```python
import torch

def _softmax(x, axis=-1):
    return torch.softmax(x, dim=axis)
def _gelu(x):
    return torch.nn.functional.gelu(x, approximate="tanh")
def _silu(x):
    return torch.nn.functional.silu(x)
def _sigmoid(x):
    return torch.sigmoid(x)
def _layernorm(x, axis=-1, eps=1e-5):
    m = x.mean(dim=axis, keepdim=True)
    v = x.var(dim=axis, keepdim=True, unbiased=False)
    return (x - m) / torch.sqrt(v + eps)
def _scatter_add(tgt, idx, src, axis=0):
    return tgt.clone().index_add_(axis, idx, src)
def _segment_sum(src, seg, n):
    out = torch.zeros((n,) + src.shape[1:], dtype=src.dtype)
    return out.index_add_(0, seg, src)
def _pad(x, pw):
    flat = tuple(v for pair in reversed(pw) for v in pair)
    return torch.nn.functional.pad(x, flat)

kernel_name = 'interleave_layers__grouped_kv_mqa__sliding_local_dilated__prompt'

def setup_inputs():

    _w = (lambda a: (lambda t: t.to(torch.bfloat16) if t.is_floating_point() else t)(torch.as_tensor(a)))
    def _A_setup():
        B, S, D, H = 1, 2048, 512, 32
        Dh = D // H
        return {
            "x": _w((lambda *s: torch.randn(*s, dtype=torch.bfloat16) * 0.05)(B, S, D)),
            "wq": _w((lambda *s: torch.randn(*s, dtype=torch.bfloat16) * 0.05)(D, H * Dh)),
            "wk": _w((lambda *s: torch.randn(*s, dtype=torch.bfloat16) * 0.05)(D, Dh)),
            "wv": _w((lambda *s: torch.randn(*s, dtype=torch.bfloat16) * 0.05)(D, Dh)),
            "wo": _w((lambda *s: torch.randn(*s, dtype=torch.bfloat16) * 0.05)(H * Dh, D)),
        }
    _A_in = _A_setup()

    def _B_setup():
        B, S, D = 1, 2048, 512
        return {
            "x": _w((lambda *s: torch.randn(*s, dtype=torch.bfloat16) * 0.05)(B, S, D)),
            "wqkv": _w((lambda *s: torch.randn(*s, dtype=torch.bfloat16) * 0.05)(D, 3 * D)),
            "wo": _w((lambda *s: torch.randn(*s, dtype=torch.bfloat16) * 0.05)(D, D)),
        }
    _B_in = _B_setup()

    return {
        "A_x": _A_in["x"],
        "A_wq": _A_in["wq"],
        "A_wk": _A_in["wk"],
        "A_wv": _A_in["wv"],
        "A_wo": _A_in["wo"],
        "B_x": _B_in["x"],
        "B_wqkv": _B_in["wqkv"],
        "B_wo": _B_in["wo"],
    }

def reference(A_x, A_wq, A_wk, A_wv, A_wo, B_x, B_wqkv, B_wo):
    def _A_ref(x, wq, wk, wv, wo):
        B, S, D = x.shape
        H = 32
        Dh = D // H
        q = (lambda x, *d: x.permute(*d))((x @ wq).reshape(B, S, H, Dh), 0, 2, 1, 3)
        k = x @ wk
        v = x @ wv
        scores = torch.einsum("bhqd,bkd->bhqk", q, k) * (Dh ** -0.5)
        p = _softmax(scores, axis=-1)
        o = torch.einsum("bhqk,bkd->bhqd", p, v)
        return (lambda x, *d: x.permute(*d))(o, 0, 2, 1, 3).reshape(B, S, H * Dh) @ wo

    def _B_ref(x, wqkv, wo):
        B, S, D = x.shape
        H = 32; Dh = D // H
        W, dil = 8, 2
        qkv = (lambda x, *d: x.permute(*d))((x @ wqkv).reshape(B, S, 3, H, Dh), 2, 0, 3, 1, 4)
        q, k, v = qkv[0], qkv[1], qkv[2]
        scale = Dh ** -0.5
        pos = torch.arange(S)
        off = torch.arange(W) * dil
        idx = pos[:, None] - off[None, :]
        mask = idx >= 0
        idx_c = torch.where(mask, idx, 0).reshape(-1)
        kg = k[:, :, idx_c, :].reshape(B, H, S, W, Dh)
        vg = v[:, :, idx_c, :].reshape(B, H, S, W, Dh)
        logits = torch.einsum("bhsd,bhswd->bhsw", q, kg) * scale
        logits = torch.where(mask[None, None, :, :], logits, -1e9)
        attn = _softmax(logits, axis=-1)
        o = torch.einsum("bhsw,bhswd->bhsd", attn, vg)
        return (lambda x, *d: x.permute(*d))(o, 0, 2, 1, 3).reshape(B, S, D) @ wo

    x = A_x
    x = x + _A_ref(_layernorm(x, axis=-1), A_wq, A_wk, A_wv, A_wo)
    x = x + _B_ref(_layernorm(x, axis=-1), B_wqkv, B_wo)
    x = x + _A_ref(_layernorm(x, axis=-1), A_wq, A_wk, A_wv, A_wo)
    x = x + _B_ref(_layernorm(x, axis=-1), B_wqkv, B_wo)
    return x
```

```python
import re

def v(i, n=1):
    return f"v{i}" if n == 1 else f"v[{i}:{i+n-1}]"
def a(i, n=1):
    return f"a{i}" if n == 1 else f"a[{i}:{i+n-1}]"
def s(i, n=1):
    return f"s{i}" if n == 1 else f"s[{i}:{i+n-1}]"

_REG = re.compile(r"^(-?)(abs\()?([vas])(?:(\d+)|\[(\d+):(\d+)\])\)?$")
def regs_of(op):
    op = op.strip()
    m = _REG.match(op)
    if m:
        k = m.group(3)
        if m.group(4) is not None:
            return {(k, int(m.group(4)))}
        return {(k, i) for i in range(int(m.group(5)), int(m.group(6)) + 1)}
    if op in ("vcc",): return {("s", "vcc_lo"), ("s", "vcc_hi")}
    if op in ("vcc_lo", "vcc_hi", "m0"): return {("s", op)}
    if op == "exec": return {("s", "exec_lo"), ("s", "exec_hi")}
    if op in ("exec_lo", "exec_hi"): return {("s", op)}
    return set()

TRANS = ("v_exp_", "v_log_", "v_rcp_", "v_rsq_", "v_sqrt_", "v_sin_", "v_cos_")
VCC = {("s", "vcc_lo"), ("s", "vcc_hi")}

class Ins:
    __slots__ = ("text", "mn", "ops", "mods", "kind", "dst", "src", "label", "target", "passes", "A", "B", "C", "isnop", "nopn")
    def __init__(self, text):
        self.text = text
        self.label = None; self.target = None
        self.dst = set(); self.src = set(); self.kind = "other"; self.passes = 0
        self.A = self.B = self.C = set(); self.isnop = False; self.nopn = 0
        t = text.split(";")[0].strip()
        if not t:
            self.kind = "empty"; self.mn = ""; self.ops = []; return
        if t.endswith(":"):
            self.kind = "label"; self.label = t[:-1]; self.mn = ""; self.ops = []; return
        if t.startswith("."):
            self.kind = "directive"; self.mn = t; self.ops = []; return
        parts = t.split(None, 1)
        mn = parts[0]; self.mn = mn
        rest = parts[1] if len(parts) > 1 else ""
        ops = [o.strip() for o in re.split(r",(?![^\[]*\])", rest)] if rest else []
        mods = ""
        if ops:
            last = ops[-1].split(None, 1)
            if last:
                ops[-1] = last[0]
                mods = last[1] if len(last) > 1 else ""
        self.ops = ops; self.mods = mods
        R = [regs_of(o) for o in ops]
        allr = lambda l: set().union(*l) if l else set()
        if mn.startswith("v_mfma") or mn.startswith("v_smfmac"):
            self.kind = "mfma"
            self.dst = R[0]; self.A = R[1]; self.B = R[2]; self.C = R[3]
            self.src = self.A | self.B | self.C
            self.passes = 8 if "32x32" in mn else 4
        elif mn.startswith("v_"):
            self.kind = "valu"
            if mn.startswith("v_cmp"):
                self.dst = R[0]; self.src = allr(R[1:])
                if mn.startswith("v_cmpx"): self.dst = self.dst | regs_of("exec")
            elif mn.startswith("v_permlane") and "swap" in mn:
                self.dst = R[0] | R[1]; self.src = R[0] | R[1]
            elif mn.startswith(("v_add_co", "v_sub_co", "v_subrev_co", "v_addc_co", "v_subb_co", "v_div_scale")):
                self.dst = R[0] | R[1]; self.src = allr(R[2:])
            elif mn.startswith(("v_fmac", "v_mac", "v_dot2c", "v_dot4c", "v_pk_fmac")):
                self.dst = R[0]; self.src = allr(R)
            elif mn.startswith("v_cndmask"):
                self.dst = R[0]; self.src = allr(R[1:])
                if len(ops) == 3: self.src |= VCC
            elif mn.startswith("v_accvgpr_write") or mn.startswith("v_accvgpr_read") or mn.startswith("v_accvgpr_mov"):
                self.dst = R[0]; self.src = allr(R[1:])
            else:
                self.dst = R[0] if R else set(); self.src = allr(R[1:])
                if "dst_unused:UNUSED_PRESERVE" in mods: self.src |= self.dst
        elif mn.startswith("ds_"):
            self.kind = "ds"
            if mn.startswith(("ds_read", "ds_bpermute", "ds_permute", "ds_swizzle")) or "_rtn" in mn:
                self.dst = R[0]; self.src = allr(R[1:])
            else:
                self.src = allr(R)
        elif mn.startswith("buffer_"):
            self.kind = "vmem"
            lds = " lds" in (" " + mods)
            if mn.startswith("buffer_load"):
                if lds:
                    self.src = allr(R) | {("s", "m0")}
                else:
                    self.dst = R[0]; self.src = allr(R[1:])
            elif mn.startswith("buffer_store"):
                self.src = allr(R)
            elif mn.startswith("buffer_atomic"):
                self.src = allr(R)
                if "sc0" in mods: self.dst = R[0]
            else:
                self.src = allr(R)
        elif mn.startswith("global_"):
            self.kind = "vmem"
            if mn.startswith("global_load_lds"):
                self.src = allr(R) | {("s", "m0")}
            elif mn.startswith("global_load"):
                self.dst = R[0]; self.src = allr(R[1:])
            elif mn.startswith("global_store"):
                self.src = allr(R)
            elif mn.startswith("global_atomic"):
                if "sc0" in mods and len(ops) == 4:
                    self.dst = R[0]; self.src = allr(R[1:])
                else:
                    self.src = allr(R)
        elif mn.startswith("s_"):
            self.kind = "salu"
            if mn == "s_nop":
                self.isnop = True; self.nopn = int(ops[0], 0) + 1
            elif mn.startswith("s_cbranch") or mn == "s_branch":
                self.kind = "branch"; self.target = ops[0]
                if "vcc" in mn: self.src = set(VCC)
                if "exec" in mn: self.src = regs_of("exec")
            elif mn in ("s_endpgm", "s_barrier", "s_waitcnt", "s_sleep", "s_setprio", "s_sethalt"):
                pass
            elif mn.startswith("s_cmp") or mn.startswith("s_bitcmp"):
                self.src = allr(R)
            elif mn.startswith(("s_load", "s_buffer_load", "s_memtime", "s_memrealtime")):
                self.kind = "smem"; self.dst = R[0]; self.src = allr(R[1:])
            elif "saveexec" in mn:
                self.dst = R[0] | regs_of("exec"); self.src = allr(R[1:]) | regs_of("exec")
            else:
                self.dst = R[0] if R else set(); self.src = allr(R[1:])
        else:
            raise ValueError("unknown instr: " + text)
    def states(self):
        if self.kind in ("empty", "label", "directive"): return 0
        if self.isnop: return self.nopn
        return 1

def isv(r): return r[0] in ("v", "a")
def vset(S): return {r for r in S if isv(r)}
def sset(S): return {r for r in S if r[0] == "s"}

def need(prod, cons):
    n = 0
    pk, ck = prod.kind, cons.kind
    if pk == "valu":
        pv = vset(prod.dst); ps = sset(prod.dst)
        if ck == "mfma" and pv & cons.src: n = max(n, 2)
        if ck == "valu":
            if prod.mn.startswith(TRANS) and not cons.mn.startswith(TRANS) and pv & cons.src: n = max(n, 1)
            if prod.mn.startswith(TRANS) and cons.mn.startswith(TRANS) and pv & cons.src: n = max(n, 1)
            if cons.mn.startswith("v_permlane") and pv & cons.src: n = max(n, 2)
            if ("dpp" in cons.mn or "row_" in cons.mods or "quad_perm" in cons.mods) and pv & cons.src: n = max(n, 2)
            if cons.mn.startswith(("v_readlane", "v_readfirstlane")) and pv & cons.src: n = max(n, 1)
            if ("sdwa" in prod.mn or ("op_sel" in prod.mods and not prod.mn.startswith("v_pk_"))) and pv & (cons.src | cons.dst): n = max(n, 1)
            if ps & cons.src:
                n = max(n, 4 if cons.mn.startswith(("v_readlane", "v_writelane")) else 2)
            if regs_of("exec") & ps:
                n = max(n, 4 if cons.mn.startswith(("v_readlane", "v_readfirstlane", "v_writelane", "v_permlane")) else 0)
        if prod.mn.startswith("v_dot"):
            if cons.mn == prod.mn:
                ab = set()
                for o in cons.ops[1:3]: ab |= regs_of(o)
                if pv & ab: n = max(n, 3)
            elif pv & (cons.src | cons.dst): n = max(n, 3)
        if ck == "mfma" and regs_of("exec") & ps: n = max(n, 4)
        if ck == "vmem" and ps & cons.src: n = max(n, 5)
        if ck == "branch" and ps & cons.src: n = max(n, 5)
        if ck == "salu" and ps & cons.src: n = max(n, 2)
    if pk == "mfma":
        P = prod.passes
        big = {8: 12, 4: 8}[P]; ovl = {8: 10, 4: 6}[P]; war = {8: 7, 4: 3}[P]
        D = prod.dst
        if ck == "mfma":
            if D & (cons.A | cons.B): n = max(n, big)
            if D & cons.C:
                if not (D == cons.C and cons.passes == P): n = max(n, ovl)
            if D & cons.dst and not (D == cons.C and cons.passes == P): n = max(n, ovl)
        elif ck in ("valu", "vmem", "ds"):
            if D & (cons.src | cons.dst): n = max(n, big)
            if ck == "valu" and prod.C & vset(cons.dst): n = max(n, war)
    if pk == "vmem" and prod.mn.endswith(("x3", "x4")) and "store" in prod.mn:
        data = regs_of(prod.ops[0]) if prod.mn.startswith("buffer") else regs_of(prod.ops[1])
        if data & cons.dst:
            n = max(n, 2 if ck == "valu" else 1)
    if pk == "ds" and prod.mn in ("ds_write_b128", "ds_write_b96"):
        data = regs_of(prod.ops[1])
        if data & cons.dst: n = max(n, 2 if ck == "valu" else 1)
    if pk == "salu" and ("s", "m0") in prod.dst:
        if ("s", "m0") in cons.src and ck in ("vmem", "ds"): n = max(n, 1)
    return n

MAXW = 20
def fix_hazards(lines, verbose=False):
    ins = [Ins(l) for l in lines]
    N = len(ins)
    labels = {x.label: i for i, x in enumerate(ins) if x.kind == "label"}
    preds = [[] for _ in range(N)]
    for i, x in enumerate(ins):
        fall = not (x.mn in ("s_branch", "s_endpgm"))
        if fall and i + 1 < N: preds[i + 1].append(i)
        if x.kind == "branch":
            if x.target not in labels: raise ValueError("unknown label " + x.target)
            preds[labels[x.target]].append(i)
    extra = [0] * N
    total = 0
    for rnd in range(4):
        changed = False
        for i, c in enumerate(ins):
            if c.kind in ("empty", "label", "directive") or c.isnop: continue
            if not c.src and not c.dst: continue
            worst = 0; why = None
            stack = [(p, extra[i]) for p in preds[i]]
            seen = {}
            while stack:
                p, d = stack.pop()
                if d >= MAXW: continue
                if seen.get(p, 99) <= d: continue
                seen[p] = d
                x = ins[p]
                if x.kind in ("mfma", "valu", "vmem", "ds", "salu"):
                    r = need(x, c)
                    if r - d > worst: worst = r - d; why = (x.text, c.text, r, d)
                nd = d + x.states() + extra[p]
                for q in preds[p]: stack.append((q, nd))
            if worst > 0:
                extra[i] += worst; total += worst; changed = True
                if verbose: print("hazard: +%d nop before [%s] after [%s] need %d have %d" % (worst, why[1].strip(), why[0].strip(), why[2], why[3]))
        if not changed: break
    out = []
    for i, l in enumerate(lines):
        w = extra[i]
        while w > 0:
            k = min(w, 16); out.append(f"  s_nop {k-1}"); w -= k
        out.append(l)
    return out, total

class Emitter:
    def __init__(self):
        self.lines = []
        self.vm = []
        self.lg = []
        self.ntok = 0
        self.uid = 0
    def __call__(self, text):
        for l in text.split("\n"):
            l = l.strip()
            if not l: continue
            self.lines.append(l if l.endswith(":") or l.startswith(".") else "  " + l)
    def label(self, name): self.lines.append(name + ":")
    def newlabel(self, base="L"):
        self.uid += 1; return f"{base}_{self.uid}"
    def comment(self, t): self.lines.append("  ; " + t)
    def vmem(self, text):
        self(text); self.ntok += 1; self.vm.append(self.ntok); return self.ntok
    def wait_vm(self, tok=None):
        if tok is None:
            self("s_waitcnt vmcnt(0)"); self.vm = []; return
        if tok not in self.vm: return
        idx = self.vm.index(tok); n = len(self.vm) - idx - 1
        if n <= 63 - 1:
            self(f"s_waitcnt vmcnt({n})")
        self.vm = self.vm[idx + 1:]
    def lds(self, text):
        self(text); self.ntok += 1; self.lg.append(self.ntok); return self.ntok
    def wait_lg(self, tok=None):
        if tok is None:
            self("s_waitcnt lgkmcnt(0)"); self.lg = []; return
        if tok not in self.lg: return
        idx = self.lg.index(tok); n = len(self.lg) - idx - 1
        if n > 15: n = 15
        self(f"s_waitcnt lgkmcnt({n})")
        self.lg = self.lg[len(self.lg) - n:] if n > 0 else []
    def reset_counters(self):
        self.vm = []; self.lg = []
```

```python
import sys
from asmlib import *

NAME = 'interleave_layers__grouped_kv_mqa__sliding_local_dilated__prompt'
KN = NAME + '_kernel'

FL_C   = 0x10000
FL_G0  = 0x18000
FL_GK  = 0x1A000
DBG    = 0x40000
WF     = 0x100000
CS     = 0x480000
X0     = 0x500000
OA     = 0xD00000
OB     = 0x1100000
HX     = 0x1500000
ST0    = 0x1700000
KF     = 0x1800000
WS_BYTES = 0x10000000
WB_Q, WB_KV, WB_OA, WB_BQ, WB_BK, WB_BV, WB_OB = 0, 16, 17, 33, 49, 65, 81

LOG2E = 1.4426950408889634
QSCALE = 0.25 * LOG2E
import struct
def fbits(x): return "0x%08x" % struct.unpack("<I", struct.pack("<f", x))[0]

sG = 2
SRD_WS = 4
SRD_T  = 8
SRD_OUT = 12
sC, sJ, sW, sP, sKH, sTAG, sHALF, sHC = 16, 17, 18, 19, 20, 21, 22, 23
sRBOFF = 24
sSTOFF = 25
sRB    = 26
sNB    = 27
sXIN, sXMID, sXOUT = 28, 29, 30
sSTIN, sSTMID, sSTOUT = 31, 32, 33
sOA, sOB, sHX, sKF = 34, 35, 36, 37
sFLC = 38
sT0, sT1, sT2, sT3, sT4, sT5, sT6, sT7 = 40, 41, 42, 43, 44, 45, 46, 47
sM0, sM1 = 48, 50
sPOLL = 52
sTS = 54
sIN = 64
sOUTP = 80
sLOOP = 56
sA0, sA1, sA2, sA3 = 57, 58, 59, 60

vTID, vL, vL16, vL4 = 0, 1, 2, 3
XR = 4
vSTAT = 12
vHALO = 13
vT0, vT1 = 14, 15

class Gen:
    def __init__(self, stop_after=None, stamps=False, safe=True):
        self.e = Emitter()
        self.stop_after = stop_after
        self.stamps = stamps
        self.st = "sc1"
        self.ld = "sc1"
        self.nstamp = 0

    def stamp(self, name):
        if not self.stamps: return
        e = self.e
        idx = self.nstamp; self.nstamp += 1
        L = e.newlabel("STAMP")
        e(f"s_cmp_lg_u32 s{sW}, 0\ns_cbranch_scc1 {L}")
        e(f"s_memrealtime s[{sTS}:{sTS+1}]\ns_waitcnt lgkmcnt(0)")
        e(f"s_lshl_b32 s{sT7}, s{sG}, 8\ns_add_u32 s{sT7}, s{sT7}, {DBG}\ns_mul_i32 s{sT6}, s{sHALF}, 128\ns_add_u32 s{sT7}, s{sT7}, s{sT6}")
        e(f"v_mov_b32 v{vT0}, s{sTS}\nv_mov_b32 v{vT1}, 0")
        e(f"s_mov_b64 exec, 1\nbuffer_store_dword v{vT0}, v{vT1}, s[{SRD_WS}:{SRD_WS+3}], s{sT7} offen offset:{(idx % 32) * 4}\ns_mov_b64 exec, -1")
        e.label(L)
        self.stampnames = getattr(self, "stampnames", []) + [name]

    def ws_load(self, dst, soff, imm=0, voff=vL16, n=4, flag=None, acc=False):
        flag = self.ld if flag is None else flag
        mn = {1: "buffer_load_dword", 2: "buffer_load_dwordx2", 4: "buffer_load_dwordx4"}[n]
        d = a(dst, n) if acc else v(dst, n)
        return self.e.vmem(f"{mn} {d}, v{voff}, s[{SRD_WS}:{SRD_WS+3}], {soff} offen offset:{imm} {flag}")
    def ws_store(self, src, soff, imm=0, voff=vL16, n=4, flag=None):
        flag = self.st if flag is None else flag
        mn = {1: "buffer_store_dword", 2: "buffer_store_dwordx2", 4: "buffer_store_dwordx4"}[n]
        return self.e.vmem(f"{mn} {v(src, n)}, v{voff}, s[{SRD_WS}:{SRD_WS+3}], {soff} offen offset:{imm} {flag}")

    def load_frags(self, dst, sbase, nfr, acc=False, flag=None, stmp=sT7):
        e = self.e; toks = []
        for t in range(nfr):
            if t % 4 == 0:
                if t == 0: so = f"s{sbase}"
                else:
                    e(f"s_add_u32 s{stmp}, s{sbase}, {t*1024}"); so = f"s{stmp}"
            toks.append(self.ws_load(dst + 4 * t, so, (t % 4) * 1024, acc=acc, flag=flag))
        return toks

    def poll(self, kind, setup):
        e = self.e
        Lp = e.newlabel("POLL"); Lok = e.newlabel("POLLOK")
        e(f"s_mov_b32 s{sPOLL}, 0")
        e.label(Lp)
        setup()
        e(f"s_cbranch_vccz {Lok}")
        e(f"s_add_u32 s{sPOLL}, s{sPOLL}, 1\ns_cmp_lt_u32 s{sPOLL}, 400000\ns_cbranch_scc1 {Lp}")
        e("s_branch L_END")
        e.label(Lok)

    def sync_cluster(self, sid, with_halo=False):
        e = self.e
        e.wait_vm(); e("s_barrier")
        L = e.newlabel("SYNC")
        e(f"s_cmp_lg_u32 s{sW}, 0\ns_cbranch_scc1 {L}")
        e(f"s_lshl_b32 s{sT0}, s{sC}, 7\ns_add_u32 s{sT0}, s{sT0}, s{sFLC}\ns_add_u32 s{sT0}, s{sT0}, {sid*4096}")
        e(f"s_lshl_b32 s{sT1}, s{sJ}, 2\nv_mov_b32 v16, s{sT1}\nv_mov_b32 v17, s{sTAG}")
        e(f"s_mov_b64 exec, 1\nbuffer_store_dword v17, v16, s[{SRD_WS}:{SRD_WS+3}], s{sT0} offen sc1\ns_mov_b64 exec, -1")
        e(f"v_and_b32 v16, 7, v{vL}\nv_lshlrev_b32 v16, 2, v16")
        if with_halo:
            e(f"s_sub_u32 s{sT1}, s{sHC}, s{sC}\ns_lshl_b32 s{sT1}, s{sT1}, 7")
            e(f"v_and_b32 v18, 8, v{vL}\nv_cmp_ne_u32 vcc, 0, v18\nv_mov_b32 v19, s{sT1}\nv_cndmask_b32 v18, 0, v19, vcc\nv_add_u32 v16, v16, v18")
            e(f"v_add_u32 v16, s{sT0}, v16")
            so = "0"
        else:
            so = f"s{sT0}"
        def setup():
            e(f"buffer_load_dword v17, v16, s[{SRD_WS}:{SRD_WS+3}], {so} offen sc1\ns_waitcnt vmcnt(0)")
            e(f"v_cmp_ne_u32 vcc, s{sTAG}, v17")
        self.poll("c", setup)
        e.label(L)
        e("s_barrier")
        e.reset_counters()

    def prologue(self):
        e = self.e
        e(f"s_cmp_ge_u32 s{sG}, 256\ns_cbranch_scc1 L_END")
        e(f"s_load_dwordx16 s[{sIN}:{sIN+15}], s[0:1], 0")
        e(f"s_load_dwordx4 s[{sOUTP}:{sOUTP+3}], s[0:1], 64")
        e(f"s_load_dwordx2 s[{sOUTP+4}:{sOUTP+5}], s[0:1], 80")
        e(f"v_and_b32 v{vL}, 63, v{vTID}\nv_lshrrev_b32 v{vT0}, 6, v{vTID}")
        e(f"v_lshlrev_b32 v{vL16}, 4, v{vL}\nv_lshlrev_b32 v{vL4}, 2, v{vL}")
        e(f"v_readfirstlane_b32 s{sW}, v{vT0}")
        e(f"s_and_b32 s{sT0}, s{sG}, 7\ns_lshr_b32 s{sT1}, s{sG}, 3\ns_lshr_b32 s{sT2}, s{sT1}, 3")
        e(f"s_lshl_b32 s{sC}, s{sT0}, 2\ns_add_u32 s{sC}, s{sC}, s{sT2}\ns_and_b32 s{sJ}, s{sT1}, 7")
        e(f"s_and_b32 s{sP}, s{sW}, 1\ns_lshr_b32 s{sKH}, s{sW}, 1")
        e(f"s_max_u32 s{sHC}, s{sC}, 1\ns_sub_u32 s{sHC}, s{sHC}, 1")
        e(f"s_lshl_b32 s{sRB}, s{sC}, 1\ns_add_u32 s{sRB}, s{sRB}, s{sP}")
        e(f"s_lshl_b32 s{sNB}, s{sJ}, 1\ns_add_u32 s{sNB}, s{sNB}, s{sKH}")
        e(f"s_lshl_b32 s{sRBOFF}, s{sRB}, 15\ns_lshl_b32 s{sT0}, s{sNB}, 11\ns_add_u32 s{sRBOFF}, s{sRBOFF}, s{sT0}")
        e(f"s_lshl_b32 s{sSTOFF}, s{sRB}, 12\ns_lshl_b32 s{sT0}, s{sNB}, 8\ns_add_u32 s{sSTOFF}, s{sSTOFF}, s{sT0}")
        e(f"v_and_b32 v{vT0}, 31, v{vL}\nv_lshrrev_b32 v{vT1}, 5, v{vL}\nv_lshlrev_b32 v{vSTAT}, 3, v{vT0}\nv_lshl_add_u32 v{vSTAT}, v{vT1}, 2, v{vSTAT}")
        e(f"s_lshl_b32 s{sT0}, s{sP}, 4\ns_sub_u32 s{sT0}, s{sT0}, 16\nv_add_u32 v{vHALO}, s{sT0}, v{vL}\nv_lshlrev_b32 v{vHALO}, 4, v{vHALO}")
        e("s_waitcnt lgkmcnt(0)")
        e(f"s_mov_b32 s{SRD_WS}, s{sOUTP+4}\ns_mov_b32 s{SRD_WS+1}, s{sOUTP+5}\ns_mov_b32 s{SRD_WS+2}, {WS_BYTES}\ns_mov_b32 s{SRD_WS+3}, 0x20000")
        e(f"s_mov_b32 s{SRD_OUT}, s{sOUTP}\ns_mov_b32 s{SRD_OUT+1}, s{sOUTP+1}\ns_mov_b32 s{SRD_OUT+2}, {2048*512*2}\ns_mov_b32 s{SRD_OUT+3}, 0x20000")
        e(f"s_mov_b32 s{sHALF}, 0")
        e(f"v_mov_b32 v{vT1}, 0")
        e(f"buffer_load_dword v{vT0}, v{vT1}, s[{SRD_WS}:{SRD_WS+3}], 0 offen sc0 sc1\ns_waitcnt vmcnt(0)")
        e(f"v_readfirstlane_b32 s{sTAG}, v{vT0}")
        e(f"s_mul_i32 s{sTAG}, s{sTAG}, 0x9E3779B1\ns_add_u32 s{sTAG}, s{sTAG}, 0x7F4A7C15")

    def publish_x(self, sX, sST, sHXr=None):
        e = self.e
        e(f"s_add_u32 s{sT0}, s{sX}, s{sRBOFF}")
        for c in range(2):
            self.ws_store(XR + 4 * c, f"s{sT0}", c * 1024)
        if sHXr is not None:
            e(f"s_lshl_b32 s{sT1}, s{sC}, 15\ns_add_u32 s{sT1}, s{sT1}, s{sHXr}\ns_lshl_b32 s{sT2}, s{sNB}, 11\ns_add_u32 s{sT1}, s{sT1}, s{sT2}")
            e("s_mov_b32 exec_lo, 0xffff0000\ns_mov_b32 exec_hi, 0xffff0000")
            for c in range(2):
                self.ws_store(XR + 4 * c, f"s{sT1}", c * 1024, voff=vHALO)
            e("s_mov_b64 exec, -1")
        e(f"v_mov_b32 v16, 0x3f803f80")
        e(f"v_dot2_f32_bf16 v17, v{XR}, v16, 0\nv_dot2_f32_bf16 v18, v{XR}, v{XR}, 0")
        for i in range(1, 8):
            e(f"v_dot2_f32_bf16 v17, v{XR+i}, v16, v17\nv_dot2_f32_bf16 v18, v{XR+i}, v{XR+i}, v18")
        e("v_permlane32_swap_b32 v17, v18\nv_add_f32 v17, v17, v18")
        e(f"s_add_u32 s{sT0}, s{sST}, s{sSTOFF}")
        self.ws_store(17, f"s{sT0}", 0, voff=vSTAT, n=1)

    def load_stats_issue(self, dst, sST, srb):
        e = self.e
        e(f"v_and_b32 v{dst+16}, 31, v{vL}\nv_lshlrev_b32 v{dst+16}, 3, v{dst+16}\nv_lshrrev_b32 v{dst+17}, 5, v{vL}\nv_lshl_add_u32 v{dst+16}, v{dst+17}, 11, v{dst+16}")
        e(f"s_lshl_b32 s{sT0}, s{srb}, 12\ns_add_u32 s{sT0}, s{sT0}, s{sST}")
        tok = None
        for t in range(8):
            tok = self.ws_load(dst + 2 * t, f"s{sT0}", t * 256, voff=dst + 16, n=2)
        return tok
    def stats_finish(self, src, vmean, vrstd):
        e = self.e
        for t in range(1, 8):
            e(f"v_add_f32 v{src}, v{src}, v{src+2*t}\nv_add_f32 v{src+1}, v{src+1}, v{src+2*t+1}")
        e(f"v_permlane32_swap_b32 v{src}, v{src+1}\nv_add_f32 v{src}, v{src}, v{src+1}\nv_mov_b32 v{src+1}, v{src}")
        e(f"v_permlane32_swap_b32 v{src}, v{src+1}")
        e(f"v_mul_f32 v{vmean}, {fbits(1/512)}, v{src}")
        e(f"v_mul_f32 v{src+1}, {fbits(1/512)}, v{src+1}")
        e(f"v_fma_f32 v{src+1}, -v{vmean}, v{vmean}, v{src+1}")
        e(f"v_add_f32 v{src+1}, {fbits(1e-5)}, v{src+1}")
        e(f"v_rsq_f32 v{vrstd}, v{src+1}")

    def p0(self):
        e = self.e
        e(f"s_mov_b32 s{SRD_T}, s{sIN}\ns_mov_b32 s{SRD_T+1}, s{sIN+1}\ns_mov_b32 s{SRD_T+2}, {2048*1024}\ns_mov_b32 s{SRD_T+3}, 0x20000")
        e(f"v_and_b32 v16, 31, v{vL}\nv_lshlrev_b32 v16, 11, v16\nv_lshrrev_b32 v17, 5, v{vL}\nv_lshl_add_u32 v16, v17, 3, v16")
        e(f"s_lshl_b32 s{sT0}, s{sC}, 6\ns_add_u32 s{sT0}, s{sT0}, s{sP}\ns_lshl_b32 s{sT0}, s{sT0}, 10\ns_lshl_b32 s{sT1}, s{sNB}, 6\ns_add_u32 s{sT0}, s{sT0}, s{sT1}")
        for q in range(4):
            e.vmem(f"buffer_load_dwordx2 v[{XR+2*q}:{XR+2*q+1}], v16, s[{SRD_T}:{SRD_T+3}], s{sT0} offen offset:{16*q}")
        e.wait_vm()
        e(f"s_mov_b32 s{sA0}, {X0}\ns_mov_b32 s{sA1}, {ST0}")
        self.publish_x(sA0, sA1)
        Lskip = e.newlabel("P0SKIP"); Lkv = e.newlabel("P0KV"); Lgo = e.newlabel("P0GO"); Lld = e.newlabel("P0LD")
        e(f"s_cmp_ge_u32 s{sG}, 97\ns_cbranch_scc1 {Lskip}")
        pw = lambda i: (sIN + 2 * i, sIN + 2 * i + 1)
        e(f"s_cmp_eq_u32 s{sG}, 16\ns_cbranch_scc1 {Lkv}")
        e(f"s_mov_b32 s{SRD_T}, s{pw(1)[0]}\ns_mov_b32 s{SRD_T+1}, s{pw(1)[1]}\ns_mov_b32 s{SRD_T+2}, {512*1024}\ns_mov_b32 s{sA2}, 1024\ns_lshl_b32 s{sA3}, s{sG}, 6")
        e(f"s_cmp_lt_u32 s{sG}, 16\ns_cbranch_scc1 {Lgo}")
        e(f"s_mov_b32 s{SRD_T}, s{pw(4)[0]}\ns_mov_b32 s{SRD_T+1}, s{pw(4)[1]}\ns_sub_u32 s{sA3}, s{sG}, 17\ns_lshl_b32 s{sA3}, s{sA3}, 6")
        e(f"s_cmp_lt_u32 s{sG}, 33\ns_cbranch_scc1 {Lgo}")
        e(f"s_mov_b32 s{SRD_T}, s{pw(6)[0]}\ns_mov_b32 s{SRD_T+1}, s{pw(6)[1]}\ns_mov_b32 s{SRD_T+2}, {512*3072}\ns_mov_b32 s{sA2}, 3072\ns_sub_u32 s{sA3}, s{sG}, 33\ns_lshl_b32 s{sA3}, s{sA3}, 6")
        e(f"s_cmp_lt_u32 s{sG}, 81\ns_cbranch_scc1 {Lgo}")
        e(f"s_mov_b32 s{SRD_T}, s{pw(7)[0]}\ns_mov_b32 s{SRD_T+1}, s{pw(7)[1]}\ns_mov_b32 s{SRD_T+2}, {512*1024}\ns_mov_b32 s{sA2}, 1024\ns_sub_u32 s{sA3}, s{sG}, 81\ns_lshl_b32 s{sA3}, s{sA3}, 6")
        e.label(Lgo)
        e(f"s_mov_b32 s{SRD_T+3}, 0x20000")
        e(f"v_lshrrev_b32 v16, 2, v{vL}\nv_mul_lo_u32 v16, v16, s{sA2}\nv_and_b32 v17, 3, v{vL}\nv_lshl_add_u32 v16, v17, 4, v16")
        e(f"s_lshl_b32 s{sT0}, s{sW}, 7\ns_mul_i32 s{sT0}, s{sT0}, s{sA2}\ns_add_u32 s{sT0}, s{sT0}, s{sA3}\ns_lshl_b32 s{sT1}, s{sA2}, 4")
        for it in range(8):
            e(f"buffer_load_dwordx4 v[{32+4*it}:{35+4*it}], v16, s[{SRD_T}:{SRD_T+3}], s{sT0} offen")
            if it < 7: e(f"s_add_u32 s{sT0}, s{sT0}, s{sT1}")
        e(f"s_branch {Lld}")
        e.label(Lkv)
        e(f"v_lshrrev_b32 v16, 2, v{vL}\nv_lshlrev_b32 v16, 5, v16\nv_and_b32 v17, 1, v{vL}\nv_lshl_add_u32 v16, v17, 4, v16")
        e(f"s_lshl_b32 s{sT0}, s{sW}, 12")
        e(f"v_and_b32 v17, 2, v{vL}\nv_cmp_eq_u32 vcc, 0, v17")
        e(f"s_mov_b32 s{SRD_T}, s{pw(3)[0]}\ns_mov_b32 s{SRD_T+1}, s{pw(3)[1]}\ns_mov_b32 s{SRD_T+2}, {512*32}\ns_mov_b32 s{SRD_T+3}, 0x20000")
        e(f"s_mov_b64 s[{sM0}:{sM0+1}], vcc")
        e(f"s_mov_b64 exec, s[{sM0}:{sM0+1}]")
        for it in range(8):
            e(f"buffer_load_dwordx4 v[{32+4*it}:{35+4*it}], v16, s[{SRD_T}:{SRD_T+3}], s{sT0} offen offset:{it*512}")
        e(f"s_mov_b64 exec, -1\ns_andn2_b64 exec, exec, s[{sM0}:{sM0+1}]")
        e(f"s_mov_b32 s{SRD_T}, s{pw(2)[0]}\ns_mov_b32 s{SRD_T+1}, s{pw(2)[1]}\ns_mov_b32 s{SRD_T+2}, {512*32}\ns_mov_b32 s{SRD_T+3}, 0x20000")
        for it in range(8):
            e(f"buffer_load_dwordx4 v[{32+4*it}:{35+4*it}], v16, s[{SRD_T}:{SRD_T+3}], s{sT0} offen offset:{it*512}")
        e("s_mov_b64 exec, -1")
        e.label(Lld)
        e("s_waitcnt vmcnt(0)")
        e(f"s_lshl_b32 s{sT0}, s{sW}, 13\nv_add_u32 v17, s{sT0}, v{vL16}")
        for it in range(8):
            e(f"ds_write_b128 v17, v[{32+4*it}:{35+4*it}] offset:{it*1024}")
        e(f"v_and_b32 v18, 15, v{vL}\nv_lshrrev_b32 v19, 2, v18\nv_lshrrev_b32 v20, 5, v{vL}\nv_lshl_add_u32 v19, v20, 2, v19\nv_lshlrev_b32 v19, 6, v19")
        e(f"v_and_b32 v20, 3, v18\nv_lshl_add_u32 v19, v20, 3, v19\nv_bfe_u32 v20, v{vL}, 4, 1\nv_lshl_add_u32 v19, v20, 5, v19\nv_add_u32 v19, s{sT0}, v19")
        e("s_waitcnt lgkmcnt(0)")
        for t in range(8):
            e(f"ds_read_b64_tr_b16 v[{64+4*t}:{65+4*t}], v19 offset:{t*1024}")
            e(f"ds_read_b64_tr_b16 v[{66+4*t}:{67+4*t}], v19 offset:{t*1024+512}")
        e("s_waitcnt lgkmcnt(0)")
        e(f"s_lshl_b32 s{sT0}, s{sG}, 15\ns_lshl_b32 s{sT1}, s{sW}, 13\ns_add_u32 s{sT0}, s{sT0}, s{sT1}\ns_add_u32 s{sT0}, s{sT0}, {WF}\ns_add_u32 s{sT1}, s{sT0}, 4096")
        for t in range(8):
            self.ws_store(64 + 4 * t, f"s{sT0 if t < 4 else sT1}", (t % 4) * 1024)
        e("v_mov_b32 v16, 0x3f803f80\nv_mov_b32 v17, 0")
        for i in range(32):
            e(f"v_dot2_f32_bf16 v17, v{64+i}, v16, v17")
        e("v_mov_b32 v18, v17\nv_permlane32_swap_b32 v17, v18\nv_add_f32 v17, v17, v18")
        e(f"s_lshl_b32 s{sT0}, s{sW}, 8\nv_add_u32 v18, s{sT0}, v{vL4}\nds_write_b32 v18, v17 offset:32768\ns_waitcnt lgkmcnt(0)\ns_barrier")
        e(f"ds_read_b32 v20, v{vL4} offset:32768\nds_read_b32 v21, v{vL4} offset:{32768+256}\nds_read_b32 v22, v{vL4} offset:{32768+512}\nds_read_b32 v23, v{vL4} offset:{32768+768}\ns_waitcnt lgkmcnt(0)")
        e("v_add_f32 v20, v20, v21\nv_add_f32 v22, v22, v23\nv_add_f32 v20, v20, v22")
        Lcs = e.newlabel("P0CS")
        e(f"s_cmp_lg_u32 s{sW}, 0\ns_cbranch_scc1 {Lcs}")
        e(f"s_lshl_b32 s{sT0}, s{sG}, 7\ns_add_u32 s{sT0}, s{sT0}, {CS}\ns_mov_b32 exec_hi, 0")
        self.ws_store(20, f"s{sT0}", 0, voff=vL4, n=1)
        e("s_mov_b64 exec, -1")
        e.label(Lcs)
        e.label(Lskip)
        e.wait_vm(); e("s_barrier")
        L = e.newlabel("G0")
        e(f"s_cmp_lg_u32 s{sW}, 0\ns_cbranch_scc1 {L}")
        e(f"v_lshlrev_b32 v16, 10, v{vL}\ns_lshl_b32 s{sT0}, s{sG}, 2\ns_add_u32 s{sT0}, s{sT0}, {FL_G0}\nv_mov_b32 v17, s{sTAG}")
        e(f"s_mov_b64 exec, 0xff\nbuffer_store_dword v17, v16, s[{SRD_WS}:{SRD_WS+3}], s{sT0} offen sc1\ns_mov_b64 exec, -1")
        e(f"s_and_b32 s{sT0}, s{sG}, 7\ns_lshl_b32 s{sT0}, s{sT0}, 10\ns_add_u32 s{sT0}, s{sT0}, {FL_G0}")
        def setup():
            e(f"buffer_load_dwordx4 v[16:19], v{vL16}, s[{SRD_WS}:{SRD_WS+3}], s{sT0} offen sc1\ns_waitcnt vmcnt(0)")
            e(f"v_xor_b32 v16, s{sTAG}, v16\nv_xor_b32 v17, s{sTAG}, v17\nv_xor_b32 v18, s{sTAG}, v18\nv_xor_b32 v19, s{sTAG}, v19")
            e("v_or_b32 v16, v16, v17\nv_or_b32 v18, v18, v19\nv_or_b32 v16, v16, v18\nv_cmp_ne_u32 vcc, 0, v16")
        self.poll("g", setup)
        e.label(L)
        e("s_barrier")
        e.reset_counters()

    def half_setup(self):
        e = self.e
        e(f"s_lshl_b32 s{sT0}, s{sHALF}, 22")
        e(f"s_add_u32 s{sXIN}, s{sT0}, {X0}\ns_add_u32 s{sXMID}, s{sXIN}, 0x200000\ns_add_u32 s{sXOUT}, s{sXIN}, 0x400000")
        e(f"s_lshl_b32 s{sT0}, s{sHALF}, 19")
        e(f"s_add_u32 s{sSTIN}, s{sT0}, {ST0}\ns_add_u32 s{sSTMID}, s{sSTIN}, 0x40000\ns_add_u32 s{sSTOUT}, s{sSTIN}, 0x80000")
        e(f"s_lshl_b32 s{sT0}, s{sHALF}, 21")
        e(f"s_add_u32 s{sOA}, s{sT0}, {OA}\ns_add_u32 s{sOB}, s{sT0}, {OB}")
        e(f"s_lshl_b32 s{sT0}, s{sHALF}, 20\ns_add_u32 s{sHX}, s{sT0}, {HX}")
        e(f"s_lshl_b32 s{sT0}, s{sHALF}, 17\ns_add_u32 s{sKF}, s{sT0}, {KF}")
        e(f"s_lshl_b32 s{sT0}, s{sHALF}, 14\ns_add_u32 s{sFLC}, s{sT0}, {FL_C}")

    def load_w_pair(self, wb):
        e = self.e
        e(f"s_add_u32 s{sT0}, s{sNB}, {wb}\ns_lshl_b32 s{sT0}, s{sT0}, 15\ns_lshl_b32 s{sT2}, s{sKH}, 14\ns_add_u32 s{sT0}, s{sT0}, s{sT2}\ns_add_u32 s{sT0}, s{sT0}, {WF}")
        self.load_frags(0, sT0, 16, acc=True)
        e(f"s_xor_b32 s{sT1}, s{sNB}, 1\ns_add_u32 s{sT1}, s{sT1}, {wb}\ns_lshl_b32 s{sT1}, s{sT1}, 15\ns_add_u32 s{sT1}, s{sT1}, s{sT2}\ns_add_u32 s{sT1}, s{sT1}, {WF}")
        return self.load_frags(64, sT1, 16, acc=True)

    def load_act_half(self, sbuf):
        e = self.e
        e(f"s_lshl_b32 s{sT0}, s{sRB}, 15\ns_lshl_b32 s{sT1}, s{sKH}, 14\ns_add_u32 s{sT0}, s{sT0}, s{sT1}\ns_add_u32 s{sT0}, s{sT0}, s{sbuf}")
        return self.load_frags(16, sT0, 16)

    def reduce_pair(self, extra_write=None, extra_read=None):
        e = self.e
        e(f"s_lshl_b32 s{sT0}, s{sW}, 12\nv_add_u32 v{vT0}, s{sT0}, v{vL16}")
        for q in range(4):
            e(f"ds_write_b128 v{vT0}, v[{96+4*q}:{99+4*q}] offset:{q*1024}")
        if extra_write: extra_write()
        e("s_waitcnt lgkmcnt(0)\ns_barrier")
        e(f"s_xor_b32 s{sT0}, s{sW}, 2\ns_lshl_b32 s{sT0}, s{sT0}, 12\nv_add_u32 v{vT0}, s{sT0}, v{vL16}")
        for q in range(4):
            e(f"ds_read_b128 v[{96+4*q}:{99+4*q}], v{vT0} offset:{q*1024}")
        if extra_read: extra_read()
        e("s_waitcnt lgkmcnt(0)")
        for r in range(16):
            e(f"v_add_f32 v{80+r}, v{80+r}, v{96+r}")

    def load_cs(self, dst, sidx_expr_reg, vaddr):
        for q in range(4):
            self.ws_load(dst + 4 * q, f"s{sidx_expr_reg}", 32 * q, voff=vaddr)

    QL = 24576; RING = 32768; SLOT = 2304; FAIL = 52000
    def g4(self):
        e = self.e
        Lnokv1 = e.newlabel("G4N1"); Lnokv2 = e.newlabel("G4N2"); Lnokv3 = e.newlabel("G4N3"); Lkvmm = e.newlabel("G4KV"); Lmmdone = e.newlabel("G4MD")
        e(f"s_cmp_eq_u32 s{sP}, s{sJ}\ns_cselect_b32 s{sA0}, 1, 0")
        self.load_w_pair(WB_Q)
        e(f"s_cmp_eq_u32 s{sA0}, 0\ns_cbranch_scc1 {Lnokv1}")
        e(f"s_lshl_b32 s{sT2}, s{sKH}, 14\ns_add_u32 s{sT0}, s{sT2}, {WF + WB_KV*32768}")
        for t in range(16):
            if t % 4 == 0 and t: e(f"s_add_u32 s{sT0}, s{sT0}, 4096")
            e(f"buffer_load_dwordx4 a[{128+4*t}:{131+4*t}], v{vL16}, s[{SRD_WS}:{SRD_WS+3}], s{sT0} offen offset:{(t%4)*1024} sc1")
        e.label(Lnokv1)
        e(f"v_lshrrev_b32 v180, 5, v{vL}\nv_lshlrev_b32 v180, 4, v180")
        e(f"s_add_u32 s{sT0}, s{sNB}, {WB_Q}\ns_lshl_b32 s{sT0}, s{sT0}, 7\ns_add_u32 s{sT0}, s{sT0}, {CS}")
        self.load_cs(148, sT0, 180)
        e(f"s_mov_b32 s{sT0}, {CS + WB_KV*128}")
        self.load_cs(164, sT0, 180)
        self.load_stats_issue(128, sSTIN, sRB)
        e("s_waitcnt vmcnt(0)")
        e.reset_counters()
        toks = self.load_act_half(sXIN)
        self.stats_finish(128, 146, 147)
        e(f"s_cmp_eq_u32 s{sA0}, 0\ns_cbranch_scc0 {Lkvmm}")
        saved = list(e.vm)
        for t in range(16):
            e.wait_vm(toks[t])
            e(f"v_mfma_f32_32x32x16_bf16 v[80:95], a[{4*t}:{4*t+3}], v[{16+4*t}:{19+4*t}], {'0' if t == 0 else 'v[80:95]'}")
            e(f"v_mfma_f32_32x32x16_bf16 v[96:111], a[{64+4*t}:{67+4*t}], v[{16+4*t}:{19+4*t}], {'0' if t == 0 else 'v[96:111]'}")
        e(f"s_branch {Lmmdone}")
        e.label(Lkvmm)
        e.vm = list(saved)
        for t in range(16):
            e.wait_vm(toks[t])
            e(f"v_mfma_f32_32x32x16_bf16 v[112:127], a[{128+4*t}:{131+4*t}], v[{16+4*t}:{19+4*t}], {'0' if t == 0 else 'v[112:127]'}")
            e(f"v_mfma_f32_32x32x16_bf16 v[80:95], a[{4*t}:{4*t+3}], v[{16+4*t}:{19+4*t}], {'0' if t == 0 else 'v[80:95]'}")
            e(f"v_mfma_f32_32x32x16_bf16 v[96:111], a[{64+4*t}:{67+4*t}], v[{16+4*t}:{19+4*t}], {'0' if t == 0 else 'v[96:111]'}")
        e.label(Lmmdone)
        e.reset_counters()
        def xw():
            L = e.newlabel("G4XW")
            e(f"s_cmp_eq_u32 s{sA0}, 0\ns_cbranch_scc1 {L}\ns_cmp_eq_u32 s{sKH}, 0\ns_cbranch_scc1 {L}")
            for q in range(4):
                e(f"ds_write_b128 v{vL16}, v[{112+4*q}:{115+4*q}] offset:{16384+q*1024}")
            e.label(L)
        self.reduce_pair(extra_write=xw)
        e(f"v_mul_f32 v184, {fbits(QSCALE)}, v147")
        e(f"v_mul_f32 v185, v146, v184\nv_sub_f32 v185, 0, v185")
        for r in range(16):
            e(f"v_mul_f32 v{96+r}, v185, v{148+r}\nv_fma_f32 v{80+r}, v{80+r}, v184, v{96+r}")
        for d in range(8):
            e(f"v_cvt_pk_bf16_f32 v{96+d}, v{80+2*d}, v{81+2*d}")
        e(f"s_lshl_b32 s{sT0}, s{sKH}, 2\ns_add_u32 s{sT0}, s{sT0}, s{sP}\ns_lshl_b32 s{sT0}, s{sT0}, 10\nv_add_u32 v{vT0}, s{sT0}, v{vL16}")
        e(f"ds_write_b128 v{vT0}, v[96:99] offset:{self.QL}\nds_write_b128 v{vT0}, v[100:103] offset:{self.QL+2048}")
        e(f"s_cmp_eq_u32 s{sA0}, 0\ns_cbranch_scc1 {Lnokv2}\ns_cmp_lg_u32 s{sKH}, 0\ns_cbranch_scc1 {Lnokv2}")
        for q in range(4):
            e(f"ds_read_b128 v[{96+4*q}:{99+4*q}], v{vL16} offset:{16384+q*1024}")
        e("s_waitcnt lgkmcnt(0)")
        e(f"v_mul_f32 v185, v146, v147\nv_sub_f32 v185, 0, v185")
        for r in range(16):
            e(f"v_add_f32 v{112+r}, v{112+r}, v{96+r}")
            e(f"v_mul_f32 v{96+r}, v185, v{164+r}\nv_fma_f32 v{112+r}, v{112+r}, v147, v{96+r}")
        for d in range(8):
            e(f"v_cvt_pk_bf16_f32 v{96+d}, v{112+2*d}, v{113+2*d}")
        e(f"s_lshl_b32 s{sT0}, s{sRB}, 10\ns_add_u32 s{sT0}, s{sT0}, s{sKF}")
        self.ws_store(100, f"s{sT0}", 0)
        e(f"v_and_b32 v186, 31, v{vL}\nv_lshlrev_b32 v186, 5, v186\nv_lshrrev_b32 v187, 5, v{vL}\nv_lshl_add_u32 v186, v187, 3, v186")
        e("ds_write_b64 v186, v[96:97] offset:20480\nds_write_b64 v186, v[98:99] offset:20496")
        e(f"v_and_b32 v188, 15, v{vL}\nv_bfe_u32 v189, v{vL}, 4, 1\nv_lshlrev_b32 v189, 4, v189\nv_lshl_add_u32 v189, v187, 2, v189\nv_lshrrev_b32 v190, 2, v188\nv_add_u32 v189, v189, v190\nv_lshlrev_b32 v189, 5, v189")
        e("v_and_b32 v190, 3, v188\nv_lshl_add_u32 v189, v190, 3, v189")
        e("s_waitcnt lgkmcnt(0)")
        e("ds_read_b64_tr_b16 v[104:105], v189 offset:20480\nds_read_b64_tr_b16 v[106:107], v189 offset:20736")
        e(f"v_bfe_u32 v190, v{vL}, 4, 1\nv_lshlrev_b32 v190, 9, v190\nv_lshl_add_u32 v190, v187, 8, v190\nv_lshl_add_u32 v190, v188, 4, v190")
        e(f"s_add_u32 s{sT0}, s{sT0}, 0x10000\ns_waitcnt lgkmcnt(0)")
        self.ws_store(104, f"s{sT0}", 0, voff=190)
        e("s_waitcnt vmcnt(0)")
        e(f"s_lshl_b32 s{sT0}, s{sHALF}, 11\ns_lshl_b32 s{sT1}, s{sRB}, 2\ns_add_u32 s{sT0}, s{sT0}, s{sT1}\ns_add_u32 s{sT0}, s{sT0}, {FL_GK}")
        e(f"v_lshlrev_b32 v190, 8, v{vL}\nv_mov_b32 v191, s{sTAG}")
        e(f"s_mov_b64 exec, 0xff\nbuffer_store_dword v191, v190, s[{SRD_WS}:{SRD_WS+3}], s{sT0} offen sc1\ns_mov_b64 exec, -1")
        e.label(Lnokv2)
        e.reset_counters()

    def att_unit(self, u, Sc, Sn, Pc, Pn, Qnext, Oc, Oprev, extra, cin="0"):
        e = self.e
        tn = (u + 1) % 16; tp = (u - 1) % 16
        for i in range(16):
            if i == 2: e(f"v_mfma_f32_32x32x16_bf16 {v(Sn,16)}, {a(4*tn,4)}, {v(Qnext,4)}, {cin}")
            if i == 7: e(f"v_mfma_f32_32x32x16_bf16 {v(Oprev,16)}, {a(64+8*tp+4,4)}, {v(Pn+4,4)}, {v(Oprev,16)}")
            if i == 12: e(f"v_mfma_f32_32x32x16_bf16 {v(Oc,16)}, {a(64+8*u,4)}, {v(Pc,4)}, {v(Oc,16)}")
            e(f"v_exp_f32 v{Sc+i}, v{Sc+i}")
            if i == 0: e(f"v_cvt_pk_bf16_f32 v{Pn+7}, v{Sn+14}, v{Sn+15}")
            if i >= 3 and (i - 3) % 2 == 0:
                k = (i - 3) // 2
                e(f"v_cvt_pk_bf16_f32 v{Pc+k}, v{Sc+2*k}, v{Sc+2*k+1}")
            for x in extra.get(i, []): e(x)

    def attention(self):
        e = self.e
        QA, QB = 16, 20
        S = [32, 48]; P = [64, 72]; O = [80, 96]
        R, SL, QL = self.RING, self.SLOT, self.QL
        e(f"v_and_b32 v24, 27, v{vL}\nv_cmp_eq_u32 vcc, 16, v24\nv_mov_b32 v25, 0x3f803f80\nv_cndmask_b32 v24, 0, v25, vcc")
        for i in range(128):
            e(f"v_accvgpr_write_b32 a{64+i}, v24")
        e(f"s_mul_i32 s{sT0}, s{sW}, {2*SL}\nv_add_u32 v26, s{sT0}, v{vL16}\nv_add_u32 v27, s{sT0}, v{vL4}")
        e("v_mov_b32 v28, 0\nv_mov_b32 v29, 0\nv_mov_b32 v30, 0\nv_mov_b32 v31, 0")
        for sidx in range(2):
            e(f"ds_write_b128 v26, v[28:31] offset:{R+sidx*SL}\nds_write_b128 v26, v[28:31] offset:{R+sidx*SL+1024}\nds_write_b32 v27, v28 offset:{R+sidx*SL+2048}")
        e(f"v_mov_b32 v27, 0\nds_write_b32 v27, v28 offset:{self.FAIL}")
        for r in range(16): e(f"v_mov_b32 v{O[1]+r}, 0")
        for r in range(16): e(f"v_mov_b32 v{O[0]+r}, 0")
        for r in range(8): e(f"v_mov_b32 v{P[1]+r}, 0")
        for r in range(16): e(f"v_mov_b32 v{S[1]+r}, 0")
        e("s_waitcnt lgkmcnt(0)")
        self.stamp("att_poll")
        L = e.newlabel("GK")
        e(f"s_cmp_lg_u32 s{sW}, 0\ns_cbranch_scc1 {L}")
        e(f"s_lshl_b32 s{sT0}, s{sHALF}, 11\ns_and_b32 s{sT1}, s{sG}, 7\ns_lshl_b32 s{sT1}, s{sT1}, 8\ns_add_u32 s{sT0}, s{sT0}, s{sT1}\ns_add_u32 s{sT0}, s{sT0}, {FL_GK}")
        def setup():
            e(f"buffer_load_dword v17, v{vL4}, s[{SRD_WS}:{SRD_WS+3}], s{sT0} offen sc1\ns_waitcnt vmcnt(0)")
            e(f"v_cmp_ne_u32 vcc, s{sTAG}, v17")
        self.poll("g", setup)
        if True:
            L2 = e.newlabel("EPOCH")
            e(f"s_cmp_lg_u32 s{sG}, 0\ns_cbranch_scc1 {L2}\ns_cmp_eq_u32 s{sHALF}, 0\ns_cbranch_scc1 {L2}")
            e(f"v_mov_b32 v16, 0\nv_mov_b32 v17, s{sTAG}\ns_mov_b64 exec, 1\nbuffer_store_dword v17, v16, s[{SRD_WS}:{SRD_WS+3}], 0 offen sc0 sc1\ns_mov_b64 exec, -1")
            e.label(L2)
        e.label(L)
        e("s_barrier")
        self.stamp("att_start")
        e.reset_counters()
        e(f"s_lshl_b32 s{sT0}, s{sW}, 14\ns_add_u32 s{sT0}, s{sT0}, s{sKF}")
        e(f"v_and_b32 v24, 15, v{vL}\nv_lshlrev_b32 v24, 4, v24\nv_lshrrev_b32 v25, 5, v{vL}\nv_lshl_add_u32 v24, v25, 8, v24")
        e(f"s_add_u32 s{sT1}, s{sT0}, 0x10000")
        for t in range(16):
            if t % 4 == 0 and t: e(f"s_add_u32 s{sT0}, s{sT0}, 4096")
            self.ws_load(4 * t, f"s{sT0}", (t % 4) * 1024, acc=True)
            e("s_mov_b32 exec_lo, 0xffff\ns_mov_b32 exec_hi, 0xffff")
            if t % 4 == 0 and t: e(f"s_add_u32 s{sT1}, s{sT1}, 4096")
            self.ws_load(64 + 8 * t, f"s{sT1}", (t % 4) * 1024, voff=24, acc=True)
            self.ws_load(68 + 8 * t, f"s{sT1}", (t % 4) * 1024 + 512, voff=24, acc=True)
            e("s_mov_b64 exec, -1")
        e(f"s_mov_b32 s{sLOOP}, 0\ns_lshl_b32 s{sA0}, s{sW}, 1\ns_add_u32 s{sA0}, s{sA0}, 2")
        e(f"s_and_b32 s{sT2}, s{sA0}, 7\ns_lshl_b32 s{sT2}, s{sT2}, 10\nv_add_u32 v28, s{sT2}, v{vL16}")
        e(f"ds_read_b128 v[{QA}:{QA+3}], v28 offset:{QL}")
        e("s_waitcnt vmcnt(0) lgkmcnt(0)")
        e.reset_counters()
        e(f"v_mfma_f32_32x32x16_bf16 {v(S[0],16)}, {a(0,4)}, {v(QA,4)}, 0")
        e("s_nop 7\ns_nop 7")
        Lloop = e.newlabel("ATTLOOP")
        e(".p2align 3")
        e.label(Lloop)
        for pos in range(2):
            Qc, Qn = (QA, QB) if pos == 0 else (QB, QA)
            Oc, On = (O[0], O[1]) if pos == 0 else (O[1], O[0])
            for u in range(16):
                c = u & 1; n = c ^ 1
                extra = {}
                if u == 0:
                    extra[3] = [f"s_add_u32 s{sT0}, s{sA0}, s{sLOOP}", f"s_sub_u32 s{sT1}, s{sT0}, 1", f"s_and_b32 s{sT1}, s{sT1}, 7", f"s_mul_i32 s{sT1}, s{sT1}, {SL}",
                                f"s_add_u32 s{sT2}, s{sT0}, 1", f"s_and_b32 s{sT2}, s{sT2}, 7", f"s_mul_i32 s{sT3}, s{sT2}, {SL}", f"s_lshl_b32 s{sT2}, s{sT2}, 10"]
                    extra[9] = [f"v_add_u32 v24, s{sT1}, v{vL16}", f"v_add_u32 v25, s{sT1}, v{vL4}"]
                    extra[13] = [f"v_add_u32 v26, s{sT3}, v{vL16}", f"v_add_u32 v27, s{sT3}, v{vL4}", f"v_add_u32 v28, s{sT2}, v{vL16}"]
                if u == 1:
                    extra[6] = [f"ds_write_b128 v24, v[{On}:{On+3}] offset:{R}"]
                    extra[8] = [f"ds_write_b128 v24, v[{On+4}:{On+7}] offset:{R+1024}"]
                    extra[10] = [f"ds_write_b32 v25, v{On+8} offset:{R+2048}"]
                if u == 4:
                    extra[5] = [f"ds_read_b128 v[{Qn}:{Qn+3}], v28 offset:{QL}"]
                if u == 8:
                    extra[4] = ["s_waitcnt lgkmcnt(0)", "s_barrier"]
                if u == 10:
                    extra[4] = [f"ds_read_b128 v[{On}:{On+3}], v26 offset:{R}"]
                    extra[8] = [f"ds_read_b128 v[{On+4}:{On+7}], v26 offset:{R+1024}"]
                    extra[12] = [f"ds_read_b32 v{On+8}, v27 offset:{R+2048}"]
                if u == 14:
                    extra[4] = ["s_waitcnt lgkmcnt(0)"]
                if u == 15:
                    extra[14] = [f"s_add_u32 s{sLOOP}, s{sLOOP}, 1"]
                Qx = Qn if u == 15 else Qc
                Op = On if u == 0 else Oc
                self.att_unit(u, S[c], S[n], P[c], P[n], Qx, Oc, Op, extra)
        e(f"s_cmp_lt_u32 s{sLOOP}, 8\ns_cbranch_scc1 {Lloop}")
        e(f"v_cvt_pk_bf16_f32 v{P[1]+7}, v{S[1]+14}, v{S[1]+15}")
        e(f"v_mfma_f32_32x32x16_bf16 {v(O[1],16)}, {a(64+8*15+4,4)}, {v(P[1]+4,4)}, {v(O[1],16)}")
        e(f"s_mul_i32 s{sT0}, s{sW}, {2*SL}\nv_add_u32 v26, s{sT0}, v{vL16}\nv_add_u32 v27, s{sT0}, v{vL4}")
        e(f"ds_read_b128 v[{O[0]}:{O[0]+3}], v26 offset:{R}\nds_read_b128 v[{O[0]+4}:{O[0]+7}], v26 offset:{R+1024}\nds_read_b32 v{O[0]+8}, v27 offset:{R+2048}")
        e("s_waitcnt lgkmcnt(0)")
        self.stamp("att_loopend")
        e(f"s_lshl_b32 s{sT0}, s{sJ}, 2\ns_add_u32 s{sT0}, s{sT0}, s{sW}\ns_lshl_b32 s{sT0}, s{sT0}, 10")
        e(f"s_lshl_b32 s{sT1}, s{sC}, 16\ns_add_u32 s{sT0}, s{sT0}, s{sT1}\ns_add_u32 s{sT0}, s{sT0}, s{sOA}\ns_add_u32 s{sT1}, s{sT0}, 32768")
        for pp in range(2):
            Oo = O[pp]
            e(f"v_rcp_f32 v24, v{Oo+8}")
            for r in range(8):
                e(f"v_mul_f32 v{Oo+r}, v24, v{Oo+r}")
            for d in range(4):
                e(f"v_cvt_pk_bf16_f32 v{32+4*pp+d}, v{Oo+2*d}, v{Oo+2*d+1}")
            self.ws_store(32 + 4 * pp, f"s{sT0 if pp == 0 else sT1}", 0)

    def outproj(self, wb, sO, final_possible, sXdst, sSTdst, sHXdst):
        e = self.e
        self.load_w_pair(wb)
        e("s_waitcnt vmcnt(0)"); e.reset_counters()
        toks = self.load_act_half(sO)
        for t in range(16):
            e.wait_vm(toks[t])
            e(f"v_mfma_f32_32x32x16_bf16 v[80:95], a[{4*t}:{4*t+3}], v[{16+4*t}:{19+4*t}], {'0' if t == 0 else 'v[80:95]'}")
            e(f"v_mfma_f32_32x32x16_bf16 v[96:111], a[{64+4*t}:{67+4*t}], v[{16+4*t}:{19+4*t}], {'0' if t == 0 else 'v[96:111]'}")
        self.reduce_pair()
        for d in range(8):
            e(f"v_lshlrev_b32 v96, 16, v{XR+d}\nv_and_b32 v97, 0xffff0000, v{XR+d}")
            e(f"v_add_f32 v{80+2*d}, v{80+2*d}, v96\nv_add_f32 v{81+2*d}, v{81+2*d}, v97")
            e(f"v_cvt_pk_bf16_f32 v{XR+d}, v{80+2*d}, v{81+2*d}")
        if final_possible:
            Lf = e.newlabel("FINAL"); Ld = e.newlabel("FDONE")
            e(f"s_cmp_eq_u32 s{sHALF}, 1\ns_cbranch_scc1 {Lf}")
            self.publish_x(sXdst, sSTdst, sHXdst)
            e(f"s_branch {Ld}")
            e.label(Lf)
            for c in range(2):
                e(f"v_permlane32_swap_b32 v{XR+4*c}, v{XR+4*c+2}\nv_permlane32_swap_b32 v{XR+4*c+1}, v{XR+4*c+3}")
            e(f"v_and_b32 v16, 31, v{vL}\nv_lshlrev_b32 v16, 11, v16\nv_lshrrev_b32 v17, 5, v{vL}\nv_lshl_add_u32 v16, v17, 4, v16")
            e(f"s_lshl_b32 s{sT0}, s{sC}, 6\ns_add_u32 s{sT0}, s{sT0}, s{sP}\ns_lshl_b32 s{sT0}, s{sT0}, 10\ns_lshl_b32 s{sT1}, s{sNB}, 6\ns_add_u32 s{sT0}, s{sT0}, s{sT1}")
            for c in range(2):
                e(f"buffer_store_dwordx4 v[{XR+4*c}:{XR+4*c+3}], v16, s[{SRD_OUT}:{SRD_OUT+3}], s{sT0} offen offset:{32*c}")
            e("s_waitcnt vmcnt(0)\ns_endpgm")
            e.label(Ld)
        else:
            self.publish_x(sXdst, sSTdst, sHXdst)

    XL = 0; QB_ = 98304; KB_ = 106496; VB_ = 118784; TB = 131072
    def g2(self):
        e = self.e
        XL, QB_, KB_, VB_, TB = self.XL, self.QB_, self.KB_, self.VB_, self.TB
        e(f"s_lshl_b32 s{sT0}, s{sJ}, 1")
        tblA = [WB_BQ, WB_BK, WB_BK + 1, WB_BV + 1]; tblB = [WB_BQ + 1, WB_BK + 1, WB_BV, WB_BV]
        e(f"s_mov_b32 s{sA0}, {tblA[0]}\ns_mov_b32 s{sA1}, {tblB[0]}")
        for w in range(1, 4):
            e(f"s_cmp_eq_u32 s{sW}, {w}\ns_cselect_b32 s{sA0}, {tblA[w]}, s{sA0}\ns_cselect_b32 s{sA1}, {tblB[w]}, s{sA1}")
        e(f"s_add_u32 s{sA0}, s{sA0}, s{sT0}\ns_add_u32 s{sA1}, s{sA1}, s{sT0}")
        e(f"s_lshl_b32 s{sA2}, s{sA0}, 15\ns_add_u32 s{sA2}, s{sA2}, {WF}\ns_lshl_b32 s{sA3}, s{sA1}, 15\ns_add_u32 s{sA3}, s{sA3}, {WF}")
        self.load_frags(0, sA2, 32, acc=True)
        e("s_waitcnt vmcnt(0)"); e.reset_counters()
        self.load_frags(128, sA3, 32, acc=True)
        e(f"v_lshrrev_b32 v16, 5, v{vL}\nv_lshlrev_b32 v16, 4, v16")
        e(f"s_lshl_b32 s{sT0}, s{sA0}, 7\ns_add_u32 s{sT0}, s{sT0}, {CS}\ns_lshl_b32 s{sT1}, s{sA1}, 7\ns_add_u32 s{sT1}, s{sT1}, {CS}")
        self.load_cs(176, sT0, 16)
        self.load_cs(192, sT1, 16)
        e(f"v_and_b32 v17, 31, v{vL}\nv_lshlrev_b32 v17, 2, v17")
        self.ws_load(208, f"s{sT0}", 0, voff=17, n=1)
        self.ws_load(209, f"s{sT1}", 0, voff=17, n=1)
        Lst = e.newlabel("G2ST"); Lh = e.newlabel("G2H");
        e(f"s_cmp_eq_u32 s{sW}, 3\ns_cbranch_scc1 {Lst}")
        e(f"v_and_b32 v18, 31, v{vL}\nv_lshrrev_b32 v19, 5, v{vL}")
        e(f"s_cmp_eq_u32 s{sW}, 2\ns_cbranch_scc1 {Lh}")
        e(f"s_lshl_b32 s{sT0}, s{sC}, 1\ns_add_u32 s{sT0}, s{sT0}, s{sW}\ns_lshl_b32 s{sT0}, s{sT0}, 12")
        e(f"v_lshlrev_b32 v20, 3, v18")
        Lh2 = e.newlabel("G2H2")
        e(f"s_branch {Lh2}")
        e.label(Lh)
        e(f"s_lshl_b32 s{sT0}, s{sHC}, 13")
        e("v_and_b32 v20, 15, v18\nv_add_u32 v20, 16, v20\nv_lshlrev_b32 v20, 3, v20\nv_lshrrev_b32 v21, 4, v18\nv_lshl_add_u32 v20, v21, 12, v20")
        e.label(Lh2)
        e(f"v_lshl_add_u32 v20, v19, 11, v20\ns_add_u32 s{sT0}, s{sT0}, s{sSTMID}")
        for t in range(8):
            e(f"buffer_load_dwordx2 v[{32+2*t}:{33+2*t}], v20, s[{SRD_WS}:{SRD_WS+3}], s{sT0} offen offset:{t*256} sc1")
        e("s_waitcnt vmcnt(0)")
        self.stats_finish(32, 22, 23)
        e(f"v_mul_f32 v22, v22, v23\nv_sub_f32 v22, 0, v22\nv_cmp_gt_u32 vcc, 32, v{vL}\nv_cndmask_b32 v22, v22, v23, vcc")
        e(f"s_lshl_b32 s{sT0}, s{sW}, 8\nv_add_u32 v23, s{sT0}, v{vL4}\nds_write_b32 v23, v22 offset:0" .replace("offset:0", f"offset:0"))
        self.e.lines[-1] = self.e.lines[-1].replace("v23, v22 offset:0", "v23, v22")
        self.e.lines.pop()
        e(f"v_add_u32 v23, {TB}, v23\nds_write_b32 v23, v22")
        e.label(Lst)
        e(f"s_lshl_b32 s{sT0}, s{sC}, 16\ns_add_u32 s{sT0}, s{sT0}, s{sXMID}\ns_lshl_b32 s{sT1}, s{sW}, 13\ns_add_u32 s{sT0}, s{sT0}, s{sT1}")
        self.load_frags(32, sT0, 8)
        e(f"s_add_u32 s{sT0}, s{sT0}, 32768")
        self.load_frags(64, sT0, 8)
        e(f"s_lshl_b32 s{sT0}, s{sHC}, 15\ns_add_u32 s{sT0}, s{sT0}, s{sHX}\ns_add_u32 s{sT0}, s{sT0}, s{sT1}")
        self.load_frags(96, sT0, 8)
        e(f"v_add_u32 v20, s{sT1}, v{vL16}")
        e("s_waitcnt vmcnt(0)"); e.reset_counters()
        for blk in range(3):
            for t in range(8):
                src = 32 + 32 * blk + 4 * t
                off = blk * 32768 + t * 1024
                if off < 65536: e(f"ds_write_b128 v20, v[{src}:{src+3}] offset:{off}")
                else:
                    if t == 0: e("v_add_u32 v21, 0x10000, v20")
                    e(f"ds_write_b128 v21, v[{src}:{src+3}] offset:{off-65536}")
        e("s_waitcnt lgkmcnt(0)\ns_barrier")
        ACC = [32, 48, 64, 80]
        e(f"v_add_u32 v21, 0x10000, v{vL16}")
        def xread(dst, blk, ks):
            off = blk * 32768 + ks * 1024
            if off < 65536: return e.lds(f"ds_read_b128 v[{dst}:{dst+3}], v{vL16} offset:{off}")
            return e.lds(f"ds_read_b128 v[{dst}:{dst+3}], v21 offset:{off-65536}")
        def mm(acc, wset, ks, xreg, orient, first):
            wr = a(wset * 128 + 4 * ks, 4); xr = v(xreg, 4); c = "0" if first else v(acc, 16)
            if orient == "T": e(f"v_mfma_f32_32x32x16_bf16 {v(acc,16)}, {wr}, {xr}, {c}")
            else: e(f"v_mfma_f32_32x32x16_bf16 {v(acc,16)}, {xr}, {wr}, {c}")
        def gemm_pass(units, blks):
            RN = 4
            ring = lambda ks, b: 96 + ((ks % RN) * 2 + b) * 4
            toks = {}
            for ks in range(min(RN - 1, 32)):
                for b, blk in enumerate(blks): toks[(ks, b)] = xread(ring(ks, b), blk, ks)
            for ks in range(32):
                nk = ks + RN - 1
                if nk < 32:
                    for b, blk in enumerate(blks): toks[(nk, b)] = xread(ring(nk, b), blk, nk)
                e.wait_lg(toks[(ks, len(blks) - 1)])
                for (acc, wset, b, orient) in units:
                    mm(acc, wset, ks, ring(ks, b), orient, ks == 0)
        labs = [e.newlabel(f"G2W{w}") for w in range(4)]; Lgd = e.newlabel("G2GD")
        for w in range(1, 4):
            e(f"s_cmp_eq_u32 s{sW}, {w}\ns_cbranch_scc1 {labs[w]}")
        plans = {
            0: [([(ACC[0], 0, 0, "T"), (ACC[1], 0, 1, "T"), (ACC[2], 1, 0, "T"), (ACC[3], 1, 1, "T")], [0, 1])],
            1: [([(ACC[0], 0, 0, "T"), (ACC[1], 0, 1, "T")], [0, 1]), ([(ACC[2], 0, 0, "T"), (ACC[3], 1, 0, "T")], [2])],
            2: [([(ACC[0], 0, 0, "T"), (ACC[1], 0, 1, "T"), (ACC[2], 1, 0, "N"), (ACC[3], 1, 1, "N")], [0, 1])],
            3: [([(ACC[0], 0, 0, "N"), (ACC[1], 0, 1, "N")], [0, 1]), ([(ACC[2], 0, 0, "N"), (ACC[3], 1, 0, "N")], [2])],
        }
        desc = {
            0: [("q", 0, 0, 'A'), ("q", 1, 0, 'A'), ("q", 0, 1, 'B'), ("q", 1, 1, 'B')],
            1: [("k", 0, 0, 'A'), ("k", 1, 0, 'A'), ("k", 2, 0, 'A'), ("k", 2, 1, 'B')],
            2: [("k", 0, 1, 'A'), ("k", 1, 1, 'A'), ("v", 0, 0, 'B'), ("v", 1, 0, 'B')],
            3: [("v", 0, 1, 'A'), ("v", 1, 1, 'A'), ("v", 2, 1, 'A'), ("v", 2, 0, 'B')],
        }
        for w in range(4):
            e.label(labs[w]); e.reset_counters()
            for units, blks in plans[w]:
                gemm_pass(units, blks)
            e(f"v_and_b32 v130, 31, v{vL}\nv_lshlrev_b32 v130, 2, v130\nv_add_u32 v130, {TB}, v130")
            e(f"v_lshrrev_b32 v131, 5, v{vL}\nv_lshlrev_b32 v131, 4, v131\nv_add_u32 v131, {TB}, v131")
            for ai, (kind, blk, cbi, cset) in enumerate(desc[w]):
                acc = ACC[ai]
                if kind in ("q", "k"):
                    cs = 176 if cset == 'A' else 192
                    e(f"ds_read_b32 v132, v130 offset:{blk*256}\nds_read_b32 v133, v130 offset:{blk*256+128}\ns_waitcnt lgkmcnt(0)")
                    if kind == "q":
                        e(f"v_mul_f32 v132, {fbits(QSCALE)}, v132\nv_mul_f32 v133, {fbits(QSCALE)}, v133")
                    for r in range(16):
                        e(f"v_mul_f32 v{96+r}, v133, v{cs+r}\nv_fma_f32 v{acc+r}, v{acc+r}, v132, v{96+r}")
                    for d in range(8):
                        e(f"v_cvt_pk_bf16_f32 v{96+d}, v{acc+2*d}, v{acc+2*d+1}")
                    base = (QB_ + blk * 4096 if kind == "q" else KB_ + blk * 4096) + cbi * 2048
                    e(f"v_add_u32 v134, {base}, v{vL16}\nds_write_b128 v134, v[96:99]\nds_write_b128 v134, v[100:103] offset:1024")
                else:
                    csn = 208 if cset == 'A' else 209
                    for q in range(4):
                        e(f"ds_read_b128 v[{96+4*q}:{99+4*q}], v131 offset:{blk*256+32*q}")
                        e(f"ds_read_b128 v[{112+4*q}:{115+4*q}], v131 offset:{blk*256+128+32*q}")
                    e("s_waitcnt lgkmcnt(0)")
                    for r in range(16):
                        e(f"v_mul_f32 v{112+r}, v{112+r}, v{csn}\nv_fma_f32 v{acc+r}, v{acc+r}, v{96+r}, v{112+r}")
                    for d in range(8):
                        e(f"v_cvt_pk_bf16_f32 v{96+d}, v{acc+2*d}, v{acc+2*d+1}")
                    base = VB_ + blk * 4096 + cbi * 2048
                    e(f"v_add_u32 v134, {base}, v{vL16}\nds_write_b128 v134, v[96:99]\nds_write_b128 v134, v[100:103] offset:1024")
            if w < 3: e(f"s_branch {Lgd}")
        e.label(Lgd)
        e("s_waitcnt lgkmcnt(0)\ns_barrier")
        e.reset_counters()
        NEG = "0xff800000"
        e(f"v_and_b32 v16, 31, v{vL}\nv_lshrrev_b32 v17, 5, v{vL}\nv_lshlrev_b32 v17, 2, v17\nv_sub_u32 v16, v16, v17")
        e(f"v_mov_b32 v18, {NEG}")
        for r in range(16):
            kk = 8 * (r >> 2) + (r & 3)
            e(f"v_subrev_u32 v19, {kk}, v16\nv_cmp_ge_u32 vcc, 7, v19\nv_cndmask_b32 v{176+r}, v18, 0, vcc")
        e(f"s_cmp_eq_u32 s{sC}, 0\ns_cselect_b32 s{sT0}, -64, 0")
        for jj in range(4):
            e(f"s_add_u32 s{sT1}, s{sT0}, {jj-1 if jj>=1 else -1}\nv_cmp_ge_i32 vcc, s{sT1}, v16\nv_cndmask_b32 v{192+jj}, v18, 0, vcc")
        e(f"s_lshl_b32 s{sT0}, s{sW}, 10\nv_add_u32 v20, s{sT0}, v{vL16}\nv_add_u32 v20, {QB_}, v20")
        e(f"s_lshr_b32 s{sT1}, s{sW}, 1\ns_lshl_b32 s{sT1}, s{sT1}, 11\nv_add_u32 v21, s{sT1}, v{vL16}\nv_add_u32 v21, {VB_}, v21")
        Q = [32, 36]; Kf = [40, 44, 48]; V = {(0, 0): 52, (0, 1): 56, (1, 0): 60, (1, 1): 64, (2, 0): 68, (2, 1): 72}
        for p in range(2): e(f"ds_read_b128 v[{Q[p]}:{Q[p]+3}], v20 offset:{p*4096}")
        for b in range(3): e(f"ds_read_b128 v[{Kf[b]}:{Kf[b]+3}], v20 offset:{(KB_-QB_)+b*4096}")
        for (b, c), r in V.items(): e(f"ds_read_b128 v[{r}:{r+3}], v21 offset:{b*4096+c*1024}")
        e("s_waitcnt lgkmcnt(0)")
        So = [80, 96]; Sh = [112, 128]; Oo = [144, 160]
        for p in range(2):
            e(f"v_mfma_f32_32x32x16_bf16 {v(So[p],16)}, {v(Kf[p],4)}, {v(Q[p],4)}, v[176:191]")
            e(f"v_mfma_f32_32x32x16_bf16 {v(Sh[p],16)}, {v(Kf[2],4)}, {v(Q[p],4)}, 0")
        e(f"s_lshl_b32 s{sT0}, s{sJ}, 2\ns_add_u32 s{sT0}, s{sT0}, s{sW}\ns_lshl_b32 s{sT0}, s{sT0}, 10")
        e(f"s_lshl_b32 s{sT1}, s{sC}, 16\ns_add_u32 s{sT0}, s{sT0}, s{sT1}\ns_add_u32 s{sT0}, s{sT0}, s{sOB}\ns_add_u32 s{sT1}, s{sT0}, 32768")
        for p in range(2):
            S_ = So[p]; H_ = Sh[p] + 4 * (2 * p + 1)
            for jj in range(4): e(f"v_add_f32 v{H_+jj}, v{H_+jj}, v{192+jj}")
            vals = [S_ + r for r in range(16)] + [H_ + jj for jj in range(4)]
            e(f"v_max3_f32 v22, v{vals[0]}, v{vals[1]}, v{vals[2]}")
            i = 3
            while i < 20:
                if i + 1 < 20: e(f"v_max3_f32 v22, v22, v{vals[i]}, v{vals[i+1]}"); i += 2
                else: e(f"v_max_f32 v22, v22, v{vals[i]}"); i += 1
            e("v_mov_b32 v23, v22\nv_permlane32_swap_b32 v22, v23\nv_max_f32 v22, v22, v23")
            for x in vals: e(f"v_sub_f32 v{x}, v{x}, v22")
            for x in vals: e(f"v_exp_f32 v{x}, v{x}")
            e(f"v_add_f32 v23, v{vals[0]}, v{vals[1]}")
            for x in vals[2:]: e(f"v_add_f32 v23, v23, v{x}")
            e("v_mov_b32 v24, v23\nv_permlane32_swap_b32 v23, v24\nv_add_f32 v23, v23, v24\nv_rcp_f32 v23, v23")
            for d in range(8): e(f"v_cvt_pk_bf16_f32 v{196+d}, v{S_+2*d}, v{S_+2*d+1}")
            e(f"v_mov_b32 v204, 0\nv_mov_b32 v205, 0\nv_cvt_pk_bf16_f32 v206, v{H_}, v{H_+1}\nv_cvt_pk_bf16_f32 v207, v{H_+2}, v{H_+3}")
            O_ = Oo[p]
            e(f"v_mfma_f32_32x32x16_bf16 {v(O_,16)}, {v(V[(p,0)],4)}, v[196:199], 0")
            e(f"v_mfma_f32_32x32x16_bf16 {v(O_,16)}, {v(V[(p,1)],4)}, v[200:203], {v(O_,16)}")
            e(f"v_mfma_f32_32x32x16_bf16 {v(O_,16)}, {v(V[(2,p)],4)}, v[204:207], {v(O_,16)}")
            Lodd = e.newlabel("ODD"); Ldone = e.newlabel("ODDD")
            e(f"s_bitcmp1_b32 s{sW}, 0\ns_cbranch_scc1 {Lodd}")
            for half in range(2):
                if half == 1: e.label(Lodd)
                b0 = O_ + 8 * half
                for r in range(8): e(f"v_mul_f32 v{b0+r}, v23, v{b0+r}")
                for d in range(4): e(f"v_cvt_pk_bf16_f32 v{25+d+ (0)}, v{b0+2*d}, v{b0+2*d+1}".replace(f"v{25+d}", f"v{28+d}"))
                if half == 0: e(f"s_branch {Ldone}")
            e.label(Ldone)
            self.ws_store(28, f"s{sT0 if p == 0 else sT1}", 0)
            e("s_nop 1")

    def build(self):
        e = self.e
        self.prologue()
        self.stamp("start")
        self.p0()
        self.stamp("p0done")
        def stop(name):
            if self.stop_after == name:
                e("s_waitcnt vmcnt(0) lgkmcnt(0)\ns_endpgm")
                return True
            return False
        if stop("p0"): return self.finish()
        e.label("L_HALF")
        self.half_setup()
        self.g4()
        self.stamp("g4done")
        if stop("g4"): return self.finish()
        self.attention()
        self.stamp("attdone")
        if stop("att"): return self.finish()
        self.sync_cluster(0)
        self.stamp("c0")
        self.outproj(WB_OA, sOA, False, sXMID, sSTMID, sHX)
        self.stamp("g1done")
        if stop("g1"): return self.finish()
        self.sync_cluster(1, with_halo=True)
        self.stamp("c1")
        self.g2()
        self.stamp("g2done")
        if stop("g2"): return self.finish()
        self.sync_cluster(2)
        self.stamp("c2")
        self.outproj(WB_OB, sOB, True, sXOUT, sSTOUT, None)
        self.stamp("g3done")
        if stop("g3"): return self.finish()
        self.sync_cluster(3)
        self.stamp("c3")
        e(f"s_mov_b32 s{sHALF}, 1\ns_branch L_HALF")
        return self.finish()

    def finish(self):
        e = self.e
        e.label("L_END")
        e("s_endpgm")
        lines, n = fix_hazards(e.lines)
        hdr = open('cdna_kernels/' + NAME + '.s.ref').read().split("\n")
        head = [l for l in hdr if l.startswith(";") and "@launch" not in l and "Override launch" not in l and "grid=ceil" not in l]
        out = head + ["; @launch grid=(256,1,1) block=(256,1,1) lds=163840"]
        out += ['.amdgcn_target "amdgcn-amd-amdhsa--gfx950"', ".text", f".globl {KN}", ".p2align 8", f".type {KN},@function", f"{KN}:"]
        out += lines
        out += ['.section .rodata,"a"', ".p2align 6", f".amdhsa_kernel {KN}",
                "  .amdhsa_next_free_vgpr 512", "  .amdhsa_next_free_sgpr 102", "  .amdhsa_accum_offset 256",
                "  .amdhsa_group_segment_fixed_size 0", "  .amdhsa_kernarg_size 88", "  .amdhsa_user_sgpr_count 2",
                "  .amdhsa_user_sgpr_kernarg_segment_ptr 1", "  .amdhsa_system_sgpr_workgroup_id_x 1", ".end_amdhsa_kernel", ""]
        self.nops = n
        return "\n".join(out)

if __name__ == "__main__":
    import argparse
    ap = argparse.ArgumentParser()
    ap.add_argument("-o", default="k.s")
    ap.add_argument("--stop", default=None)
    ap.add_argument("--stamps", action="store_true")
    args = ap.parse_args()
    g = Gen(stop_after=args.stop, stamps=args.stamps)
    txt = g.build()
    open(args.o, "w").write(txt)
    print("wrote", args.o, "lines", txt.count("\n"), "nop states", g.nops)
    if args.stamps: print(g.stampnames)
```

```python
import sys
from asmlib import *

NAME = 'interleave_layers__grouped_kv_mqa__sliding_local_dilated__prompt'
KN = NAME + '_kernel'

FL_C   = 0x10000
FL_G0  = 0x18000
FL_GK  = 0x1A000
FL_XW  = 0x1C000
FL_H   = 0x20000
DBG    = 0x40000
WF     = 0x100000
CS     = 0x480000
X0     = 0x500000
OA     = 0xD00000
OB     = 0x1100000
HX     = 0x1500000
ST0    = 0x1700000
KF     = 0x1800000
VT_STRIDE = 1088
STH    = 0x1A00000
WS_BYTES = 0x10000000
MODEADDR = 163832
WB_Q, WB_KV, WB_OA, WB_BQ, WB_BK, WB_BV, WB_OB = 0, 16, 17, 33, 49, 65, 81

LOG2E = 1.4426950408889634
QSCALE = 0.25 * LOG2E
import struct
def fbits(x): return "0x%08x" % struct.unpack("<I", struct.pack("<f", x))[0]

sG = 2
SRD_WS = 4
SRD_T  = 8
SRD_OUT = 12
sC, sJ, sW, sP, sKH, sTAG, sHALF, sHC = 16, 17, 18, 19, 20, 21, 22, 23
sRBOFF = 24
sSTOFF = 25
sRB    = 26
sNB    = 27
sXIN, sXMID, sXOUT = 28, 29, 30
sSTIN, sSTMID, sSTOUT = 31, 32, 33
sOA, sOB, sHX, sKF = 34, 35, 36, 37
sFLC = 38
sT0, sT1, sT2, sT3, sT4, sT5, sT6, sT7 = 40, 41, 42, 43, 44, 45, 46, 47
sM0, sM1 = 48, 50
sPOLL = 52
sTS = 54
sIN = 64
sOUTP = 80
sLOOP = 56
sA0, sA1, sA2, sA3 = 57, 58, 59, 60
sFA = 61
sA4, sA5 = 62, 63
sACT = 91
sRANK = 100
sPFB = 86
sMODE = 39
sSTH = 53

vTID, vL, vL16, vL4 = 0, 1, 2, 3
XR = 4
vSTAT = 12
vHALO = 13
vT0, vT1 = 14, 15
vWK, vWS = 254, 255

LS = [64, 66, 76, 78, 80, 82, 84, 52]
class Gen:
    def __init__(self, stop_after=None, stamps=False, safe=True):
        self.e = Emitter()
        self.stop_after = stop_after
        self.stamps = stamps
        self.st = "sc1"
        self.ld = "sc1"
        self.nstamp = 0

    def stamp(self, name):
        if not self.stamps: return
        e = self.e
        idx = self.nstamp; self.nstamp += 1
        L = e.newlabel("STAMP")
        e(f"s_cmp_lg_u32 s{sW}, 0\ns_cbranch_scc1 {L}")
        e(f"s_memrealtime s[{sTS}:{sTS+1}]\ns_memtime s[50:51]\ns_waitcnt lgkmcnt(0)")
        e(f"s_lshl_b32 s{sT7}, s{sG}, 9\ns_add_u32 s{sT7}, s{sT7}, {DBG}\ns_mul_i32 s{sT6}, s{sHALF}, 256\ns_add_u32 s{sT7}, s{sT7}, s{sT6}")
        e(f"v_mov_b32 v{vT0}, s{sTS}\nv_mov_b32 v{vT1}, 0")
        e(f"s_mov_b64 exec, 1\nbuffer_store_dword v{vT0}, v{vT1}, s[{SRD_WS}:{SRD_WS+3}], s{sT7} offen offset:{(idx % 32) * 4}")
        e(f"v_mov_b32 v{vT0}, s50\nbuffer_store_dword v{vT0}, v{vT1}, s[{SRD_WS}:{SRD_WS+3}], s{sT7} offen offset:{128 + (idx % 32) * 4}\ns_mov_b64 exec, -1")
        e.label(L)
        self.stampnames = getattr(self, "stampnames", []) + [name]

    def lstamp(self, k):
        if self.stamps and getattr(self, "light", None): self.e(f"s_memtime s[{LS[k]}:{LS[k]+1}]")
    def lflush(self, name):
        if not (self.stamps and getattr(self, "light", None) == name): return
        e = self.e
        L = e.newlabel("LST")
        e(f"s_cmp_lg_u32 s{sW}, 0\ns_cbranch_scc1 {L}\ns_waitcnt lgkmcnt(0)")
        e(f"s_lshl_b32 s{sT7}, s{sG}, 6\ns_add_u32 s{sT7}, s{sT7}, 0x60000\ns_lshl_b32 s{sT6}, s{sHALF}, 5\ns_add_u32 s{sT7}, s{sT7}, s{sT6}")
        e(f"v_mov_b32 v{vT1}, 0\ns_mov_b64 exec, 1")
        for k in range(8):
            e(f"v_mov_b32 v{vT0}, s{LS[k]}\nbuffer_store_dword v{vT0}, v{vT1}, s[{SRD_WS}:{SRD_WS+3}], s{sT7} offen offset:{4*k}")
        e("s_mov_b64 exec, -1")
        e.label(L)

    def ws_load(self, dst, soff, imm=0, voff=vL16, n=4, flag=None, acc=False):
        flag = self.ld if flag is None else flag
        mn = {1: "buffer_load_dword", 2: "buffer_load_dwordx2", 4: "buffer_load_dwordx4"}[n]
        d = a(dst, n) if acc else v(dst, n)
        return self.e.vmem(f"{mn} {d}, v{voff}, s[{SRD_WS}:{SRD_WS+3}], {soff} offen offset:{imm} {flag}")
    def ws_store(self, src, soff, imm=0, voff=vL16, n=4, flag=None):
        flag = self.st if flag is None else flag
        mn = {1: "buffer_store_dword", 2: "buffer_store_dwordx2", 4: "buffer_store_dwordx4"}[n]
        return self.e.vmem(f"{mn} {v(src, n)}, v{voff}, s[{SRD_WS}:{SRD_WS+3}], {soff} offen offset:{imm} {flag}")

    def moded(self, fn):
        e = self.e
        Lf = e.newlabel("FAST"); Ld = e.newlabel("MDONE")
        e(f"s_cmp_eq_u32 s{sMODE}, 1\ns_cbranch_scc1 {Lf}")
        saved = list(e.vm); nt = e.ntok
        fn("sc1")
        e(f"s_branch {Ld}")
        e.label(Lf)
        e.vm = saved; e.ntok = nt
        r = fn("")
        e.label(Ld)
        return r

    def load_frags(self, dst, sbase, nfr, acc=False, flag=None, stmp=sT7):
        e = self.e; toks = []
        for t in range(nfr):
            if t % 4 == 0:
                if t == 0: so = f"s{sbase}"
                else:
                    e(f"s_add_u32 s{stmp}, s{sbase}, {t*1024}"); so = f"s{stmp}"
            toks.append(self.ws_load(dst + 4 * t, so, (t % 4) * 1024, acc=acc, flag=flag))
        return toks

    def poll(self, kind, setup):
        e = self.e
        Lp = e.newlabel("POLL"); Lok = e.newlabel("POLLOK")
        e(f"s_mov_b32 s{sPOLL}, 0")
        e.label(Lp)
        setup()
        e(f"s_cbranch_vccz {Lok}")
        e(f"s_add_u32 s{sPOLL}, s{sPOLL}, 1\ns_cmp_lt_u32 s{sPOLL}, 400000\ns_cbranch_scc1 {Lp}")
        e("s_branch L_END")
        e.label(Lok)

    def sync_cluster(self, sid, tok=None, pre_barrier=None, window=None, drain=False, halo_flag=False):
        e = self.e
        e.wait_vm(tok)
        if pre_barrier: pre_barrier()
        e("s_barrier")
        L0 = e.newlabel("SYNCA"); L = e.newlabel("SYNC")
        e(f"s_lshl_b32 s{sFA}, s{sC}, 7\ns_add_u32 s{sFA}, s{sFA}, s{sFLC}\ns_add_u32 s{sFA}, s{sFA}, {sid*4096}")
        e(f"s_cmp_lg_u32 s{sW}, 0\ns_cbranch_scc1 {L0}")
        e(f"s_lshl_b32 s{sT1}, s{sJ}, 2\nv_mov_b32 v16, s{sT1}\nv_mov_b32 v17, s{sTAG}")
        e("s_mov_b64 exec, 1")
        saved = list(e.vm)
        self.moded(lambda fl: e(f"buffer_store_dword v17, v16, s[{SRD_WS}:{SRD_WS+3}], s{sFA} offen {fl}"))
        e.vm = saved
        e("s_mov_b64 exec, -1")
        e.label(L0)
        if window: window()
        e(f"s_cmp_lg_u32 s{sW}, 0\ns_cbranch_scc1 {L}")
        e(f"v_and_b32 v16, 7, v{vL}\nv_lshlrev_b32 v16, 2, v16")
        def setup():
            e(f"buffer_load_dword v17, v16, s[{SRD_WS}:{SRD_WS+3}], s{sFA} offen sc1\ns_waitcnt vmcnt(0)")
            e(f"v_cmp_ne_u32 vcc, s{sTAG}, v17")
        self.poll("c", setup)
        e.label(L)
        if drain:
            e("s_waitcnt vmcnt(0)"); e.vm = []
        e("s_barrier")
        if halo_flag:
            L2 = e.newlabel("HF")
            e(f"s_cmp_lg_u32 s{sW}, 0\ns_cbranch_scc1 {L2}")
            e(f"s_lshl_b32 s{sT0}, s{sHALF}, 12\ns_lshl_b32 s{sT1}, s{sC}, 7\ns_add_u32 s{sT0}, s{sT0}, s{sT1}\ns_add_u32 s{sT0}, s{sT0}, {FL_H}")
            e(f"s_lshl_b32 s{sT1}, s{sJ}, 2\nv_mov_b32 v16, s{sT1}\nv_mov_b32 v17, s{sTAG}")
            e(f"s_mov_b64 exec, 1\nbuffer_store_dword v17, v16, s[{SRD_WS}:{SRD_WS+3}], s{sT0} offen sc1\ns_mov_b64 exec, -1")
            e.label(L2)

    def prologue(self):
        e = self.e
        e(f"s_cmp_ge_u32 s{sG}, 256\ns_cbranch_scc1 L_END")
        e(f"s_load_dwordx16 s[{sIN}:{sIN+15}], s[0:1], 0")
        if not getattr(self, "nopf", False):
            Lpf = e.newlabel("PF")
            e(f"s_getpc_b64 s[40:41]")
            e.label("L_PFBASE")
            e(f"s_mov_b32 s{sPFB}, s40\ns_mov_b32 s{sPFB+1}, s41")
            e(f"s_lshr_b32 s42, s{sG}, 3\ns_mul_i32 s42, s42, 3072\ns_add_u32 s43, s42, 3072\ns_cmp_gt_u32 s43, L_CODE_END-L_PFBASE\ns_cbranch_scc1 {Lpf}")
            e(f"s_add_u32 s40, s40, s42\ns_addc_u32 s41, s41, 0\nv_and_b32 v250, 63, v0\nv_lshrrev_b32 v251, 6, v0\nv_lshlrev_b32 v250, 4, v250\nv_min_u32 v251, 2, v251\nv_lshl_add_u32 v250, v251, 10, v250")
            e("global_load_dwordx4 v[252:255], v250, s[40:41]")
            e.label(Lpf)
        e(f"s_load_dwordx4 s[{sOUTP}:{sOUTP+3}], s[0:1], 64")
        e(f"s_load_dwordx2 s[{sOUTP+4}:{sOUTP+5}], s[0:1], 80")
        e(f"v_and_b32 v{vL}, 63, v{vTID}\nv_lshrrev_b32 v{vT0}, 6, v{vTID}")
        e(f"v_lshlrev_b32 v{vL16}, 4, v{vL}\nv_lshlrev_b32 v{vL4}, 2, v{vL}")
        e(f"v_readfirstlane_b32 s{sW}, v{vT0}")
        e(f"s_and_b32 s{sT0}, s{sG}, 7\ns_lshr_b32 s{sT1}, s{sG}, 3\ns_and_b32 s{sT2}, s{sT1}, 3")
        e(f"s_lshl_b32 s{sC}, s{sT0}, 2\ns_add_u32 s{sC}, s{sC}, s{sT2}\ns_lshr_b32 s{sJ}, s{sT1}, 2")
        e(f"s_and_b32 s{sP}, s{sW}, 1\ns_lshr_b32 s{sKH}, s{sW}, 1")
        e(f"s_max_u32 s{sHC}, s{sC}, 1\ns_sub_u32 s{sHC}, s{sHC}, 1")
        e(f"s_lshl_b32 s{sRB}, s{sC}, 1\ns_add_u32 s{sRB}, s{sRB}, s{sP}")
        e(f"s_lshl_b32 s{sNB}, s{sJ}, 1\ns_add_u32 s{sNB}, s{sNB}, s{sKH}")
        e(f"s_lshl_b32 s{sRBOFF}, s{sRB}, 15\ns_lshl_b32 s{sT0}, s{sNB}, 11\ns_add_u32 s{sRBOFF}, s{sRBOFF}, s{sT0}")
        e(f"s_lshl_b32 s{sSTOFF}, s{sRB}, 12\ns_lshl_b32 s{sT0}, s{sNB}, 8\ns_add_u32 s{sSTOFF}, s{sSTOFF}, s{sT0}")
        e(f"v_and_b32 v{vT0}, 31, v{vL}\nv_lshrrev_b32 v{vT1}, 5, v{vL}\nv_lshlrev_b32 v{vSTAT}, 3, v{vT0}\nv_lshl_add_u32 v{vSTAT}, v{vT1}, 2, v{vSTAT}")
        e(f"s_lshl_b32 s{sT0}, s{sP}, 4\ns_sub_u32 s{sT0}, s{sT0}, 16\nv_add_u32 v{vHALO}, s{sT0}, v{vL}\nv_lshlrev_b32 v{vHALO}, 4, v{vHALO}")
        e("s_waitcnt lgkmcnt(0)")
        e(f"s_mov_b32 s{SRD_WS}, s{sOUTP+4}\ns_mov_b32 s{SRD_WS+1}, s{sOUTP+5}\ns_mov_b32 s{SRD_WS+2}, {WS_BYTES}\ns_mov_b32 s{SRD_WS+3}, 0x20000")
        e(f"s_mov_b32 s{SRD_OUT}, s{sOUTP}\ns_mov_b32 s{SRD_OUT+1}, s{sOUTP+1}\ns_mov_b32 s{SRD_OUT+2}, {2048*512*2}\ns_mov_b32 s{SRD_OUT+3}, 0x20000")
        e(f"s_mov_b32 s{sHALF}, 0")
        e(f"s_getreg_b32 s3, hwreg(HW_REG_XCC_ID)\ns_and_b32 s3, s3, 15\ns_mov_b32 s{sMODE}, 0")

    def tag_from(self, vreg):
        e = self.e
        e(f"v_readfirstlane_b32 s{sTAG}, v{vreg}")
        e(f"s_mul_i32 s{sTAG}, s{sTAG}, 0x9E3779B1\ns_add_u32 s{sTAG}, s{sTAG}, 0x7F4A7C15")
        Lx = e.newlabel("XW")
        e(f"s_cmp_lg_u32 s{sW}, 0\ns_cbranch_scc1 {Lx}")
        e(f"s_add_u32 s{sT0}, s{sTAG}, s3\ns_add_u32 s{sT0}, s{sT0}, 16\nv_mov_b32 v{vT0}, s{sT0}")
        e(f"s_lshl_b32 s{sT1}, s{sC}, 3\ns_add_u32 s{sT1}, s{sT1}, s{sJ}\ns_lshl_b32 s{sT1}, s{sT1}, 2\ns_add_u32 s{sT1}, s{sT1}, {FL_XW}\nv_mov_b32 v{vT1}, 0")
        e(f"s_mov_b64 exec, 1\nbuffer_store_dword v{vT0}, v{vT1}, s[{SRD_WS}:{SRD_WS+3}], s{sT1} offen sc1\ns_mov_b64 exec, -1")
        e.label(Lx)

    def publish_x(self, sX, sST, sHXr=None, moded=True):
        e = self.e
        e(f"s_add_u32 s{sT0}, s{sX}, s{sRBOFF}")
        def st1(fl):
            for c in range(2): t = self.ws_store(XR + 4 * c, f"s{sT0}", c * 1024, flag=fl)
            return t
        if moded: self.moded(st1)
        else: st1("sc1")
        e(f"v_mov_b32 v16, 0x3f803f80")
        e(f"v_dot2_f32_bf16 v17, v{XR}, v16, 0\nv_dot2_f32_bf16 v18, v{XR}, v{XR}, 0")
        for i in range(1, 8):
            e(f"v_dot2_f32_bf16 v17, v{XR+i}, v16, v17\nv_dot2_f32_bf16 v18, v{XR+i}, v{XR+i}, v18")
        e("v_permlane32_swap_b32 v17, v18\nv_add_f32 v17, v17, v18")
        e(f"s_add_u32 s{sT0}, s{sST}, s{sSTOFF}")
        st2 = lambda fl: self.ws_store(17, f"s{sT0}", 0, voff=vSTAT, n=1, flag=fl)
        tok = self.moded(st2) if moded else st2("sc1")
        if sHXr is not None:
            e(f"s_lshl_b32 s{sT1}, s{sC}, 15\ns_add_u32 s{sT1}, s{sT1}, s{sHXr}\ns_lshl_b32 s{sT2}, s{sNB}, 11\ns_add_u32 s{sT1}, s{sT1}, s{sT2}")
            e("s_mov_b32 exec_lo, 0xffff0000\ns_mov_b32 exec_hi, 0xffff0000")
            for c in range(2):
                self.ws_store(XR + 4 * c, f"s{sT1}", c * 1024, voff=vHALO, flag="sc1")
            e("s_mov_b64 exec, -1")
            e(f"s_add_u32 s{sT0}, s{sSTH}, s{sSTOFF}")
            self.ws_store(17, f"s{sT0}", 0, voff=vSTAT, n=1, flag="sc1")
        return tok

    def load_stats_issue(self, dst, sST, srb):
        e = self.e
        e(f"v_and_b32 v{dst+16}, 31, v{vL}\nv_lshlrev_b32 v{dst+16}, 3, v{dst+16}\nv_lshrrev_b32 v{dst+17}, 5, v{vL}\nv_lshl_add_u32 v{dst+16}, v{dst+17}, 11, v{dst+16}")
        e(f"s_lshl_b32 s{sT0}, s{srb}, 12\ns_add_u32 s{sT0}, s{sT0}, s{sST}")
        tok = None
        for t in range(8):
            tok = self.ws_load(dst + 2 * t, f"s{sT0}", t * 256, voff=dst + 16, n=2)
        return tok
    def stats_finish(self, src, vmean, vrstd):
        e = self.e
        for t in range(1, 8):
            e(f"v_add_f32 v{src}, v{src}, v{src+2*t}\nv_add_f32 v{src+1}, v{src+1}, v{src+2*t+1}")
        e(f"v_permlane32_swap_b32 v{src}, v{src+1}\nv_add_f32 v{src}, v{src}, v{src+1}\nv_mov_b32 v{src+1}, v{src}")
        e(f"v_permlane32_swap_b32 v{src}, v{src+1}")
        e(f"v_mul_f32 v{vmean}, {fbits(1/512)}, v{src}")
        e(f"v_mul_f32 v{src+1}, {fbits(1/512)}, v{src+1}")
        e(f"v_fma_f32 v{src+1}, -v{vmean}, v{vmean}, v{src+1}")
        e(f"v_add_f32 v{src+1}, {fbits(1e-5)}, v{src+1}")
        e(f"v_rsq_f32 v{vrstd}, v{src+1}")

    def p0(self):
        e = self.e
        e(f"s_mov_b32 s{SRD_T}, s{sIN}\ns_mov_b32 s{SRD_T+1}, s{sIN+1}\ns_mov_b32 s{SRD_T+2}, {2048*1024}\ns_mov_b32 s{SRD_T+3}, 0x20000")
        e(f"v_and_b32 v16, 31, v{vL}\nv_lshlrev_b32 v16, 11, v16\nv_lshrrev_b32 v17, 5, v{vL}\nv_lshl_add_u32 v16, v17, 3, v16")
        e(f"s_lshl_b32 s{sT0}, s{sC}, 6\ns_add_u32 s{sT0}, s{sT0}, s{sP}\ns_lshl_b32 s{sT0}, s{sT0}, 10\ns_lshl_b32 s{sT1}, s{sNB}, 6\ns_add_u32 s{sT0}, s{sT0}, s{sT1}")
        for q in range(4):
            e.vmem(f"buffer_load_dwordx2 v[{XR+2*q}:{XR+2*q+1}], v16, s[{SRD_T}:{SRD_T+3}], s{sT0} offen offset:{16*q}")
        e.wait_vm()
        e(f"s_mov_b32 s{sA0}, {X0}\ns_mov_b32 s{sA1}, {ST0}")
        self.publish_x(sA0, sA1, moded=False)
        Lskip = e.newlabel("P0SKIP"); Lkv = e.newlabel("P0KV"); Lgo = e.newlabel("P0GO"); Lld = e.newlabel("P0LD")
        e(f"s_cmp_ge_u32 s{sG}, 97\ns_cbranch_scc1 {Lskip}")
        pw = lambda i: (sIN + 2 * i, sIN + 2 * i + 1)
        e(f"s_cmp_eq_u32 s{sG}, 16\ns_cbranch_scc1 {Lkv}")
        e(f"s_mov_b32 s{SRD_T}, s{pw(1)[0]}\ns_mov_b32 s{SRD_T+1}, s{pw(1)[1]}\ns_mov_b32 s{SRD_T+2}, {512*1024}\ns_mov_b32 s{sA2}, 1024\ns_lshl_b32 s{sA3}, s{sG}, 6")
        e(f"s_cmp_lt_u32 s{sG}, 16\ns_cbranch_scc1 {Lgo}")
        e(f"s_mov_b32 s{SRD_T}, s{pw(4)[0]}\ns_mov_b32 s{SRD_T+1}, s{pw(4)[1]}\ns_sub_u32 s{sA3}, s{sG}, 17\ns_lshl_b32 s{sA3}, s{sA3}, 6")
        e(f"s_cmp_lt_u32 s{sG}, 33\ns_cbranch_scc1 {Lgo}")
        e(f"s_mov_b32 s{SRD_T}, s{pw(6)[0]}\ns_mov_b32 s{SRD_T+1}, s{pw(6)[1]}\ns_mov_b32 s{SRD_T+2}, {512*3072}\ns_mov_b32 s{sA2}, 3072\ns_sub_u32 s{sA3}, s{sG}, 33\ns_lshl_b32 s{sA3}, s{sA3}, 6")
        e(f"s_cmp_lt_u32 s{sG}, 81\ns_cbranch_scc1 {Lgo}")
        e(f"s_mov_b32 s{SRD_T}, s{pw(7)[0]}\ns_mov_b32 s{SRD_T+1}, s{pw(7)[1]}\ns_mov_b32 s{SRD_T+2}, {512*1024}\ns_mov_b32 s{sA2}, 1024\ns_sub_u32 s{sA3}, s{sG}, 81\ns_lshl_b32 s{sA3}, s{sA3}, 6")
        e.label(Lgo)
        e(f"s_mov_b32 s{SRD_T+3}, 0x20000")
        e(f"v_lshrrev_b32 v16, 2, v{vL}\nv_mul_lo_u32 v16, v16, s{sA2}\nv_and_b32 v17, 3, v{vL}\nv_lshl_add_u32 v16, v17, 4, v16")
        e(f"s_lshl_b32 s{sT0}, s{sW}, 7\ns_mul_i32 s{sT0}, s{sT0}, s{sA2}\ns_add_u32 s{sT0}, s{sT0}, s{sA3}\ns_lshl_b32 s{sT1}, s{sA2}, 4")
        for it in range(8):
            e(f"buffer_load_dwordx4 v[{32+4*it}:{35+4*it}], v16, s[{SRD_T}:{SRD_T+3}], s{sT0} offen")
            if it < 7: e(f"s_add_u32 s{sT0}, s{sT0}, s{sT1}")
        e(f"s_branch {Lld}")
        e.label(Lkv)
        e(f"v_lshrrev_b32 v16, 2, v{vL}\nv_lshlrev_b32 v16, 5, v16\nv_and_b32 v17, 1, v{vL}\nv_lshl_add_u32 v16, v17, 4, v16")
        e(f"s_lshl_b32 s{sT0}, s{sW}, 12")
        e(f"v_and_b32 v17, 2, v{vL}\nv_cmp_eq_u32 vcc, 0, v17")
        e(f"s_mov_b32 s{SRD_T}, s{pw(3)[0]}\ns_mov_b32 s{SRD_T+1}, s{pw(3)[1]}\ns_mov_b32 s{SRD_T+2}, {512*32}\ns_mov_b32 s{SRD_T+3}, 0x20000")
        e(f"s_mov_b64 s[{sM0}:{sM0+1}], vcc")
        e(f"s_mov_b64 exec, s[{sM0}:{sM0+1}]")
        for it in range(8):
            e(f"buffer_load_dwordx4 v[{32+4*it}:{35+4*it}], v16, s[{SRD_T}:{SRD_T+3}], s{sT0} offen offset:{it*512}")
        e(f"s_mov_b64 exec, -1\ns_andn2_b64 exec, exec, s[{sM0}:{sM0+1}]")
        e(f"s_mov_b32 s{SRD_T}, s{pw(2)[0]}\ns_mov_b32 s{SRD_T+1}, s{pw(2)[1]}\ns_mov_b32 s{SRD_T+2}, {512*32}\ns_mov_b32 s{SRD_T+3}, 0x20000")
        for it in range(8):
            e(f"buffer_load_dwordx4 v[{32+4*it}:{35+4*it}], v16, s[{SRD_T}:{SRD_T+3}], s{sT0} offen offset:{it*512}")
        e("s_mov_b64 exec, -1")
        e.label(Lld)
        e("s_waitcnt vmcnt(0)")
        e(f"s_lshl_b32 s{sT0}, s{sW}, 13\nv_add_u32 v17, s{sT0}, v{vL16}")
        for it in range(8):
            e(f"ds_write_b128 v17, v[{32+4*it}:{35+4*it}] offset:{it*1024}")
        e(f"v_and_b32 v18, 15, v{vL}\nv_lshrrev_b32 v19, 2, v18\nv_lshrrev_b32 v20, 5, v{vL}\nv_lshl_add_u32 v19, v20, 2, v19\nv_lshlrev_b32 v19, 6, v19")
        e(f"v_and_b32 v20, 3, v18\nv_lshl_add_u32 v19, v20, 3, v19\nv_bfe_u32 v20, v{vL}, 4, 1\nv_lshl_add_u32 v19, v20, 5, v19\nv_add_u32 v19, s{sT0}, v19")
        e("s_waitcnt lgkmcnt(0)")
        for t in range(8):
            e(f"ds_read_b64_tr_b16 v[{64+4*t}:{65+4*t}], v19 offset:{t*1024}")
            e(f"ds_read_b64_tr_b16 v[{66+4*t}:{67+4*t}], v19 offset:{t*1024+512}")
        e("s_waitcnt lgkmcnt(0)")
        e(f"s_lshl_b32 s{sT0}, s{sG}, 15\ns_lshl_b32 s{sT1}, s{sW}, 13\ns_add_u32 s{sT0}, s{sT0}, s{sT1}\ns_add_u32 s{sT0}, s{sT0}, {WF}\ns_add_u32 s{sT1}, s{sT0}, 4096")
        for t in range(8):
            self.ws_store(64 + 4 * t, f"s{sT0 if t < 4 else sT1}", (t % 4) * 1024)
        e("v_mov_b32 v16, 0x3f803f80\nv_mov_b32 v17, 0")
        for i in range(32):
            e(f"v_dot2_f32_bf16 v17, v{64+i}, v16, v17")
        e("v_mov_b32 v18, v17\nv_permlane32_swap_b32 v17, v18\nv_add_f32 v17, v17, v18")
        e(f"s_lshl_b32 s{sT0}, s{sW}, 8\nv_add_u32 v18, s{sT0}, v{vL4}\nds_write_b32 v18, v17 offset:32768\ns_waitcnt lgkmcnt(0)\ns_barrier")
        e(f"ds_read_b32 v20, v{vL4} offset:32768\nds_read_b32 v21, v{vL4} offset:{32768+256}\nds_read_b32 v22, v{vL4} offset:{32768+512}\nds_read_b32 v23, v{vL4} offset:{32768+768}\ns_waitcnt lgkmcnt(0)")
        e("v_add_f32 v20, v20, v21\nv_add_f32 v22, v22, v23\nv_add_f32 v20, v20, v22")
        Lcs = e.newlabel("P0CS")
        e(f"s_cmp_lg_u32 s{sW}, 0\ns_cbranch_scc1 {Lcs}")
        e(f"s_lshl_b32 s{sT0}, s{sG}, 7\ns_add_u32 s{sT0}, s{sT0}, {CS}\ns_mov_b32 exec_hi, 0")
        self.ws_store(20, f"s{sT0}", 0, voff=vL4, n=1)
        e("s_mov_b64 exec, -1")
        e.label(Lcs)
        e.label(Lskip)
        e.wait_vm(); e("s_barrier")
        L = e.newlabel("G0")
        e(f"s_cmp_lg_u32 s{sW}, 0\ns_cbranch_scc1 {L}")
        e(f"v_lshlrev_b32 v16, 10, v{vL}\ns_lshl_b32 s{sT0}, s{sG}, 2\ns_add_u32 s{sT0}, s{sT0}, {FL_G0}\nv_mov_b32 v17, s{sTAG}")
        e(f"s_mov_b64 exec, 0xff\nbuffer_store_dword v17, v16, s[{SRD_WS}:{SRD_WS+3}], s{sT0} offen sc1\ns_mov_b64 exec, -1")
        e(f"s_and_b32 s{sT0}, s{sG}, 7\ns_lshl_b32 s{sT0}, s{sT0}, 10\ns_add_u32 s{sT0}, s{sT0}, {FL_G0}")
        def setup():
            e(f"buffer_load_dwordx4 v[16:19], v{vL16}, s[{SRD_WS}:{SRD_WS+3}], s{sT0} offen sc1\ns_waitcnt vmcnt(0)")
            e(f"v_xor_b32 v16, s{sTAG}, v16\nv_xor_b32 v17, s{sTAG}, v17\nv_xor_b32 v18, s{sTAG}, v18\nv_xor_b32 v19, s{sTAG}, v19")
            e("v_or_b32 v16, v16, v17\nv_or_b32 v18, v18, v19\nv_or_b32 v16, v16, v18\nv_cmp_ne_u32 vcc, 0, v16")
        self.poll("g", setup)
        self.mode_detect()
        e.label(L)
        e("s_barrier")
        self.mode_read()
        e.reset_counters()

    def mode_detect(self):
        e = self.e
        Lp = e.newlabel("XPOLL"); Lok = e.newlabel("XOK")
        e(f"s_lshl_b32 s{sT0}, s{sC}, 5\ns_add_u32 s{sT0}, s{sT0}, {FL_XW}\nv_and_b32 v16, 7, v{vL}\nv_lshlrev_b32 v16, 2, v16\ns_mov_b32 s{sPOLL}, 0")
        e.label(Lp)
        e(f"buffer_load_dword v17, v16, s[{SRD_WS}:{SRD_WS+3}], s{sT0} offen sc1\ns_waitcnt vmcnt(0)")
        e(f"v_subrev_u32 v17, s{sTAG}, v17\nv_subrev_u32 v17, 16, v17\nv_cmp_le_u32 vcc, 16, v17")
        e(f"s_cbranch_vccz {Lok}")
        e(f"s_add_u32 s{sPOLL}, s{sPOLL}, 1\ns_cmp_lt_u32 s{sPOLL}, 400000\ns_cbranch_scc1 {Lp}\ns_branch L_END")
        e.label(Lok)
        e(f"v_cmp_ne_u32 vcc, s3, v17\ns_nop 4\ns_cmp_eq_u64 vcc, 0\ns_cselect_b32 s{sT1}, 1, 0")
        if getattr(self, "force_safe", False): e(f"s_mov_b32 s{sT1}, 0")
        e(f"v_mov_b32 v16, {MODEADDR}\nv_mov_b32 v17, s{sT1}\nds_write_b32 v16, v17\ns_waitcnt lgkmcnt(0)")
    def mode_read(self):
        e = self.e
        e(f"v_mov_b32 v16, {MODEADDR}\nds_read_b32 v17, v16\ns_waitcnt lgkmcnt(0)\nv_readfirstlane_b32 s{sMODE}, v17")


    def first_phase(self):
        e = self.e
        XI, WQI, WVI = 0, 65536, 131072
        STX, CSP, CSK, REDKV, VT, RED = 8192, 9216, 9728, 12288, 16384, 32768
        SRD_X, SRD_Q, SRD_P = 8, 68, 72
        pw = lambda i: (sIN + 2 * i, sIN + 2 * i + 1)
        sR = sA0
        for k, i in enumerate((1, 2, 3, 4, 6, 7)):
            e(f"s_mov_b32 s{88+2*k}, s{pw(i)[0]}\ns_mov_b32 s{89+2*k}, s{pw(i)[1]}")
        e(f"s_mov_b32 s{SRD_X}, s{sIN}\ns_mov_b32 s{SRD_X+1}, s{sIN+1}\ns_mov_b32 s{SRD_X+2}, {2048*1024}\ns_mov_b32 s{SRD_X+3}, 0x20000")
        e(f"s_mov_b32 s{SRD_Q}, s88\ns_mov_b32 s{SRD_Q+1}, s89\ns_mov_b32 s{SRD_Q+2}, {512*1024}\ns_mov_b32 s{SRD_Q+3}, 0x20000")
        e(f"v_mov_b32 v230, 0")
        e(f"buffer_load_dword v231, v230, s[{SRD_WS}:{SRD_WS+3}], 0 offen sc0 sc1")
        def x_rows(par_expr_sgpr, nrows, srow0):
            e(f"s_lshl_b32 s{sT3}, s{srow0}, 1\ns_add_u32 s{sT3}, s{sT3}, s{par_expr_sgpr}\ns_lshl_b32 s{sT4}, s{sC}, 6\ns_add_u32 s{sT3}, s{sT3}, s{sT4}\ns_lshl_b32 s{sT3}, s{sT3}, 10")
            e(f"s_lshl_b32 s{sT4}, s{par_expr_sgpr}, 5\ns_add_u32 s{sT4}, s{sT4}, s{srow0}\ns_lshl_b32 s{sT4}, s{sT4}, 10")
            e(f"s_and_b32 s{sT5}, s{srow0}, 15\ns_lshl_b32 s{sT5}, s{sT5}, 4")
            for t in range(nrows):
                e(f"v_xor_b32 v232, s{sT5}, v{vL16}\ns_mov_b32 m0, s{sT4}")
                e(f"buffer_load_dwordx4 v232, s[{SRD_X}:{SRD_X+3}], s{sT3} offen lds")
                if t < nrows - 1: e(f"s_add_u32 s{sT3}, s{sT3}, 2048\ns_add_u32 s{sT4}, s{sT4}, 1024\ns_add_u32 s{sT5}, s{sT5}, 16")
        def wq_rows(nit, srow_shift_expr):
            e(f"s_lshl_b32 s{sT3}, s{sT6}, 10\ns_lshl_b32 s{sT4}, s{sJ}, 7\ns_add_u32 s{sT3}, s{sT3}, s{sT4}\ns_lshl_b32 s{sT4}, s{sT6}, 7\ns_add_u32 s{sT4}, s{sT4}, {WQI}")
            for t in range(nit):
                e(f"s_mov_b32 m0, s{sT4}\ns_add_u32 s{sT4}, s{sT4}, 1024")
                e(f"buffer_load_dwordx4 v233, s[{SRD_Q}:{SRD_Q+3}], s{sT3} offen lds")
                if t < nit - 1: e(f"s_add_u32 s{sT3}, s{sT3}, 8192")
        e(f"v_lshrrev_b32 v233, 3, v{vL}\nv_lshlrev_b32 v233, 10, v233\nv_and_b32 v234, 7, v{vL}\nv_lshl_add_u32 v233, v234, 4, v233")
        e(f"s_mul_i32 s{sR}, s{sC}, 6\ns_add_u32 s{sR}, s{sR}, s{sJ}\ns_sub_u32 s{sR}, s{sR}, 2\ns_cmp_lt_u32 s{sJ}, 2\ns_cselect_b32 s{sR}, 255, s{sR}")
        def _pl():
            Lnp = e.newlabel("FNP"); Lgo = e.newlabel("FGO"); Lkvb = e.newlabel("FKVB")
            e(f"s_cmp_ge_u32 s{sR}, 97\ns_cbranch_scc1 {Lnp}")
            e(f"s_cmp_eq_u32 s{sR}, 16\ns_cbranch_scc1 {Lkvb}")
            e(f"s_mov_b32 s{SRD_P}, s88\ns_mov_b32 s{SRD_P+1}, s89\ns_mov_b32 s{SRD_P+2}, {512*1024}\ns_mov_b32 s{sA2}, 1024\ns_lshl_b32 s{sA3}, s{sR}, 6")
            e(f"s_cmp_lt_u32 s{sR}, 16\ns_cbranch_scc1 {Lgo}")
            e(f"s_mov_b32 s{SRD_P}, s94\ns_mov_b32 s{SRD_P+1}, s95\ns_sub_u32 s{sA3}, s{sR}, 17\ns_lshl_b32 s{sA3}, s{sA3}, 6")
            e(f"s_cmp_lt_u32 s{sR}, 33\ns_cbranch_scc1 {Lgo}")
            e(f"s_mov_b32 s{SRD_P}, s96\ns_mov_b32 s{SRD_P+1}, s97\ns_mov_b32 s{SRD_P+2}, {512*3072}\ns_mov_b32 s{sA2}, 3072\ns_sub_u32 s{sA3}, s{sR}, 33\ns_lshl_b32 s{sA3}, s{sA3}, 6")
            e(f"s_cmp_lt_u32 s{sR}, 81\ns_cbranch_scc1 {Lgo}")
            e(f"s_mov_b32 s{SRD_P}, s98\ns_mov_b32 s{SRD_P+1}, s99\ns_mov_b32 s{SRD_P+2}, {512*1024}\ns_mov_b32 s{sA2}, 1024\ns_sub_u32 s{sA3}, s{sR}, 81\ns_lshl_b32 s{sA3}, s{sA3}, 6")
            e.label(Lgo)
            e(f"s_mov_b32 s{SRD_P+3}, 0x20000")
            e(f"v_lshrrev_b32 v235, 2, v{vL}\nv_mul_lo_u32 v235, v235, s{sA2}\nv_and_b32 v236, 3, v{vL}\nv_lshl_add_u32 v235, v236, 4, v235")
            e(f"s_lshl_b32 s{sT0}, s{sW}, 7\ns_mul_i32 s{sT0}, s{sT0}, s{sA2}\ns_add_u32 s{sT0}, s{sT0}, s{sA3}\ns_lshl_b32 s{sT1}, s{sA2}, 4")
            for it in range(8):
                e(f"buffer_load_dwordx4 a[{4*it}:{4*it+3}], v235, s[{SRD_P}:{SRD_P+3}], s{sT0} offen")
                if it < 7: e(f"s_add_u32 s{sT0}, s{sT0}, s{sT1}")
            e(f"s_branch {Lnp}")
            e.label(Lkvb)
            e(f"v_lshrrev_b32 v235, 2, v{vL}\nv_lshlrev_b32 v235, 5, v235\nv_and_b32 v236, 1, v{vL}\nv_lshl_add_u32 v235, v236, 4, v235")
            e(f"s_lshl_b32 s{sT0}, s{sW}, 12")
            e(f"v_and_b32 v236, 2, v{vL}\nv_cmp_eq_u32 vcc, 0, v236")
            e(f"s_mov_b32 s{SRD_P}, s92\ns_mov_b32 s{SRD_P+1}, s93\ns_mov_b32 s{SRD_P+2}, {512*32}\ns_mov_b32 s{SRD_P+3}, 0x20000")
            e(f"s_mov_b64 s[{sM0}:{sM0+1}], vcc\ns_mov_b64 exec, s[{sM0}:{sM0+1}]")
            for it in range(8):
                e(f"buffer_load_dwordx4 a[{4*it}:{4*it+3}], v235, s[{SRD_P}:{SRD_P+3}], s{sT0} offen offset:{it*512}")
            e(f"s_mov_b64 exec, -1\ns_andn2_b64 exec, exec, s[{sM0}:{sM0+1}]")
            e(f"s_mov_b32 s{SRD_P}, s90\ns_mov_b32 s{SRD_P+1}, s91\ns_mov_b32 s{SRD_P+2}, {512*32}\ns_mov_b32 s{SRD_P+3}, 0x20000")
            for it in range(8):
                e(f"buffer_load_dwordx4 a[{4*it}:{4*it+3}], v235, s[{SRD_P}:{SRD_P+3}], s{sT0} offen offset:{it*512}")
            e("s_mov_b64 exec, -1")
            e.label(Lnp)
        self._prep_loads = _pl
        Lnk = e.newlabel("FNK"); Lcommon = e.newlabel("FCOM"); Lkvw = e.newlabel("FKVW")
        e(f"s_cmp_ge_u32 s{sJ}, 2\ns_cbranch_scc1 {Lnk}")
        for m, (ptr, base) in enumerate(((92, WVI), (90, WVI + 16384))):
            e(f"s_mov_b32 s{SRD_P}, s{ptr}\ns_mov_b32 s{SRD_P+1}, s{ptr+1}\ns_mov_b32 s{SRD_P+2}, 16384\ns_mov_b32 s{SRD_P+3}, 0x20000")
            e(f"s_lshl_b32 s{sT0}, s{sW}, 12\ns_add_u32 s{sT1}, s{sT0}, {base}\ns_mov_b32 m0, s{sT1}\ns_nop 0")
            for t in range(4):
                e(f"buffer_load_dwordx4 v{vL16}, s[{SRD_P}:{SRD_P+3}], s{sT0} offen offset:{t*1024} lds")
        e(f"s_lshl_b32 s{sT6}, s{sW}, 3")
        x_rows(sJ, 8, sT6)
        e(f"s_branch {Lcommon}")
        e.label(Lnk)
        self._prep_loads()
        e(f"s_lshr_b32 s{sT7}, s{sW}, 1\ns_and_b32 s{sT6}, s{sW}, 1\ns_lshl_b32 s{sT6}, s{sT6}, 4")
        x_rows(sT7, 16, sT6)
        e(f"s_lshl_b32 s{sT6}, s{sW}, 7")
        wq_rows(16, None)
        e.label(Lcommon)
        e(f"v_and_b32 v16, 31, v{vL}\nv_lshlrev_b32 v16, 11, v16\nv_lshrrev_b32 v17, 5, v{vL}\nv_lshl_add_u32 v16, v17, 3, v16")
        e(f"s_lshl_b32 s{sT0}, s{sC}, 6\ns_add_u32 s{sT0}, s{sT0}, s{sP}\ns_lshl_b32 s{sT0}, s{sT0}, 10\ns_lshl_b32 s{sT1}, s{sNB}, 6\ns_add_u32 s{sT0}, s{sT0}, s{sT1}")
        for q in range(4):
            e(f"buffer_load_dwordx2 v[{XR+2*q}:{XR+2*q+1}], v16, s[{SRD_X}:{SRD_X+3}], s{sT0} offen offset:{16*q}")
        self.stamp("f_issued")
        e(f"v_and_b32 v16, 31, v{vL}\nv_lshrrev_b32 v17, 5, v{vL}\nv_and_b32 v18, 15, v16\nv_lshlrev_b32 v19, 10, v16")
        e(f"s_lshl_b32 s{sT0}, s{sP}, 15\ns_lshl_b32 s{sT1}, s{sKH}, 9\ns_add_u32 s{sT0}, s{sT0}, s{sT1}\nv_add_u32 v19, s{sT0}, v19")
        for b in range(8):
            e(f"v_add_u32 v20, {2*b}, v17\nv_xor_b32 v20, v20, v18\nv_lshl_add_u32 v{240+b}, v20, 4, v19")
        e(f"v_and_b32 v18, 15, v{vL}\nv_lshrrev_b32 v20, 2, v18\nv_lshl_add_u32 v20, v17, 3, v20\nv_lshlrev_b32 v21, 7, v20")
        e(f"v_bfe_u32 v22, v{vL}, 4, 1\nv_lshl_add_u32 v21, v22, 5, v21\nv_and_b32 v23, 3, v18\nv_lshl_add_u32 v21, v23, 3, v21")
        e(f"s_lshl_b32 s{sT0}, s{sKH}, 15\ns_add_u32 s{sT0}, s{sT0}, {WQI}\ns_lshl_b32 s{sT1}, s{sKH}, 6\ns_add_u32 s{sT2}, s{sT0}, s{sT1}\nv_add_u32 v248, s{sT2}, v21")
        e(f"s_xor_b32 s{sT1}, s{sT1}, 64\ns_add_u32 s{sT2}, s{sT0}, s{sT1}\nv_add_u32 v249, s{sT2}, v21")
        e(f"v_lshlrev_b32 v21, 5, v20\nv_lshl_add_u32 v21, v22, 14, v21\nv_lshl_add_u32 v21, v23, 3, v21")
        e(f"s_lshl_b32 s{sT0}, s{sKH}, 13\ns_add_u32 s{sT0}, s{sT0}, {WVI}\nv_add_u32 v250, s{sT0}, v21")
        STXK, CSK, REDKV, VT = WVI, WVI + 256, WVI + 8192 + 512, WVI + 1024
        STX2, CSP, RED = WVI + 13312, WVI + 14336, WVI + 16384
        ONE = 229
        def xreads():
            for t in range(16):
                e(f"ds_read_b128 v[{16+4*t}:{19+4*t}], v{240+(t&7)} offset:{(t>>3)*256}")
            e(f"v_mov_b32 v{ONE}, 0x3f803f80\nv_mov_b32 v224, 0\nv_mov_b32 v225, 0\nv_mov_b32 v226, 0\nv_mov_b32 v236, 0\nv_mov_b32 v237, 0\nv_mov_b32 v238, 0")
            e("s_waitcnt lgkmcnt(0)")
        def stats_ops(t):
            acc = lambda k, d: ((224, 236), (225, 237))[k][d & 1]
            return [f"v_dot2_f32_bf16 v{acc(k,d)}, v{16+4*t+d}, v{ONE if k == 0 else 16+4*t+d}, v{acc(k,d)}" for d in range(4) for k in range(2)]
        def stats_write(sbase):
            e("v_add_f32 v224, v224, v236\nv_add_f32 v225, v225, v237")
            e("v_permlane32_swap_b32 v224, v225\nv_add_f32 v224, v224, v225")
            e(f"v_add_u32 v227, s{sbase}, v{vL4}\nds_write_b32 v227, v224")
        def stats_read(sbase, second):
            e(f"v_and_b32 v227, 31, v{vL}\nv_lshlrev_b32 v227, 2, v227\nv_add_u32 v227, s{sbase}, v227")
            e(f"ds_read_b32 v224, v227\nds_read_b32 v225, v227 offset:128\nds_read_b32 v226, v227 offset:{second}\nds_read_b32 v228, v227 offset:{second+128}")
            e("s_waitcnt lgkmcnt(0)")
            e(f"v_add_f32 v224, v224, v226\nv_add_f32 v225, v225, v228")
            e(f"v_mul_f32 v178, {fbits(1/512)}, v224\nv_mul_f32 v225, {fbits(1/512)}, v225\nv_fma_f32 v225, -v178, v178, v225\nv_add_f32 v225, {fbits(1e-5)}, v225\nv_rsq_f32 v179, v225")
        def cs_read(dst, base, second):
            e(f"v_lshrrev_b32 v228, 5, v{vL}\nv_lshlrev_b32 v228, 4, v228\nv_add_u32 v228, {base}, v228")
            for q in range(4):
                e(f"ds_read_b128 v[{dst+4*q}:{dst+3+4*q}], v228 offset:{32*q}\nds_read_b128 v[{112+4*q}:{115+4*q}], v228 offset:{second+32*q}")
            e("s_waitcnt lgkmcnt(0)")
            for r in range(16): e(f"v_add_f32 v{dst+r}, v{dst+r}, v{112+r}")
        def qpass(with_stats):
            Lp1 = e.newlabel("FQP1"); Lpd = e.newlabel("FQPD")
            e("v_mov_b32 v226, 0\nv_mov_b32 v238, 0")
            e(f"s_cmp_eq_u32 s{sP}, 1\ns_cbranch_scc1 {Lp1}")
            for var in range(2):
                if var == 1: e.label(Lp1)
                def rd(t):
                    r = 112 + (t % 4) * 8
                    e(f"ds_read_b64_tr_b16 v[{r}:{r+1}], v248 offset:{t*2048}\nds_read_b64_tr_b16 v[{r+2}:{r+3}], v248 offset:{t*2048+512}")
                    e(f"ds_read_b64_tr_b16 v[{r+4}:{r+5}], v249 offset:{t*2048}\nds_read_b64_tr_b16 v[{r+6}:{r+7}], v249 offset:{t*2048+512}")
                for t in range(3): rd(t)
                for t in range(16):
                    if t + 3 < 16: rd(t + 3)
                    e(f"s_waitcnt lgkmcnt({4*min(3, 15-t)})")
                    r = 112 + (t % 4) * 8
                    e(f"v_mfma_f32_32x32x16_bf16 v[80:95], v[{r}:{r+3}], v[{16+4*t}:{19+4*t}], {'0' if t == 0 else 'v[80:95]'}")
                    e(f"v_mfma_f32_32x32x16_bf16 v[96:111], v[{r+4}:{r+7}], v[{16+4*t}:{19+4*t}], {'0' if t == 0 else 'v[96:111]'}")
                    so = stats_ops(t) if with_stats else [None] * 8
                    for d in range(4):
                        if so[2*d]: e(so[2*d])
                        e(f"v_dot2_f32_bf16 v{226 if d % 2 == 0 else 238}, v{r+4*var+d}, v{ONE}, v{226 if d % 2 == 0 else 238}")
                        if so[2*d+1]: e(so[2*d+1])
                if var == 0: e(f"s_branch {Lpd}")
            e.label(Lpd)
            e(f"s_xor_b32 s{sT1}, s{sKH}, s{sP}\ns_lshl_b32 s{sT1}, s{sT1}, 8\ns_lshl_b32 s{sT2}, s{sKH}, 7\ns_add_u32 s{sT1}, s{sT1}, s{sT2}\ns_add_u32 s{sT1}, s{sT1}, {CSP}")
            e("v_add_f32 v226, v226, v238\nv_mov_b32 v228, v226\nv_permlane32_swap_b32 v226, v228\nv_add_f32 v226, v226, v228")
            e(f"v_add_u32 v228, s{sT1}, v{vL4}\ns_mov_b32 exec_hi, 0\nds_write_b32 v228, v226\ns_mov_b64 exec, -1")
        def prep_process():
            Lcs = e.newlabel("FPCS")
            PL = WVI
            e("s_waitcnt vmcnt(36)")
            e(f"s_lshl_b32 s{sT0}, s{sW}, 13\ns_add_u32 s{sT0}, s{sT0}, {PL}\nv_add_u32 v17, s{sT0}, v{vL16}")
            for it in range(8):
                e(f"ds_write_b128 v17, a[{4*it}:{4*it+3}] offset:{it*1024}")
            e(f"v_and_b32 v18, 15, v{vL}\nv_lshrrev_b32 v19, 2, v18\nv_lshrrev_b32 v20, 5, v{vL}\nv_lshl_add_u32 v19, v20, 2, v19\nv_lshlrev_b32 v19, 6, v19")
            e(f"v_and_b32 v20, 3, v18\nv_lshl_add_u32 v19, v20, 3, v19\nv_bfe_u32 v20, v{vL}, 4, 1\nv_lshl_add_u32 v19, v20, 5, v19\nv_add_u32 v19, s{sT0}, v19")
            e("s_waitcnt lgkmcnt(0)")
            for t in range(8):
                e(f"ds_read_b64_tr_b16 v[{32+4*t}:{33+4*t}], v19 offset:{t*1024}")
                e(f"ds_read_b64_tr_b16 v[{34+4*t}:{35+4*t}], v19 offset:{t*1024+512}")
            e(f"s_lshl_b32 s{sT2}, s{sR}, 15\ns_lshl_b32 s{sT1}, s{sW}, 13\ns_add_u32 s{sT2}, s{sT2}, s{sT1}\ns_add_u32 s{sT2}, s{sT2}, {WF}\ns_add_u32 s{sT1}, s{sT2}, 4096")
            e("v_mov_b32 v16, 0x3f803f80\nv_mov_b32 v17, 0")
            e("s_waitcnt lgkmcnt(0)")
            for t in range(8):
                e(f"buffer_store_dwordx4 v[{32+4*t}:{35+4*t}], v{vL16}, s[{SRD_WS}:{SRD_WS+3}], s{sT2 if t < 4 else sT1} offen offset:{(t%4)*1024} sc1")
            e("v_mov_b32 v21, 0\nv_mov_b32 v22, 0\nv_mov_b32 v23, 0")
            for i in range(32):
                ac = (17, 21, 22, 23)[i % 4]
                e(f"v_dot2_f32_bf16 v{ac}, v{32+i}, v16, v{ac}")
            e("v_add_f32 v21, v21, v22\nv_add_f32 v17, v17, v23\nv_add_f32 v17, v17, v21")
            e("v_mov_b32 v18, v17\nv_permlane32_swap_b32 v17, v18\nv_add_f32 v17, v17, v18")
            e(f"v_add_u32 v18, s{sT0}, v{vL4}\nds_write_b32 v18, v17\ns_waitcnt lgkmcnt(0)\ns_barrier")
            e(f"s_cmp_lg_u32 s{sW}, 0\ns_cbranch_scc1 {Lcs}")
            e(f"v_add_u32 v18, {PL}, v{vL4}")
            e(f"ds_read_b32 v20, v18\nds_read_b32 v21, v18 offset:8192\nds_read_b32 v22, v18 offset:16384\nds_read_b32 v23, v18 offset:24576\ns_waitcnt lgkmcnt(0)")
            e("v_add_f32 v20, v20, v21\nv_add_f32 v22, v22, v23\nv_add_f32 v20, v20, v22")
            e(f"s_lshl_b32 s{sT0}, s{sR}, 7\ns_add_u32 s{sT0}, s{sT0}, {CS}\ns_mov_b32 exec_hi, 0")
            e(f"buffer_store_dword v20, v{vL4}, s[{SRD_WS}:{SRD_WS+3}], s{sT0} offen sc1\ns_mov_b64 exec, -1")
            e.label(Lcs)
        Lkvp = e.newlabel("FKVP"); Lnkw = e.newlabel("FNKW"); Lqs = e.newlabel("FQS"); Lq2 = e.newlabel("FQ2"); Lred = e.newlabel("FRED"); Lep = e.newlabel("FEP")
        e(f"s_cmp_ge_u32 s{sJ}, 2\ns_cbranch_scc1 {Lnkw}")
        e(f"s_cmp_eq_u32 s{sP}, s{sJ}\ns_cbranch_scc1 {Lkvp}")
        e("s_waitcnt vmcnt(4)")
        self.tag_from(231)
        e("s_barrier")
        e(f"s_xor_b32 s{sT7}, s{sJ}, 1\ns_lshl_b32 s{sT6}, s{sKH}, 4")
        x_rows(sT7, 16, sT6)
        e(f"s_lshl_b32 s{sT6}, s{sKH}, 8")
        wq_rows(12, None)
        e("s_barrier")
        e(f"s_lshl_b32 s{sT6}, s{sKH}, 8\ns_add_u32 s{sT6}, s{sT6}, 96")
        wq_rows(20, None)
        e("s_waitcnt vmcnt(0)")
        e("s_barrier")
        e(f"s_branch {Lqs}")
        e.label(Lkvp)
        e("s_waitcnt vmcnt(4)")
        self.tag_from(231)
        e("s_barrier")
        self.stamp("f_b0")
        fl = getattr(self, "light", None) == "fkv"
        if fl: self.lstamp(0)
        xreads()
        if fl: self.lstamp(1)
        def kvrd(t): e(f"ds_read_b64_tr_b16 v[{160+4*t}:{161+4*t}], v250 offset:{t*512}\nds_read_b64_tr_b16 v[{162+4*t}:{163+4*t}], v250 offset:{t*512+128}")
        for t in range(5): kvrd(t)
        for t in range(16):
            if t + 5 < 16: kvrd(t + 5)
            e(f"s_waitcnt lgkmcnt({2*min(5, 15-t)})")
            e(f"v_mfma_f32_32x32x16_bf16 v[144:159], v[{160+4*t}:{163+4*t}], v[{16+4*t}:{19+4*t}], {'0' if t == 0 else 'v[144:159]'}")
            so = stats_ops(t)
            for d in range(4):
                e(so[2*d]); e(f"v_dot2_f32_bf16 v{226 if d % 2 == 0 else 238}, v{160+4*t+d}, v{ONE}, v{226 if d % 2 == 0 else 238}"); e(so[2*d+1])
        if fl: self.lstamp(2)
        e(f"s_lshl_b32 s{sT0}, s{sKH}, 13\ns_add_u32 s{sT0}, s{sT0}, {STXK}")
        stats_write(sT0)
        e(f"s_add_u32 s{sT1}, s{sT0}, 256")
        e("v_add_f32 v226, v226, v238\nv_mov_b32 v228, v226\nv_permlane32_swap_b32 v226, v228\nv_add_f32 v226, v226, v228")
        e(f"v_add_u32 v228, s{sT1}, v{vL4}\ns_mov_b32 exec_hi, 0\nds_write_b32 v228, v226\ns_mov_b64 exec, -1")
        Lx = e.newlabel("FKW")
        e(f"s_cmp_eq_u32 s{sKH}, 0\ns_cbranch_scc1 {Lx}")
        e(f"v_add_u32 v{vT0}, {REDKV}, v{vL16}")
        for q in range(4):
            e(f"ds_write_b128 v{vT0}, v[{144+4*q}:{147+4*q}] offset:{q*1024}")
        e.label(Lx)
        e("s_waitcnt lgkmcnt(0)")
        if fl: self.lstamp(3)
        e("s_barrier")
        if fl: self.lstamp(4)
        e(f"s_mov_b32 s{sT0}, {STXK}")
        stats_read(sT0, 8192)
        if fl: self.lstamp(5)
        Lk1 = e.newlabel("FK1")
        e(f"s_cmp_lg_u32 s{sKH}, 0\ns_cbranch_scc1 {Lk1}")
        self.kv_epilogue(REDKV, VT, 196, 178, 179, pre=lambda: cs_read(196, CSK, 8192), before_drain=(lambda: self.lstamp(6)) if fl else None)
        if fl:
            self.lstamp(7); self.lflush("fkv")
        self.stamp("f_kv")
        e("s_barrier")
        e(f"s_branch {Lq2}")
        e.label(Lk1)
        e("s_waitcnt vmcnt(0)\ns_barrier")
        e.label(Lq2)
        qpass(False)
        e(f"s_branch {Lred}")
        e.label(Lnkw)
        Lw0 = e.newlabel("FW0"); Lw1 = e.newlabel("FW1")
        e(f"s_cmp_ge_u32 s{sR}, 97\ns_cbranch_scc1 {Lw0}")
        prep_process()
        Lw2 = e.newlabel("FW2")
        e(f"s_cmp_eq_u32 s{sW}, 0\ns_cbranch_scc1 {Lw2}")
        e(f"s_waitcnt vmcnt(8)\ns_branch {Lw1}")
        e.label(Lw2)
        e(f"s_waitcnt vmcnt(9)\ns_branch {Lw1}")
        e.label(Lw0)
        e("s_waitcnt vmcnt(0)")
        e.label(Lw1)
        self.tag_from(231)
        e("s_barrier")
        e.label(Lqs)
        self.stamp("f_landed")
        xreads()
        qpass(True)
        e(f"s_lshl_b32 s{sT0}, s{sW}, 8\ns_add_u32 s{sT0}, s{sT0}, {STX2}")
        stats_write(sT0)
        e.label(Lred)
        self.reduce_pair(red=RED)
        Lst = e.newlabel("FST")
        e(f"s_cmp_eq_u32 s{sP}, s{sJ}\ns_cbranch_scc1 {Lst}")
        e(f"s_lshl_b32 s{sT0}, s{sP}, 8\ns_add_u32 s{sT0}, s{sT0}, {STX2}")
        stats_read(sT0, 512)
        e.label(Lst)
        e(f"s_lshl_b32 s{sT1}, s{sKH}, 8\ns_add_u32 s{sT1}, s{sT1}, {CSP}")
        e(f"v_lshrrev_b32 v228, 5, v{vL}\nv_lshlrev_b32 v228, 4, v228\nv_add_u32 v228, s{sT1}, v228")
        for q in range(4):
            e(f"ds_read_b128 v[{196+4*q}:{199+4*q}], v228 offset:{32*q}\nds_read_b128 v[{112+4*q}:{115+4*q}], v228 offset:{128+32*q}")
        e("s_waitcnt lgkmcnt(0)")
        for r in range(16): e(f"v_add_f32 v{196+r}, v{196+r}, v{112+r}")
        self.q_epilogue(196, 178, 179)
        self.stamp("f_q")
        e(f"s_mov_b32 s{sRANK}, s{sR}")
        e.reset_counters()

    def half_setup(self):
        e = self.e
        e(f"s_lshl_b32 s{sT0}, s{sHALF}, 22")
        e(f"s_add_u32 s{sXIN}, s{sT0}, {X0}\ns_add_u32 s{sXMID}, s{sXIN}, 0x200000\ns_add_u32 s{sXOUT}, s{sXIN}, 0x400000")
        e(f"s_lshl_b32 s{sT0}, s{sHALF}, 19")
        e(f"s_add_u32 s{sSTIN}, s{sT0}, {ST0}\ns_add_u32 s{sSTMID}, s{sSTIN}, 0x40000\ns_add_u32 s{sSTOUT}, s{sSTIN}, 0x80000")
        e(f"s_lshl_b32 s{sT0}, s{sHALF}, 21")
        e(f"s_add_u32 s{sOA}, s{sT0}, {OA}\ns_add_u32 s{sOB}, s{sT0}, {OB}")
        e(f"s_lshl_b32 s{sT0}, s{sHALF}, 20\ns_add_u32 s{sHX}, s{sT0}, {HX}")
        e(f"s_lshl_b32 s{sT0}, s{sHALF}, 18\ns_add_u32 s{sKF}, s{sT0}, {KF}")
        e(f"s_lshl_b32 s{sT0}, s{sHALF}, 14\ns_add_u32 s{sFLC}, s{sT0}, {FL_C}")
        e(f"s_lshl_b32 s{sT0}, s{sHALF}, 18\ns_add_u32 s{sSTH}, s{sT0}, {STH}")


    def w_pair_bases(self, wb, sK, sS):
        e = self.e
        e(f"s_lshl_b32 s{sT2}, s{sKH}, 14")
        e(f"s_add_u32 s{sK}, s{sNB}, {wb}\ns_lshl_b32 s{sK}, s{sK}, 15\ns_add_u32 s{sK}, s{sK}, s{sT2}\ns_add_u32 s{sK}, s{sK}, {WF}")
        e(f"s_xor_b32 s{sS}, s{sNB}, 1\ns_add_u32 s{sS}, s{sS}, {wb}\ns_lshl_b32 s{sS}, s{sS}, 15\ns_add_u32 s{sS}, s{sS}, s{sT2}\ns_add_u32 s{sS}, s{sS}, {WF}")
    def load_w_pair(self, wb, dk, ds, acc=True):
        self.w_pair_bases(wb, sT0, sT1)
        self.load_frags(dk, sT0, 16, acc=acc)
        return self.load_frags(ds, sT1, 16, acc=acc)

    def load_act_half(self, sbuf, nfirst=16):
        e = self.e
        e(f"s_lshl_b32 s{sACT}, s{sRB}, 15\ns_lshl_b32 s{sT1}, s{sKH}, 14\ns_add_u32 s{sACT}, s{sACT}, s{sT1}\ns_add_u32 s{sACT}, s{sACT}, s{sbuf}")
        self._act = {}
        for t in range(nfirst): self.act_issue(t)
        return self._act
    def act_issue(self, t):
        if t >= 16 or t in self._act: return
        e = self.e
        if t % 4 == 0 and t: e(f"s_add_u32 s{sACT}, s{sACT}, 4096")
        self._act[t] = self.ws_load(16 + 4 * t, f"s{sACT}", (t % 4) * 1024)

    RED = 131072; REDKV = 147456; VT = 151552
    WL0 = 0; WL1 = 65536
    WKVL = 0
    def reduce_pair(self, red=None, extra_write=None):
        e = self.e
        red = self.RED if red is None else red
        e(f"s_lshl_b32 s{sT0}, s{sW}, 12\ns_add_u32 s{sT0}, s{sT0}, {red}\nv_add_u32 v{vT0}, s{sT0}, v{vL16}")
        e(f"s_xor_b32 s{sT0}, s{sT0}, 8192\nv_add_u32 v{vT1}, s{sT0}, v{vL16}")
        for q in range(4):
            e(f"ds_write_b128 v{vT0}, v[{96+4*q}:{99+4*q}] offset:{q*1024}")
        if extra_write: extra_write()
        e("s_waitcnt lgkmcnt(0)\ns_barrier")
        for q in range(4):
            e(f"ds_read_b128 v[{96+4*q}:{99+4*q}], v{vT1} offset:{q*1024}")
        for q in range(4):
            e(f"s_waitcnt lgkmcnt({3-q})")
            for r in range(4 * q, 4 * q + 4):
                e(f"v_add_f32 v{80+r}, v{80+r}, v{96+r}")
        e.lg = []

    def load_cs(self, dst, sidx_expr_reg, vaddr):
        tok = None
        for q in range(4):
            tok = self.ws_load(dst + 4 * q, f"s{sidx_expr_reg}", 32 * q, voff=vaddr)
        return tok

    def dma(self, soff, imm):
        return self.e.vmem(f"buffer_load_dwordx4 v{vL16}, s[{SRD_WS}:{SRD_WS+3}], {soff} offen offset:{imm} sc1 lds")
    def wpair_dma_list(self, wb, ldsbase, sM, sS):
        setup = [f"s_lshl_b32 s{sT0}, s{sW}, 14", f"s_add_u32 s{sM}, s{sT0}, {ldsbase}",
                 f"s_lshl_b32 s{sS}, s{sJ}, 16", f"s_add_u32 s{sS}, s{sS}, s{sT0}", f"s_add_u32 s{sS}, s{sS}, {WF + wb*32768}"]
        items = []
        for g in range(4):
            for t in range(4):
                pre = [f"s_mov_b32 m0, s{sM}", f"s_add_u32 s{sM}, s{sM}, 4096"] if t == 0 else []
                post = [f"s_add_u32 s{sS}, s{sS}, 4096"] if t == 3 else []
                items.append((pre, f"buffer_load_dwordx4 v{vL16}, s[{SRD_WS}:{SRD_WS+3}], s{sS} offen offset:{t*1024} sc1 lds", post))
        return setup, items
    def emit_item(self, it):
        pre, ld, post = it
        for x in pre: self.e(x)
        t = self.e.vmem(ld)
        for x in post: self.e(x)
        return t
    def wpair_dma(self, wb, ldsbase):
        setup, items = self.wpair_dma_list(wb, ldsbase, sA4, sA5)
        for x in setup: self.e(x)
        t = None
        for it in items: t = self.emit_item(it)
        return t

    WR = 112
    def pair_addrs(self, ldsbase):
        e = self.e
        e(f"s_lshl_b32 s{sT2}, s{sKH}, 14\ns_lshl_b32 s{sT3}, s{sKH}, 15\ns_add_u32 s{sT3}, s{sT3}, s{sT2}\ns_add_u32 s{sT3}, s{sT3}, {ldsbase}\nv_add_u32 v{vWK}, s{sT3}, v{vL16}")
        e(f"s_xor_b32 s{sT3}, s{sKH}, 1\ns_lshl_b32 s{sT3}, s{sT3}, 15\ns_add_u32 s{sT3}, s{sT3}, s{sT2}\ns_add_u32 s{sT3}, s{sT3}, {ldsbase}\nv_add_u32 v{vWS}, s{sT3}, v{vL16}")
    def pair_prime(self):
        e = self.e; self._wt = {}
        for t in range(3): self._pair_read(t)
    def _pair_read(self, t):
        e = self.e; r = self.WR + (t % 4) * 8
        e.lds(f"ds_read_b128 v[{r}:{r+3}], v{vWK} offset:{t*1024}")
        self._wt[t] = e.lds(f"ds_read_b128 v[{r+4}:{r+7}], v{vWS} offset:{t*1024}")
    def pair_mfma(self, toks, inter=None, AH=10):
        e = self.e
        for t in range(16):
            if t + 3 < 16: self._pair_read(t + 3)
            if toks is not None:
                self.act_issue(t + AH)
                e.wait_vm(toks[t])
            e.wait_lg(self._wt[t])
            r = self.WR + (t % 4) * 8
            e(f"v_mfma_f32_32x32x16_bf16 v[80:95], v[{r}:{r+3}], v[{16+4*t}:{19+4*t}], {'0' if t == 0 else 'v[80:95]'}")
            e(f"v_mfma_f32_32x32x16_bf16 v[96:111], v[{r+4}:{r+7}], v[{16+4*t}:{19+4*t}], {'0' if t == 0 else 'v[96:111]'}")
            if inter: inter(t)

    QL = 0; PS = 8192; SLOT = 2304; FAIL = 63488
    CSQ, CSKV = 180, 196
    def g4_prefetch_cs(self):
        e = self.e
        e(f"v_lshrrev_b32 v212, 5, v{vL}\nv_lshlrev_b32 v212, 4, v212")
        e(f"s_add_u32 s{sT0}, s{sNB}, {WB_Q}\ns_lshl_b32 s{sT0}, s{sT0}, 7\ns_add_u32 s{sT0}, s{sT0}, {CS}")
        self.load_cs(self.CSQ, sT0, 212)
        e(f"s_mov_b32 s{sT0}, {CS + WB_KV*128}")
        return self.load_cs(self.CSKV, sT0, 212)
    def g4_prefetch_kv(self):
        e = self.e
        L = e.newlabel("PFKV")
        e(f"s_cmp_eq_u32 s{sP}, s{sJ}\ns_cbranch_scc0 {L}")
        e(f"s_lshl_b32 s{sT2}, s{sKH}, 14\ns_add_u32 s{sT0}, s{sT2}, {WF + WB_KV*32768}")
        for t in range(16):
            if t % 4 == 0 and t: e(f"s_add_u32 s{sT0}, s{sT0}, 4096")
            e(f"buffer_load_dwordx4 a[{4*t}:{4*t+3}], v{vL16}, s[{SRD_WS}:{SRD_WS+3}], s{sT0} offen offset:{(t%4)*1024} sc1")
        e.label(L)

    def kv_epilogue(self, redkv, vt, CSKV, vmean, vrstd, pre=None, before_drain=None):
        e = self.e
        e(f"v_add_u32 v{vT0}, {redkv}, v{vL16}")
        for q in range(4):
            e(f"ds_read_b128 v[{96+4*q}:{99+4*q}], v{vT0} offset:{q*1024}")
        e(f"v_and_b32 v216, 31, v{vL}\nv_lshlrev_b32 v216, 5, v216\nv_lshrrev_b32 v217, 5, v{vL}\nv_lshl_add_u32 v216, v217, 3, v216\nv_add_u32 v216, {vt}, v216")
        e(f"v_and_b32 v218, 15, v{vL}\nv_bfe_u32 v219, v{vL}, 4, 1\nv_lshlrev_b32 v219, 4, v219\nv_lshl_add_u32 v219, v217, 2, v219\nv_lshrrev_b32 v220, 2, v218\nv_add_u32 v219, v219, v220\nv_lshlrev_b32 v219, 5, v219")
        e(f"v_and_b32 v220, 3, v218\nv_lshl_add_u32 v219, v220, 3, v219\nv_add_u32 v219, {vt}, v219")
        e(f"v_bfe_u32 v220, v{vL}, 4, 1\nv_mul_u32_u24 v220, 544, v220\nv_mul_u32_u24 v222, 272, v217\nv_add_u32 v220, v220, v222\nv_lshl_add_u32 v220, v218, 4, v220")
        e(f"s_lshl_b32 s{sT0}, s{sRB}, 10\ns_add_u32 s{sT0}, s{sT0}, s{sKF}")
        e(f"s_mul_i32 s{sT1}, s{sRB}, {VT_STRIDE}\ns_add_u32 s{sT1}, s{sT1}, s{sKF}\ns_add_u32 s{sT1}, s{sT1}, 0x10000")
        e(f"v_mul_u32_u24 v222, 272, v{vL}\nv_add_u32 v222, 256, v222")
        for r in range(4): e(f"v_mov_b32 v{224+r}, 0x3f803f80")
        e(f"s_mov_b64 exec, 0xf\nbuffer_store_dwordx4 v[224:227], v222, s[{SRD_WS}:{SRD_WS+3}], s{sT1} offen sc1\ns_mov_b64 exec, -1")
        e("s_waitcnt lgkmcnt(0)")
        if pre: pre()
        e(f"v_mul_f32 v214, v{vmean}, v{vrstd}\nv_sub_f32 v214, 0, v214")
        for r in range(16):
            e(f"v_add_f32 v{144+r}, v{144+r}, v{96+r}")
            e(f"v_mul_f32 v{96+r}, v214, v{CSKV+r}\nv_fma_f32 v{144+r}, v{144+r}, v{vrstd}, v{96+r}")
        for d in range(8):
            e(f"v_cvt_pk_bf16_f32 v{96+d}, v{144+2*d}, v{145+2*d}")
        e("ds_write_b64 v216, v[96:97]\nds_write_b64 v216, v[98:99] offset:16")
        e(f"buffer_store_dwordx4 v[100:103], v{vL16}, s[{SRD_WS}:{SRD_WS+3}], s{sT0} offen sc1")
        e("s_waitcnt lgkmcnt(0)")
        e("ds_read_b64_tr_b16 v[104:105], v219\nds_read_b64_tr_b16 v[106:107], v219 offset:256\ns_waitcnt lgkmcnt(0)")
        e(f"buffer_store_dwordx4 v[104:107], v220, s[{SRD_WS}:{SRD_WS+3}], s{sT1} offen sc1")
        e(f"s_lshl_b32 s{sT0}, s{sHALF}, 11\ns_lshl_b32 s{sT1}, s{sRB}, 2\ns_add_u32 s{sT0}, s{sT0}, s{sT1}\ns_add_u32 s{sT0}, s{sT0}, {FL_GK}")
        e(f"v_lshlrev_b32 v220, 8, v{vL}\nv_mov_b32 v221, s{sTAG}")
        if before_drain: before_drain()
        e("s_waitcnt vmcnt(0)")
        e(f"s_mov_b64 exec, 0xff\nbuffer_store_dword v221, v220, s[{SRD_WS}:{SRD_WS+3}], s{sT0} offen sc1\ns_mov_b64 exec, -1")

    def q_epilogue(self, CSQ, vmean, vrstd):
        e = self.e
        e(f"v_mul_f32 v214, {fbits(QSCALE)}, v{vrstd}")
        e(f"v_mul_f32 v215, v{vmean}, v214\nv_sub_f32 v215, 0, v215")
        e(f"s_lshl_b32 s{sT0}, s{sKH}, 2\ns_add_u32 s{sT0}, s{sT0}, s{sP}\ns_lshl_b32 s{sT0}, s{sT0}, 10\nv_add_u32 v{vT0}, s{sT0}, v{vL16}")
        for r in range(16):
            e(f"v_mul_f32 v{96+r}, v215, v{CSQ+r}\nv_fma_f32 v{80+r}, v{80+r}, v214, v{96+r}")
        for d in range(8):
            e(f"v_cvt_pk_bf16_f32 v{96+d}, v{80+2*d}, v{81+2*d}")
        e(f"ds_write_b128 v{vT0}, v[96:99] offset:{self.QL}\nds_write_b128 v{vT0}, v[100:103] offset:{self.QL+2048}")

    def g4(self):
        e = self.e
        CSQ, CSKV = self.CSQ, self.CSKV
        Lq = e.newlabel("G4Q"); Lb1 = e.newlabel("G4B1"); Lq2 = e.newlabel("G4Q2"); Lred = e.newlabel("G4RED")
        toks = self.load_act_half(sXIN, 10)
        e(f"v_and_b32 v176, 31, v{vL}\nv_lshlrev_b32 v176, 3, v176\nv_lshrrev_b32 v177, 5, v{vL}\nv_lshl_add_u32 v176, v177, 11, v176")
        e(f"s_lshl_b32 s90, s{sRB}, 12\ns_add_u32 s90, s90, s{sSTIN}")
        def stat_inter(t):
            if 6 <= t <= 9:
                for q in (2 * (t - 6), 2 * (t - 6) + 1):
                    self.ws_load(160 + 2 * q, "s90", q * 256, voff=176, n=2)
        self.pair_addrs(self.WL1)
        saved = list(e.vm); saved_act = dict(self._act)
        e(f"s_cmp_eq_u32 s{sP}, s{sJ}\ns_cbranch_scc0 {Lq}")
        for t in range(16):
            self.act_issue(t + 10)
            e.wait_vm(toks[t])
            e(f"v_mfma_f32_32x32x16_bf16 v[144:159], a[{4*t}:{4*t+3}], v[{16+4*t}:{19+4*t}], {'0' if t == 0 else 'v[144:159]'}")
            stat_inter(t)
        e(f"s_cmp_eq_u32 s{sKH}, 0\ns_cbranch_scc1 {Lb1}")
        e(f"v_add_u32 v{vT0}, {self.REDKV}, v{vL16}")
        for q in range(4):
            e(f"ds_write_b128 v{vT0}, v[{144+4*q}:{147+4*q}] offset:{q*1024}")
        e("s_waitcnt lgkmcnt(0)")
        e(f"s_branch {Lb1}")
        e.label(Lq)
        e.vm = list(saved); e.lg = []
        self._act = saved_act
        e(f"s_lshl_b32 s{sACT}, s{sRB}, 15\ns_lshl_b32 s{sT1}, s{sKH}, 14\ns_add_u32 s{sACT}, s{sACT}, s{sT1}\ns_add_u32 s{sACT}, s{sACT}, s{sXIN}\ns_add_u32 s{sACT}, s{sACT}, 8192")
        self.pair_prime()
        self.pair_mfma(self._act, stat_inter)
        e.label(Lb1)
        e("s_waitcnt vmcnt(0)"); e.reset_counters()
        self.stats_finish(160, 178, 179)
        e(f"s_cmp_ge_u32 s{sJ}, 2\ns_cbranch_scc1 {Lred}")
        e("s_barrier")
        e(f"s_cmp_eq_u32 s{sP}, s{sJ}\ns_cbranch_scc0 {Lred}")
        e(f"s_cmp_lg_u32 s{sKH}, 0\ns_cbranch_scc1 {Lq2}")
        self.kv_epilogue(self.REDKV, self.VT, CSKV, 178, 179)
        e.label(Lq2)
        e.lg = []
        self.pair_prime()
        self.pair_mfma(None)
        e.label(Lred)
        e.lg = []
        self.reduce_pair()
        self.q_epilogue(CSQ, 178, 179)
        e.reset_counters()

    def att_unit(self, u, Sc, Sn, Pc, Pn, Qnext, Oc, Oprev, extra, first, cin="0"):
        e = self.e
        tn = (u + 1) % 16; tp = (u - 1) % 16
        for x in extra.get(-1, []): e(x)
        for i in range(16):
            if i == 2 and Qnext is not None: e(f"v_mfma_f32_32x32x16_bf16 {v(Sn,16)}, {a(4*tn,4)}, {v(Qnext,4)}, {cin}")
            if i == 7: e(f"v_mfma_f32_32x32x16_bf16 {v(Oprev,16)}, {a(64+8*tp+4,4)}, {v(Pn+4,4)}, {v(Oprev,16)}")
            if i == 12: e(f"v_mfma_f32_32x32x16_bf16 {v(Oc,16)}, {a(64+8*u,4)}, {v(Pc,4)}, {'0' if first else v(Oc,16)}")
            e(f"v_exp_f32 v{Sc+i}, v{Sc+i}")
            if i == 0: e(f"v_cvt_pk_bf16_f32 v{Pn+7}, v{Sn+14}, v{Sn+15}")
            if i >= 3 and (i - 3) % 2 == 0:
                k = (i - 3) // 2
                e(f"v_cvt_pk_bf16_f32 v{Pc+k}, v{Sc+2*k}, v{Sc+2*k+1}")
            for x in extra.get(i, []): e(x)

    def attention(self):
        e = self.e
        QA, QB = 16, 20
        S = [32, 48]; P = [64, 72]; O = [80, 96]
        PS, SL, QL, WS1 = self.PS, self.SLOT, self.QL, self.WL1
        sM0V, sSOFF = sA4, sA5
        sK, sV = 88, 89
        self.g2_w_bases()
        e(f"v_mov_b32 v27, 0\nds_write_b32 v27, v27 offset:{self.FAIL}")
        for r in range(8): e(f"v_mov_b32 v{P[1]+r}, 0")
        for r in range(2): e(f"v_mov_b32 v{S[1]+14+r}, 0")
        e(f"s_mul_i32 s{sT0}, s{sW}, {6*SL}\ns_add_u32 s{sT0}, s{sT0}, {PS}\nv_add_u32 v24, s{sT0}, v{vL16}\ns_add_u32 s{sT0}, s{sT0}, 2048\nv_add_u32 v25, s{sT0}, v{vL4}")
        setup, dmaitems = self.wpair_dma_list(WB_OA, WS1, sM0V, sSOFF)
        for x in setup: e(x)
        e(f"v_and_b32 v27, 31, v{vL}\nv_min_u32 v26, 16, v27\nv_lshlrev_b32 v26, 4, v26\nv_lshrrev_b32 v29, 5, v{vL}\nv_mul_u32_u24 v29, 272, v29\nv_add_u32 v26, v26, v29")
        e(f"v_and_b32 v29, 27, v27\nv_cmp_eq_u32 vcc, 16, v29\nv_cmp_gt_u32 s[{sM0}:{sM0+1}], 16, v27\ns_or_b64 vcc, vcc, s[{sM0}:{sM0+1}]\nv_mov_b32 v29, {WS_BYTES}\nv_cndmask_b32 v26, v29, v26, vcc")
        e(f"s_mov_b32 s{sLOOP}, 0\ns_lshl_b32 s{sT2}, s{sW}, 1\ns_add_u32 s{sT2}, s{sT2}, 2\ns_and_b32 s{sT2}, s{sT2}, 7")
        e(f"s_lshl_b32 s{sT2}, s{sT2}, 10\nv_add_u32 v28, s{sT2}, v{vL16}")
        e("s_waitcnt lgkmcnt(0)")
        self.stamp("att_poll")
        L = e.newlabel("GK")
        e(f"s_cmp_lg_u32 s{sW}, 0\ns_cbranch_scc1 {L}")
        Lm = e.newlabel("NOMODE")
        e(f"s_cmp_lg_u32 s{sHALF}, 0\ns_cbranch_scc1 {Lm}")
        self.mode_detect()
        e.label(Lm)
        e(f"s_lshl_b32 s{sT0}, s{sHALF}, 11\ns_and_b32 s{sT1}, s{sG}, 7\ns_lshl_b32 s{sT1}, s{sT1}, 8\ns_add_u32 s{sT0}, s{sT0}, s{sT1}\ns_add_u32 s{sT0}, s{sT0}, {FL_GK}")
        def setup_():
            e(f"buffer_load_dword v17, v{vL4}, s[{SRD_WS}:{SRD_WS+3}], s{sT0} offen sc1\ns_waitcnt vmcnt(0)")
            e(f"v_cmp_ne_u32 vcc, s{sTAG}, v17")
        self.poll("g", setup_)
        L2 = e.newlabel("EPOCH")
        e(f"s_cmp_lg_u32 s{sG}, 0\ns_cbranch_scc1 {L2}\ns_cmp_eq_u32 s{sHALF}, 0\ns_cbranch_scc1 {L2}")
        e(f"v_mov_b32 v16, 0\nv_mov_b32 v17, s{sTAG}\ns_mov_b64 exec, 1\nbuffer_store_dword v17, v16, s[{SRD_WS}:{SRD_WS+3}], 0 offen sc0 sc1\ns_mov_b64 exec, -1\ns_waitcnt vmcnt(0)")
        e.label(L2)
        e.label(L)
        e("s_waitcnt vmcnt(0)")
        e("s_barrier")
        Lm2 = e.newlabel("NOMODE2"); Lpf = e.newlabel("NOPF")
        e(f"s_cmp_lg_u32 s{sHALF}, 0\ns_cbranch_scc1 {Lm2}")
        self.mode_read()
        e(f"s_cmp_ge_u32 s{sRANK}, 97\ns_cbranch_scc1 {Lpf}\ns_cmp_lg_u32 s{sW}, 0\ns_cbranch_scc1 {Lpf}")
        e(f"v_lshlrev_b32 v16, 9, v{vL}\ns_lshl_b32 s{sT0}, s{sRANK}, 2\ns_add_u32 s{sT0}, s{sT0}, {FL_G0}\nv_mov_b32 v17, s{sTAG}")
        e(f"s_mov_b64 exec, 0xff\nbuffer_store_dword v17, v16, s[{SRD_WS}:{SRD_WS+3}], s{sT0} offen sc1\ns_mov_b64 exec, -1")
        e.label(Lpf)
        e.label(Lm2)
        self.stamp("att_start")
        e.reset_counters()
        e(f"ds_read_b128 v[{QA}:{QA+3}], v28 offset:{QL}")
        e(f"s_lshl_b32 s{sK}, s{sW}, 14\ns_add_u32 s{sK}, s{sK}, s{sKF}")
        e(f"s_mul_i32 s{sV}, s{sW}, {16*VT_STRIDE}\ns_add_u32 s{sV}, s{sV}, s{sKF}\ns_add_u32 s{sV}, s{sV}, 0x10000")
        def kv_lines(t):
            Ls = []
            if t % 4 == 0 and t: Ls += [f"s_add_u32 s{sK}, s{sK}, 4096"]
            if t % 2 == 0 and t: Ls += [f"s_add_u32 s{sV}, s{sV}, {2*VT_STRIDE}"]
            vo = (t % 2) * VT_STRIDE
            Ls += [f"buffer_load_dwordx4 a[{4*t}:{4*t+3}], v{vL16}, s[{SRD_WS}:{SRD_WS+3}], s{sK} offen offset:{(t%4)*1024} sc1",
                   f"buffer_load_dwordx4 a[{64+8*t}:{67+8*t}], v26, s[{SRD_WS}:{SRD_WS+3}], s{sV} offen offset:{vo} sc1",
                   f"buffer_load_dwordx4 a[{68+8*t}:{71+8*t}], v26, s[{SRD_WS}:{SRD_WS+3}], s{sV} offen offset:{vo+544} sc1"]
            return Ls
        AHEAD = 4
        for t in range(AHEAD):
            for x in kv_lines(t): e(x)
        e(f"s_waitcnt vmcnt({3*AHEAD-1}) lgkmcnt(0)")
        e(f"v_mfma_f32_32x32x16_bf16 {v(S[0],16)}, {a(0,4)}, {v(QA,4)}, 0")
        e("s_nop 7\ns_nop 7")
        self.stamp("att_kv")
        def wA_line(f):
            return [f"s_add_u32 s{sT7}, s{sA2}, {(f//4)*4096}",
                    f"buffer_load_dwordx4 a[{4*f}:{4*f+3}], v{vL16}, s[{SRD_WS}:{SRD_WS+3}], s{sT7} offen offset:{(f%4)*1024} sc1"]
        def position(pos, kind):
            Qc, Qn = (QA, QB) if pos == 0 else (QB, QA)
            Oc, On = (O[0], O[1]) if pos == 0 else (O[1], O[0])
            for u in range(16):
                c = u & 1; n = c ^ 1
                extra = {}
                if kind == 'first':
                    issued = min(AHEAD + u, 16)
                    need_idx = min(3 * (u + 1), 47) if u < 15 else 47
                    nw = 3*issued - need_idx - 1
                    if u in (13, 14): nw += 1
                    extra[-1] = [f"s_waitcnt vmcnt({nw})"]
                    if AHEAD + u < 16:
                        extra[3] = kv_lines(AHEAD + u)
                    if u == 12:
                        extra[5] = [f"s_and_b32 s{sT0}, s{sG}, 7", f"s_lshl_b32 s{sT0}, s{sT0}, 9", f"s_add_u32 s{sT0}, s{sT0}, {FL_G0}",
                                    f"v_lshlrev_b32 v29, 3, v{vL}",
                                    f"buffer_load_dwordx2 v[30:31], v29, s[{SRD_WS}:{SRD_WS+3}], s{sT0} offen sc1"]
                    if u == 15:
                        Lok = e.newlabel("G0OK"); Lp = e.newlabel("G0P")
                        chk = [f"v_xor_b32 v30, s{sTAG}, v30", f"v_xor_b32 v31, s{sTAG}, v31",
                               f"v_cmp_lt_u32 vcc, 48, v{vL}", "s_nop 1", "v_cndmask_b32 v30, v30, 0, vcc",
                               f"v_cmp_le_u32 vcc, 48, v{vL}", "s_nop 1", "v_cndmask_b32 v31, v31, 0, vcc",
                               "v_or_b32 v30, v30, v31", "v_cmp_ne_u32 vcc, 0, v30"]
                        extra[6] = chk + [f"s_cbranch_vccz {Lok}", f"s_mov_b32 s{sPOLL}, 0", f"{Lp}:",
                                          f"buffer_load_dwordx2 v[30:31], v29, s[{SRD_WS}:{SRD_WS+3}], s{sT0} offen sc1", "s_waitcnt vmcnt(0)"] + chk + \
                                         [f"s_cbranch_vccz {Lok}", f"s_add_u32 s{sPOLL}, s{sPOLL}, 1", f"s_cmp_lt_u32 s{sPOLL}, 400000", f"s_cbranch_scc1 {Lp}", "s_branch L_END", f"{Lok}:"]
                if u == 0 and kind != 'last':
                    extra[9] = ["v_add_u32 v28, 0x400, v28", "v_and_b32 v28, 0x1fff, v28"]
                if u == 1 and kind == 'loop':
                    extra[6] = [f"ds_write_b128 v24, v[{On}:{On+3}]", f"ds_write_b128 v24, v[{On+4}:{On+7}] offset:1024", f"ds_write_b32 v25, v{On+8}",
                                f"v_add_u32 v24, {SL}, v24", f"v_add_u32 v25, {SL}, v25"]
                if u == 4 and kind != 'last':
                    extra[5] = [f"ds_read_b128 v[{Qn}:{Qn+3}], v28 offset:{QL}"]
                if pos == 1 and kind == 'loop' and u == 2:
                    for t in range(4):
                        pre, ld, post = dmaitems[t]
                        extra[5 + 2 * t] = pre + [ld] + post
                if kind == 'last' and u == 0 and not getattr(self, "nopf", False):
                    Lp = e.newlabel("PF2")
                    extra[1] = [f"s_lshr_b32 s{sT4}, s{sG}, 3", f"s_lshl_b32 s{sT4}, s{sT4}, 2", f"s_add_u32 s{sT4}, s{sT4}, s{sW}", f"s_lshl_b32 s{sT4}, s{sT4}, 10",
                                f"s_add_u32 s{sT5}, s{sT4}, 1024", f"s_cmp_gt_u32 s{sT5}, L_CODE_END-L_PFBASE", f"s_cbranch_scc1 {Lp}",
                                f"s_add_u32 s{sT4}, s{sT4}, s{sPFB}", f"s_addc_u32 s{sT5}, s{sPFB+1}, 0",
                                f"global_load_dwordx4 v[128:131], v{vL16}, s[{sT4}:{sT4+1}]", f"{Lp}:"]
                if kind == 'last':
                    if u < 4:
                        pre, ld, post = dmaitems[u]
                        extra[8] = pre + [ld] + post
                    extra.setdefault(4, []).extend(wA_line(u))
                    if u >= 2: extra.setdefault(10, []).extend(wA_line(16 + u - 2))
                    if u >= 14: extra.setdefault(13, []).extend(wA_line(16 + u))
                if u == 14 and kind != 'last':
                    extra.setdefault(4, []).append("s_waitcnt lgkmcnt(0)")
                if u == 15 and kind != 'last':
                    extra[14] = [f"s_add_u32 s{sLOOP}, s{sLOOP}, 1"]
                Qx = Qn if u == 15 else Qc
                if u == 15 and kind == 'last': Qx = None
                Op = On if u == 0 else Oc
                self.att_unit(u, S[c], S[n], P[c], P[n], Qx, Oc, Op, extra, first=(u == 0))
        position(0, 'first')
        Lloop = e.newlabel("ATTLOOP")
        e(".p2align 3")
        e.label(Lloop)
        position(1, 'loop')
        position(0, 'loop')
        e(f"s_cmp_lt_u32 s{sLOOP}, 7\ns_cbranch_scc1 {Lloop}")
        position(1, 'last')
        e(f"v_cvt_pk_bf16_f32 v{P[1]+7}, v{S[1]+14}, v{S[1]+15}")
        e(f"v_mfma_f32_32x32x16_bf16 {v(O[1],16)}, {a(64+8*15+4,4)}, {v(P[1]+4,4)}, {v(O[1],16)}")
        for vis in range(3):
            e(f"s_sub_u32 s{sT0}, s{sW}, {1+vis}\ns_and_b32 s{sT0}, s{sT0}, 3\ns_mul_i32 s{sT0}, s{sT0}, {6*SL}\ns_add_u32 s{sT0}, s{sT0}, {PS + 2*vis*SL}")
            e(f"v_add_u32 v{24+vis}, s{sT0}, v{vL16}\ns_add_u32 s{sT0}, s{sT0}, 2048\nv_add_u32 v{28+vis}, s{sT0}, v{vL4}")
        e("s_waitcnt vmcnt(27) lgkmcnt(0)\ns_barrier")
        self.stamp("att_loopend")
        slots = {}
        base = [32, 44, 56, 68, 112, 16]
        k = 0
        for pp in range(2):
            for vis in range(3):
                b = base[k]; k += 1; slots[(pp, vis)] = b
                lreg = 31 if b == 16 else b + 8
                e(f"ds_read_b128 v[{b}:{b+3}], v{24+vis} offset:{pp*SL}\nds_read_b128 v[{b+4}:{b+7}], v{24+vis} offset:{pp*SL+1024}\nds_read_b32 v{lreg}, v{28+vis} offset:{pp*SL}")
        e(f"s_lshl_b32 s{sT0}, s{sJ}, 2\ns_add_u32 s{sT0}, s{sT0}, s{sW}\ns_lshl_b32 s{sT0}, s{sT0}, 10")
        e(f"s_lshl_b32 s{sT1}, s{sC}, 16\ns_add_u32 s{sT0}, s{sT0}, s{sT1}\ns_add_u32 s{sT0}, s{sT0}, s{sOA}\ns_add_u32 s{sT1}, s{sT0}, 32768")
        tok = None
        for pp in range(2):
            Oo = O[pp]
            e(f"s_waitcnt lgkmcnt({9 if pp == 0 else 0})")
            for vis in range(3):
                b = slots[(pp, vis)]
                for r in range(9):
                    src = 31 if (b == 16 and r == 8) else b + r
                    e(f"v_add_f32 v{Oo+r}, v{Oo+r}, v{src}")
            e(f"v_rcp_f32 v{Oo+9}, v{Oo+8}")
            for r in range(8):
                e(f"v_mul_f32 v{Oo+r}, v{Oo+9}, v{Oo+r}")
            for d in range(4):
                e(f"v_cvt_pk_bf16_f32 v{Oo+12+d}, v{Oo+2*d}, v{Oo+2*d+1}")
            tok = self.moded(lambda fl: self.ws_store(Oo + 12, f"s{sT0 if pp == 0 else sT1}", 0, flag=fl))
        return tok

    def g2_w_bases(self):
        e = self.e
        e(f"s_lshl_b32 s{sT0}, s{sJ}, 1")
        tblA = [WB_BQ, WB_BK, WB_BK + 1, WB_BV + 1]; tblB = [WB_BQ + 1, WB_BK + 1, WB_BV, WB_BV]
        e(f"s_mov_b32 s{sA0}, {tblA[0]}\ns_mov_b32 s{sA1}, {tblB[0]}")
        for w in range(1, 4):
            e(f"s_cmp_eq_u32 s{sW}, {w}\ns_cselect_b32 s{sA0}, {tblA[w]}, s{sA0}\ns_cselect_b32 s{sA1}, {tblB[w]}, s{sA1}")
        e(f"s_add_u32 s{sA0}, s{sA0}, s{sT0}\ns_add_u32 s{sA1}, s{sA1}, s{sT0}")
        e(f"s_lshl_b32 s{sA2}, s{sA0}, 15\ns_add_u32 s{sA2}, s{sA2}, {WF}\ns_lshl_b32 s{sA3}, s{sA1}, 15\ns_add_u32 s{sA3}, s{sA3}, {WF}")
    def g2_w_load(self, f0, f1):
        e = self.e; tok = None
        cur = None
        for f in range(f0, f1):
            st = 0 if f < 32 else 1; ks = f % 32
            grp = (st, ks // 4)
            if grp != cur:
                e(f"s_add_u32 s{sT7}, s{sA2 if st == 0 else sA3}, {(ks//4)*4096}"); cur = grp
            tok = self.ws_load(st * 128 + 4 * ks, f"s{sT7}", (ks % 4) * 1024, acc=True)
        return tok

    def outproj(self, g1, sO, sXdst, sSTdst, sHXdst, wl, inter=None):
        e = self.e
        tag = "g1" if g1 else "g3"
        on = getattr(self, "light", None) == tag
        if on: self.lstamp(0)
        toks = self.load_act_half(sO, 10)
        self.pair_addrs(wl)
        e.lg = []
        self.pair_prime()
        if on:
            e.wait_vm(toks[0]); self.lstamp(1)
        self.pair_mfma(toks, inter)
        if on: self.lstamp(2)
        for d in range(8):
            e(f"v_lshlrev_b32 v{16+2*d}, 16, v{XR+d}\nv_and_b32 v{17+2*d}, 0xffff0000, v{XR+d}")
        self.reduce_pair()
        if on: self.lstamp(3)
        for d in range(8):
            e(f"v_add_f32 v{80+2*d}, v{80+2*d}, v{16+2*d}\nv_add_f32 v{81+2*d}, v{81+2*d}, v{17+2*d}")
            e(f"v_cvt_pk_bf16_f32 v{XR+d}, v{80+2*d}, v{81+2*d}")
        if not g1:
            Lf = e.newlabel("FINAL"); Ld = e.newlabel("FDONE")
            e(f"s_cmp_eq_u32 s{sHALF}, 1\ns_cbranch_scc1 {Lf}")
            tok = self.publish_x(sXdst, sSTdst, sHXdst)
            saved = list(e.vm)
            e(f"s_branch {Ld}")
            e.label(Lf)
            for c in range(2):
                e(f"v_permlane32_swap_b32 v{XR+4*c}, v{XR+4*c+2}\nv_permlane32_swap_b32 v{XR+4*c+1}, v{XR+4*c+3}")
            e(f"v_and_b32 v16, 31, v{vL}\nv_lshlrev_b32 v16, 11, v16\nv_lshrrev_b32 v17, 5, v{vL}\nv_lshl_add_u32 v16, v17, 4, v16")
            e(f"s_lshl_b32 s{sT0}, s{sC}, 6\ns_add_u32 s{sT0}, s{sT0}, s{sP}\ns_lshl_b32 s{sT0}, s{sT0}, 10\ns_lshl_b32 s{sT1}, s{sNB}, 6\ns_add_u32 s{sT0}, s{sT0}, s{sT1}")
            for c in range(2):
                e(f"buffer_store_dwordx4 v[{XR+4*c}:{XR+4*c+3}], v16, s[{SRD_OUT}:{SRD_OUT+3}], s{sT0} offen offset:{32*c}")
            e("s_endpgm")
            e.label(Ld)
            e.vm = saved
        else:
            tok = self.publish_x(sXdst, sSTdst, sHXdst)
        if on:
            self.lstamp(4); self.lflush(tag)
        return tok

    XL = 0; QB_ = 98304; KB_ = 106496; VB_ = 118784; TB = 131072
    CSA, CSB, CSN = 176, 192, 208
    BIAS, BH = 210, 226
    def g2_consts(self):
        e = self.e
        e(f"v_lshrrev_b32 v16, 5, v{vL}\nv_lshlrev_b32 v16, 4, v16")
        e(f"s_lshl_b32 s{sT0}, s{sA0}, 7\ns_add_u32 s{sT0}, s{sT0}, {CS}\ns_lshl_b32 s{sT1}, s{sA1}, 7\ns_add_u32 s{sT1}, s{sT1}, {CS}")
        self.load_cs(self.CSA, sT0, 16)
        self.load_cs(self.CSB, sT1, 16)
        e(f"v_and_b32 v17, 31, v{vL}\nv_lshlrev_b32 v17, 2, v17")
        self.ws_load(self.CSN, f"s{sT0}", 0, voff=17, n=1)
        tok = self.ws_load(self.CSN + 1, f"s{sT1}", 0, voff=17, n=1)
        NEG = "0xff800000"
        e(f"v_and_b32 v18, 31, v{vL}\nv_lshrrev_b32 v19, 5, v{vL}\nv_lshlrev_b32 v19, 2, v19\nv_sub_u32 v18, v18, v19")
        e(f"v_mov_b32 v19, {NEG}")
        for r in range(16):
            kk = 8 * (r >> 2) + (r & 3)
            e(f"v_subrev_u32 v20, {kk}, v18\nv_cmp_ge_u32 vcc, 7, v20\nv_cndmask_b32 v{212+r}, v19, 0, vcc")
        e(f"s_cmp_eq_u32 s{sC}, 0\ns_cselect_b32 s{sT0}, -64, 0")
        for jj in range(4):
            e(f"s_add_u32 s{sT1}, s{sT0}, {jj-1}\nv_cmp_ge_i32 vcc, s{sT1}, v18\nv_cndmask_b32 v{232+jj}, v19, 0, vcc\nv_mov_b32 v{240+jj}, v{232+jj}")
            e(f"v_mov_b32 v{228+jj}, 0\nv_mov_b32 v{236+jj}, 0")
        return tok

    def g2(self):
        e = self.e
        XL, QB_, KB_, VB_, TB = self.XL, self.QB_, self.KB_, self.VB_, self.TB
        CSA, CSB, CSN = self.CSA, self.CSB, self.CSN
        def dma(soff, imm): return e.vmem(f"buffer_load_dwordx4 v{vL16}, s[{SRD_WS}:{SRD_WS+3}], {soff} offen offset:{imm} sc1 lds")
        sXB, sHB, sSB = 88, 89, 90
        e(f"s_lshl_b32 s{sXB}, s{sC}, 16\ns_add_u32 s{sXB}, s{sXB}, s{sXMID}")
        def grp(blk, ks_mul, ks_add, n):
            its = []
            for t in range(n):
                pre = []
                if t == 0:
                    pre = [f"s_mul_i32 s{sT1}, s{sW}, {ks_mul*1024}", f"s_add_u32 s{sT1}, s{sT1}, {blk*32768 + ks_add*1024}",
                           f"s_mov_b32 m0, s{sT1}", f"s_add_u32 s{sT2}, s{sXB}, s{sT1}"]
                its.append((pre, f"buffer_load_dwordx4 v{vL16}, s[{SRD_WS}:{SRD_WS+3}], s{sT2} offen offset:{t*1024} sc1 lds", []))
            return its
        chunk0 = grp(0, 3, 0, 3) + grp(1, 3, 0, 3)
        chunk1a = grp(0, 2, 12, 2) + grp(1, 2, 12, 2)
        chunk1b = grp(0, 3, 20, 3) + grp(1, 3, 20, 3)
        tok0 = None
        for it in chunk0: tok0 = self.emit_item(it)
        sHS = 92
        e(f"v_and_b32 v18, 31, v{vL}\nv_lshrrev_b32 v19, 5, v{vL}")
        e(f"s_lshl_b32 s{sSB}, s{sC}, 1\ns_and_b32 s{sT5}, s{sW}, 1\ns_add_u32 s{sSB}, s{sSB}, s{sT5}\ns_lshl_b32 s{sSB}, s{sSB}, 12\ns_add_u32 s{sSB}, s{sSB}, s{sSTMID}")
        e(f"v_lshlrev_b32 v20, 3, v18\nv_lshl_add_u32 v20, v19, 11, v20")
        e(f"s_lshl_b32 s{sHS}, s{sHC}, 13\ns_add_u32 s{sHS}, s{sHS}, s{sSTH}")
        e("v_and_b32 v22, 15, v18\nv_add_u32 v22, 16, v22\nv_lshlrev_b32 v22, 3, v22\nv_lshrrev_b32 v23, 4, v18\nv_lshl_add_u32 v22, v23, 12, v22\nv_lshl_add_u32 v22, v19, 11, v22")
        statitems = [([], f"buffer_load_dwordx2 v[{144+2*t}:{145+2*t}], v20, s[{SRD_WS}:{SRD_WS+3}], s{sSB} offen offset:{t*256} sc1", []) for t in range(8)]
        hstatitems = [([], f"buffer_load_dwordx2 v[{160+2*t}:{161+2*t}], v22, s[{SRD_WS}:{SRD_WS+3}], s{sHS} offen offset:{t*256} sc1", []) for t in range(8)]
        e(f"s_lshl_b32 s93, s{sHALF}, 12\ns_lshl_b32 s{sT1}, s{sHC}, 7\ns_add_u32 s93, s93, s{sT1}\ns_add_u32 s93, s93, {FL_H}\nv_and_b32 v23, 7, v{vL}\nv_lshlrev_b32 v23, 2, v23")
        e(f"s_lshl_b32 s{sHB}, s{sHC}, 15\ns_add_u32 s{sHB}, s{sHB}, s{sHX}")
        haloitems = []
        for t in range(8):
            pre = []
            if t == 0: pre = [f"s_lshl_b32 s{sT1}, s{sW}, 13", f"s_add_u32 s{sT2}, s{sHB}, s{sT1}", f"s_add_u32 s{sT1}, s{sT1}, 65536", f"s_mov_b32 m0, s{sT1}", "s_nop 0"]
            if t == 4: pre = [f"s_lshl_b32 s{sT1}, s{sW}, 13", f"s_add_u32 s{sT1}, s{sT1}, 4096", f"s_add_u32 s{sT2}, s{sHB}, s{sT1}", f"s_add_u32 s{sT1}, s{sT1}, 65536", f"s_mov_b32 m0, s{sT1}", "s_nop 0"]
            haloitems.append((pre, f"buffer_load_dwordx4 v{vL16}, s[{SRD_WS}:{SRD_WS+3}], s{sT2} offen offset:{(t%4)*1024} sc1 lds", []))
        def wB_item(ks):
            return ([f"s_add_u32 s{sT7}, s{sA3}, {(ks//4)*4096}"], f"buffer_load_dwordx4 a[{128+4*ks}:{131+4*ks}], v{vL16}, s[{SRD_WS}:{SRD_WS+3}], s{sT7} offen offset:{(ks%4)*1024} sc1", [])
        wBlo = [wB_item(ks) for ks in range(10, 16)]
        NONE = None
        streams = {0: chunk1a + chunk1b + statitems + haloitems + wBlo,
                   1: chunk1a + chunk1b + statitems + haloitems + wBlo,
                   2: chunk1a + chunk1b + wBlo + [NONE, NONE] + haloitems,
                   3: chunk1a + chunk1b + wBlo + [NONE, NONE] + haloitems}
        wBidx = {0: 26, 1: 26, 2: 10, 3: 10}
        stream2 = [wB_item(ks) for ks in range(16, 32)]
        e(f"v_add_u32 v21, 0x10000, v{vL16}")
        ACC = [32, 48, 64, 80]
        def xread(dst, blk, ks):
            off = blk * 32768 + ks * 1024
            if off < 65536: return e.lds(f"ds_read_b128 v[{dst}:{dst+3}], v{vL16} offset:{off}")
            return e.lds(f"ds_read_b128 v[{dst}:{dst+3}], v21 offset:{off-65536}")
        def mm(acc, wset, ks, xreg, orient, first):
            wr = a(wset * 128 + 4 * ks, 4); xr = v(xreg, 4); c = "0" if first else v(acc, 16)
            if orient == "T": e(f"v_mfma_f32_32x32x16_bf16 {v(acc,16)}, {wr}, {xr}, {c}")
            else: e(f"v_mfma_f32_32x32x16_bf16 {v(acc,16)}, {xr}, {wr}, {c}")
        RN = 4
        ring = lambda ks, b: 96 + ((ks % RN) * 2 + b) * 4
        def gemm_range(units, blks, k0, k1, filler, prime_limit):
            toks = self._xtoks
            for ks in range(k0, k1):
                for nk in range(ks, min(ks + RN, prime_limit)):
                    for b, blk in enumerate(blks):
                        if (blk, nk) not in toks: toks[(blk, nk)] = xread(ring(nk, b), blk, nk)
                e.wait_lg(toks[(blks[-1], ks)])
                for (acc, wset, b, orient) in units:
                    mm(acc, wset, ks, ring(ks, b), orient, ks == 0)
                    for _ in range(3):
                        if filler: e(filler.pop(0))
        def epi(acc, kind, blk, cbi, cset, tmp):
            L = []
            if kind in ("q", "k"):
                cs = CSA if cset == 'A' else CSB
                rs, nm = 136 + 2 * blk, 137 + 2 * blk
                if kind == "q":
                    L += [f"v_mul_f32 v142, {fbits(QSCALE)}, v{rs}", f"v_mul_f32 v143, {fbits(QSCALE)}, v{nm}"]; rs, nm = 142, 143
                for r in range(16):
                    L += [f"v_mul_f32 v{tmp+r}, v{nm}, v{cs+r}", f"v_fma_f32 v{acc+r}, v{acc+r}, v{rs}, v{tmp+r}"]
                base = (QB_ if kind == "q" else KB_) + blk * 4096 + cbi * 2048
            else:
                csn = CSN if cset == 'A' else CSN + 1
                for q in range(4):
                    L += [f"ds_read_b128 v[{tmp+4*q}:{tmp+3+4*q}], v135 offset:{blk*256+32*q}", f"ds_read_b128 v[{tmp+16+4*q}:{tmp+19+4*q}], v135 offset:{blk*256+128+32*q}"]
                L += ["s_waitcnt lgkmcnt(0)"]
                for r in range(16):
                    L += [f"v_mul_f32 v{tmp+16+r}, v{tmp+16+r}, v{csn}", f"v_fma_f32 v{acc+r}, v{acc+r}, v{tmp+r}, v{tmp+16+r}"]
                base = VB_ + blk * 4096 + cbi * 2048
            for d in range(8):
                L += [f"v_cvt_pk_bf16_f32 v{tmp+d}, v{acc+2*d}, v{acc+2*d+1}"]
            L += [f"v_add_u32 v133, {base}, v{vL16}", "s_nop 0", f"ds_write_b128 v133, v[{tmp}:{tmp+3}]", f"ds_write_b128 v133, v[{tmp+4}:{tmp+7}] offset:1024"]
            return L
        plans = {
            0: ([(ACC[0], 0, 0, "T"), (ACC[1], 0, 1, "T")], [(ACC[2], 1, 0, "T"), (ACC[3], 1, 1, "T")], [0, 1]),
            1: ([(ACC[0], 0, 0, "T"), (ACC[1], 0, 1, "T")], [(ACC[2], 0, 0, "T"), (ACC[3], 1, 0, "T")], [2]),
            2: ([(ACC[0], 0, 0, "T"), (ACC[1], 0, 1, "T")], [(ACC[2], 1, 0, "N"), (ACC[3], 1, 1, "N")], [0, 1]),
            3: ([(ACC[0], 0, 0, "N"), (ACC[1], 0, 1, "N")], [(ACC[2], 0, 0, "N"), (ACC[3], 1, 0, "N")], [2]),
        }
        desc = {
            0: [("q", 0, 0, 'A'), ("q", 1, 0, 'A'), ("q", 0, 1, 'B'), ("q", 1, 1, 'B')],
            1: [("k", 0, 0, 'A'), ("k", 1, 0, 'A'), ("k", 2, 0, 'A'), ("k", 2, 1, 'B')],
            2: [("k", 0, 1, 'A'), ("k", 1, 1, 'A'), ("v", 0, 0, 'B'), ("v", 1, 0, 'B')],
            3: [("v", 0, 1, 'A'), ("v", 1, 1, 'A'), ("v", 2, 1, 'A'), ("v", 2, 0, 'B')],
        }
        labs = [e.newlabel(f"G2W{w}") for w in range(4)]; Lgd = e.newlabel("G2GD")
        e.wait_vm(tok0); e("s_barrier")
        self.stamp("g2A")
        vmA = list(e.vm)
        for w in range(1, 4):
            e(f"s_cmp_eq_u32 s{sW}, {w}\ns_cbranch_scc1 {labs[w]}")
        vm_end = None
        for w in range(4):
            e.label(labs[w]); e.lg = []; e.vm = list(vmA)
            p1, p2_units, blk2 = plans[w]
            self._xtoks = {}
            stream = streams[w]
            st = list(stream); tk = {}
            def step(k0, k1, limit):
                for ks in range(k0, k1):
                    gemm_range(p1, [0, 1], ks, ks + 1, None, limit)
                    if st:
                        it = st.pop(0)
                        if it is not None: tk[len(stream) - len(st) - 1] = self.emit_item(it)
            if w == 0:
                step(0, 2, 12)
                tokP = e.vmem(f"buffer_load_dword v24, v23, s[{SRD_WS}:{SRD_WS+3}], s93 offen sc1")
                step(2, 12, 12)
                Lok = e.newlabel("HOK"); Lp = e.newlabel("HPOLL")
                e.wait_vm(tokP)
                e(f"v_cmp_ne_u32 vcc, s{sTAG}, v24\ns_cbranch_vccz {Lok}")
                saved = list(e.vm)
                e(f"s_mov_b32 s{sPOLL}, 0")
                e.label(Lp)
                e(f"buffer_load_dword v24, v23, s[{SRD_WS}:{SRD_WS+3}], s93 offen sc1\ns_waitcnt vmcnt(0)\nv_cmp_ne_u32 vcc, s{sTAG}, v24\ns_cbranch_vccz {Lok}")
                e(f"s_add_u32 s{sPOLL}, s{sPOLL}, 1\ns_cmp_lt_u32 s{sPOLL}, 400000\ns_cbranch_scc1 {Lp}\ns_branch L_END")
                e.label(Lok)
                e.vm = saved
            else:
                step(0, 12, 12)
            e.wait_vm(tk[3]); e("s_barrier")
            step(12, 20, 20)
            e.wait_vm(tk[9]); e("s_barrier")
            step(20, 26, 32)
            if w < 2:
                e.wait_vm(tk[17])
                sub = Emitter(); old = self.e; self.e = sub
                self.stats_finish(144, 130, 131)
                sub(f"v_mul_f32 v130, v130, v131\nv_sub_f32 v130, 0, v130\nv_cmp_gt_u32 vcc, 32, v{vL}\ns_nop 1\nv_cndmask_b32 v130, v130, v131, vcc")
                sub(f"v_add_u32 v131, {TB + w*256}, v{vL4}\nds_write_b32 v131, v130")
                self.e = old
                fil = [l.strip() for l in sub.lines]
                for ks in range(26, 32):
                    step(ks, ks + 1, 32)
                    for _ in range(7):
                        if fil:
                            l = fil.pop(0); (e.lds if l.startswith("ds_") else e)(l)
                for l in fil: (e.lds if l.startswith("ds_") else e)(l)
            else:
                step(26, 32, 32)
            tokH = tk[25]
            if w == 0: self.stamp("g2p1")
            e.wait_vm(tokH); e("s_waitcnt lgkmcnt(0)\ns_barrier"); e.lg = []
            if w == 0: self.stamp("g2C")
            e(f"v_and_b32 v134, 31, v{vL}\nv_lshlrev_b32 v134, 2, v134\nv_add_u32 v134, {TB}, v134")
            e(f"v_lshrrev_b32 v135, 5, v{vL}\nv_lshlrev_b32 v135, 4, v135\nv_add_u32 v135, {TB}, v135")
            for blk in range(2):
                e(f"ds_read_b32 v{136+2*blk}, v134 offset:{blk*256}\nds_read_b32 v{137+2*blk}, v134 offset:{blk*256+128}")
            e("s_waitcnt lgkmcnt(0)")
            self._xtoks = {}
            d = desc[w]
            f1 = epi(ACC[0], *d[0], 144); f2 = epi(ACC[1], *d[1], 144)
            st2 = list(stream2); tkB = {ks: tk[wBidx[w] + ks - 10] for ks in range(10, 16)}
            hs = list(hstatitems) if w in (1, 3) else []; tkHS = [None]
            def p2(k0, k1, fl=None, nf=4):
                for ks in range(k0, k1):
                    if ks in tkB: e.wait_vm(tkB[ks])
                    gemm_range(p2u, blk2, ks, ks + 1, None, 32)
                    if st2:
                        kk = 32 - len(st2); tkB[kk] = self.emit_item(st2.pop(0))
                    if hs and ks >= (0 if w == 1 else 14): tkHS[0] = self.emit_item(hs.pop(0))
                    if fl is not None:
                        for _ in range(nf):
                            if fl:
                                l = fl.pop(0)
                                (e.lds if l.startswith("ds_") else e)(l)
            p2u = p2_units
            if d[0][0] == "v":
                p2(0, 4)
                e("s_waitcnt lgkmcnt(0)"); e.lg = []
                for l in f1: e(l)
                e.lg = [-1, -2]
                p2(4, 12)
                e("s_waitcnt lgkmcnt(0)"); e.lg = []
                for l in f2: e(l)
                e.lg = [-1, -2]
                p2(12, 32)
            else:
                fl = f1 + f2
                p2(0, 2)
                p2(2, 32, fl)
                for l in fl: (e.lds if l.startswith("ds_") else e)(l)
            if w in (1, 3):
                e.wait_vm(tkHS[0])
                self.stats_finish(160, 130, 131)
                e("v_mul_f32 v130, v130, v131\nv_sub_f32 v130, 0, v130")
                if w == 1:
                    e("v_mov_b32 v140, v131\nv_mov_b32 v141, v130")
                else:
                    e(f"v_cmp_gt_u32 vcc, 32, v{vL}\ns_nop 1\nv_cndmask_b32 v130, v130, v131, vcc\nv_add_u32 v131, {TB + 2*256}, v{vL4}\nds_write_b32 v131, v130")
            if w == 0: self.stamp("g2p2")
            e("s_waitcnt lgkmcnt(0)"); e.lg = []
            for l in epi(ACC[2], *d[2], 144): e(l)
            for l in epi(ACC[3], *d[3], 96): e(l)
            vm_end = list(e.vm)
            if w < 3: e(f"s_branch {Lgd}")
        e.label(Lgd)
        e.vm = vm_end
        e("s_waitcnt lgkmcnt(0)\ns_barrier")
        e.lg = []
        self.stamp("g2gemm")
        e(f"s_lshl_b32 s{sT0}, s{sW}, 10\ns_add_u32 s{sT0}, s{sT0}, {QB_}\nv_add_u32 v20, s{sT0}, v{vL16}")
        e(f"s_lshr_b32 s{sT1}, s{sW}, 1\ns_lshl_b32 s{sT1}, s{sT1}, 11\ns_add_u32 s{sT1}, s{sT1}, {VB_}\nv_add_u32 v21, s{sT1}, v{vL16}")
        Q = [32, 36]; Kf = [40, 44, 48]; V = {(0, 0): 52, (0, 1): 56, (1, 0): 60, (1, 1): 64, (2, 0): 68, (2, 1): 72}
        e(f"ds_read_b128 v[{Kf[2]}:{Kf[2]+3}], v20 offset:{(KB_-QB_)+2*4096}")
        for p in range(2):
            e(f"ds_read_b128 v[{Q[p]}:{Q[p]+3}], v20 offset:{p*4096}\nds_read_b128 v[{Kf[p]}:{Kf[p]+3}], v20 offset:{(KB_-QB_)+p*4096}")
        for (b, c), r in V.items(): e(f"ds_read_b128 v[{r}:{r+3}], v21 offset:{b*4096+c*1024}")
        e(f"s_lshl_b32 s{sT0}, s{sJ}, 2\ns_add_u32 s{sT0}, s{sT0}, s{sW}\ns_lshl_b32 s{sT0}, s{sT0}, 10")
        e(f"s_lshl_b32 s{sT1}, s{sC}, 16\ns_add_u32 s{sT0}, s{sT0}, s{sT1}\ns_add_u32 s{sT0}, s{sT0}, s{sOB}\ns_add_u32 s{sT1}, s{sT0}, 32768")
        So = [80, 96]; Sh = [112, 128]; Oo = [144, 160]
        setup, g3items = self.wpair_dma_list(WB_OB, self.WL0, sA4, sA5)
        e(f"s_mov_b32 s88, s{sT0}\ns_mov_b32 s89, s{sT1}")
        for x in setup: e(x)
        def g3dma(n):
            for _ in range(n):
                if g3items: self.emit_item(g3items.pop(0))
        g3dma(3)
        e("s_waitcnt lgkmcnt(8)")
        e(f"v_mfma_f32_32x32x16_bf16 {v(So[0],16)}, {v(Kf[0],4)}, {v(Q[0],4)}, v[212:227]")
        e(f"v_mfma_f32_32x32x16_bf16 {v(Sh[0],16)}, {v(Kf[2],4)}, {v(Q[0],4)}, v[228:243]")
        e("s_waitcnt lgkmcnt(6)")
        e(f"v_mfma_f32_32x32x16_bf16 {v(So[1],16)}, {v(Kf[1],4)}, {v(Q[1],4)}, v[212:227]")
        e(f"v_mfma_f32_32x32x16_bf16 {v(Sh[1],16)}, {v(Kf[2],4)}, {v(Q[1],4)}, v[228:243]")
        g3dma(2)
        e("v_mov_b32 v26, 0x3f803f80")
        vals = [[So[p] + r for r in range(16)] + [Sh[p] + 4 * (2 * p + 1) + jj for jj in range(4)] for p in range(2)]
        mx = [22, 23]; tm = [24, 25]
        PP = [176, 192]
        for p in range(2):
            vl = vals[p]
            e(f"v_max3_f32 v{mx[p]}, v{vl[0]}, v{vl[1]}, v{vl[2]}")
            i = 3
            while i < 20:
                if i + 1 < 20: e(f"v_max3_f32 v{mx[p]}, v{mx[p]}, v{vl[i]}, v{vl[i+1]}"); i += 2
                else: e(f"v_max_f32 v{mx[p]}, v{mx[p]}, v{vl[i]}"); i += 1
        for p in range(2): e(f"v_mov_b32 v{tm[p]}, v{mx[p]}")
        for p in range(2): e(f"v_permlane32_swap_b32 v{mx[p]}, v{tm[p]}")
        for p in range(2): e(f"v_max_f32 v{mx[p]}, v{mx[p]}, v{tm[p]}")
        for p in range(2):
            for i_, x in enumerate(vals[p]):
                e(f"v_sub_f32 v{x}, v{x}, v{mx[p]}")
                if i_ % 8 == 7: g3dma(1)
        for p in range(2):
            for i_, x in enumerate(vals[p]):
                e(f"v_exp_f32 v{x}, v{x}")
                if i_ % 5 == 4: g3dma(1)
            S_ = So[p]; H_ = vals[p][16]; Pp = PP[p]
            e(f"v_mov_b32 v{Pp+8}, 0\nv_mov_b32 v{Pp+9}, 0")
            for d in range(8): e(f"v_cvt_pk_bf16_f32 v{Pp+d}, v{S_+2*d}, v{S_+2*d+1}")
            e(f"v_cvt_pk_bf16_f32 v{Pp+10}, v{H_}, v{H_+1}\nv_cvt_pk_bf16_f32 v{Pp+11}, v{H_+2}, v{H_+3}")
            O_ = Oo[p]
            if p == 0: e("s_waitcnt lgkmcnt(0)")
            e(f"v_mfma_f32_32x32x16_bf16 {v(O_,16)}, {v(V[(p,0)],4)}, {v(Pp,4)}, 0")
            e(f"v_mfma_f32_32x32x16_bf16 {v(O_,16)}, {v(V[(p,1)],4)}, {v(Pp+4,4)}, {v(O_,16)}")
            e(f"v_mfma_f32_32x32x16_bf16 {v(O_,16)}, {v(V[(2,p)],4)}, {v(Pp+8,4)}, {v(O_,16)}")
            e(f"v_dot2_f32_bf16 v{mx[p]}, v{Pp}, v26, 0")
            for d in list(range(1, 8)) + [10, 11]: e(f"v_dot2_f32_bf16 v{mx[p]}, v{Pp+d}, v26, v{mx[p]}")
        for p in range(2): e(f"v_mov_b32 v{tm[p]}, v{mx[p]}")
        for p in range(2): e(f"v_permlane32_swap_b32 v{mx[p]}, v{tm[p]}")
        for p in range(2): e(f"v_add_f32 v{mx[p]}, v{mx[p]}, v{tm[p]}")
        for p in range(2): e(f"v_rcp_f32 v{mx[p]}, v{mx[p]}")
        Lodd = e.newlabel("ODD"); Ldone = e.newlabel("ODDD")
        e(f"s_bitcmp1_b32 s{sW}, 0\ns_cbranch_scc1 {Lodd}")
        for half in range(2):
            if half == 1: e.label(Lodd)
            for p in range(2):
                b0 = Oo[p] + 8 * half
                for r in range(8): e(f"v_mul_f32 v{b0+r}, v{mx[p]}, v{b0+r}")
                for d in range(4): e(f"v_cvt_pk_bf16_f32 v{28+4*p+d}, v{b0+2*d}, v{b0+2*d+1}")
            if half == 0: e(f"s_branch {Ldone}")
        e.label(Ldone)
        tok = self.moded(lambda fl: (self.ws_store(28, "s88", 0, flag=fl), self.ws_store(32, "s89", 0, flag=fl))[1])
        g3dma(16)
        return tok

    def build(self):
        e = self.e
        self.prologue()
        self.stamp("start")
        def stop(name):
            if self.stop_after == name:
                e("s_waitcnt vmcnt(0) lgkmcnt(0)\ns_endpgm")
                return True
            return False
        self.half_setup()
        self.first_phase()
        self.stamp("fdone")
        e.label("L_ATT")
        tok = self.attention()
        self.stamp("attdone")
        if stop("att"): return self.finish()
        self.sync_cluster(0, tok=tok, window=lambda: self.g2_consts())
        self.stamp("c0")
        tok = self.outproj(True, sOA, sXMID, sSTMID, sHX, self.WL1)
        self.stamp("g1done")
        if stop("g1"): return self.finish()
        self.sync_cluster(1, tok=tok, window=lambda: self.g2_w_load(32, 42), drain=True, halo_flag=True)
        e.reset_counters()
        self.stamp("c1")
        tok = self.g2()
        self.stamp("g2done")
        if stop("g2"): return self.finish()
        self.sync_cluster(2, tok=tok, window=lambda: (self.g4_prefetch_cs(), self.g4_prefetch_kv()), drain=True)
        e.reset_counters()
        self.stamp("c2")
        tok = self.outproj(False, sOB, sXOUT, sSTOUT, None, self.WL0)
        self.stamp("g3done")
        if stop("g3"): return self.finish()
        self.sync_cluster(3, tok=tok, window=lambda: self.wpair_dma(WB_Q, self.WL1), drain=True)
        e.reset_counters()
        self.stamp("c3")
        e(f"s_mov_b32 s{sHALF}, 1")
        self.half_setup()
        self.g4()
        self.stamp("g4done")
        e("s_branch L_ATT")
        return self.finish()

    def finish(self):
        e = self.e
        e.label("L_END")
        e("s_endpgm")
        e.label("L_CODE_END")
        lines, n = fix_hazards(e.lines)
        hdr = open('cdna_kernels/' + NAME + '.s.ref').read().split("\n")
        head = [l for l in hdr if l.startswith(";") and "@launch" not in l and "Override launch" not in l and "grid=ceil" not in l]
        out = head + ["; @launch grid=(256,1,1) block=(256,1,1) lds=163840"]
        out += ['.amdgcn_target "amdgcn-amd-amdhsa--gfx950"', ".text", f".globl {KN}", ".p2align 8", f".type {KN},@function", f"{KN}:"]
        out += lines
        out += ['.section .rodata,"a"', ".p2align 6", f".amdhsa_kernel {KN}",
                "  .amdhsa_next_free_vgpr 512", "  .amdhsa_next_free_sgpr 102", "  .amdhsa_accum_offset 256",
                "  .amdhsa_group_segment_fixed_size 0", "  .amdhsa_kernarg_size 88", "  .amdhsa_user_sgpr_count 2",
                "  .amdhsa_user_sgpr_kernarg_segment_ptr 1", "  .amdhsa_system_sgpr_workgroup_id_x 1", ".end_amdhsa_kernel", ""]
        self.nops = n
        return "\n".join(out)

if __name__ == "__main__":
    import argparse
    ap = argparse.ArgumentParser()
    ap.add_argument("-o", default="k.s")
    ap.add_argument("--stop", default=None)
    ap.add_argument("--stamps", action="store_true")
    ap.add_argument("--attvar", default="")
    ap.add_argument("--light", default=None)
    ap.add_argument("--safe", action="store_true")
    ap.add_argument("--nopf", action="store_true")
    args = ap.parse_args()
    g = Gen(stop_after=args.stop, stamps=args.stamps)
    g.attvar = args.attvar
    g.light = args.light
    g.force_safe = args.safe
    g.nopf = args.nopf
    txt = g.build()
    open(args.o, "w").write(txt)
    print("wrote", args.o, "lines", txt.count("\n"), "nop states", g.nops)
    if args.stamps: print(g.stampnames)
```

```python
import sys
from asmlib import *

NAME = 'interleave_layers__grouped_kv_mqa__sliding_local_dilated__prompt'
KN = NAME + '_kernel'

FL_C   = 0x10000
FL_G0  = 0x18000
FL_GK  = 0x1A000
FL_XW  = 0x1C000
FL_H   = 0x20000
DBG    = 0x40000
WF     = 0x100000
CS     = 0x480000
X0     = 0x500000
OA     = 0xD00000
OB     = 0x1100000
HX     = 0x1500000
ST0    = 0x1700000
KF     = 0x1800000
VT_STRIDE = 1088
STH    = 0x1A00000
WS_BYTES = 0x10000000
MODEADDR = 163832
WB_Q, WB_KV, WB_OA, WB_BQ, WB_BK, WB_BV, WB_OB = 0, 16, 17, 33, 49, 65, 81

LOG2E = 1.4426950408889634
QSCALE = 0.25 * LOG2E
import struct
def fbits(x): return "0x%08x" % struct.unpack("<I", struct.pack("<f", x))[0]

sG = 2
SRD_WS = 4
SRD_T  = 8
SRD_OUT = 12
sC, sJ, sW, sP, sKH, sTAG, sHALF, sHC = 16, 17, 18, 19, 20, 21, 22, 23
sRBOFF = 24
sSTOFF = 25
sRB    = 26
sNB    = 27
sXIN, sXMID, sXOUT = 28, 29, 30
sSTIN, sSTMID, sSTOUT = 31, 32, 33
sOA, sOB, sHX, sKF = 34, 35, 36, 37
sFLC = 38
sT0, sT1, sT2, sT3, sT4, sT5, sT6, sT7 = 40, 41, 42, 43, 44, 45, 46, 47
sM0, sM1 = 48, 50
sPOLL = 52
sTS = 54
sIN = 64
sOUTP = 80
sLOOP = 56
sA0, sA1, sA2, sA3 = 57, 58, 59, 60
sFA = 61
sA4, sA5 = 62, 63
sACT = 91
sRANK = 100
sFB = 101
sBAD = 48
sPFB = 86
sMODE = 39
sSTH = 53

vTID, vL, vL16, vL4 = 0, 1, 2, 3
XR = 4
vSTAT = 12
vHALO = 13
vT0, vT1 = 14, 15
vWK, vWS = 254, 255

LS = [64, 66, 76, 78, 80, 82, 84, 52]
class Gen:
    def __init__(self, stop_after=None, stamps=False, safe=True):
        self.e = Emitter()
        self.stop_after = stop_after
        self.stamps = stamps
        self.st = "sc1"
        self.ld = "sc1"
        self.nstamp = 0

    def stamp(self, name):
        if not self.stamps: return
        e = self.e
        idx = self.nstamp; self.nstamp += 1
        L = e.newlabel("STAMP")
        e(f"s_cmp_lg_u32 s{sW}, 0\ns_cbranch_scc1 {L}")
        e(f"s_memrealtime s[{sTS}:{sTS+1}]\ns_memtime s[50:51]\ns_waitcnt lgkmcnt(0)")
        e(f"s_lshl_b32 s{sT7}, s{sG}, 9\ns_add_u32 s{sT7}, s{sT7}, {DBG}\ns_mul_i32 s{sT6}, s{sHALF}, 256\ns_add_u32 s{sT7}, s{sT7}, s{sT6}")
        e(f"v_mov_b32 v{vT0}, s{sTS}\nv_mov_b32 v{vT1}, 0")
        e(f"s_mov_b64 exec, 1\nbuffer_store_dword v{vT0}, v{vT1}, s[{SRD_WS}:{SRD_WS+3}], s{sT7} offen offset:{(idx % 32) * 4}")
        e(f"v_mov_b32 v{vT0}, s50\nbuffer_store_dword v{vT0}, v{vT1}, s[{SRD_WS}:{SRD_WS+3}], s{sT7} offen offset:{128 + (idx % 32) * 4}\ns_mov_b64 exec, -1")
        e.label(L)
        self.stampnames = getattr(self, "stampnames", []) + [name]

    def lstamp(self, k):
        if self.stamps and getattr(self, "light", None): self.e(f"s_memtime s[{LS[k]}:{LS[k]+1}]")
    def lflush(self, name):
        if not (self.stamps and getattr(self, "light", None) == name): return
        e = self.e
        L = e.newlabel("LST")
        e(f"s_cmp_lg_u32 s{sW}, 0\ns_cbranch_scc1 {L}\ns_waitcnt lgkmcnt(0)")
        e(f"s_lshl_b32 s{sT7}, s{sG}, 6\ns_add_u32 s{sT7}, s{sT7}, 0x60000\ns_lshl_b32 s{sT6}, s{sHALF}, 5\ns_add_u32 s{sT7}, s{sT7}, s{sT6}")
        e(f"v_mov_b32 v{vT1}, 0\ns_mov_b64 exec, 1")
        for k in range(8):
            e(f"v_mov_b32 v{vT0}, s{LS[k]}\nbuffer_store_dword v{vT0}, v{vT1}, s[{SRD_WS}:{SRD_WS+3}], s{sT7} offen offset:{4*k}")
        e("s_mov_b64 exec, -1")
        e.label(L)

    def ws_load(self, dst, soff, imm=0, voff=vL16, n=4, flag=None, acc=False):
        flag = self.ld if flag is None else flag
        mn = {1: "buffer_load_dword", 2: "buffer_load_dwordx2", 4: "buffer_load_dwordx4"}[n]
        d = a(dst, n) if acc else v(dst, n)
        return self.e.vmem(f"{mn} {d}, v{voff}, s[{SRD_WS}:{SRD_WS+3}], {soff} offen offset:{imm} {flag}")
    def ws_store(self, src, soff, imm=0, voff=vL16, n=4, flag=None):
        flag = self.st if flag is None else flag
        mn = {1: "buffer_store_dword", 2: "buffer_store_dwordx2", 4: "buffer_store_dwordx4"}[n]
        return self.e.vmem(f"{mn} {v(src, n)}, v{voff}, s[{SRD_WS}:{SRD_WS+3}], {soff} offen offset:{imm} {flag}")

    def moded(self, fn):
        e = self.e
        Lf = e.newlabel("FAST"); Ld = e.newlabel("MDONE")
        e(f"s_cmp_eq_u32 s{sMODE}, 1\ns_cbranch_scc1 {Lf}")
        saved = list(e.vm); nt = e.ntok
        fn("sc1")
        e(f"s_branch {Ld}")
        e.label(Lf)
        e.vm = saved; e.ntok = nt
        r = fn("")
        e.label(Ld)
        return r

    def load_frags(self, dst, sbase, nfr, acc=False, flag=None, stmp=sT7):
        e = self.e; toks = []
        for t in range(nfr):
            if t % 4 == 0:
                if t == 0: so = f"s{sbase}"
                else:
                    e(f"s_add_u32 s{stmp}, s{sbase}, {t*1024}"); so = f"s{stmp}"
            toks.append(self.ws_load(dst + 4 * t, so, (t % 4) * 1024, acc=acc, flag=flag))
        return toks

    def poll(self, kind, setup):
        e = self.e
        Lp = e.newlabel("POLL"); Lok = e.newlabel("POLLOK")
        e(f"s_mov_b32 s{sPOLL}, 0")
        e.label(Lp)
        setup()
        e(f"s_cbranch_vccz {Lok}")
        e(f"s_add_u32 s{sPOLL}, s{sPOLL}, 1\ns_cmp_lt_u32 s{sPOLL}, 400000\ns_cbranch_scc1 {Lp}")
        e("s_branch L_END")
        e.label(Lok)

    def sync_cluster(self, sid, tok=None, pre_barrier=None, window=None, drain=False, halo_flag=False, post_barrier=None):
        e = self.e
        e.wait_vm(tok)
        if pre_barrier: pre_barrier()
        e("s_barrier")
        if post_barrier: post_barrier()
        L0 = e.newlabel("SYNCA"); L = e.newlabel("SYNC")
        e(f"s_lshl_b32 s{sFA}, s{sC}, 7\ns_add_u32 s{sFA}, s{sFA}, s{sFLC}\ns_add_u32 s{sFA}, s{sFA}, {sid*4096}")
        e(f"s_cmp_lg_u32 s{sW}, 0\ns_cbranch_scc1 {L0}")
        e(f"s_lshl_b32 s{sT1}, s{sJ}, 2\nv_mov_b32 v16, s{sT1}\nv_mov_b32 v17, s{sTAG}")
        e("s_mov_b64 exec, 1")
        saved = list(e.vm)
        self.moded(lambda fl: e(f"buffer_store_dword v17, v16, s[{SRD_WS}:{SRD_WS+3}], s{sFA} offen {fl}"))
        e.vm = saved
        e("s_mov_b64 exec, -1")
        e.label(L0)
        if window: window()
        e(f"s_cmp_lg_u32 s{sW}, 0\ns_cbranch_scc1 {L}")
        e(f"v_and_b32 v16, 7, v{vL}\nv_lshlrev_b32 v16, 2, v16")
        def setup():
            e(f"buffer_load_dword v17, v16, s[{SRD_WS}:{SRD_WS+3}], s{sFA} offen sc1\ns_waitcnt vmcnt(0)")
            e(f"v_cmp_ne_u32 vcc, s{sTAG}, v17")
        self.poll("c", setup)
        e.label(L)
        if drain:
            e("s_waitcnt vmcnt(0)"); e.vm = []
        e("s_barrier")
        if halo_flag:
            L2 = e.newlabel("HF")
            e(f"s_cmp_lg_u32 s{sW}, 0\ns_cbranch_scc1 {L2}")
            e(f"s_lshl_b32 s{sT0}, s{sHALF}, 12\ns_lshl_b32 s{sT1}, s{sC}, 7\ns_add_u32 s{sT0}, s{sT0}, s{sT1}\ns_add_u32 s{sT0}, s{sT0}, {FL_H}")
            e(f"s_lshl_b32 s{sT1}, s{sJ}, 2\nv_mov_b32 v16, s{sT1}\nv_mov_b32 v17, s{sTAG}")
            e(f"s_mov_b64 exec, 1\nbuffer_store_dword v17, v16, s[{SRD_WS}:{SRD_WS+3}], s{sT0} offen sc1\ns_mov_b64 exec, -1")
            e.label(L2)

    def prologue(self):
        e = self.e
        e(f"s_cmp_ge_u32 s{sG}, 256\ns_cbranch_scc1 L_END")
        e(f"s_load_dwordx16 s[{sIN}:{sIN+15}], s[0:1], 0")
        if not getattr(self, "nopf", False):
            Lpf = e.newlabel("PF")
            e(f"s_getpc_b64 s[40:41]")
            e.label("L_PFBASE")
            e(f"s_mov_b32 s{sPFB}, s40\ns_mov_b32 s{sPFB+1}, s41")
            e(f"s_lshr_b32 s42, s{sG}, 3\ns_mul_i32 s42, s42, 3072\ns_add_u32 s43, s42, 3072\ns_cmp_gt_u32 s43, L_CODE_END-L_PFBASE\ns_cbranch_scc1 {Lpf}")
            e(f"s_add_u32 s40, s40, s42\ns_addc_u32 s41, s41, 0\nv_and_b32 v250, 63, v0\nv_lshrrev_b32 v251, 6, v0\nv_lshlrev_b32 v250, 4, v250\nv_min_u32 v251, 2, v251\nv_lshl_add_u32 v250, v251, 10, v250")
            e("global_load_dwordx4 v[252:255], v250, s[40:41]")
            e.label(Lpf)
        e(f"s_load_dwordx4 s[{sOUTP}:{sOUTP+3}], s[0:1], 64")
        e(f"s_load_dwordx2 s[{sOUTP+4}:{sOUTP+5}], s[0:1], 80")
        e(f"v_and_b32 v{vL}, 63, v{vTID}\nv_lshrrev_b32 v{vT0}, 6, v{vTID}")
        e(f"v_lshlrev_b32 v{vL16}, 4, v{vL}\nv_lshlrev_b32 v{vL4}, 2, v{vL}")
        e(f"v_readfirstlane_b32 s{sW}, v{vT0}")
        e(f"s_and_b32 s{sT0}, s{sG}, 7\ns_lshr_b32 s{sT1}, s{sG}, 3\ns_and_b32 s{sT2}, s{sT1}, 3")
        e(f"s_lshl_b32 s{sC}, s{sT0}, 2\ns_add_u32 s{sC}, s{sC}, s{sT2}\ns_lshr_b32 s{sJ}, s{sT1}, 2")
        e(f"s_and_b32 s{sP}, s{sW}, 1\ns_lshr_b32 s{sKH}, s{sW}, 1")
        e(f"s_max_u32 s{sHC}, s{sC}, 1\ns_sub_u32 s{sHC}, s{sHC}, 1")
        e(f"s_lshl_b32 s{sRB}, s{sC}, 1\ns_add_u32 s{sRB}, s{sRB}, s{sP}")
        e(f"s_lshl_b32 s{sNB}, s{sJ}, 1\ns_add_u32 s{sNB}, s{sNB}, s{sKH}")
        e(f"s_lshl_b32 s{sRBOFF}, s{sRB}, 15\ns_lshl_b32 s{sT0}, s{sNB}, 11\ns_add_u32 s{sRBOFF}, s{sRBOFF}, s{sT0}")
        e(f"s_lshl_b32 s{sSTOFF}, s{sRB}, 12\ns_lshl_b32 s{sT0}, s{sNB}, 8\ns_add_u32 s{sSTOFF}, s{sSTOFF}, s{sT0}")
        e(f"v_and_b32 v{vT0}, 31, v{vL}\nv_lshrrev_b32 v{vT1}, 5, v{vL}\nv_lshlrev_b32 v{vSTAT}, 3, v{vT0}\nv_lshl_add_u32 v{vSTAT}, v{vT1}, 2, v{vSTAT}")
        e(f"s_lshl_b32 s{sT0}, s{sP}, 4\ns_sub_u32 s{sT0}, s{sT0}, 16\nv_add_u32 v{vHALO}, s{sT0}, v{vL}\nv_lshlrev_b32 v{vHALO}, 4, v{vHALO}")
        e("s_waitcnt lgkmcnt(0)")
        e(f"s_mov_b32 s{SRD_WS}, s{sOUTP+4}\ns_mov_b32 s{SRD_WS+1}, s{sOUTP+5}\ns_mov_b32 s{SRD_WS+2}, {WS_BYTES}\ns_mov_b32 s{SRD_WS+3}, 0x20000")
        e(f"s_mov_b32 s{SRD_OUT}, s{sOUTP}\ns_mov_b32 s{SRD_OUT+1}, s{sOUTP+1}\ns_mov_b32 s{SRD_OUT+2}, {2048*512*2}\ns_mov_b32 s{SRD_OUT+3}, 0x20000")
        e(f"s_mov_b32 s{sHALF}, 0")
        e(f"s_getreg_b32 s3, hwreg(HW_REG_XCC_ID)\ns_and_b32 s3, s3, 15\ns_mov_b32 s{sMODE}, 0")

    def tag_from(self, vreg):
        e = self.e
        e(f"v_readfirstlane_b32 s{sTAG}, v{vreg}")
        e(f"s_mul_i32 s{sTAG}, s{sTAG}, 0x9E3779B1\ns_add_u32 s{sTAG}, s{sTAG}, 0x7F4A7C15")
        Lx = e.newlabel("XW")
        e(f"s_cmp_lg_u32 s{sW}, 0\ns_cbranch_scc1 {Lx}")
        e(f"s_add_u32 s{sT0}, s{sTAG}, s3\ns_add_u32 s{sT0}, s{sT0}, 16\nv_mov_b32 v{vT0}, s{sT0}")
        e(f"s_lshl_b32 s{sT1}, s{sC}, 3\ns_add_u32 s{sT1}, s{sT1}, s{sJ}\ns_lshl_b32 s{sT1}, s{sT1}, 2\ns_add_u32 s{sT1}, s{sT1}, {FL_XW}\nv_mov_b32 v{vT1}, 0")
        e(f"s_mov_b64 exec, 1\nbuffer_store_dword v{vT0}, v{vT1}, s[{SRD_WS}:{SRD_WS+3}], s{sT1} offen sc1\ns_mov_b64 exec, -1")
        e.label(Lx)

    def publish_x(self, sX, sST, sHXr=None, moded=True):
        e = self.e
        e(f"s_add_u32 s{sT0}, s{sX}, s{sRBOFF}")
        def st1(fl):
            for c in range(2): t = self.ws_store(XR + 4 * c, f"s{sT0}", c * 1024, flag=fl)
            return t
        if moded: self.moded(st1)
        else: st1("sc1")
        e(f"v_mov_b32 v16, 0x3f803f80")
        e(f"v_dot2_f32_bf16 v17, v{XR}, v16, 0\nv_dot2_f32_bf16 v18, v{XR}, v{XR}, 0")
        for i in range(1, 8):
            e(f"v_dot2_f32_bf16 v17, v{XR+i}, v16, v17\nv_dot2_f32_bf16 v18, v{XR+i}, v{XR+i}, v18")
        e("v_permlane32_swap_b32 v17, v18\nv_add_f32 v17, v17, v18")
        e(f"s_add_u32 s{sT0}, s{sST}, s{sSTOFF}")
        st2 = lambda fl: self.ws_store(17, f"s{sT0}", 0, voff=vSTAT, n=1, flag=fl)
        tok = self.moded(st2) if moded else st2("sc1")
        if sHXr is not None:
            e(f"s_lshl_b32 s{sT1}, s{sC}, 15\ns_add_u32 s{sT1}, s{sT1}, s{sHXr}\ns_lshl_b32 s{sT2}, s{sNB}, 11\ns_add_u32 s{sT1}, s{sT1}, s{sT2}")
            e("s_mov_b32 exec_lo, 0xffff0000\ns_mov_b32 exec_hi, 0xffff0000")
            for c in range(2):
                self.ws_store(XR + 4 * c, f"s{sT1}", c * 1024, voff=vHALO, flag="sc1")
            e("s_mov_b64 exec, -1")
            e(f"s_add_u32 s{sT0}, s{sSTH}, s{sSTOFF}")
            self.ws_store(17, f"s{sT0}", 0, voff=vSTAT, n=1, flag="sc1")
        return tok

    def load_stats_issue(self, dst, sST, srb):
        e = self.e
        e(f"v_and_b32 v{dst+16}, 31, v{vL}\nv_lshlrev_b32 v{dst+16}, 3, v{dst+16}\nv_lshrrev_b32 v{dst+17}, 5, v{vL}\nv_lshl_add_u32 v{dst+16}, v{dst+17}, 11, v{dst+16}")
        e(f"s_lshl_b32 s{sT0}, s{srb}, 12\ns_add_u32 s{sT0}, s{sT0}, s{sST}")
        tok = None
        for t in range(8):
            tok = self.ws_load(dst + 2 * t, f"s{sT0}", t * 256, voff=dst + 16, n=2)
        return tok
    def stats_finish(self, src, vmean, vrstd):
        e = self.e
        for t in range(1, 8):
            e(f"v_add_f32 v{src}, v{src}, v{src+2*t}\nv_add_f32 v{src+1}, v{src+1}, v{src+2*t+1}")
        e(f"v_permlane32_swap_b32 v{src}, v{src+1}\nv_add_f32 v{src}, v{src}, v{src+1}\nv_mov_b32 v{src+1}, v{src}")
        e(f"v_permlane32_swap_b32 v{src}, v{src+1}")
        e(f"v_mul_f32 v{vmean}, {fbits(1/512)}, v{src}")
        e(f"v_mul_f32 v{src+1}, {fbits(1/512)}, v{src+1}")
        e(f"v_fma_f32 v{src+1}, -v{vmean}, v{vmean}, v{src+1}")
        e(f"v_add_f32 v{src+1}, {fbits(1e-5)}, v{src+1}")
        e(f"v_rsq_f32 v{vrstd}, v{src+1}")

    def p0(self):
        e = self.e
        e(f"s_mov_b32 s{SRD_T}, s{sIN}\ns_mov_b32 s{SRD_T+1}, s{sIN+1}\ns_mov_b32 s{SRD_T+2}, {2048*1024}\ns_mov_b32 s{SRD_T+3}, 0x20000")
        e(f"v_and_b32 v16, 31, v{vL}\nv_lshlrev_b32 v16, 11, v16\nv_lshrrev_b32 v17, 5, v{vL}\nv_lshl_add_u32 v16, v17, 3, v16")
        e(f"s_lshl_b32 s{sT0}, s{sC}, 6\ns_add_u32 s{sT0}, s{sT0}, s{sP}\ns_lshl_b32 s{sT0}, s{sT0}, 10\ns_lshl_b32 s{sT1}, s{sNB}, 6\ns_add_u32 s{sT0}, s{sT0}, s{sT1}")
        for q in range(4):
            e.vmem(f"buffer_load_dwordx2 v[{XR+2*q}:{XR+2*q+1}], v16, s[{SRD_T}:{SRD_T+3}], s{sT0} offen offset:{16*q}")
        e.wait_vm()
        e(f"s_mov_b32 s{sA0}, {X0}\ns_mov_b32 s{sA1}, {ST0}")
        self.publish_x(sA0, sA1, moded=False)
        Lskip = e.newlabel("P0SKIP"); Lkv = e.newlabel("P0KV"); Lgo = e.newlabel("P0GO"); Lld = e.newlabel("P0LD")
        e(f"s_cmp_ge_u32 s{sG}, 97\ns_cbranch_scc1 {Lskip}")
        pw = lambda i: (sIN + 2 * i, sIN + 2 * i + 1)
        e(f"s_cmp_eq_u32 s{sG}, 16\ns_cbranch_scc1 {Lkv}")
        e(f"s_mov_b32 s{SRD_T}, s{pw(1)[0]}\ns_mov_b32 s{SRD_T+1}, s{pw(1)[1]}\ns_mov_b32 s{SRD_T+2}, {512*1024}\ns_mov_b32 s{sA2}, 1024\ns_lshl_b32 s{sA3}, s{sG}, 6")
        e(f"s_cmp_lt_u32 s{sG}, 16\ns_cbranch_scc1 {Lgo}")
        e(f"s_mov_b32 s{SRD_T}, s{pw(4)[0]}\ns_mov_b32 s{SRD_T+1}, s{pw(4)[1]}\ns_sub_u32 s{sA3}, s{sG}, 17\ns_lshl_b32 s{sA3}, s{sA3}, 6")
        e(f"s_cmp_lt_u32 s{sG}, 33\ns_cbranch_scc1 {Lgo}")
        e(f"s_mov_b32 s{SRD_T}, s{pw(6)[0]}\ns_mov_b32 s{SRD_T+1}, s{pw(6)[1]}\ns_mov_b32 s{SRD_T+2}, {512*3072}\ns_mov_b32 s{sA2}, 3072\ns_sub_u32 s{sA3}, s{sG}, 33\ns_lshl_b32 s{sA3}, s{sA3}, 6")
        e(f"s_cmp_lt_u32 s{sG}, 81\ns_cbranch_scc1 {Lgo}")
        e(f"s_mov_b32 s{SRD_T}, s{pw(7)[0]}\ns_mov_b32 s{SRD_T+1}, s{pw(7)[1]}\ns_mov_b32 s{SRD_T+2}, {512*1024}\ns_mov_b32 s{sA2}, 1024\ns_sub_u32 s{sA3}, s{sG}, 81\ns_lshl_b32 s{sA3}, s{sA3}, 6")
        e.label(Lgo)
        e(f"s_mov_b32 s{SRD_T+3}, 0x20000")
        e(f"v_lshrrev_b32 v16, 2, v{vL}\nv_mul_lo_u32 v16, v16, s{sA2}\nv_and_b32 v17, 3, v{vL}\nv_lshl_add_u32 v16, v17, 4, v16")
        e(f"s_lshl_b32 s{sT0}, s{sW}, 7\ns_mul_i32 s{sT0}, s{sT0}, s{sA2}\ns_add_u32 s{sT0}, s{sT0}, s{sA3}\ns_lshl_b32 s{sT1}, s{sA2}, 4")
        for it in range(8):
            e(f"buffer_load_dwordx4 v[{32+4*it}:{35+4*it}], v16, s[{SRD_T}:{SRD_T+3}], s{sT0} offen")
            if it < 7: e(f"s_add_u32 s{sT0}, s{sT0}, s{sT1}")
        e(f"s_branch {Lld}")
        e.label(Lkv)
        e(f"v_lshrrev_b32 v16, 2, v{vL}\nv_lshlrev_b32 v16, 5, v16\nv_and_b32 v17, 1, v{vL}\nv_lshl_add_u32 v16, v17, 4, v16")
        e(f"s_lshl_b32 s{sT0}, s{sW}, 12")
        e(f"v_and_b32 v17, 2, v{vL}\nv_cmp_eq_u32 vcc, 0, v17")
        e(f"s_mov_b32 s{SRD_T}, s{pw(3)[0]}\ns_mov_b32 s{SRD_T+1}, s{pw(3)[1]}\ns_mov_b32 s{SRD_T+2}, {512*32}\ns_mov_b32 s{SRD_T+3}, 0x20000")
        e(f"s_mov_b64 s[{sM0}:{sM0+1}], vcc")
        e(f"s_mov_b64 exec, s[{sM0}:{sM0+1}]")
        for it in range(8):
            e(f"buffer_load_dwordx4 v[{32+4*it}:{35+4*it}], v16, s[{SRD_T}:{SRD_T+3}], s{sT0} offen offset:{it*512}")
        e(f"s_mov_b64 exec, -1\ns_andn2_b64 exec, exec, s[{sM0}:{sM0+1}]")
        e(f"s_mov_b32 s{SRD_T}, s{pw(2)[0]}\ns_mov_b32 s{SRD_T+1}, s{pw(2)[1]}\ns_mov_b32 s{SRD_T+2}, {512*32}\ns_mov_b32 s{SRD_T+3}, 0x20000")
        for it in range(8):
            e(f"buffer_load_dwordx4 v[{32+4*it}:{35+4*it}], v16, s[{SRD_T}:{SRD_T+3}], s{sT0} offen offset:{it*512}")
        e("s_mov_b64 exec, -1")
        e.label(Lld)
        e("s_waitcnt vmcnt(0)")
        e(f"s_lshl_b32 s{sT0}, s{sW}, 13\nv_add_u32 v17, s{sT0}, v{vL16}")
        for it in range(8):
            e(f"ds_write_b128 v17, v[{32+4*it}:{35+4*it}] offset:{it*1024}")
        e(f"v_and_b32 v18, 15, v{vL}\nv_lshrrev_b32 v19, 2, v18\nv_lshrrev_b32 v20, 5, v{vL}\nv_lshl_add_u32 v19, v20, 2, v19\nv_lshlrev_b32 v19, 6, v19")
        e(f"v_and_b32 v20, 3, v18\nv_lshl_add_u32 v19, v20, 3, v19\nv_bfe_u32 v20, v{vL}, 4, 1\nv_lshl_add_u32 v19, v20, 5, v19\nv_add_u32 v19, s{sT0}, v19")
        e("s_waitcnt lgkmcnt(0)")
        for t in range(8):
            e(f"ds_read_b64_tr_b16 v[{64+4*t}:{65+4*t}], v19 offset:{t*1024}")
            e(f"ds_read_b64_tr_b16 v[{66+4*t}:{67+4*t}], v19 offset:{t*1024+512}")
        e("s_waitcnt lgkmcnt(0)")
        e(f"s_lshl_b32 s{sT0}, s{sG}, 15\ns_lshl_b32 s{sT1}, s{sW}, 13\ns_add_u32 s{sT0}, s{sT0}, s{sT1}\ns_add_u32 s{sT0}, s{sT0}, {WF}\ns_add_u32 s{sT1}, s{sT0}, 4096")
        for t in range(8):
            self.ws_store(64 + 4 * t, f"s{sT0 if t < 4 else sT1}", (t % 4) * 1024)
        e("v_mov_b32 v16, 0x3f803f80\nv_mov_b32 v17, 0")
        for i in range(32):
            e(f"v_dot2_f32_bf16 v17, v{64+i}, v16, v17")
        e("v_mov_b32 v18, v17\nv_permlane32_swap_b32 v17, v18\nv_add_f32 v17, v17, v18")
        e(f"s_lshl_b32 s{sT0}, s{sW}, 8\nv_add_u32 v18, s{sT0}, v{vL4}\nds_write_b32 v18, v17 offset:32768\ns_waitcnt lgkmcnt(0)\ns_barrier")
        e(f"ds_read_b32 v20, v{vL4} offset:32768\nds_read_b32 v21, v{vL4} offset:{32768+256}\nds_read_b32 v22, v{vL4} offset:{32768+512}\nds_read_b32 v23, v{vL4} offset:{32768+768}\ns_waitcnt lgkmcnt(0)")
        e("v_add_f32 v20, v20, v21\nv_add_f32 v22, v22, v23\nv_add_f32 v20, v20, v22")
        Lcs = e.newlabel("P0CS")
        e(f"s_cmp_lg_u32 s{sW}, 0\ns_cbranch_scc1 {Lcs}")
        e(f"s_lshl_b32 s{sT0}, s{sG}, 7\ns_add_u32 s{sT0}, s{sT0}, {CS}\ns_mov_b32 exec_hi, 0")
        self.ws_store(20, f"s{sT0}", 0, voff=vL4, n=1)
        e("s_mov_b64 exec, -1")
        e.label(Lcs)
        e.label(Lskip)
        e.wait_vm(); e("s_barrier")
        L = e.newlabel("G0")
        e(f"s_cmp_lg_u32 s{sW}, 0\ns_cbranch_scc1 {L}")
        e(f"v_lshlrev_b32 v16, 10, v{vL}\ns_lshl_b32 s{sT0}, s{sG}, 2\ns_add_u32 s{sT0}, s{sT0}, {FL_G0}\nv_mov_b32 v17, s{sTAG}")
        e(f"s_mov_b64 exec, 0xff\nbuffer_store_dword v17, v16, s[{SRD_WS}:{SRD_WS+3}], s{sT0} offen sc1\ns_mov_b64 exec, -1")
        e(f"s_and_b32 s{sT0}, s{sG}, 7\ns_lshl_b32 s{sT0}, s{sT0}, 10\ns_add_u32 s{sT0}, s{sT0}, {FL_G0}")
        def setup():
            e(f"buffer_load_dwordx4 v[16:19], v{vL16}, s[{SRD_WS}:{SRD_WS+3}], s{sT0} offen sc1\ns_waitcnt vmcnt(0)")
            e(f"v_xor_b32 v16, s{sTAG}, v16\nv_xor_b32 v17, s{sTAG}, v17\nv_xor_b32 v18, s{sTAG}, v18\nv_xor_b32 v19, s{sTAG}, v19")
            e("v_or_b32 v16, v16, v17\nv_or_b32 v18, v18, v19\nv_or_b32 v16, v16, v18\nv_cmp_ne_u32 vcc, 0, v16")
        self.poll("g", setup)
        self.mode_detect()
        e.label(L)
        e("s_barrier")
        self.mode_read()
        e.reset_counters()

    def mode_detect(self):
        e = self.e
        Lp = e.newlabel("XPOLL"); Lok = e.newlabel("XOK")
        e(f"s_lshl_b32 s{sT0}, s{sC}, 5\ns_add_u32 s{sT0}, s{sT0}, {FL_XW}\nv_and_b32 v16, 7, v{vL}\nv_lshlrev_b32 v16, 2, v16\ns_mov_b32 s{sPOLL}, 0")
        e.label(Lp)
        e(f"buffer_load_dword v17, v16, s[{SRD_WS}:{SRD_WS+3}], s{sT0} offen sc1\ns_waitcnt vmcnt(0)")
        e(f"v_subrev_u32 v17, s{sTAG}, v17\nv_subrev_u32 v17, 16, v17\nv_cmp_le_u32 vcc, 16, v17")
        e(f"s_cbranch_vccz {Lok}")
        e(f"s_add_u32 s{sPOLL}, s{sPOLL}, 1\ns_cmp_lt_u32 s{sPOLL}, 400000\ns_cbranch_scc1 {Lp}\ns_branch L_END")
        e.label(Lok)
        e(f"v_cmp_ne_u32 vcc, s3, v17\ns_nop 4\ns_cmp_eq_u64 vcc, 0\ns_cselect_b32 s{sT1}, 1, 0")
        if getattr(self, "force_safe", False): e(f"s_mov_b32 s{sT1}, 0")
        e(f"v_mov_b32 v16, {MODEADDR}\nv_mov_b32 v17, s{sT1}\nds_write_b32 v16, v17\ns_waitcnt lgkmcnt(0)")
    def mode_read(self):
        e = self.e
        e(f"v_mov_b32 v16, {MODEADDR}\nds_read_b32 v17, v16\ns_waitcnt lgkmcnt(0)\nv_readfirstlane_b32 s{sMODE}, v17")


    def first_phase(self):
        e = self.e
        XI, WQI, WVI = 0, 65536, 131072
        STX, CSP, CSK, REDKV, VT, RED = 8192, 9216, 9728, 12288, 16384, 32768
        SRD_X, SRD_Q, SRD_P = 8, 68, 72
        pw = lambda i: (sIN + 2 * i, sIN + 2 * i + 1)
        sR = sA0
        for k, i in enumerate((1, 2, 3, 4, 6, 7)):
            e(f"s_mov_b32 s{88+2*k}, s{pw(i)[0]}\ns_mov_b32 s{89+2*k}, s{pw(i)[1]}")
        e(f"s_mov_b32 s{SRD_X}, s{sIN}\ns_mov_b32 s{SRD_X+1}, s{sIN+1}\ns_mov_b32 s{SRD_X+2}, {2048*1024}\ns_mov_b32 s{SRD_X+3}, 0x20000")
        e(f"s_mov_b32 s{SRD_Q}, s88\ns_mov_b32 s{SRD_Q+1}, s89\ns_mov_b32 s{SRD_Q+2}, {512*1024}\ns_mov_b32 s{SRD_Q+3}, 0x20000")
        e(f"v_mov_b32 v230, 0")
        e(f"buffer_load_dword v231, v230, s[{SRD_WS}:{SRD_WS+3}], 0 offen sc0 sc1")
        def x_rows(par_expr_sgpr, nrows, srow0):
            e(f"s_lshl_b32 s{sT3}, s{srow0}, 1\ns_add_u32 s{sT3}, s{sT3}, s{par_expr_sgpr}\ns_lshl_b32 s{sT4}, s{sC}, 6\ns_add_u32 s{sT3}, s{sT3}, s{sT4}\ns_lshl_b32 s{sT3}, s{sT3}, 10")
            e(f"s_lshl_b32 s{sT4}, s{par_expr_sgpr}, 5\ns_add_u32 s{sT4}, s{sT4}, s{srow0}\ns_lshl_b32 s{sT4}, s{sT4}, 10")
            e(f"s_and_b32 s{sT5}, s{srow0}, 15\ns_lshl_b32 s{sT5}, s{sT5}, 4")
            for t in range(nrows):
                e(f"v_xor_b32 v232, s{sT5}, v{vL16}\ns_mov_b32 m0, s{sT4}")
                e(f"buffer_load_dwordx4 v232, s[{SRD_X}:{SRD_X+3}], s{sT3} offen lds")
                if t < nrows - 1: e(f"s_add_u32 s{sT3}, s{sT3}, 2048\ns_add_u32 s{sT4}, s{sT4}, 1024\ns_add_u32 s{sT5}, s{sT5}, 16")
        def wq_rows(nit, srow_shift_expr):
            e(f"s_lshl_b32 s{sT3}, s{sT6}, 10\ns_lshl_b32 s{sT4}, s{sJ}, 7\ns_add_u32 s{sT3}, s{sT3}, s{sT4}\ns_lshl_b32 s{sT4}, s{sT6}, 7\ns_add_u32 s{sT4}, s{sT4}, {WQI}")
            for t in range(nit):
                e(f"s_mov_b32 m0, s{sT4}\ns_add_u32 s{sT4}, s{sT4}, 1024")
                e(f"buffer_load_dwordx4 v233, s[{SRD_Q}:{SRD_Q+3}], s{sT3} offen lds")
                if t < nit - 1: e(f"s_add_u32 s{sT3}, s{sT3}, 8192")
        e(f"v_lshrrev_b32 v233, 3, v{vL}\nv_lshlrev_b32 v233, 10, v233\nv_and_b32 v234, 7, v{vL}\nv_lshl_add_u32 v233, v234, 4, v233")
        e(f"s_mul_i32 s{sR}, s{sC}, 6\ns_add_u32 s{sR}, s{sR}, s{sJ}\ns_sub_u32 s{sR}, s{sR}, 2\ns_cmp_lt_u32 s{sJ}, 2\ns_cselect_b32 s{sR}, 255, s{sR}")
        def _pl():
            Lnp = e.newlabel("FNP"); Lgo = e.newlabel("FGO"); Lkvb = e.newlabel("FKVB")
            e(f"s_cmp_ge_u32 s{sR}, 97\ns_cbranch_scc1 {Lnp}")
            e(f"s_cmp_eq_u32 s{sR}, 16\ns_cbranch_scc1 {Lkvb}")
            e(f"s_mov_b32 s{SRD_P}, s88\ns_mov_b32 s{SRD_P+1}, s89\ns_mov_b32 s{SRD_P+2}, {512*1024}\ns_mov_b32 s{sA2}, 1024\ns_lshl_b32 s{sA3}, s{sR}, 6")
            e(f"s_cmp_lt_u32 s{sR}, 16\ns_cbranch_scc1 {Lgo}")
            e(f"s_mov_b32 s{SRD_P}, s94\ns_mov_b32 s{SRD_P+1}, s95\ns_sub_u32 s{sA3}, s{sR}, 17\ns_lshl_b32 s{sA3}, s{sA3}, 6")
            e(f"s_cmp_lt_u32 s{sR}, 33\ns_cbranch_scc1 {Lgo}")
            e(f"s_mov_b32 s{SRD_P}, s96\ns_mov_b32 s{SRD_P+1}, s97\ns_mov_b32 s{SRD_P+2}, {512*3072}\ns_mov_b32 s{sA2}, 3072\ns_sub_u32 s{sA3}, s{sR}, 33\ns_lshl_b32 s{sA3}, s{sA3}, 6")
            e(f"s_cmp_lt_u32 s{sR}, 81\ns_cbranch_scc1 {Lgo}")
            e(f"s_mov_b32 s{SRD_P}, s98\ns_mov_b32 s{SRD_P+1}, s99\ns_mov_b32 s{SRD_P+2}, {512*1024}\ns_mov_b32 s{sA2}, 1024\ns_sub_u32 s{sA3}, s{sR}, 81\ns_lshl_b32 s{sA3}, s{sA3}, 6")
            e.label(Lgo)
            e(f"s_mov_b32 s{SRD_P+3}, 0x20000")
            e(f"v_lshrrev_b32 v235, 2, v{vL}\nv_mul_lo_u32 v235, v235, s{sA2}\nv_and_b32 v236, 3, v{vL}\nv_lshl_add_u32 v235, v236, 4, v235")
            e(f"s_lshl_b32 s{sT0}, s{sW}, 7\ns_mul_i32 s{sT0}, s{sT0}, s{sA2}\ns_add_u32 s{sT0}, s{sT0}, s{sA3}\ns_lshl_b32 s{sT1}, s{sA2}, 4")
            for it in range(8):
                e(f"buffer_load_dwordx4 a[{4*it}:{4*it+3}], v235, s[{SRD_P}:{SRD_P+3}], s{sT0} offen")
                if it < 7: e(f"s_add_u32 s{sT0}, s{sT0}, s{sT1}")
            e(f"s_branch {Lnp}")
            e.label(Lkvb)
            e(f"v_lshrrev_b32 v235, 2, v{vL}\nv_lshlrev_b32 v235, 5, v235\nv_and_b32 v236, 1, v{vL}\nv_lshl_add_u32 v235, v236, 4, v235")
            e(f"s_lshl_b32 s{sT0}, s{sW}, 12")
            e(f"v_and_b32 v236, 2, v{vL}\nv_cmp_eq_u32 vcc, 0, v236")
            e(f"s_mov_b32 s{SRD_P}, s92\ns_mov_b32 s{SRD_P+1}, s93\ns_mov_b32 s{SRD_P+2}, {512*32}\ns_mov_b32 s{SRD_P+3}, 0x20000")
            e(f"s_mov_b64 s[{sM0}:{sM0+1}], vcc\ns_mov_b64 exec, s[{sM0}:{sM0+1}]")
            for it in range(8):
                e(f"buffer_load_dwordx4 a[{4*it}:{4*it+3}], v235, s[{SRD_P}:{SRD_P+3}], s{sT0} offen offset:{it*512}")
            e(f"s_mov_b64 exec, -1\ns_andn2_b64 exec, exec, s[{sM0}:{sM0+1}]")
            e(f"s_mov_b32 s{SRD_P}, s90\ns_mov_b32 s{SRD_P+1}, s91\ns_mov_b32 s{SRD_P+2}, {512*32}\ns_mov_b32 s{SRD_P+3}, 0x20000")
            for it in range(8):
                e(f"buffer_load_dwordx4 a[{4*it}:{4*it+3}], v235, s[{SRD_P}:{SRD_P+3}], s{sT0} offen offset:{it*512}")
            e("s_mov_b64 exec, -1")
            e.label(Lnp)
        self._prep_loads = _pl
        Lnk = e.newlabel("FNK"); Lcommon = e.newlabel("FCOM"); Lkvw = e.newlabel("FKVW")
        e(f"s_cmp_ge_u32 s{sJ}, 2\ns_cbranch_scc1 {Lnk}")
        for m, (ptr, base) in enumerate(((92, WVI), (90, WVI + 16384))):
            e(f"s_mov_b32 s{SRD_P}, s{ptr}\ns_mov_b32 s{SRD_P+1}, s{ptr+1}\ns_mov_b32 s{SRD_P+2}, 16384\ns_mov_b32 s{SRD_P+3}, 0x20000")
            e(f"s_lshl_b32 s{sT0}, s{sW}, 12\ns_add_u32 s{sT1}, s{sT0}, {base}\ns_mov_b32 m0, s{sT1}\ns_nop 0")
            for t in range(4):
                e(f"buffer_load_dwordx4 v{vL16}, s[{SRD_P}:{SRD_P+3}], s{sT0} offen offset:{t*1024} lds")
        e(f"s_lshl_b32 s{sT6}, s{sW}, 3")
        x_rows(sJ, 8, sT6)
        e(f"s_branch {Lcommon}")
        e.label(Lnk)
        self._prep_loads()
        e(f"s_lshr_b32 s{sT7}, s{sW}, 1\ns_and_b32 s{sT6}, s{sW}, 1\ns_lshl_b32 s{sT6}, s{sT6}, 4")
        x_rows(sT7, 16, sT6)
        e(f"s_lshl_b32 s{sT6}, s{sW}, 7")
        wq_rows(16, None)
        e.label(Lcommon)
        e(f"v_and_b32 v16, 31, v{vL}\nv_lshlrev_b32 v16, 11, v16\nv_lshrrev_b32 v17, 5, v{vL}\nv_lshl_add_u32 v16, v17, 3, v16")
        e(f"s_lshl_b32 s{sT0}, s{sC}, 6\ns_add_u32 s{sT0}, s{sT0}, s{sP}\ns_lshl_b32 s{sT0}, s{sT0}, 10\ns_lshl_b32 s{sT1}, s{sNB}, 6\ns_add_u32 s{sT0}, s{sT0}, s{sT1}")
        for q in range(4):
            e(f"buffer_load_dwordx2 v[{XR+2*q}:{XR+2*q+1}], v16, s[{SRD_X}:{SRD_X+3}], s{sT0} offen offset:{16*q}")
        self.stamp("f_issued")
        e(f"v_and_b32 v16, 31, v{vL}\nv_lshrrev_b32 v17, 5, v{vL}\nv_and_b32 v18, 15, v16\nv_lshlrev_b32 v19, 10, v16")
        e(f"s_lshl_b32 s{sT0}, s{sP}, 15\ns_lshl_b32 s{sT1}, s{sKH}, 9\ns_add_u32 s{sT0}, s{sT0}, s{sT1}\nv_add_u32 v19, s{sT0}, v19")
        for b in range(8):
            e(f"v_add_u32 v20, {2*b}, v17\nv_xor_b32 v20, v20, v18\nv_lshl_add_u32 v{240+b}, v20, 4, v19")
        e(f"v_and_b32 v18, 15, v{vL}\nv_lshrrev_b32 v20, 2, v18\nv_lshl_add_u32 v20, v17, 3, v20\nv_lshlrev_b32 v21, 7, v20")
        e(f"v_bfe_u32 v22, v{vL}, 4, 1\nv_lshl_add_u32 v21, v22, 5, v21\nv_and_b32 v23, 3, v18\nv_lshl_add_u32 v21, v23, 3, v21")
        e(f"s_lshl_b32 s{sT0}, s{sKH}, 15\ns_add_u32 s{sT0}, s{sT0}, {WQI}\ns_lshl_b32 s{sT1}, s{sKH}, 6\ns_add_u32 s{sT2}, s{sT0}, s{sT1}\nv_add_u32 v248, s{sT2}, v21")
        e(f"s_xor_b32 s{sT1}, s{sT1}, 64\ns_add_u32 s{sT2}, s{sT0}, s{sT1}\nv_add_u32 v249, s{sT2}, v21")
        e(f"v_lshlrev_b32 v21, 5, v20\nv_lshl_add_u32 v21, v22, 14, v21\nv_lshl_add_u32 v21, v23, 3, v21")
        e(f"s_lshl_b32 s{sT0}, s{sKH}, 13\ns_add_u32 s{sT0}, s{sT0}, {WVI}\nv_add_u32 v250, s{sT0}, v21")
        STXK, CSK, REDKV, VT = WVI, WVI + 256, WVI + 8192 + 512, WVI + 1024
        STX2, CSP, RED = WVI + 13312, WVI + 14336, WVI + 16384
        ONE = 229
        def xreads():
            for t in range(16):
                e(f"ds_read_b128 v[{16+4*t}:{19+4*t}], v{240+(t&7)} offset:{(t>>3)*256}")
            e(f"v_mov_b32 v{ONE}, 0x3f803f80\nv_mov_b32 v224, 0\nv_mov_b32 v225, 0\nv_mov_b32 v226, 0\nv_mov_b32 v236, 0\nv_mov_b32 v237, 0\nv_mov_b32 v238, 0")
            e("s_waitcnt lgkmcnt(0)")
        def stats_ops(t):
            acc = lambda k, d: ((224, 236), (225, 237))[k][d & 1]
            return [f"v_dot2_f32_bf16 v{acc(k,d)}, v{16+4*t+d}, v{ONE if k == 0 else 16+4*t+d}, v{acc(k,d)}" for d in range(4) for k in range(2)]
        def stats_write(sbase):
            e("v_add_f32 v224, v224, v236\nv_add_f32 v225, v225, v237")
            e("v_permlane32_swap_b32 v224, v225\nv_add_f32 v224, v224, v225")
            e(f"v_add_u32 v227, s{sbase}, v{vL4}\nds_write_b32 v227, v224")
        def stats_read(sbase, second):
            e(f"v_and_b32 v227, 31, v{vL}\nv_lshlrev_b32 v227, 2, v227\nv_add_u32 v227, s{sbase}, v227")
            e(f"ds_read_b32 v224, v227\nds_read_b32 v225, v227 offset:128\nds_read_b32 v226, v227 offset:{second}\nds_read_b32 v228, v227 offset:{second+128}")
            e("s_waitcnt lgkmcnt(0)")
            e(f"v_add_f32 v224, v224, v226\nv_add_f32 v225, v225, v228")
            e(f"v_mul_f32 v178, {fbits(1/512)}, v224\nv_mul_f32 v225, {fbits(1/512)}, v225\nv_fma_f32 v225, -v178, v178, v225\nv_add_f32 v225, {fbits(1e-5)}, v225\nv_rsq_f32 v179, v225")
        def cs_read(dst, base, second):
            e(f"v_lshrrev_b32 v228, 5, v{vL}\nv_lshlrev_b32 v228, 4, v228\nv_add_u32 v228, {base}, v228")
            for q in range(4):
                e(f"ds_read_b128 v[{dst+4*q}:{dst+3+4*q}], v228 offset:{32*q}\nds_read_b128 v[{112+4*q}:{115+4*q}], v228 offset:{second+32*q}")
            e("s_waitcnt lgkmcnt(0)")
            for r in range(16): e(f"v_add_f32 v{dst+r}, v{dst+r}, v{112+r}")
        def qpass(with_stats):
            Lp1 = e.newlabel("FQP1"); Lpd = e.newlabel("FQPD")
            e("v_mov_b32 v226, 0\nv_mov_b32 v238, 0")
            e(f"s_cmp_eq_u32 s{sP}, 1\ns_cbranch_scc1 {Lp1}")
            for var in range(2):
                if var == 1: e.label(Lp1)
                def rd(t):
                    r = 112 + (t % 4) * 8
                    e(f"ds_read_b64_tr_b16 v[{r}:{r+1}], v248 offset:{t*2048}\nds_read_b64_tr_b16 v[{r+2}:{r+3}], v248 offset:{t*2048+512}")
                    e(f"ds_read_b64_tr_b16 v[{r+4}:{r+5}], v249 offset:{t*2048}\nds_read_b64_tr_b16 v[{r+6}:{r+7}], v249 offset:{t*2048+512}")
                for t in range(3): rd(t)
                for t in range(16):
                    if t + 3 < 16: rd(t + 3)
                    e(f"s_waitcnt lgkmcnt({4*min(3, 15-t)})")
                    r = 112 + (t % 4) * 8
                    e(f"v_mfma_f32_32x32x16_bf16 v[80:95], v[{r}:{r+3}], v[{16+4*t}:{19+4*t}], {'0' if t == 0 else 'v[80:95]'}")
                    e(f"v_mfma_f32_32x32x16_bf16 v[96:111], v[{r+4}:{r+7}], v[{16+4*t}:{19+4*t}], {'0' if t == 0 else 'v[96:111]'}")
                    so = stats_ops(t) if with_stats else [None] * 8
                    for d in range(4):
                        if so[2*d]: e(so[2*d])
                        e(f"v_dot2_f32_bf16 v{226 if d % 2 == 0 else 238}, v{r+4*var+d}, v{ONE}, v{226 if d % 2 == 0 else 238}")
                        if so[2*d+1]: e(so[2*d+1])
                if var == 0: e(f"s_branch {Lpd}")
            e.label(Lpd)
            e(f"s_xor_b32 s{sT1}, s{sKH}, s{sP}\ns_lshl_b32 s{sT1}, s{sT1}, 8\ns_lshl_b32 s{sT2}, s{sKH}, 7\ns_add_u32 s{sT1}, s{sT1}, s{sT2}\ns_add_u32 s{sT1}, s{sT1}, {CSP}")
            e("v_add_f32 v226, v226, v238\nv_mov_b32 v228, v226\nv_permlane32_swap_b32 v226, v228\nv_add_f32 v226, v226, v228")
            e(f"v_add_u32 v228, s{sT1}, v{vL4}\ns_mov_b32 exec_hi, 0\nds_write_b32 v228, v226\ns_mov_b64 exec, -1")
        def prep_process():
            Lcs = e.newlabel("FPCS")
            PL = WVI
            e("s_waitcnt vmcnt(36)")
            e(f"s_lshl_b32 s{sT0}, s{sW}, 13\ns_add_u32 s{sT0}, s{sT0}, {PL}\nv_add_u32 v17, s{sT0}, v{vL16}")
            for it in range(8):
                e(f"ds_write_b128 v17, a[{4*it}:{4*it+3}] offset:{it*1024}")
            e(f"v_and_b32 v18, 15, v{vL}\nv_lshrrev_b32 v19, 2, v18\nv_lshrrev_b32 v20, 5, v{vL}\nv_lshl_add_u32 v19, v20, 2, v19\nv_lshlrev_b32 v19, 6, v19")
            e(f"v_and_b32 v20, 3, v18\nv_lshl_add_u32 v19, v20, 3, v19\nv_bfe_u32 v20, v{vL}, 4, 1\nv_lshl_add_u32 v19, v20, 5, v19\nv_add_u32 v19, s{sT0}, v19")
            e("s_waitcnt lgkmcnt(0)")
            for t in range(8):
                e(f"ds_read_b64_tr_b16 v[{32+4*t}:{33+4*t}], v19 offset:{t*1024}")
                e(f"ds_read_b64_tr_b16 v[{34+4*t}:{35+4*t}], v19 offset:{t*1024+512}")
            e(f"s_lshl_b32 s{sT2}, s{sR}, 15\ns_lshl_b32 s{sT1}, s{sW}, 13\ns_add_u32 s{sT2}, s{sT2}, s{sT1}\ns_add_u32 s{sT2}, s{sT2}, {WF}\ns_add_u32 s{sT1}, s{sT2}, 4096")
            e("v_mov_b32 v16, 0x3f803f80\nv_mov_b32 v17, 0")
            e("s_waitcnt lgkmcnt(0)")
            for t in range(8):
                e(f"buffer_store_dwordx4 v[{32+4*t}:{35+4*t}], v{vL16}, s[{SRD_WS}:{SRD_WS+3}], s{sT2 if t < 4 else sT1} offen offset:{(t%4)*1024} sc1")
            e("v_mov_b32 v21, 0\nv_mov_b32 v22, 0\nv_mov_b32 v23, 0")
            for i in range(32):
                ac = (17, 21, 22, 23)[i % 4]
                e(f"v_dot2_f32_bf16 v{ac}, v{32+i}, v16, v{ac}")
            e("v_add_f32 v21, v21, v22\nv_add_f32 v17, v17, v23\nv_add_f32 v17, v17, v21")
            e("v_mov_b32 v18, v17\nv_permlane32_swap_b32 v17, v18\nv_add_f32 v17, v17, v18")
            e(f"v_add_u32 v18, s{sT0}, v{vL4}\nds_write_b32 v18, v17\ns_waitcnt lgkmcnt(0)\ns_barrier")
            e(f"s_cmp_lg_u32 s{sW}, 0\ns_cbranch_scc1 {Lcs}")
            e(f"v_add_u32 v18, {PL}, v{vL4}")
            e(f"ds_read_b32 v20, v18\nds_read_b32 v21, v18 offset:8192\nds_read_b32 v22, v18 offset:16384\nds_read_b32 v23, v18 offset:24576\ns_waitcnt lgkmcnt(0)")
            e("v_add_f32 v20, v20, v21\nv_add_f32 v22, v22, v23\nv_add_f32 v20, v20, v22")
            e(f"s_lshl_b32 s{sT0}, s{sR}, 7\ns_add_u32 s{sT0}, s{sT0}, {CS}\ns_mov_b32 exec_hi, 0")
            e(f"buffer_store_dword v20, v{vL4}, s[{SRD_WS}:{SRD_WS+3}], s{sT0} offen sc1\ns_mov_b64 exec, -1")
            e.label(Lcs)
        Lkvp = e.newlabel("FKVP"); Lnkw = e.newlabel("FNKW"); Lqs = e.newlabel("FQS"); Lq2 = e.newlabel("FQ2"); Lred = e.newlabel("FRED"); Lep = e.newlabel("FEP")
        e(f"s_cmp_ge_u32 s{sJ}, 2\ns_cbranch_scc1 {Lnkw}")
        e(f"s_cmp_eq_u32 s{sP}, s{sJ}\ns_cbranch_scc1 {Lkvp}")
        e("s_waitcnt vmcnt(4)")
        self.tag_from(231)
        e("s_barrier")
        e(f"s_xor_b32 s{sT7}, s{sJ}, 1\ns_lshl_b32 s{sT6}, s{sKH}, 4")
        x_rows(sT7, 16, sT6)
        e(f"s_lshl_b32 s{sT6}, s{sKH}, 8")
        wq_rows(12, None)
        e("s_barrier")
        e(f"s_lshl_b32 s{sT6}, s{sKH}, 8\ns_add_u32 s{sT6}, s{sT6}, 96")
        wq_rows(20, None)
        e("s_waitcnt vmcnt(0)")
        e("s_barrier")
        e(f"s_branch {Lqs}")
        e.label(Lkvp)
        e("s_waitcnt vmcnt(4)")
        self.tag_from(231)
        e("s_barrier")
        self.stamp("f_b0")
        fl = getattr(self, "light", None) == "fkv"
        if fl: self.lstamp(0)
        xreads()
        if fl: self.lstamp(1)
        def kvrd(t): e(f"ds_read_b64_tr_b16 v[{160+4*t}:{161+4*t}], v250 offset:{t*512}\nds_read_b64_tr_b16 v[{162+4*t}:{163+4*t}], v250 offset:{t*512+128}")
        for t in range(5): kvrd(t)
        for t in range(16):
            if t + 5 < 16: kvrd(t + 5)
            e(f"s_waitcnt lgkmcnt({2*min(5, 15-t)})")
            e(f"v_mfma_f32_32x32x16_bf16 v[144:159], v[{160+4*t}:{163+4*t}], v[{16+4*t}:{19+4*t}], {'0' if t == 0 else 'v[144:159]'}")
            so = stats_ops(t)
            for d in range(4):
                e(so[2*d]); e(f"v_dot2_f32_bf16 v{226 if d % 2 == 0 else 238}, v{160+4*t+d}, v{ONE}, v{226 if d % 2 == 0 else 238}"); e(so[2*d+1])
        if fl: self.lstamp(2)
        e(f"s_lshl_b32 s{sT0}, s{sKH}, 13\ns_add_u32 s{sT0}, s{sT0}, {STXK}")
        stats_write(sT0)
        e(f"s_add_u32 s{sT1}, s{sT0}, 256")
        e("v_add_f32 v226, v226, v238\nv_mov_b32 v228, v226\nv_permlane32_swap_b32 v226, v228\nv_add_f32 v226, v226, v228")
        e(f"v_add_u32 v228, s{sT1}, v{vL4}\ns_mov_b32 exec_hi, 0\nds_write_b32 v228, v226\ns_mov_b64 exec, -1")
        Lx = e.newlabel("FKW")
        e(f"s_cmp_eq_u32 s{sKH}, 0\ns_cbranch_scc1 {Lx}")
        e(f"v_add_u32 v{vT0}, {REDKV}, v{vL16}")
        for q in range(4):
            e(f"ds_write_b128 v{vT0}, v[{144+4*q}:{147+4*q}] offset:{q*1024}")
        e.label(Lx)
        e("s_waitcnt lgkmcnt(0)")
        if fl: self.lstamp(3)
        e("s_barrier")
        if fl: self.lstamp(4)
        e(f"s_mov_b32 s{sT0}, {STXK}")
        stats_read(sT0, 8192)
        if fl: self.lstamp(5)
        Lk1 = e.newlabel("FK1")
        e(f"s_cmp_lg_u32 s{sKH}, 0\ns_cbranch_scc1 {Lk1}")
        self.kv_epilogue(REDKV, VT, 196, 178, 179, pre=lambda: cs_read(196, CSK, 8192), before_drain=(lambda: self.lstamp(6)) if fl else None)
        if fl:
            self.lstamp(7); self.lflush("fkv")
        self.stamp("f_kv")
        e("s_barrier")
        e(f"s_branch {Lq2}")
        e.label(Lk1)
        e("s_waitcnt vmcnt(0)\ns_barrier")
        e.label(Lq2)
        qpass(False)
        e(f"s_branch {Lred}")
        e.label(Lnkw)
        Lw0 = e.newlabel("FW0"); Lw1 = e.newlabel("FW1")
        e(f"s_cmp_ge_u32 s{sR}, 97\ns_cbranch_scc1 {Lw0}")
        prep_process()
        Lw2 = e.newlabel("FW2")
        e(f"s_cmp_eq_u32 s{sW}, 0\ns_cbranch_scc1 {Lw2}")
        e(f"s_waitcnt vmcnt(8)\ns_branch {Lw1}")
        e.label(Lw2)
        e(f"s_waitcnt vmcnt(9)\ns_branch {Lw1}")
        e.label(Lw0)
        e("s_waitcnt vmcnt(0)")
        e.label(Lw1)
        self.tag_from(231)
        e("s_barrier")
        e.label(Lqs)
        self.stamp("f_landed")
        xreads()
        qpass(True)
        e(f"s_lshl_b32 s{sT0}, s{sW}, 8\ns_add_u32 s{sT0}, s{sT0}, {STX2}")
        stats_write(sT0)
        e.label(Lred)
        self.reduce_pair(red=RED)
        Lst = e.newlabel("FST")
        e(f"s_cmp_eq_u32 s{sP}, s{sJ}\ns_cbranch_scc1 {Lst}")
        e(f"s_lshl_b32 s{sT0}, s{sP}, 8\ns_add_u32 s{sT0}, s{sT0}, {STX2}")
        stats_read(sT0, 512)
        e.label(Lst)
        e(f"s_lshl_b32 s{sT1}, s{sKH}, 8\ns_add_u32 s{sT1}, s{sT1}, {CSP}")
        e(f"v_lshrrev_b32 v228, 5, v{vL}\nv_lshlrev_b32 v228, 4, v228\nv_add_u32 v228, s{sT1}, v228")
        for q in range(4):
            e(f"ds_read_b128 v[{196+4*q}:{199+4*q}], v228 offset:{32*q}\nds_read_b128 v[{112+4*q}:{115+4*q}], v228 offset:{128+32*q}")
        e("s_waitcnt lgkmcnt(0)")
        for r in range(16): e(f"v_add_f32 v{196+r}, v{196+r}, v{112+r}")
        self.q_epilogue(196, 178, 179)
        self.stamp("f_q")
        e(f"s_mov_b32 s{sRANK}, s{sR}")
        e.reset_counters()

    def half_setup(self):
        e = self.e
        e(f"s_lshl_b32 s{sT0}, s{sHALF}, 22")
        e(f"s_add_u32 s{sXIN}, s{sT0}, {X0}\ns_add_u32 s{sXMID}, s{sXIN}, 0x200000\ns_add_u32 s{sXOUT}, s{sXIN}, 0x400000")
        e(f"s_lshl_b32 s{sT0}, s{sHALF}, 19")
        e(f"s_add_u32 s{sSTIN}, s{sT0}, {ST0}\ns_add_u32 s{sSTMID}, s{sSTIN}, 0x40000\ns_add_u32 s{sSTOUT}, s{sSTIN}, 0x80000")
        e(f"s_lshl_b32 s{sT0}, s{sHALF}, 21")
        e(f"s_add_u32 s{sOA}, s{sT0}, {OA}\ns_add_u32 s{sOB}, s{sT0}, {OB}")
        e(f"s_lshl_b32 s{sT0}, s{sHALF}, 20\ns_add_u32 s{sHX}, s{sT0}, {HX}")
        e(f"s_lshl_b32 s{sT0}, s{sHALF}, 18\ns_add_u32 s{sKF}, s{sT0}, {KF}")
        e(f"s_lshl_b32 s{sT0}, s{sHALF}, 14\ns_add_u32 s{sFLC}, s{sT0}, {FL_C}")
        e(f"s_lshl_b32 s{sT0}, s{sHALF}, 18\ns_add_u32 s{sSTH}, s{sT0}, {STH}")


    def w_pair_bases(self, wb, sK, sS):
        e = self.e
        e(f"s_lshl_b32 s{sT2}, s{sKH}, 14")
        e(f"s_add_u32 s{sK}, s{sNB}, {wb}\ns_lshl_b32 s{sK}, s{sK}, 15\ns_add_u32 s{sK}, s{sK}, s{sT2}\ns_add_u32 s{sK}, s{sK}, {WF}")
        e(f"s_xor_b32 s{sS}, s{sNB}, 1\ns_add_u32 s{sS}, s{sS}, {wb}\ns_lshl_b32 s{sS}, s{sS}, 15\ns_add_u32 s{sS}, s{sS}, s{sT2}\ns_add_u32 s{sS}, s{sS}, {WF}")
    def load_w_pair(self, wb, dk, ds, acc=True):
        self.w_pair_bases(wb, sT0, sT1)
        self.load_frags(dk, sT0, 16, acc=acc)
        return self.load_frags(ds, sT1, 16, acc=acc)

    def load_act_half(self, sbuf, nfirst=16):
        e = self.e
        e(f"s_lshl_b32 s{sACT}, s{sRB}, 15\ns_lshl_b32 s{sT1}, s{sKH}, 14\ns_add_u32 s{sACT}, s{sACT}, s{sT1}\ns_add_u32 s{sACT}, s{sACT}, s{sbuf}")
        self._act = {}
        for t in range(nfirst): self.act_issue(t)
        return self._act
    def act_issue(self, t):
        if t >= 16 or t in self._act: return
        e = self.e
        if t % 4 == 0 and t: e(f"s_add_u32 s{sACT}, s{sACT}, 4096")
        self._act[t] = self.ws_load(16 + 4 * t, f"s{sACT}", (t % 4) * 1024)

    RED = 131072; REDKV = 147456; VT = 151552
    WL0 = 0; WL1 = 65536
    WKVL = 0
    def reduce_pair(self, red=None, extra_write=None):
        e = self.e
        red = self.RED if red is None else red
        e(f"s_lshl_b32 s{sT0}, s{sW}, 12\ns_add_u32 s{sT0}, s{sT0}, {red}\nv_add_u32 v{vT0}, s{sT0}, v{vL16}")
        e(f"s_xor_b32 s{sT0}, s{sT0}, 8192\nv_add_u32 v{vT1}, s{sT0}, v{vL16}")
        for q in range(4):
            e(f"ds_write_b128 v{vT0}, v[{96+4*q}:{99+4*q}] offset:{q*1024}")
        if extra_write: extra_write()
        e("s_waitcnt lgkmcnt(0)\ns_barrier")
        for q in range(4):
            e(f"ds_read_b128 v[{96+4*q}:{99+4*q}], v{vT1} offset:{q*1024}")
        for q in range(4):
            e(f"s_waitcnt lgkmcnt({3-q})")
            for r in range(4 * q, 4 * q + 4):
                e(f"v_add_f32 v{80+r}, v{80+r}, v{96+r}")
        e.lg = []

    def load_cs(self, dst, sidx_expr_reg, vaddr):
        tok = None
        for q in range(4):
            tok = self.ws_load(dst + 4 * q, f"s{sidx_expr_reg}", 32 * q, voff=vaddr)
        return tok

    def dma(self, soff, imm):
        return self.e.vmem(f"buffer_load_dwordx4 v{vL16}, s[{SRD_WS}:{SRD_WS+3}], {soff} offen offset:{imm} sc1 lds")
    def wpair_dma_list(self, wb, ldsbase, sM, sS):
        setup = [f"s_lshl_b32 s{sT0}, s{sW}, 14", f"s_add_u32 s{sM}, s{sT0}, {ldsbase}",
                 f"s_lshl_b32 s{sS}, s{sJ}, 16", f"s_add_u32 s{sS}, s{sS}, s{sT0}", f"s_add_u32 s{sS}, s{sS}, {WF + wb*32768}"]
        items = []
        for g in range(4):
            for t in range(4):
                pre = [f"s_mov_b32 m0, s{sM}", f"s_add_u32 s{sM}, s{sM}, 4096"] if t == 0 else []
                post = [f"s_add_u32 s{sS}, s{sS}, 4096"] if t == 3 else []
                items.append((pre, f"buffer_load_dwordx4 v{vL16}, s[{SRD_WS}:{SRD_WS+3}], s{sS} offen offset:{t*1024} sc1 lds", post))
        return setup, items
    def emit_item(self, it):
        pre, ld, post = it
        for x in pre: self.e(x)
        t = self.e.vmem(ld)
        for x in post: self.e(x)
        return t
    def wpair_dma(self, wb, ldsbase):
        setup, items = self.wpair_dma_list(wb, ldsbase, sA4, sA5)
        for x in setup: self.e(x)
        t = None
        for it in items: t = self.emit_item(it)
        return t

    WR = 112
    def pair_addrs(self, ldsbase):
        e = self.e
        e(f"s_lshl_b32 s{sT2}, s{sKH}, 14\ns_lshl_b32 s{sT3}, s{sKH}, 15\ns_add_u32 s{sT3}, s{sT3}, s{sT2}\ns_add_u32 s{sT3}, s{sT3}, {ldsbase}\nv_add_u32 v{vWK}, s{sT3}, v{vL16}")
        e(f"s_xor_b32 s{sT3}, s{sKH}, 1\ns_lshl_b32 s{sT3}, s{sT3}, 15\ns_add_u32 s{sT3}, s{sT3}, s{sT2}\ns_add_u32 s{sT3}, s{sT3}, {ldsbase}\nv_add_u32 v{vWS}, s{sT3}, v{vL16}")
    def pair_prime(self):
        e = self.e; self._wt = {}
        for t in range(3): self._pair_read(t)
    def _pair_read(self, t):
        e = self.e; r = self.WR + (t % 4) * 8
        e.lds(f"ds_read_b128 v[{r}:{r+3}], v{vWK} offset:{t*1024}")
        self._wt[t] = e.lds(f"ds_read_b128 v[{r+4}:{r+7}], v{vWS} offset:{t*1024}")
    def pair_mfma(self, toks, inter=None, AH=10):
        e = self.e
        for t in range(16):
            if t + 3 < 16: self._pair_read(t + 3)
            if toks is not None:
                self.act_issue(t + AH)
                e.wait_vm(toks[t])
            e.wait_lg(self._wt[t])
            r = self.WR + (t % 4) * 8
            e(f"v_mfma_f32_32x32x16_bf16 v[80:95], v[{r}:{r+3}], v[{16+4*t}:{19+4*t}], {'0' if t == 0 else 'v[80:95]'}")
            e(f"v_mfma_f32_32x32x16_bf16 v[96:111], v[{r+4}:{r+7}], v[{16+4*t}:{19+4*t}], {'0' if t == 0 else 'v[96:111]'}")
            if inter: inter(t)

    QL = 0; PS = 8192; SLOT = 2304; FAIL = 63488
    CSQ, CSKV = 180, 196
    def g4_prefetch_cs(self):
        e = self.e
        e(f"v_lshrrev_b32 v212, 5, v{vL}\nv_lshlrev_b32 v212, 4, v212")
        e(f"s_add_u32 s{sT0}, s{sNB}, {WB_Q}\ns_lshl_b32 s{sT0}, s{sT0}, 7\ns_add_u32 s{sT0}, s{sT0}, {CS}")
        self.load_cs(self.CSQ, sT0, 212)
        e(f"s_mov_b32 s{sT0}, {CS + WB_KV*128}")
        return self.load_cs(self.CSKV, sT0, 212)
    def g4_prefetch_kv(self):
        e = self.e
        L = e.newlabel("PFKV")
        e(f"s_cmp_eq_u32 s{sP}, s{sJ}\ns_cbranch_scc0 {L}")
        e(f"s_lshl_b32 s{sT2}, s{sKH}, 14\ns_add_u32 s{sT0}, s{sT2}, {WF + WB_KV*32768}")
        for t in range(16):
            if t % 4 == 0 and t: e(f"s_add_u32 s{sT0}, s{sT0}, 4096")
            e(f"buffer_load_dwordx4 a[{4*t}:{4*t+3}], v{vL16}, s[{SRD_WS}:{SRD_WS+3}], s{sT0} offen offset:{(t%4)*1024} sc1")
        e.label(L)

    def kv_epilogue(self, redkv, vt, CSKV, vmean, vrstd, pre=None, before_drain=None):
        e = self.e
        e(f"v_add_u32 v{vT0}, {redkv}, v{vL16}")
        for q in range(4):
            e(f"ds_read_b128 v[{96+4*q}:{99+4*q}], v{vT0} offset:{q*1024}")
        e(f"v_and_b32 v216, 31, v{vL}\nv_lshlrev_b32 v216, 5, v216\nv_lshrrev_b32 v217, 5, v{vL}\nv_lshl_add_u32 v216, v217, 3, v216\nv_add_u32 v216, {vt}, v216")
        e(f"v_and_b32 v218, 15, v{vL}\nv_bfe_u32 v219, v{vL}, 4, 1\nv_lshlrev_b32 v219, 4, v219\nv_lshl_add_u32 v219, v217, 2, v219\nv_lshrrev_b32 v220, 2, v218\nv_add_u32 v219, v219, v220\nv_lshlrev_b32 v219, 5, v219")
        e(f"v_and_b32 v220, 3, v218\nv_lshl_add_u32 v219, v220, 3, v219\nv_add_u32 v219, {vt}, v219")
        e(f"v_bfe_u32 v220, v{vL}, 4, 1\nv_mul_u32_u24 v220, 544, v220\nv_mul_u32_u24 v222, 272, v217\nv_add_u32 v220, v220, v222\nv_lshl_add_u32 v220, v218, 4, v220")
        e(f"s_lshl_b32 s{sT0}, s{sRB}, 10\ns_add_u32 s{sT0}, s{sT0}, s{sKF}")
        e(f"s_mul_i32 s{sT1}, s{sRB}, {VT_STRIDE}\ns_add_u32 s{sT1}, s{sT1}, s{sKF}\ns_add_u32 s{sT1}, s{sT1}, 0x10000")
        e(f"v_mul_u32_u24 v222, 272, v{vL}\nv_add_u32 v222, 256, v222")
        for r in range(4): e(f"v_mov_b32 v{224+r}, 0x3f803f80")
        e(f"s_mov_b64 exec, 0xf\nbuffer_store_dwordx4 v[224:227], v222, s[{SRD_WS}:{SRD_WS+3}], s{sT1} offen sc1\ns_mov_b64 exec, -1")
        e("s_waitcnt lgkmcnt(0)")
        if pre: pre()
        e(f"v_mul_f32 v214, v{vmean}, v{vrstd}\nv_sub_f32 v214, 0, v214")
        for r in range(16):
            e(f"v_add_f32 v{144+r}, v{144+r}, v{96+r}")
            e(f"v_mul_f32 v{96+r}, v214, v{CSKV+r}\nv_fma_f32 v{144+r}, v{144+r}, v{vrstd}, v{96+r}")
        for d in range(8):
            e(f"v_cvt_pk_bf16_f32 v{96+d}, v{144+2*d}, v{145+2*d}")
        e("ds_write_b64 v216, v[96:97]\nds_write_b64 v216, v[98:99] offset:16")
        e(f"buffer_store_dwordx4 v[100:103], v{vL16}, s[{SRD_WS}:{SRD_WS+3}], s{sT0} offen sc1")
        e("s_waitcnt lgkmcnt(0)")
        e("ds_read_b64_tr_b16 v[104:105], v219\nds_read_b64_tr_b16 v[106:107], v219 offset:256\ns_waitcnt lgkmcnt(0)")
        e(f"buffer_store_dwordx4 v[104:107], v220, s[{SRD_WS}:{SRD_WS+3}], s{sT1} offen sc1")
        e(f"s_lshl_b32 s{sT0}, s{sHALF}, 11\ns_lshl_b32 s{sT1}, s{sRB}, 2\ns_add_u32 s{sT0}, s{sT0}, s{sT1}\ns_add_u32 s{sT0}, s{sT0}, {FL_GK}")
        e(f"v_lshlrev_b32 v220, 8, v{vL}\nv_mov_b32 v221, s{sTAG}")
        if before_drain: before_drain()
        e("s_waitcnt vmcnt(0)")
        e(f"s_mov_b64 exec, 0xff\nbuffer_store_dword v221, v220, s[{SRD_WS}:{SRD_WS+3}], s{sT0} offen sc1\ns_mov_b64 exec, -1")

    def q_epilogue(self, CSQ, vmean, vrstd):
        e = self.e
        e(f"v_mul_f32 v214, {fbits(QSCALE)}, v{vrstd}")
        e(f"v_mul_f32 v215, v{vmean}, v214\nv_sub_f32 v215, 0, v215")
        e(f"s_lshl_b32 s{sT0}, s{sKH}, 2\ns_add_u32 s{sT0}, s{sT0}, s{sP}\ns_lshl_b32 s{sT0}, s{sT0}, 10\nv_add_u32 v{vT0}, s{sT0}, v{vL16}")
        for r in range(16):
            e(f"v_mul_f32 v{96+r}, v215, v{CSQ+r}\nv_fma_f32 v{80+r}, v{80+r}, v214, v{96+r}")
        for d in range(8):
            e(f"v_cvt_pk_bf16_f32 v{96+d}, v{80+2*d}, v{81+2*d}")
        e(f"ds_write_b128 v{vT0}, v[96:99] offset:{self.QL}\nds_write_b128 v{vT0}, v[100:103] offset:{self.QL+2048}")

    def g4(self):
        e = self.e
        CSQ, CSKV = self.CSQ, self.CSKV
        Lq = e.newlabel("G4Q"); Lb1 = e.newlabel("G4B1"); Lq2 = e.newlabel("G4Q2"); Lred = e.newlabel("G4RED")
        toks = self.load_act_half(sXIN, 10)
        e(f"v_and_b32 v176, 31, v{vL}\nv_lshlrev_b32 v176, 3, v176\nv_lshrrev_b32 v177, 5, v{vL}\nv_lshl_add_u32 v176, v177, 11, v176")
        e(f"s_lshl_b32 s90, s{sRB}, 12\ns_add_u32 s90, s90, s{sSTIN}")
        def stat_inter(t):
            if 6 <= t <= 9:
                for q in (2 * (t - 6), 2 * (t - 6) + 1):
                    self.ws_load(160 + 2 * q, "s90", q * 256, voff=176, n=2)
        self.pair_addrs(self.WL1)
        saved = list(e.vm); saved_act = dict(self._act)
        e(f"s_cmp_eq_u32 s{sP}, s{sJ}\ns_cbranch_scc0 {Lq}")
        for t in range(16):
            self.act_issue(t + 10)
            e.wait_vm(toks[t])
            e(f"v_mfma_f32_32x32x16_bf16 v[144:159], a[{4*t}:{4*t+3}], v[{16+4*t}:{19+4*t}], {'0' if t == 0 else 'v[144:159]'}")
            stat_inter(t)
        e(f"s_cmp_eq_u32 s{sKH}, 0\ns_cbranch_scc1 {Lb1}")
        e(f"v_add_u32 v{vT0}, {self.REDKV}, v{vL16}")
        for q in range(4):
            e(f"ds_write_b128 v{vT0}, v[{144+4*q}:{147+4*q}] offset:{q*1024}")
        e("s_waitcnt lgkmcnt(0)")
        e(f"s_branch {Lb1}")
        e.label(Lq)
        e.vm = list(saved); e.lg = []
        self._act = saved_act
        e(f"s_lshl_b32 s{sACT}, s{sRB}, 15\ns_lshl_b32 s{sT1}, s{sKH}, 14\ns_add_u32 s{sACT}, s{sACT}, s{sT1}\ns_add_u32 s{sACT}, s{sACT}, s{sXIN}\ns_add_u32 s{sACT}, s{sACT}, 8192")
        self.pair_prime()
        self.pair_mfma(self._act, stat_inter)
        e.label(Lb1)
        e("s_waitcnt vmcnt(0)"); e.reset_counters()
        self.stats_finish(160, 178, 179)
        e(f"s_cmp_ge_u32 s{sJ}, 2\ns_cbranch_scc1 {Lred}")
        e("s_barrier")
        e(f"s_cmp_eq_u32 s{sP}, s{sJ}\ns_cbranch_scc0 {Lred}")
        e(f"s_cmp_lg_u32 s{sKH}, 0\ns_cbranch_scc1 {Lq2}")
        self.kv_epilogue(self.REDKV, self.VT, CSKV, 178, 179)
        e.label(Lq2)
        e.lg = []
        self.pair_prime()
        self.pair_mfma(None)
        e.label(Lred)
        e.lg = []
        self.reduce_pair()
        self.q_epilogue(CSQ, 178, 179)
        e.reset_counters()

    def att_unit(self, u, Sc, Sn, Pc, Pn, Qnext, Oc, Oprev, extra, first, cin="0"):
        e = self.e
        tn = (u + 1) % 16; tp = (u - 1) % 16
        for x in extra.get(-1, []): e(x)
        for i in range(16):
            if i == 2 and Qnext is not None: e(f"v_mfma_f32_32x32x16_bf16 {v(Sn,16)}, {a(4*tn,4)}, {v(Qnext,4)}, {cin}")
            if i == 7: e(f"v_mfma_f32_32x32x16_bf16 {v(Oprev,16)}, {a(64+8*tp+4,4)}, {v(Pn+4,4)}, {v(Oprev,16)}")
            if i == 12: e(f"v_mfma_f32_32x32x16_bf16 {v(Oc,16)}, {a(64+8*u,4)}, {v(Pc,4)}, {'0' if first else v(Oc,16)}")
            e(f"v_exp_f32 v{Sc+i}, v{Sc+i}")
            if i == 0: e(f"v_cvt_pk_bf16_f32 v{Pn+7}, v{Sn+14}, v{Sn+15}")
            if i >= 3 and (i - 3) % 2 == 0:
                k = (i - 3) // 2
                e(f"v_cvt_pk_bf16_f32 v{Pc+k}, v{Sc+2*k}, v{Sc+2*k+1}")
            for x in extra.get(i, []): e(x)

    def attention(self):
        e = self.e
        QA, QB = 16, 20
        S = [32, 48]; P = [64, 72]; O = [80, 96]
        PS, SL, QL, WS1 = self.PS, self.SLOT, self.QL, self.WL1
        sM0V, sSOFF = sA4, sA5
        sK, sV = 88, 89
        self.g2_w_bases()
        e(f"v_mov_b32 v27, 0\nds_write_b32 v27, v27 offset:{self.FAIL}\ns_mov_b32 s{sFB}, 0")
        for r in range(8): e(f"v_mov_b32 v{P[1]+r}, 0")
        for r in range(2): e(f"v_mov_b32 v{S[1]+14+r}, 0")
        e(f"s_mul_i32 s{sT0}, s{sW}, {6*SL}\ns_add_u32 s{sT0}, s{sT0}, {PS}\nv_add_u32 v24, s{sT0}, v{vL16}\ns_add_u32 s{sT0}, s{sT0}, 2048\nv_add_u32 v25, s{sT0}, v{vL4}")
        setup, dmaitems = self.wpair_dma_list(WB_OA, WS1, sM0V, sSOFF)
        for x in setup: e(x)
        e(f"v_and_b32 v27, 31, v{vL}\nv_min_u32 v26, 16, v27\nv_lshlrev_b32 v26, 4, v26\nv_lshrrev_b32 v29, 5, v{vL}\nv_mul_u32_u24 v29, 272, v29\nv_add_u32 v26, v26, v29")
        e(f"v_and_b32 v29, 27, v27\nv_cmp_eq_u32 vcc, 16, v29\nv_cmp_gt_u32 s[{sM0}:{sM0+1}], 16, v27\ns_or_b64 vcc, vcc, s[{sM0}:{sM0+1}]\nv_mov_b32 v29, {WS_BYTES}\nv_cndmask_b32 v26, v29, v26, vcc")
        e(f"s_mov_b32 s{sLOOP}, 0\ns_lshl_b32 s{sT2}, s{sW}, 1\ns_add_u32 s{sT2}, s{sT2}, 2\ns_and_b32 s{sT2}, s{sT2}, 7")
        e(f"s_lshl_b32 s{sT2}, s{sT2}, 10\nv_add_u32 v28, s{sT2}, v{vL16}")
        e("s_waitcnt lgkmcnt(0)")
        self.stamp("att_poll")
        L = e.newlabel("GK")
        e(f"s_cmp_lg_u32 s{sW}, 0\ns_cbranch_scc1 {L}")
        Lm = e.newlabel("NOMODE")
        e(f"s_cmp_lg_u32 s{sHALF}, 0\ns_cbranch_scc1 {Lm}")
        self.mode_detect()
        e.label(Lm)
        e(f"s_lshl_b32 s{sT0}, s{sHALF}, 11\ns_and_b32 s{sT1}, s{sG}, 7\ns_lshl_b32 s{sT1}, s{sT1}, 8\ns_add_u32 s{sT0}, s{sT0}, s{sT1}\ns_add_u32 s{sT0}, s{sT0}, {FL_GK}")
        def setup_():
            e(f"buffer_load_dword v17, v{vL4}, s[{SRD_WS}:{SRD_WS+3}], s{sT0} offen sc1\ns_waitcnt vmcnt(0)")
            e(f"v_cmp_ne_u32 vcc, s{sTAG}, v17")
        self.poll("g", setup_)
        L2 = e.newlabel("EPOCH")
        e(f"s_cmp_lg_u32 s{sG}, 0\ns_cbranch_scc1 {L2}\ns_cmp_eq_u32 s{sHALF}, 0\ns_cbranch_scc1 {L2}")
        e(f"v_mov_b32 v16, 0\nv_mov_b32 v17, s{sTAG}\ns_mov_b64 exec, 1\nbuffer_store_dword v17, v16, s[{SRD_WS}:{SRD_WS+3}], 0 offen sc0 sc1\ns_mov_b64 exec, -1\ns_waitcnt vmcnt(0)")
        e.label(L2)
        e.label(L)
        e("s_waitcnt vmcnt(0)")
        e("s_barrier")
        Lm2 = e.newlabel("NOMODE2"); Lpf = e.newlabel("NOPF")
        e(f"s_cmp_lg_u32 s{sHALF}, 0\ns_cbranch_scc1 {Lm2}")
        self.mode_read()
        e(f"s_cmp_ge_u32 s{sRANK}, 97\ns_cbranch_scc1 {Lpf}\ns_cmp_lg_u32 s{sW}, 0\ns_cbranch_scc1 {Lpf}")
        e(f"v_lshlrev_b32 v16, 9, v{vL}\ns_lshl_b32 s{sT0}, s{sRANK}, 2\ns_add_u32 s{sT0}, s{sT0}, {FL_G0}\nv_mov_b32 v17, s{sTAG}")
        e(f"s_mov_b64 exec, 0xff\nbuffer_store_dword v17, v16, s[{SRD_WS}:{SRD_WS+3}], s{sT0} offen sc1\ns_mov_b64 exec, -1")
        e.label(Lpf)
        e.label(Lm2)
        self.stamp("att_start")
        e.reset_counters()
        e(f"ds_read_b128 v[{QA}:{QA+3}], v28 offset:{QL}")
        e(f"s_lshl_b32 s{sK}, s{sW}, 14\ns_add_u32 s{sK}, s{sK}, s{sKF}")
        e(f"s_mul_i32 s{sV}, s{sW}, {16*VT_STRIDE}\ns_add_u32 s{sV}, s{sV}, s{sKF}\ns_add_u32 s{sV}, s{sV}, 0x10000")
        def kv_lines(t):
            Ls = []
            if t % 4 == 0 and t: Ls += [f"s_add_u32 s{sK}, s{sK}, 4096"]
            if t % 2 == 0 and t: Ls += [f"s_add_u32 s{sV}, s{sV}, {2*VT_STRIDE}"]
            vo = (t % 2) * VT_STRIDE
            Ls += [f"buffer_load_dwordx4 a[{4*t}:{4*t+3}], v{vL16}, s[{SRD_WS}:{SRD_WS+3}], s{sK} offen offset:{(t%4)*1024} sc1",
                   f"buffer_load_dwordx4 a[{64+8*t}:{67+8*t}], v26, s[{SRD_WS}:{SRD_WS+3}], s{sV} offen offset:{vo} sc1",
                   f"buffer_load_dwordx4 a[{68+8*t}:{71+8*t}], v26, s[{SRD_WS}:{SRD_WS+3}], s{sV} offen offset:{vo+544} sc1"]
            return Ls
        AHEAD = 4
        for t in range(AHEAD):
            for x in kv_lines(t): e(x)
        e(f"s_waitcnt vmcnt({3*AHEAD-1}) lgkmcnt(0)")
        e(f"v_mfma_f32_32x32x16_bf16 {v(S[0],16)}, {a(0,4)}, {v(QA,4)}, 0")
        e("s_nop 7\ns_nop 7")
        self.stamp("att_kv")
        def wA_line(f):
            return [f"s_add_u32 s{sT7}, s{sA2}, {(f//4)*4096}",
                    f"buffer_load_dwordx4 a[{4*f}:{4*f+3}], v{vL16}, s[{SRD_WS}:{SRD_WS+3}], s{sT7} offen offset:{(f%4)*1024} sc1"]
        def position(pos, kind):
            Qc, Qn = (QA, QB) if pos == 0 else (QB, QA)
            Oc, On = (O[0], O[1]) if pos == 0 else (O[1], O[0])
            for u in range(16):
                c = u & 1; n = c ^ 1
                extra = {}
                if kind == 'first':
                    issued = min(AHEAD + u, 16)
                    need_idx = min(3 * (u + 1), 47) if u < 15 else 47
                    nw = 3*issued - need_idx - 1
                    if u in (13, 14): nw += 1
                    extra[-1] = [f"s_waitcnt vmcnt({nw})"]
                    if AHEAD + u < 16:
                        extra[3] = kv_lines(AHEAD + u)
                    if u == 12:
                        extra[5] = [f"s_and_b32 s{sT0}, s{sG}, 7", f"s_lshl_b32 s{sT0}, s{sT0}, 9", f"s_add_u32 s{sT0}, s{sT0}, {FL_G0}",
                                    f"v_lshlrev_b32 v29, 3, v{vL}",
                                    f"buffer_load_dwordx2 v[30:31], v29, s[{SRD_WS}:{SRD_WS+3}], s{sT0} offen sc1"]
                    if u == 15:
                        Lok = e.newlabel("G0OK"); Lp = e.newlabel("G0P")
                        chk = [f"v_xor_b32 v30, s{sTAG}, v30", f"v_xor_b32 v31, s{sTAG}, v31",
                               f"v_cmp_lt_u32 vcc, 48, v{vL}", "s_nop 1", "v_cndmask_b32 v30, v30, 0, vcc",
                               f"v_cmp_le_u32 vcc, 48, v{vL}", "s_nop 1", "v_cndmask_b32 v31, v31, 0, vcc",
                               "v_or_b32 v30, v30, v31", "v_cmp_ne_u32 vcc, 0, v30"]
                        extra[6] = chk + [f"s_cbranch_vccz {Lok}", f"s_mov_b32 s{sPOLL}, 0", f"{Lp}:",
                                          f"buffer_load_dwordx2 v[30:31], v29, s[{SRD_WS}:{SRD_WS+3}], s{sT0} offen sc1", "s_waitcnt vmcnt(0)"] + chk + \
                                         [f"s_cbranch_vccz {Lok}", f"s_add_u32 s{sPOLL}, s{sPOLL}, 1", f"s_cmp_lt_u32 s{sPOLL}, 400000", f"s_cbranch_scc1 {Lp}", "s_branch L_END", f"{Lok}:"]
                if u == 0 and kind != 'last':
                    extra[9] = ["v_add_u32 v28, 0x400, v28", "v_and_b32 v28, 0x1fff, v28"]
                if u == 1 and kind == 'loop':
                    extra[6] = [f"ds_write_b128 v24, v[{On}:{On+3}]", f"ds_write_b128 v24, v[{On+4}:{On+7}] offset:1024", f"ds_write_b32 v25, v{On+8}",
                                f"v_add_u32 v24, {SL}, v24", f"v_add_u32 v25, {SL}, v25"]
                if u == 4 and kind != 'last':
                    extra[5] = [f"ds_read_b128 v[{Qn}:{Qn+3}], v28 offset:{QL}"]
                if pos == 1 and kind == 'loop' and u == 2:
                    for t in range(4):
                        pre, ld, post = dmaitems[t]
                        extra[5 + 2 * t] = pre + [ld] + post
                if kind == 'last' and u == 0 and not getattr(self, "nopf", False):
                    Lp = e.newlabel("PF2")
                    extra[1] = [f"s_lshr_b32 s{sT4}, s{sG}, 3", f"s_lshl_b32 s{sT4}, s{sT4}, 2", f"s_add_u32 s{sT4}, s{sT4}, s{sW}", f"s_lshl_b32 s{sT4}, s{sT4}, 10",
                                f"s_add_u32 s{sT5}, s{sT4}, 1024", f"s_cmp_gt_u32 s{sT5}, L_CODE_END-L_PFBASE", f"s_cbranch_scc1 {Lp}",
                                f"s_add_u32 s{sT4}, s{sT4}, s{sPFB}", f"s_addc_u32 s{sT5}, s{sPFB+1}, 0",
                                f"global_load_dwordx4 v[128:131], v{vL16}, s[{sT4}:{sT4+1}]", f"{Lp}:"]
                if kind == 'last':
                    if u < 4:
                        pre, ld, post = dmaitems[u]
                        extra[8] = pre + [ld] + post
                    extra.setdefault(4, []).extend(wA_line(u))
                    if u >= 2: extra.setdefault(10, []).extend(wA_line(16 + u - 2))
                    if u >= 14: extra.setdefault(13, []).extend(wA_line(16 + u))
                if u == 14 and kind != 'last':
                    extra.setdefault(4, []).append("s_waitcnt lgkmcnt(0)")
                if u == 15 and kind != 'last':
                    extra[14] = [f"s_add_u32 s{sLOOP}, s{sLOOP}, 1"]
                Qx = Qn if u == 15 else Qc
                if u == 15 and kind == 'last': Qx = None
                Op = On if u == 0 else Oc
                self.att_unit(u, S[c], S[n], P[c], P[n], Qx, Oc, Op, extra, first=(u == 0))
        position(0, 'first')
        Lloop = e.newlabel("ATTLOOP")
        e(".p2align 3")
        e.label(Lloop)
        position(1, 'loop')
        position(0, 'loop')
        e(f"s_cmp_lt_u32 s{sLOOP}, 7\ns_cbranch_scc1 {Lloop}")
        position(1, 'last')
        e(f"v_cvt_pk_bf16_f32 v{P[1]+7}, v{S[1]+14}, v{S[1]+15}")
        e(f"v_mfma_f32_32x32x16_bf16 {v(O[1],16)}, {a(64+8*15+4,4)}, {v(P[1]+4,4)}, {v(O[1],16)}")
        e.label("L_ATT_TAIL")
        for vis in range(3):
            e(f"s_sub_u32 s{sT0}, s{sW}, {1+vis}\ns_and_b32 s{sT0}, s{sT0}, 3\ns_mul_i32 s{sT0}, s{sT0}, {6*SL}\ns_add_u32 s{sT0}, s{sT0}, {PS + 2*vis*SL}")
            e(f"v_add_u32 v{24+vis}, s{sT0}, v{vL16}\ns_add_u32 s{sT0}, s{sT0}, 2048\nv_add_u32 v{28+vis}, s{sT0}, v{vL4}")
        e("s_waitcnt vmcnt(27) lgkmcnt(0)\ns_barrier")
        self.stamp("att_loopend")
        slots = {}
        base = [32, 44, 56, 68, 112, 16]
        k = 0
        for pp in range(2):
            for vis in range(3):
                b = base[k]; k += 1; slots[(pp, vis)] = b
                lreg = 31 if b == 16 else b + 8
                e(f"ds_read_b128 v[{b}:{b+3}], v{24+vis} offset:{pp*SL}\nds_read_b128 v[{b+4}:{b+7}], v{24+vis} offset:{pp*SL+1024}\nds_read_b32 v{lreg}, v{28+vis} offset:{pp*SL}")
        e(f"s_lshl_b32 s{sT0}, s{sJ}, 2\ns_add_u32 s{sT0}, s{sT0}, s{sW}\ns_lshl_b32 s{sT0}, s{sT0}, 10")
        e(f"s_lshl_b32 s{sT1}, s{sC}, 16\ns_add_u32 s{sT0}, s{sT0}, s{sT1}\ns_add_u32 s{sT0}, s{sT0}, s{sOA}\ns_add_u32 s{sT1}, s{sT0}, 32768")
        tok = None
        for pp in range(2):
            Oo = O[pp]
            e(f"s_waitcnt lgkmcnt({9 if pp == 0 else 0})")
            for vis in range(3):
                b = slots[(pp, vis)]
                for r in range(9):
                    src = 31 if (b == 16 and r == 8) else b + r
                    e(f"v_add_f32 v{Oo+r}, v{Oo+r}, v{src}")
            e(f"v_rcp_f32 v{Oo+9}, v{Oo+8}")
            for r in range(8):
                e(f"v_mul_f32 v{Oo+r}, v{Oo+9}, v{Oo+r}")
            for d in range(4):
                e(f"v_cvt_pk_bf16_f32 v{Oo+12+d}, v{Oo+2*d}, v{Oo+2*d+1}")
            tok = self.moded(lambda fl: self.ws_store(Oo + 12, f"s{sT0 if pp == 0 else sT1}", 0, flag=fl))
        e(f"v_cmp_nle_f32 vcc, 0x1f800000, v{O[0]+8}\ns_mov_b64 s[{sBAD}:{sBAD+1}], vcc")
        e(f"v_cmp_nge_f32 vcc, 0x5f800000, v{O[0]+8}\ns_or_b64 s[{sBAD}:{sBAD+1}], s[{sBAD}:{sBAD+1}], vcc")
        e(f"v_cmp_nle_f32 vcc, 0x1f800000, v{O[1]+8}\ns_or_b64 s[{sBAD}:{sBAD+1}], s[{sBAD}:{sBAD+1}], vcc")
        e(f"v_cmp_nge_f32 vcc, 0x5f800000, v{O[1]+8}\ns_or_b64 s[{sBAD}:{sBAD+1}], s[{sBAD}:{sBAD+1}], vcc")
        Lok = e.newlabel("LSUMOK")
        e(f"s_cmp_eq_u64 s[{sBAD}:{sBAD+1}], 0\ns_cbranch_scc1 {Lok}")
        e(f"v_mov_b32 v24, 1\nv_mov_b32 v25, 0\nds_write_b32 v25, v24 offset:{self.FAIL}")
        e.label(Lok)
        return tok

    def fallback_check(self):
        e = self.e
        L = e.newlabel("NOFB")
        e(f"v_mov_b32 v16, 0\nds_read_b32 v17, v16 offset:{self.FAIL}\ns_waitcnt lgkmcnt(0)\nv_readfirstlane_b32 s{sT0}, v17")
        e(f"s_cmp_eq_u32 s{sT0}, 0\ns_cbranch_scc1 {L}\ns_cmp_eq_u32 s{sFB}, 0\ns_cbranch_scc1 L_FALLBACK")
        e.label(L)

    def fallback(self):
        e = self.e
        PS, SL, QL = self.PS, self.SLOT, self.QL
        MX = 131072
        K, V, Q, S, P, CM, M, ACC = 128, 132, 140, 144, 160, 168, 184, 192
        sI, sT, sKA, sVA, sB = 88, 89, 90, 92, 93
        e.label("L_FALLBACK")
        e(f"s_mov_b32 s{sFB}, 1\ns_waitcnt vmcnt(0) lgkmcnt(0)")
        e(f"v_and_b32 v187, 31, v{vL}\nv_min_u32 v186, 16, v187\nv_lshlrev_b32 v186, 4, v186\nv_lshrrev_b32 v188, 5, v{vL}\nv_mul_u32_u24 v188, 272, v188\nv_add_u32 v186, v186, v188")
        e(f"v_and_b32 v188, 27, v187\nv_cmp_eq_u32 vcc, 16, v188\nv_cmp_gt_u32 s[{sM0}:{sM0+1}], 16, v187\ns_or_b64 vcc, vcc, s[{sM0}:{sM0+1}]\nv_mov_b32 v188, {WS_BYTES}\nv_cndmask_b32 v186, v188, v186, vcc")
        e(f"v_and_b32 v187, 31, v{vL}\nv_lshlrev_b32 v187, 2, v187")
        for ps in range(2):
            Li = e.newlabel("FBI"); Lt = e.newlabel("FBT")
            e(f"s_mov_b32 s{sI}, 0")
            e.label(Li)
            e(f"s_lshl_b32 s{sB}, s{sW}, 1\ns_add_u32 s{sB}, s{sB}, 2\ns_add_u32 s{sB}, s{sB}, s{sI}\ns_and_b32 s{sB}, s{sB}, 7")
            e(f"s_lshl_b32 s{sT0}, s{sB}, 10\nv_add_u32 v185, s{sT0}, v{vL16}\nds_read_b128 v[{Q}:{Q+3}], v185 offset:{QL}")
            if ps == 0:
                e(f"v_mov_b32 v{M}, 0xff800000")
            else:
                e(f"s_lshl_b32 s{sT0}, s{sB}, 9\ns_add_u32 s{sT0}, s{sT0}, {MX}\nv_add_u32 v185, s{sT0}, v187")
                e(f"ds_read_b32 v{M}, v185\nds_read_b32 v189, v185 offset:128\nds_read_b32 v190, v185 offset:256\nds_read_b32 v191, v185 offset:384\ns_waitcnt lgkmcnt(0)")
                e(f"v_max_f32 v{M}, v{M}, v189\nv_max_f32 v190, v190, v191\nv_max_f32 v{M}, v{M}, v190")
                for r in range(16): e(f"v_sub_f32 v{CM+r}, 0, v{M}\nv_mov_b32 v{ACC+r}, 0")
            e(f"s_lshl_b32 s{sKA}, s{sW}, 14\ns_add_u32 s{sKA}, s{sKA}, s{sKF}")
            e(f"s_mul_i32 s{sVA}, s{sW}, {16*VT_STRIDE}\ns_add_u32 s{sVA}, s{sVA}, s{sKF}\ns_add_u32 s{sVA}, s{sVA}, 0x10000")
            e(f"s_mov_b32 s{sT}, 0")
            e.label(Lt)
            e(f"buffer_load_dwordx4 v[{K}:{K+3}], v{vL16}, s[{SRD_WS}:{SRD_WS+3}], s{sKA} offen sc1")
            if ps == 1:
                e(f"buffer_load_dwordx4 v[{V}:{V+3}], v186, s[{SRD_WS}:{SRD_WS+3}], s{sVA} offen sc1")
                e(f"buffer_load_dwordx4 v[{V+4}:{V+7}], v186, s[{SRD_WS}:{SRD_WS+3}], s{sVA} offen offset:544 sc1")
            e("s_waitcnt vmcnt(0) lgkmcnt(0)")
            e(f"v_mfma_f32_32x32x16_bf16 {v(S,16)}, {v(K,4)}, {v(Q,4)}, {'0' if ps == 0 else v(CM,16)}")
            if ps == 0:
                for r in range(0, 16, 2): e(f"v_max3_f32 v{M}, v{M}, v{S+r}, v{S+r+1}")
            else:
                for r in range(16): e(f"v_exp_f32 v{S+r}, v{S+r}")
                for d in range(8): e(f"v_cvt_pk_bf16_f32 v{P+d}, v{S+2*d}, v{S+2*d+1}")
                e(f"v_mfma_f32_32x32x16_bf16 {v(ACC,16)}, {v(V,4)}, {v(P,4)}, {v(ACC,16)}")
                e(f"v_mfma_f32_32x32x16_bf16 {v(ACC,16)}, {v(V+4,4)}, {v(P+4,4)}, {v(ACC,16)}")
            e(f"s_add_u32 s{sKA}, s{sKA}, 1024\ns_add_u32 s{sVA}, s{sVA}, {VT_STRIDE}\ns_add_u32 s{sT}, s{sT}, 1\ns_cmp_lt_u32 s{sT}, 16\ns_cbranch_scc1 {Lt}")
            if ps == 0:
                e(f"v_mov_b32 v189, v{M}\nv_permlane32_swap_b32 v{M}, v189\nv_max_f32 v{M}, v{M}, v189")
                e(f"s_lshl_b32 s{sT0}, s{sB}, 9\ns_lshl_b32 s{sT1}, s{sW}, 7\ns_add_u32 s{sT0}, s{sT0}, s{sT1}\ns_add_u32 s{sT0}, s{sT0}, {MX}\nv_add_u32 v185, s{sT0}, v187")
                e(f"ds_write_b32 v185, v{M}\ns_waitcnt lgkmcnt(0)")
            else:
                L6 = e.newlabel("FB6"); L7 = e.newlabel("FB7"); Ln = e.newlabel("FBN")
                e(f"s_cmp_eq_u32 s{sI}, 6\ns_cbranch_scc1 {L6}\ns_cmp_eq_u32 s{sI}, 7\ns_cbranch_scc1 {L7}")
                e(f"s_mul_i32 s{sT0}, s{sW}, 6\ns_add_u32 s{sT0}, s{sT0}, s{sI}\ns_mul_i32 s{sT0}, s{sT0}, {SL}\ns_add_u32 s{sT0}, s{sT0}, {PS}")
                e(f"v_add_u32 v185, s{sT0}, v{vL16}\ns_add_u32 s{sT0}, s{sT0}, 2048\nv_add_u32 v188, s{sT0}, v{vL4}")
                e(f"ds_write_b128 v185, v[{ACC}:{ACC+3}]\nds_write_b128 v185, v[{ACC+4}:{ACC+7}] offset:1024\nds_write_b32 v188, v{ACC+8}\ns_waitcnt lgkmcnt(0)\ns_branch {Ln}")
                e.label(L6)
                for r in range(9): e(f"v_mov_b32 v{80+r}, v{ACC+r}")
                e(f"s_branch {Ln}")
                e.label(L7)
                for r in range(9): e(f"v_mov_b32 v{96+r}, v{ACC+r}")
                e.label(Ln)
            e(f"s_add_u32 s{sI}, s{sI}, 1\ns_cmp_lt_u32 s{sI}, 8\ns_cbranch_scc1 {Li}")
            if ps == 0: e("s_barrier")
        e("s_waitcnt vmcnt(0) lgkmcnt(0)\ns_branch L_ATT_TAIL")

    def g2_w_bases(self):
        e = self.e
        e(f"s_lshl_b32 s{sT0}, s{sJ}, 1")
        tblA = [WB_BQ, WB_BK, WB_BK + 1, WB_BV + 1]; tblB = [WB_BQ + 1, WB_BK + 1, WB_BV, WB_BV]
        e(f"s_mov_b32 s{sA0}, {tblA[0]}\ns_mov_b32 s{sA1}, {tblB[0]}")
        for w in range(1, 4):
            e(f"s_cmp_eq_u32 s{sW}, {w}\ns_cselect_b32 s{sA0}, {tblA[w]}, s{sA0}\ns_cselect_b32 s{sA1}, {tblB[w]}, s{sA1}")
        e(f"s_add_u32 s{sA0}, s{sA0}, s{sT0}\ns_add_u32 s{sA1}, s{sA1}, s{sT0}")
        e(f"s_lshl_b32 s{sA2}, s{sA0}, 15\ns_add_u32 s{sA2}, s{sA2}, {WF}\ns_lshl_b32 s{sA3}, s{sA1}, 15\ns_add_u32 s{sA3}, s{sA3}, {WF}")
    def g2_w_load(self, f0, f1):
        e = self.e; tok = None
        cur = None
        for f in range(f0, f1):
            st = 0 if f < 32 else 1; ks = f % 32
            grp = (st, ks // 4)
            if grp != cur:
                e(f"s_add_u32 s{sT7}, s{sA2 if st == 0 else sA3}, {(ks//4)*4096}"); cur = grp
            tok = self.ws_load(st * 128 + 4 * ks, f"s{sT7}", (ks % 4) * 1024, acc=True)
        return tok

    def outproj(self, g1, sO, sXdst, sSTdst, sHXdst, wl, inter=None):
        e = self.e
        tag = "g1" if g1 else "g3"
        on = getattr(self, "light", None) == tag
        if on: self.lstamp(0)
        toks = self.load_act_half(sO, 10)
        self.pair_addrs(wl)
        e.lg = []
        self.pair_prime()
        if on:
            e.wait_vm(toks[0]); self.lstamp(1)
        self.pair_mfma(toks, inter)
        if on: self.lstamp(2)
        for d in range(8):
            e(f"v_lshlrev_b32 v{16+2*d}, 16, v{XR+d}\nv_and_b32 v{17+2*d}, 0xffff0000, v{XR+d}")
        self.reduce_pair()
        if on: self.lstamp(3)
        for d in range(8):
            e(f"v_add_f32 v{80+2*d}, v{80+2*d}, v{16+2*d}\nv_add_f32 v{81+2*d}, v{81+2*d}, v{17+2*d}")
            e(f"v_cvt_pk_bf16_f32 v{XR+d}, v{80+2*d}, v{81+2*d}")
        if not g1:
            Lf = e.newlabel("FINAL"); Ld = e.newlabel("FDONE")
            e(f"s_cmp_eq_u32 s{sHALF}, 1\ns_cbranch_scc1 {Lf}")
            tok = self.publish_x(sXdst, sSTdst, sHXdst)
            saved = list(e.vm)
            e(f"s_branch {Ld}")
            e.label(Lf)
            for c in range(2):
                e(f"v_permlane32_swap_b32 v{XR+4*c}, v{XR+4*c+2}\nv_permlane32_swap_b32 v{XR+4*c+1}, v{XR+4*c+3}")
            e(f"v_and_b32 v16, 31, v{vL}\nv_lshlrev_b32 v16, 11, v16\nv_lshrrev_b32 v17, 5, v{vL}\nv_lshl_add_u32 v16, v17, 4, v16")
            e(f"s_lshl_b32 s{sT0}, s{sC}, 6\ns_add_u32 s{sT0}, s{sT0}, s{sP}\ns_lshl_b32 s{sT0}, s{sT0}, 10\ns_lshl_b32 s{sT1}, s{sNB}, 6\ns_add_u32 s{sT0}, s{sT0}, s{sT1}")
            for c in range(2):
                e(f"buffer_store_dwordx4 v[{XR+4*c}:{XR+4*c+3}], v16, s[{SRD_OUT}:{SRD_OUT+3}], s{sT0} offen offset:{32*c} {getattr(self, 'outflag', '')}")
            self.stamp("end")
            e("s_endpgm")
            e.label(Ld)
            e.vm = saved
        else:
            tok = self.publish_x(sXdst, sSTdst, sHXdst)
        if on:
            self.lstamp(4); self.lflush(tag)
        return tok

    XL = 0; QB_ = 98304; KB_ = 106496; VB_ = 118784; TB = 131072
    CSA, CSB, CSN = 176, 192, 208
    BIAS, BH = 210, 226
    def g2_consts(self):
        e = self.e
        e(f"v_lshrrev_b32 v16, 5, v{vL}\nv_lshlrev_b32 v16, 4, v16")
        e(f"s_lshl_b32 s{sT0}, s{sA0}, 7\ns_add_u32 s{sT0}, s{sT0}, {CS}\ns_lshl_b32 s{sT1}, s{sA1}, 7\ns_add_u32 s{sT1}, s{sT1}, {CS}")
        self.load_cs(self.CSA, sT0, 16)
        self.load_cs(self.CSB, sT1, 16)
        e(f"v_and_b32 v17, 31, v{vL}\nv_lshlrev_b32 v17, 2, v17")
        self.ws_load(self.CSN, f"s{sT0}", 0, voff=17, n=1)
        tok = self.ws_load(self.CSN + 1, f"s{sT1}", 0, voff=17, n=1)
        NEG = "0xff800000"
        e(f"v_and_b32 v18, 31, v{vL}\nv_lshrrev_b32 v19, 5, v{vL}\nv_lshlrev_b32 v19, 2, v19\nv_sub_u32 v18, v18, v19")
        e(f"v_mov_b32 v19, {NEG}")
        for r in range(16):
            kk = 8 * (r >> 2) + (r & 3)
            e(f"v_subrev_u32 v20, {kk}, v18\nv_cmp_ge_u32 vcc, 7, v20\nv_cndmask_b32 v{212+r}, v19, 0, vcc")
        e(f"s_cmp_eq_u32 s{sC}, 0\ns_cselect_b32 s{sT0}, -64, 0")
        for jj in range(4):
            e(f"s_add_u32 s{sT1}, s{sT0}, {jj-1}\nv_cmp_ge_i32 vcc, s{sT1}, v18\nv_cndmask_b32 v{232+jj}, v19, 0, vcc\nv_mov_b32 v{240+jj}, v{232+jj}")
            e(f"v_mov_b32 v{228+jj}, 0\nv_mov_b32 v{236+jj}, 0")
        return tok

    def g2(self):
        e = self.e
        XL, QB_, KB_, VB_, TB = self.XL, self.QB_, self.KB_, self.VB_, self.TB
        CSA, CSB, CSN = self.CSA, self.CSB, self.CSN
        def dma(soff, imm): return e.vmem(f"buffer_load_dwordx4 v{vL16}, s[{SRD_WS}:{SRD_WS+3}], {soff} offen offset:{imm} sc1 lds")
        sXB, sHB, sSB = 88, 89, 90
        e(f"s_lshl_b32 s{sXB}, s{sC}, 16\ns_add_u32 s{sXB}, s{sXB}, s{sXMID}")
        def grp(blk, ks_mul, ks_add, n):
            its = []
            for t in range(n):
                pre = []
                if t == 0:
                    pre = [f"s_mul_i32 s{sT1}, s{sW}, {ks_mul*1024}", f"s_add_u32 s{sT1}, s{sT1}, {blk*32768 + ks_add*1024}",
                           f"s_mov_b32 m0, s{sT1}", f"s_add_u32 s{sT2}, s{sXB}, s{sT1}"]
                its.append((pre, f"buffer_load_dwordx4 v{vL16}, s[{SRD_WS}:{SRD_WS+3}], s{sT2} offen offset:{t*1024} sc1 lds", []))
            return its
        def grp2(ks_mul, ks_add, n):
            its = []
            for t in range(n):
                pre = []
                if t % 4 == 0:
                    pre = [f"s_mul_i32 s{sT1}, s{sKH}, {ks_mul*1024}", f"s_lshl_b32 s{sT2}, s{sP}, 15", f"s_add_u32 s{sT1}, s{sT1}, s{sT2}",
                           f"s_add_u32 s{sT1}, s{sT1}, {(ks_add + t)*1024}", f"s_mov_b32 m0, s{sT1}", f"s_add_u32 s{sT3}, s{sXB}, s{sT1}"]
                its.append((pre, f"buffer_load_dwordx4 v{vL16}, s[{SRD_WS}:{SRD_WS+3}], s{sT3} offen offset:{(t%4)*1024} sc1 lds", []))
            return its
        C0 = grp2(3, 0, 3); C1 = grp2(5, 6, 5); C2 = grp2(8, 16, 8)
        tok0 = None; tok1 = None
        for it in C0: tok0 = self.emit_item(it)
        for it in C1: tok1 = self.emit_item(it)
        sHS = 92
        e(f"v_and_b32 v18, 31, v{vL}\nv_lshrrev_b32 v19, 5, v{vL}")
        e(f"s_lshl_b32 s{sSB}, s{sC}, 1\ns_and_b32 s{sT5}, s{sW}, 1\ns_add_u32 s{sSB}, s{sSB}, s{sT5}\ns_lshl_b32 s{sSB}, s{sSB}, 12\ns_add_u32 s{sSB}, s{sSB}, s{sSTMID}")
        e(f"v_lshlrev_b32 v20, 3, v18\nv_lshl_add_u32 v20, v19, 11, v20")
        e(f"s_lshl_b32 s{sHS}, s{sHC}, 13\ns_add_u32 s{sHS}, s{sHS}, s{sSTH}")
        e("v_and_b32 v22, 15, v18\nv_add_u32 v22, 16, v22\nv_lshlrev_b32 v22, 3, v22\nv_lshrrev_b32 v23, 4, v18\nv_lshl_add_u32 v22, v23, 12, v22\nv_lshl_add_u32 v22, v19, 11, v22")
        statitems = [([], f"buffer_load_dwordx2 v[{144+2*t}:{145+2*t}], v20, s[{SRD_WS}:{SRD_WS+3}], s{sSB} offen offset:{t*256} sc1", []) for t in range(8)]
        hstat = lambda dst: [([], f"buffer_load_dwordx2 v[{dst+2*t}:{dst+1+2*t}], v22, s[{SRD_WS}:{SRD_WS+3}], s{sHS} offen offset:{t*256} sc1", []) for t in range(8)]
        e(f"s_lshl_b32 s93, s{sHALF}, 12\ns_lshl_b32 s{sT1}, s{sHC}, 7\ns_add_u32 s93, s93, s{sT1}\ns_add_u32 s93, s93, {FL_H}\nv_and_b32 v23, 7, v{vL}\nv_lshlrev_b32 v23, 2, v23")
        e(f"s_lshl_b32 s{sHB}, s{sHC}, 15\ns_add_u32 s{sHB}, s{sHB}, s{sHX}")
        haloitems = []
        for t in range(8):
            pre = []
            if t == 0: pre = [f"s_lshl_b32 s{sT1}, s{sW}, 13", f"s_add_u32 s{sT2}, s{sHB}, s{sT1}", f"s_add_u32 s{sT1}, s{sT1}, 65536", f"s_mov_b32 m0, s{sT1}", "s_nop 0"]
            if t == 4: pre = [f"s_lshl_b32 s{sT1}, s{sW}, 13", f"s_add_u32 s{sT1}, s{sT1}, 4096", f"s_add_u32 s{sT2}, s{sHB}, s{sT1}", f"s_add_u32 s{sT1}, s{sT1}, 65536", f"s_mov_b32 m0, s{sT1}", "s_nop 0"]
            haloitems.append((pre, f"buffer_load_dwordx4 v{vL16}, s[{SRD_WS}:{SRD_WS+3}], s{sT2} offen offset:{(t%4)*1024} sc1 lds", []))
        def wB_item(ks):
            return ([f"s_add_u32 s{sT7}, s{sA3}, {(ks//4)*4096}"], f"buffer_load_dwordx4 a[{128+4*ks}:{131+4*ks}], v{vL16}, s[{SRD_WS}:{SRD_WS+3}], s{sT7} offen offset:{(ks%4)*1024} sc1", [])
        e(f"v_add_u32 v21, 0x10000, v{vL16}")
        ACC = [32, 48, 64, 80]
        def xread(dst, blk, ks):
            off = blk * 32768 + ks * 1024
            if off < 65536: return e.lds(f"ds_read_b128 v[{dst}:{dst+3}], v{vL16} offset:{off}")
            return e.lds(f"ds_read_b128 v[{dst}:{dst+3}], v21 offset:{off-65536}")
        def mm(acc, wset, ks, xreg, orient, first):
            wr = a(wset * 128 + 4 * ks, 4); xr = v(xreg, 4); c = "0" if first else v(acc, 16)
            if orient == "T": e(f"v_mfma_f32_32x32x16_bf16 {v(acc,16)}, {wr}, {xr}, {c}")
            else: e(f"v_mfma_f32_32x32x16_bf16 {v(acc,16)}, {xr}, {wr}, {c}")
        RN = 4
        def epi(acc, kind, blk, cbi, cset, tmp):
            L = []
            if kind in ("q", "k"):
                cs = CSA if cset == 'A' else CSB
                rs, nm = 136 + 2 * blk, 137 + 2 * blk
                if kind == "q":
                    L += [f"v_mul_f32 v142, {fbits(QSCALE)}, v{rs}", f"v_mul_f32 v143, {fbits(QSCALE)}, v{nm}"]; rs, nm = 142, 143
                for r in range(16):
                    L += [f"v_mul_f32 v{tmp+r}, v{nm}, v{cs+r}", f"v_fmac_f32 v{tmp+r}, v{acc+r}, v{rs}"]
                src = tmp
                base = (QB_ if kind == "q" else KB_) + blk * 4096 + cbi * 2048
            else:
                csn = CSN if cset == 'A' else CSN + 1
                for q in range(4):
                    L += [f"ds_read_b128 v[{tmp+4*q}:{tmp+3+4*q}], v135 offset:{blk*256+32*q}", f"ds_read_b128 v[{tmp+16+4*q}:{tmp+19+4*q}], v135 offset:{blk*256+128+32*q}"]
                L += ["@wait"]
                for r in range(16):
                    L += [f"v_mul_f32 v{tmp+16+r}, v{tmp+16+r}, v{csn}", f"v_fmac_f32 v{tmp+16+r}, v{acc+r}, v{tmp+r}"]
                src = tmp + 16
                base = VB_ + blk * 4096 + cbi * 2048
            for d in range(8):
                L += [f"v_cvt_pk_bf16_f32 v{acc+d}, v{src+2*d}, v{src+2*d+1}"]
            L += [f"v_add_u32 v133, {base}, v{vL16}", f"ds_write_b128 v133, v[{acc}:{acc+3}]", f"ds_write_b128 v133, v[{acc+4}:{acc+7}] offset:1024"]
            return L
        class Fill:
            def __init__(s_, items): s_.items = list(items); s_.last = None
            def emit(s_, n=1):
                for _ in range(n):
                    if not s_.items: return
                    l = s_.items.pop(0)
                    if l == "@wait":
                        e.wait_lg(s_.last); continue
                    if l.startswith("ds_"): s_.last = e.lds(l)
                    else: e(l)
            def flush(s_): s_.emit(10**6)
        desc = {
            0: [("q", 0, 0, 'A'), ("q", 1, 0, 'A'), ("q", 0, 1, 'B'), ("q", 1, 1, 'B')],
            1: [("k", 0, 0, 'A'), ("k", 1, 0, 'A'), ("k", 2, 0, 'A'), ("k", 2, 1, 'B')],
            2: [("k", 0, 1, 'A'), ("k", 1, 1, 'A'), ("v", 0, 0, 'B'), ("v", 1, 0, 'B')],
            3: [("v", 0, 1, 'A'), ("v", 1, 1, 'A'), ("v", 2, 1, 'A'), ("v", 2, 0, 'B')],
        }
        units = {
            0: [(ACC[0], 0, 0, "T"), (ACC[1], 0, 1, "T"), (ACC[2], 1, 0, "T"), (ACC[3], 1, 1, "T")],
            1: [(ACC[0], 0, 0, "T"), (ACC[1], 0, 1, "T"), (ACC[2], 0, 0, "T"), (ACC[3], 1, 0, "T")],
            2: [(ACC[0], 0, 0, "T"), (ACC[1], 0, 1, "T"), (ACC[2], 1, 0, "N"), (ACC[3], 1, 1, "N")],
            3: [(ACC[0], 0, 0, "N"), (ACC[1], 0, 1, "N"), (ACC[2], 0, 0, "N"), (ACC[3], 1, 0, "N")],
        }
        labs = [e.newlabel(f"G2W{w}") for w in range(4)]; Lgd = e.newlabel("G2GD")
        e(f"v_and_b32 v134, 31, v{vL}\nv_lshlrev_b32 v134, 2, v134\nv_add_u32 v134, {TB}, v134")
        e(f"v_lshrrev_b32 v135, 5, v{vL}\nv_lshlrev_b32 v135, 4, v135\nv_add_u32 v135, {TB}, v135")
        e.wait_vm(tok0); e("s_barrier")
        self.stamp("g2A")
        vmA = list(e.vm)
        for w in range(1, 4):
            e(f"s_cmp_eq_u32 s{sW}, {w}\ns_cbranch_scc1 {labs[w]}")
        vm_end = None
        for w in range(4):
            e.label(labs[w]); e.lg = []; e.vm = list(vmA)
            U = units[w]; d = desc[w]
            if w in (0, 2):
                steps = [([0, 1], ks, [0, 1, 2, 3]) for ks in range(16)] + [([0, 1], ks, [0, 1]) for ks in range(16, 32)] + [([0, 1], ks, [2, 3]) for ks in range(16, 32)]
            else:
                steps = [([0, 1], ks, [0, 1]) for ks in range(32)] + [([2], ks, [2, 3]) for ks in range(32)]
            cnt0 = []; c_ = 0
            for (b_, k_, u_) in steps: cnt0.append(c_); c_ += len(u_)
            B1, B2, BC = 10, 30, 62
            def avail(step_idx, count):
                blks, ks, _ = steps[step_idx]
                if blks == [2]: return count >= BC
                if ks >= 16: return count >= B2
                if ks >= 6: return count >= B1
                return True
            side = {}
            def put(c, it): side.setdefault(c, []).append(it)
            named = {}
            for i, it in enumerate(C2): put(2 * i, ("vm", f"C2_{i}", it))
            wBneed = {}
            if w in (0, 2):
                lo = {10: 17, 11: 22, 12: 27, 13: 28, 14: 31, 15: 35} if w == 0 else {10: 17, 11: 20, 12: 23, 13: 26, 14: 31, 15: 35}
                for ks, c in lo.items(): put(c, ("vm", f"wB{ks}", wB_item(ks)))
                for i, ks in enumerate(range(16, 32)): put(46 + 2 * i, ("vm", f"wB{ks}", wB_item(ks)))
            else:
                for i, ks in enumerate(range(10, 16)): put(46 + 2 * i, ("vm", f"wB{ks}", wB_item(ks)))
                for i, ks in enumerate(range(16, 32)): put(58 + 2 * i, ("vm", f"wB{ks}", wB_item(ks)))
                for i, it in enumerate(hstat(160 if w == 1 else 176)): put(65 + 2 * i, ("vm", f"hs{i}", it))
            if w == 0:
                put(16, ("vm", "poll", ([], f"buffer_load_dword v24, v23, s[{SRD_WS}:{SRD_WS+3}], s93 offen sc1", [])))
                for i, c in enumerate((18, 19, 20, 21, 23, 24, 25, 26)): put(c, ("vm", f"st{i}", statitems[i]))
            if w == 1:
                for i in range(8): put(16 + i, ("vm", f"st{i}", statitems[i]))
            for i, it in enumerate(haloitems): put(30 + 2 * i, ("vm", f"halo{i}", it))
            stfill = None
            if w < 2:
                sub = Emitter(); old = self.e; self.e = sub
                self.stats_finish(144, 130, 131)
                sub(f"v_mul_f32 v130, v130, v131\nv_sub_f32 v130, 0, v130\nv_cmp_gt_u32 vcc, 32, v{vL}\ns_nop 1\nv_cndmask_b32 v130, v130, v131, vcc")
                sub(f"v_add_u32 v131, {TB + w*256}, v{vL4}\nds_write_b32 v131, v130")
                self.e = old
                stfill = Fill([l.strip() for l in sub.lines])
            f12 = None
            fstart = 98 if w in (0, 2) else 67
            hfill = None
            xt = {}
            ringslot = lambda si, b: 96 + ((si % RN) * 2 + b) * 4
            count = 0
            def do_barrier(c):
                if c == B1: e.wait_vm(tok1); e("s_barrier")
                if c == B2:
                    if w == 0:
                        Lok = e.newlabel("HOK"); Lp = e.newlabel("HPOLL")
                        e.wait_vm(named["poll"])
                        e(f"v_cmp_ne_u32 vcc, s{sTAG}, v24\ns_cbranch_vccz {Lok}")
                        saved = list(e.vm)
                        e(f"s_mov_b32 s{sPOLL}, 0")
                        e.label(Lp)
                        e(f"buffer_load_dword v24, v23, s[{SRD_WS}:{SRD_WS+3}], s93 offen sc1\ns_waitcnt vmcnt(0)\nv_cmp_ne_u32 vcc, s{sTAG}, v24\ns_cbranch_vccz {Lok}")
                        e(f"s_add_u32 s{sPOLL}, s{sPOLL}, 1\ns_cmp_lt_u32 s{sPOLL}, 400000\ns_cbranch_scc1 {Lp}\ns_branch L_END")
                        e.label(Lok)
                        e.vm = saved
                    e.wait_vm(named["C2_7"]); e("s_barrier")
                if c == BC:
                    if stfill: stfill.flush()
                    if w == 0: self.stamp("g2p1")
                    e.wait_vm(named["halo7"]); e("s_waitcnt lgkmcnt(0)\ns_barrier"); e.lg = []
                    for blk in range(2):
                        e.lds(f"ds_read_b32 v{136+2*blk}, v134 offset:{blk*256}"); named["tb"] = e.lds(f"ds_read_b32 v{137+2*blk}, v134 offset:{blk*256+128}")
            for si, (blks, ks, us) in enumerate(steps):
                for ui_i, ui in enumerate(us):
                    if count in (B1, B2, BC): do_barrier(count)
                    if ui_i == 0:
                        for sj in range(si, min(si + RN, len(steps))):
                            if sj not in xt and avail(sj, count):
                                bl, kk, _ = steps[sj]
                                t_ = None
                                for b, blk in enumerate(bl): t_ = xread(ringslot(sj, b), blk, kk)
                                xt[sj] = t_
                        e.wait_lg(xt[si])
                    acc, wset, b, orient = U[ui]
                    if wset == 1 and f"wB{ks}" in named: e.wait_vm(named[f"wB{ks}"])
                    first = (ks == 0)
                    mm(acc, wset, ks, ringslot(si, b), orient, first)
                    for kind, nm_, it in side.get(count, []): named[nm_] = self.emit_item(it)
                    if stfill and 46 <= count < BC:
                        if count == 46: e.wait_vm(named["st7"])
                        stfill.emit(3)
                    if count == fstart - 1:
                        e.wait_lg(named["tb"])
                        f12 = Fill(epi(ACC[0], *d[0], 144) + epi(ACC[1], *d[1], 144))
                    if f12 and count >= fstart: f12.emit(4 if w in (0, 2) else 2)
                    count += 1
            if f12: f12.flush()
            if w in (1, 3):
                e.wait_vm(named["hs7"])
                self.stats_finish(160 if w == 1 else 176, 130, 131)
                e("v_mul_f32 v130, v130, v131\nv_sub_f32 v130, 0, v130")
                if w == 1:
                    e("v_mov_b32 v140, v131\nv_mov_b32 v141, v130")
                else:
                    e(f"v_cmp_gt_u32 vcc, 32, v{vL}\ns_nop 1\nv_cndmask_b32 v130, v130, v131, vcc\nv_add_u32 v131, {TB + 2*256}, v{vL4}")
                    e.lds("ds_write_b32 v131, v130")
                    e("s_waitcnt lgkmcnt(0)"); e.lg = []
            if w == 0: self.stamp("g2p2")
            Fill(epi(ACC[2], *d[2], 144)).flush()
            Fill(epi(ACC[3], *d[3], 96)).flush()
            vm_end = list(e.vm)
            if w < 3: e(f"s_branch {Lgd}")
        e.label(Lgd)
        e.vm = vm_end
        e("s_waitcnt lgkmcnt(0)\ns_barrier")
        e.lg = []
        self.stamp("g2gemm")
        e(f"s_lshl_b32 s{sT0}, s{sW}, 10\ns_add_u32 s{sT0}, s{sT0}, {QB_}\nv_add_u32 v20, s{sT0}, v{vL16}")
        e(f"s_lshr_b32 s{sT1}, s{sW}, 1\ns_lshl_b32 s{sT1}, s{sT1}, 11\ns_add_u32 s{sT1}, s{sT1}, {VB_}\nv_add_u32 v21, s{sT1}, v{vL16}")
        Q = [32, 36]; Kf = [40, 44, 48]; V = {(0, 0): 52, (0, 1): 56, (1, 0): 60, (1, 1): 64, (2, 0): 68, (2, 1): 72}
        e(f"ds_read_b128 v[{Kf[2]}:{Kf[2]+3}], v20 offset:{(KB_-QB_)+2*4096}")
        for p in range(2):
            e(f"ds_read_b128 v[{Q[p]}:{Q[p]+3}], v20 offset:{p*4096}\nds_read_b128 v[{Kf[p]}:{Kf[p]+3}], v20 offset:{(KB_-QB_)+p*4096}")
        for (b, c), r in V.items(): e(f"ds_read_b128 v[{r}:{r+3}], v21 offset:{b*4096+c*1024}")
        e(f"s_lshl_b32 s{sT0}, s{sJ}, 2\ns_add_u32 s{sT0}, s{sT0}, s{sW}\ns_lshl_b32 s{sT0}, s{sT0}, 10")
        e(f"s_lshl_b32 s{sT1}, s{sC}, 16\ns_add_u32 s{sT0}, s{sT0}, s{sT1}\ns_add_u32 s{sT0}, s{sT0}, s{sOB}\ns_add_u32 s{sT1}, s{sT0}, 32768")
        So = [80, 96]; Sh = [112, 128]; Oo = [144, 160]
        setup, g3items = self.wpair_dma_list(WB_OB, self.WL0, sA4, sA5)
        e(f"s_mov_b32 s88, s{sT0}\ns_mov_b32 s89, s{sT1}")
        for x in setup: e(x)
        def g3dma(n):
            for _ in range(n):
                if g3items: self.emit_item(g3items.pop(0))
        g3dma(3)
        e("s_waitcnt lgkmcnt(8)")
        e(f"v_mfma_f32_32x32x16_bf16 {v(So[0],16)}, {v(Kf[0],4)}, {v(Q[0],4)}, v[212:227]")
        e(f"v_mfma_f32_32x32x16_bf16 {v(Sh[0],16)}, {v(Kf[2],4)}, {v(Q[0],4)}, v[228:243]")
        e("s_waitcnt lgkmcnt(6)")
        e(f"v_mfma_f32_32x32x16_bf16 {v(So[1],16)}, {v(Kf[1],4)}, {v(Q[1],4)}, v[212:227]")
        e(f"v_mfma_f32_32x32x16_bf16 {v(Sh[1],16)}, {v(Kf[2],4)}, {v(Q[1],4)}, v[228:243]")
        g3dma(2)
        e("v_mov_b32 v26, 0x3f803f80")
        vals = [[So[p] + r for r in range(16)] + [Sh[p] + 4 * (2 * p + 1) + jj for jj in range(4)] for p in range(2)]
        mx = [22, 23]; tm = [24, 25]
        PP = [176, 192]
        for p in range(2):
            vl = vals[p]
            e(f"v_max3_f32 v{mx[p]}, v{vl[0]}, v{vl[1]}, v{vl[2]}")
            i = 3
            while i < 20:
                if i + 1 < 20: e(f"v_max3_f32 v{mx[p]}, v{mx[p]}, v{vl[i]}, v{vl[i+1]}"); i += 2
                else: e(f"v_max_f32 v{mx[p]}, v{mx[p]}, v{vl[i]}"); i += 1
        for p in range(2): e(f"v_mov_b32 v{tm[p]}, v{mx[p]}")
        for p in range(2): e(f"v_permlane32_swap_b32 v{mx[p]}, v{tm[p]}")
        for p in range(2): e(f"v_max_f32 v{mx[p]}, v{mx[p]}, v{tm[p]}")
        for p in range(2):
            for i_, x in enumerate(vals[p]):
                e(f"v_sub_f32 v{x}, v{x}, v{mx[p]}")
                if i_ % 8 == 7: g3dma(1)
        for p in range(2):
            for i_, x in enumerate(vals[p]):
                e(f"v_exp_f32 v{x}, v{x}")
                if i_ % 5 == 4: g3dma(1)
            S_ = So[p]; H_ = vals[p][16]; Pp = PP[p]
            e(f"v_mov_b32 v{Pp+8}, 0\nv_mov_b32 v{Pp+9}, 0")
            for d in range(8): e(f"v_cvt_pk_bf16_f32 v{Pp+d}, v{S_+2*d}, v{S_+2*d+1}")
            e(f"v_cvt_pk_bf16_f32 v{Pp+10}, v{H_}, v{H_+1}\nv_cvt_pk_bf16_f32 v{Pp+11}, v{H_+2}, v{H_+3}")
            O_ = Oo[p]
            if p == 0: e("s_waitcnt lgkmcnt(0)")
            e(f"v_mfma_f32_32x32x16_bf16 {v(O_,16)}, {v(V[(p,0)],4)}, {v(Pp,4)}, 0")
            e(f"v_mfma_f32_32x32x16_bf16 {v(O_,16)}, {v(V[(p,1)],4)}, {v(Pp+4,4)}, {v(O_,16)}")
            e(f"v_mfma_f32_32x32x16_bf16 {v(O_,16)}, {v(V[(2,p)],4)}, {v(Pp+8,4)}, {v(O_,16)}")
            e(f"v_dot2_f32_bf16 v{mx[p]}, v{Pp}, v26, 0")
            for d in list(range(1, 8)) + [10, 11]: e(f"v_dot2_f32_bf16 v{mx[p]}, v{Pp+d}, v26, v{mx[p]}")
        for p in range(2): e(f"v_mov_b32 v{tm[p]}, v{mx[p]}")
        for p in range(2): e(f"v_permlane32_swap_b32 v{mx[p]}, v{tm[p]}")
        for p in range(2): e(f"v_add_f32 v{mx[p]}, v{mx[p]}, v{tm[p]}")
        for p in range(2): e(f"v_rcp_f32 v{mx[p]}, v{mx[p]}")
        Lodd = e.newlabel("ODD"); Ldone = e.newlabel("ODDD")
        e(f"s_bitcmp1_b32 s{sW}, 0\ns_cbranch_scc1 {Lodd}")
        for half in range(2):
            if half == 1: e.label(Lodd)
            for p in range(2):
                b0 = Oo[p] + 8 * half
                for r in range(8): e(f"v_mul_f32 v{b0+r}, v{mx[p]}, v{b0+r}")
                for d in range(4): e(f"v_cvt_pk_bf16_f32 v{28+4*p+d}, v{b0+2*d}, v{b0+2*d+1}")
            if half == 0: e(f"s_branch {Ldone}")
        e.label(Ldone)
        tok = self.moded(lambda fl: (self.ws_store(28, "s88", 0, flag=fl), self.ws_store(32, "s89", 0, flag=fl))[1])
        g3dma(16)
        return tok

    def build(self):
        e = self.e
        self.prologue()
        self.stamp("start")
        def stop(name):
            if self.stop_after == name:
                e("s_waitcnt vmcnt(0) lgkmcnt(0)\ns_endpgm")
                return True
            return False
        self.half_setup()
        self.first_phase()
        self.stamp("fdone")
        e.label("L_ATT")
        tok = self.attention()
        self.stamp("attdone")
        if stop("att"): return self.finish()
        self.sync_cluster(0, tok=tok, window=lambda: self.g2_consts(), pre_barrier=lambda: e("s_waitcnt lgkmcnt(0)"), post_barrier=self.fallback_check)
        self.stamp("c0")
        tok = self.outproj(True, sOA, sXMID, sSTMID, sHX, self.WL1)
        self.stamp("g1done")
        if stop("g1"): return self.finish()
        self.sync_cluster(1, tok=tok, window=lambda: self.g2_w_load(32, 42), drain=True, halo_flag=True)
        e.reset_counters()
        self.stamp("c1")
        tok = self.g2()
        self.stamp("g2done")
        if stop("g2"): return self.finish()
        self.sync_cluster(2, tok=tok, window=lambda: (self.g4_prefetch_cs(), self.g4_prefetch_kv()), drain=True)
        e.reset_counters()
        self.stamp("c2")
        tok = self.outproj(False, sOB, sXOUT, sSTOUT, None, self.WL0)
        self.stamp("g3done")
        if stop("g3"): return self.finish()
        self.sync_cluster(3, tok=tok, window=lambda: self.wpair_dma(WB_Q, self.WL1), drain=True)
        e.reset_counters()
        self.stamp("c3")
        e(f"s_mov_b32 s{sHALF}, 1")
        self.half_setup()
        self.g4()
        self.stamp("g4done")
        e("s_branch L_ATT")
        self.fallback()
        return self.finish()

    def finish(self):
        e = self.e
        e.label("L_END")
        e("s_endpgm")
        e.label("L_CODE_END")
        lines, n = fix_hazards(e.lines)
        hdr = open('cdna_kernels/' + NAME + '.s.ref').read().split("\n")
        head = [l for l in hdr if l.startswith(";") and "@launch" not in l and "Override launch" not in l and "grid=ceil" not in l]
        out = head + ["; @launch grid=(256,1,1) block=(256,1,1) lds=163840"]
        out += ['.amdgcn_target "amdgcn-amd-amdhsa--gfx950"', ".text", f".globl {KN}", ".p2align 8", f".type {KN},@function", f"{KN}:"]
        out += lines
        out += ['.section .rodata,"a"', ".p2align 6", f".amdhsa_kernel {KN}",
                "  .amdhsa_next_free_vgpr 512", "  .amdhsa_next_free_sgpr 102", "  .amdhsa_accum_offset 256",
                "  .amdhsa_group_segment_fixed_size 0", "  .amdhsa_kernarg_size 88", "  .amdhsa_user_sgpr_count 2",
                "  .amdhsa_user_sgpr_kernarg_segment_ptr 1", "  .amdhsa_system_sgpr_workgroup_id_x 1", ".end_amdhsa_kernel", ""]
        self.nops = n
        return "\n".join(out)

if __name__ == "__main__":
    import argparse
    ap = argparse.ArgumentParser()
    ap.add_argument("-o", default="k.s")
    ap.add_argument("--stop", default=None)
    ap.add_argument("--stamps", action="store_true")
    ap.add_argument("--attvar", default="")
    ap.add_argument("--light", default=None)
    ap.add_argument("--safe", action="store_true")
    ap.add_argument("--nopf", action="store_true")
    ap.add_argument("--outflag", default="")
    args = ap.parse_args()
    g = Gen(stop_after=args.stop, stamps=args.stamps)
    g.attvar = args.attvar
    g.light = args.light
    g.force_safe = args.safe
    g.nopf = args.nopf
    g.outflag = args.outflag
    txt = g.build()
    open(args.o, "w").write(txt)
    print("wrote", args.o, "lines", txt.count("\n"), "nop states", g.nops)
    if args.stamps: print(g.stampnames)
```

```python
import sys
from asmlib import *

NAME = 'interleave_layers__grouped_kv_mqa__sliding_local_dilated__prompt'
KN = NAME + '_kernel'

FL_C   = 0x10000
FL_G0  = 0x18000
FL_GK  = 0x1A000
FL_XW  = 0x1C000
FL_H   = 0x20000
DBG    = 0x40000
WF     = 0x100000
CS     = 0x480000
X0     = 0x500000
OA     = 0xD00000
OB     = 0x1100000
HX     = 0x1500000
ST0    = 0x1700000
KF     = 0x1800000
VT_STRIDE = 1088
STH    = 0x1A00000
WS_BYTES = 0x10000000
MODEADDR = 163832
WB_Q, WB_KV, WB_OA, WB_BQ, WB_BK, WB_BV, WB_OB = 0, 16, 17, 33, 49, 65, 81

LOG2E = 1.4426950408889634
QSCALE = 0.25 * LOG2E
import struct
def fbits(x): return "0x%08x" % struct.unpack("<I", struct.pack("<f", x))[0]

sG = 2
SRD_WS = 4
SRD_T  = 8
SRD_OUT = 12
sC, sJ, sW, sP, sKH, sTAG, sHALF, sHC = 16, 17, 18, 19, 20, 21, 22, 23
sRBOFF = 24
sSTOFF = 25
sRB    = 26
sNB    = 27
sXIN, sXMID, sXOUT = 28, 29, 30
sSTIN, sSTMID, sSTOUT = 31, 32, 33
sOA, sOB, sHX, sKF = 34, 35, 36, 37
sFLC = 38
sT0, sT1, sT2, sT3, sT4, sT5, sT6, sT7 = 40, 41, 42, 43, 44, 45, 46, 47
sM0, sM1 = 48, 50
sPOLL = 52
sTS = 54
sIN = 64
sOUTP = 80
sLOOP = 56
sA0, sA1, sA2, sA3 = 57, 58, 59, 60
sFA = 61
sA4, sA5 = 62, 63
sACT = 91
sRANK = 100
sFB = 101
sBAD = 48
sPFB = 86
sMODE = 39
sSTH = 53

vTID, vL, vL16, vL4 = 0, 1, 2, 3
XR = 4
vSTAT = 12
vHALO = 13
vT0, vT1 = 14, 15
vWK, vWS = 254, 255

LS = [64, 66, 76, 78, 80, 82, 84, 52]
class Gen:
    def __init__(self, stop_after=None, stamps=False, safe=True):
        self.e = Emitter()
        self.stop_after = stop_after
        self.stamps = stamps
        self.st = "sc1"
        self.ld = "sc1"
        self.nstamp = 0

    def stamp(self, name):
        if not self.stamps: return
        e = self.e
        idx = self.nstamp; self.nstamp += 1
        L = e.newlabel("STAMP")
        e(f"s_cmp_lg_u32 s{sW}, 0\ns_cbranch_scc1 {L}")
        e(f"s_memrealtime s[{sTS}:{sTS+1}]\ns_memtime s[50:51]\ns_waitcnt lgkmcnt(0)")
        e(f"s_lshl_b32 s{sT7}, s{sG}, 9\ns_add_u32 s{sT7}, s{sT7}, {DBG}\ns_mul_i32 s{sT6}, s{sHALF}, 256\ns_add_u32 s{sT7}, s{sT7}, s{sT6}")
        e(f"v_mov_b32 v{vT0}, s{sTS}\nv_mov_b32 v{vT1}, 0")
        e(f"s_mov_b64 exec, 1\nbuffer_store_dword v{vT0}, v{vT1}, s[{SRD_WS}:{SRD_WS+3}], s{sT7} offen offset:{(idx % 32) * 4}")
        e(f"v_mov_b32 v{vT0}, s50\nbuffer_store_dword v{vT0}, v{vT1}, s[{SRD_WS}:{SRD_WS+3}], s{sT7} offen offset:{128 + (idx % 32) * 4}\ns_mov_b64 exec, -1")
        e.label(L)
        self.stampnames = getattr(self, "stampnames", []) + [name]

    def lstamp(self, k):
        if self.stamps and getattr(self, "light", None): self.e(f"s_memtime s[{LS[k]}:{LS[k]+1}]")
    def lflush(self, name):
        if not (self.stamps and getattr(self, "light", None) == name): return
        e = self.e
        L = e.newlabel("LST")
        e(f"s_cmp_lg_u32 s{sW}, 0\ns_cbranch_scc1 {L}\ns_waitcnt lgkmcnt(0)")
        e(f"s_lshl_b32 s{sT7}, s{sG}, 6\ns_add_u32 s{sT7}, s{sT7}, 0x60000\ns_lshl_b32 s{sT6}, s{sHALF}, 5\ns_add_u32 s{sT7}, s{sT7}, s{sT6}")
        e(f"v_mov_b32 v{vT1}, 0\ns_mov_b64 exec, 1")
        for k in range(8):
            e(f"v_mov_b32 v{vT0}, s{LS[k]}\nbuffer_store_dword v{vT0}, v{vT1}, s[{SRD_WS}:{SRD_WS+3}], s{sT7} offen offset:{4*k}")
        e("s_mov_b64 exec, -1")
        e.label(L)

    def ws_load(self, dst, soff, imm=0, voff=vL16, n=4, flag=None, acc=False):
        flag = self.ld if flag is None else flag
        mn = {1: "buffer_load_dword", 2: "buffer_load_dwordx2", 4: "buffer_load_dwordx4"}[n]
        d = a(dst, n) if acc else v(dst, n)
        return self.e.vmem(f"{mn} {d}, v{voff}, s[{SRD_WS}:{SRD_WS+3}], {soff} offen offset:{imm} {flag}")
    def ws_store(self, src, soff, imm=0, voff=vL16, n=4, flag=None):
        flag = self.st if flag is None else flag
        mn = {1: "buffer_store_dword", 2: "buffer_store_dwordx2", 4: "buffer_store_dwordx4"}[n]
        return self.e.vmem(f"{mn} {v(src, n)}, v{voff}, s[{SRD_WS}:{SRD_WS+3}], {soff} offen offset:{imm} {flag}")

    def moded(self, fn):
        e = self.e
        Lf = e.newlabel("FAST"); Ld = e.newlabel("MDONE")
        e(f"s_cmp_eq_u32 s{sMODE}, 1\ns_cbranch_scc1 {Lf}")
        saved = list(e.vm); nt = e.ntok
        fn("sc1")
        e(f"s_branch {Ld}")
        e.label(Lf)
        e.vm = saved; e.ntok = nt
        r = fn("")
        e.label(Ld)
        return r

    def load_frags(self, dst, sbase, nfr, acc=False, flag=None, stmp=sT7):
        e = self.e; toks = []
        for t in range(nfr):
            if t % 4 == 0:
                if t == 0: so = f"s{sbase}"
                else:
                    e(f"s_add_u32 s{stmp}, s{sbase}, {t*1024}"); so = f"s{stmp}"
            toks.append(self.ws_load(dst + 4 * t, so, (t % 4) * 1024, acc=acc, flag=flag))
        return toks

    def poll(self, kind, setup):
        e = self.e
        Lp = e.newlabel("POLL"); Lok = e.newlabel("POLLOK")
        e(f"s_mov_b32 s{sPOLL}, 0")
        e.label(Lp)
        setup()
        e(f"s_cbranch_vccz {Lok}")
        e(f"s_add_u32 s{sPOLL}, s{sPOLL}, 1\ns_cmp_lt_u32 s{sPOLL}, 400000\ns_cbranch_scc1 {Lp}")
        e("s_branch L_END")
        e.label(Lok)

    def sync_cluster(self, sid, tok=None, pre_barrier=None, window=None, drain=False, halo_flag=False, post_barrier=None):
        e = self.e
        e.wait_vm(tok)
        if pre_barrier: pre_barrier()
        e("s_barrier")
        if post_barrier: post_barrier()
        L0 = e.newlabel("SYNCA"); L = e.newlabel("SYNC")
        e(f"s_lshl_b32 s{sFA}, s{sC}, 7\ns_add_u32 s{sFA}, s{sFA}, s{sFLC}\ns_add_u32 s{sFA}, s{sFA}, {sid*4096}")
        e(f"s_cmp_lg_u32 s{sW}, 0\ns_cbranch_scc1 {L0}")
        e(f"s_lshl_b32 s{sT1}, s{sJ}, 2\nv_mov_b32 v16, s{sT1}\nv_mov_b32 v17, s{sTAG}")
        e("s_mov_b64 exec, 1")
        saved = list(e.vm)
        self.moded(lambda fl: e(f"buffer_store_dword v17, v16, s[{SRD_WS}:{SRD_WS+3}], s{sFA} offen {fl}"))
        e.vm = saved
        e("s_mov_b64 exec, -1")
        e.label(L0)
        if window: window()
        e(f"s_cmp_lg_u32 s{sW}, 0\ns_cbranch_scc1 {L}")
        e(f"v_and_b32 v16, 7, v{vL}\nv_lshlrev_b32 v16, 2, v16")
        def setup():
            e(f"buffer_load_dword v17, v16, s[{SRD_WS}:{SRD_WS+3}], s{sFA} offen sc1\ns_waitcnt vmcnt(0)")
            e(f"v_cmp_ne_u32 vcc, s{sTAG}, v17")
        self.poll("c", setup)
        e.label(L)
        if drain:
            e("s_waitcnt vmcnt(0)"); e.vm = []
        e("s_barrier")
        if halo_flag:
            L2 = e.newlabel("HF")
            e(f"s_cmp_lg_u32 s{sW}, 0\ns_cbranch_scc1 {L2}")
            e(f"s_lshl_b32 s{sT0}, s{sHALF}, 12\ns_lshl_b32 s{sT1}, s{sC}, 7\ns_add_u32 s{sT0}, s{sT0}, s{sT1}\ns_add_u32 s{sT0}, s{sT0}, {FL_H}")
            e(f"s_lshl_b32 s{sT1}, s{sJ}, 2\nv_mov_b32 v16, s{sT1}\nv_mov_b32 v17, s{sTAG}")
            e(f"s_mov_b64 exec, 1\nbuffer_store_dword v17, v16, s[{SRD_WS}:{SRD_WS+3}], s{sT0} offen sc1\ns_mov_b64 exec, -1")
            e.label(L2)

    def prologue(self):
        e = self.e
        e(f"s_cmp_ge_u32 s{sG}, 256\ns_cbranch_scc1 L_END")
        e(f"s_load_dwordx16 s[{sIN}:{sIN+15}], s[0:1], 0")
        if not getattr(self, "nopf", False):
            Lpf = e.newlabel("PF")
            e(f"s_getpc_b64 s[40:41]")
            e.label("L_PFBASE")
            e(f"s_mov_b32 s{sPFB}, s40\ns_mov_b32 s{sPFB+1}, s41")
            e(f"s_lshr_b32 s42, s{sG}, 3\ns_mul_i32 s42, s42, 3072\ns_add_u32 s43, s42, 3072\ns_cmp_gt_u32 s43, L_CODE_END-L_PFBASE\ns_cbranch_scc1 {Lpf}")
            e(f"s_add_u32 s40, s40, s42\ns_addc_u32 s41, s41, 0\nv_and_b32 v250, 63, v0\nv_lshrrev_b32 v251, 6, v0\nv_lshlrev_b32 v250, 4, v250\nv_min_u32 v251, 2, v251\nv_lshl_add_u32 v250, v251, 10, v250")
            e("global_load_dwordx4 v[252:255], v250, s[40:41]")
            e.label(Lpf)
        e(f"s_load_dwordx4 s[{sOUTP}:{sOUTP+3}], s[0:1], 64")
        e(f"s_load_dwordx2 s[{sOUTP+4}:{sOUTP+5}], s[0:1], 80")
        e(f"v_and_b32 v{vL}, 63, v{vTID}\nv_lshrrev_b32 v{vT0}, 6, v{vTID}")
        e(f"v_lshlrev_b32 v{vL16}, 4, v{vL}\nv_lshlrev_b32 v{vL4}, 2, v{vL}")
        e(f"v_readfirstlane_b32 s{sW}, v{vT0}")
        e(f"s_and_b32 s{sT0}, s{sG}, 7\ns_lshr_b32 s{sT1}, s{sG}, 3\ns_and_b32 s{sT2}, s{sT1}, 3")
        e(f"s_lshl_b32 s{sC}, s{sT0}, 2\ns_add_u32 s{sC}, s{sC}, s{sT2}\ns_lshr_b32 s{sJ}, s{sT1}, 2")
        e(f"s_and_b32 s{sP}, s{sW}, 1\ns_lshr_b32 s{sKH}, s{sW}, 1")
        e(f"s_max_u32 s{sHC}, s{sC}, 1\ns_sub_u32 s{sHC}, s{sHC}, 1")
        e(f"s_lshl_b32 s{sRB}, s{sC}, 1\ns_add_u32 s{sRB}, s{sRB}, s{sP}")
        e(f"s_lshl_b32 s{sNB}, s{sJ}, 1\ns_add_u32 s{sNB}, s{sNB}, s{sKH}")
        e(f"s_lshl_b32 s{sRBOFF}, s{sRB}, 15\ns_lshl_b32 s{sT0}, s{sNB}, 11\ns_add_u32 s{sRBOFF}, s{sRBOFF}, s{sT0}")
        e(f"s_lshl_b32 s{sSTOFF}, s{sRB}, 12\ns_lshl_b32 s{sT0}, s{sNB}, 8\ns_add_u32 s{sSTOFF}, s{sSTOFF}, s{sT0}")
        e(f"v_and_b32 v{vT0}, 31, v{vL}\nv_lshrrev_b32 v{vT1}, 5, v{vL}\nv_lshlrev_b32 v{vSTAT}, 3, v{vT0}\nv_lshl_add_u32 v{vSTAT}, v{vT1}, 2, v{vSTAT}")
        e(f"s_lshl_b32 s{sT0}, s{sP}, 4\ns_sub_u32 s{sT0}, s{sT0}, 16\nv_add_u32 v{vHALO}, s{sT0}, v{vL}\nv_lshlrev_b32 v{vHALO}, 4, v{vHALO}")
        e("s_waitcnt lgkmcnt(0)")
        e(f"s_mov_b32 s{SRD_WS}, s{sOUTP+4}\ns_mov_b32 s{SRD_WS+1}, s{sOUTP+5}\ns_mov_b32 s{SRD_WS+2}, {WS_BYTES}\ns_mov_b32 s{SRD_WS+3}, 0x20000")
        e(f"s_mov_b32 s{SRD_OUT}, s{sOUTP}\ns_mov_b32 s{SRD_OUT+1}, s{sOUTP+1}\ns_mov_b32 s{SRD_OUT+2}, {2048*512*2}\ns_mov_b32 s{SRD_OUT+3}, 0x20000")
        e(f"s_mov_b32 s{sHALF}, 0")
        e(f"s_getreg_b32 s3, hwreg(HW_REG_XCC_ID)\ns_and_b32 s3, s3, 15\ns_mov_b32 s{sMODE}, 0")

    def tag_from(self, vreg):
        e = self.e
        e(f"v_readfirstlane_b32 s{sTAG}, v{vreg}")
        e(f"s_mul_i32 s{sTAG}, s{sTAG}, 0x9E3779B1\ns_add_u32 s{sTAG}, s{sTAG}, 0x7F4A7C15")
        Lx = e.newlabel("XW")
        e(f"s_cmp_lg_u32 s{sW}, 0\ns_cbranch_scc1 {Lx}")
        e(f"s_add_u32 s{sT0}, s{sTAG}, s3\ns_add_u32 s{sT0}, s{sT0}, 16\nv_mov_b32 v{vT0}, s{sT0}")
        e(f"s_lshl_b32 s{sT1}, s{sC}, 3\ns_add_u32 s{sT1}, s{sT1}, s{sJ}\ns_lshl_b32 s{sT1}, s{sT1}, 2\ns_add_u32 s{sT1}, s{sT1}, {FL_XW}\nv_mov_b32 v{vT1}, 0")
        e(f"s_mov_b64 exec, 1\nbuffer_store_dword v{vT0}, v{vT1}, s[{SRD_WS}:{SRD_WS+3}], s{sT1} offen sc1\ns_mov_b64 exec, -1")
        e.label(Lx)

    def publish_x(self, sX, sST, sHXr=None, moded=True):
        e = self.e
        e(f"s_add_u32 s{sT0}, s{sX}, s{sRBOFF}")
        def st1(fl):
            for c in range(2): t = self.ws_store(XR + 4 * c, f"s{sT0}", c * 1024, flag=fl)
            return t
        if moded: self.moded(st1)
        else: st1("sc1")
        e(f"v_mov_b32 v16, 0x3f803f80")
        e(f"v_dot2_f32_bf16 v17, v{XR}, v16, 0\nv_dot2_f32_bf16 v18, v{XR}, v{XR}, 0")
        for i in range(1, 8):
            e(f"v_dot2_f32_bf16 v17, v{XR+i}, v16, v17\nv_dot2_f32_bf16 v18, v{XR+i}, v{XR+i}, v18")
        e("v_permlane32_swap_b32 v17, v18\nv_add_f32 v17, v17, v18")
        e(f"s_add_u32 s{sT0}, s{sST}, s{sSTOFF}")
        st2 = lambda fl: self.ws_store(17, f"s{sT0}", 0, voff=vSTAT, n=1, flag=fl)
        tok = self.moded(st2) if moded else st2("sc1")
        if sHXr is not None:
            e(f"s_lshl_b32 s{sT1}, s{sC}, 15\ns_add_u32 s{sT1}, s{sT1}, s{sHXr}\ns_lshl_b32 s{sT2}, s{sNB}, 11\ns_add_u32 s{sT1}, s{sT1}, s{sT2}")
            e("s_mov_b32 exec_lo, 0xffff0000\ns_mov_b32 exec_hi, 0xffff0000")
            for c in range(2):
                self.ws_store(XR + 4 * c, f"s{sT1}", c * 1024, voff=vHALO, flag="sc1")
            e("s_mov_b64 exec, -1")
            e(f"s_add_u32 s{sT0}, s{sSTH}, s{sSTOFF}")
            self.ws_store(17, f"s{sT0}", 0, voff=vSTAT, n=1, flag="sc1")
        return tok

    def load_stats_issue(self, dst, sST, srb):
        e = self.e
        e(f"v_and_b32 v{dst+16}, 31, v{vL}\nv_lshlrev_b32 v{dst+16}, 3, v{dst+16}\nv_lshrrev_b32 v{dst+17}, 5, v{vL}\nv_lshl_add_u32 v{dst+16}, v{dst+17}, 11, v{dst+16}")
        e(f"s_lshl_b32 s{sT0}, s{srb}, 12\ns_add_u32 s{sT0}, s{sT0}, s{sST}")
        tok = None
        for t in range(8):
            tok = self.ws_load(dst + 2 * t, f"s{sT0}", t * 256, voff=dst + 16, n=2)
        return tok
    def stats_finish(self, src, vmean, vrstd):
        e = self.e
        for t in range(1, 8):
            e(f"v_add_f32 v{src}, v{src}, v{src+2*t}\nv_add_f32 v{src+1}, v{src+1}, v{src+2*t+1}")
        e(f"v_permlane32_swap_b32 v{src}, v{src+1}\nv_add_f32 v{src}, v{src}, v{src+1}\nv_mov_b32 v{src+1}, v{src}")
        e(f"v_permlane32_swap_b32 v{src}, v{src+1}")
        e(f"v_mul_f32 v{vmean}, {fbits(1/512)}, v{src}")
        e(f"v_mul_f32 v{src+1}, {fbits(1/512)}, v{src+1}")
        e(f"v_fma_f32 v{src+1}, -v{vmean}, v{vmean}, v{src+1}")
        e(f"v_add_f32 v{src+1}, {fbits(1e-5)}, v{src+1}")
        e(f"v_rsq_f32 v{vrstd}, v{src+1}")

    def p0(self):
        e = self.e
        e(f"s_mov_b32 s{SRD_T}, s{sIN}\ns_mov_b32 s{SRD_T+1}, s{sIN+1}\ns_mov_b32 s{SRD_T+2}, {2048*1024}\ns_mov_b32 s{SRD_T+3}, 0x20000")
        e(f"v_and_b32 v16, 31, v{vL}\nv_lshlrev_b32 v16, 11, v16\nv_lshrrev_b32 v17, 5, v{vL}\nv_lshl_add_u32 v16, v17, 3, v16")
        e(f"s_lshl_b32 s{sT0}, s{sC}, 6\ns_add_u32 s{sT0}, s{sT0}, s{sP}\ns_lshl_b32 s{sT0}, s{sT0}, 10\ns_lshl_b32 s{sT1}, s{sNB}, 6\ns_add_u32 s{sT0}, s{sT0}, s{sT1}")
        for q in range(4):
            e.vmem(f"buffer_load_dwordx2 v[{XR+2*q}:{XR+2*q+1}], v16, s[{SRD_T}:{SRD_T+3}], s{sT0} offen offset:{16*q}")
        e.wait_vm()
        e(f"s_mov_b32 s{sA0}, {X0}\ns_mov_b32 s{sA1}, {ST0}")
        self.publish_x(sA0, sA1, moded=False)
        Lskip = e.newlabel("P0SKIP"); Lkv = e.newlabel("P0KV"); Lgo = e.newlabel("P0GO"); Lld = e.newlabel("P0LD")
        e(f"s_cmp_ge_u32 s{sG}, 97\ns_cbranch_scc1 {Lskip}")
        pw = lambda i: (sIN + 2 * i, sIN + 2 * i + 1)
        e(f"s_cmp_eq_u32 s{sG}, 16\ns_cbranch_scc1 {Lkv}")
        e(f"s_mov_b32 s{SRD_T}, s{pw(1)[0]}\ns_mov_b32 s{SRD_T+1}, s{pw(1)[1]}\ns_mov_b32 s{SRD_T+2}, {512*1024}\ns_mov_b32 s{sA2}, 1024\ns_lshl_b32 s{sA3}, s{sG}, 6")
        e(f"s_cmp_lt_u32 s{sG}, 16\ns_cbranch_scc1 {Lgo}")
        e(f"s_mov_b32 s{SRD_T}, s{pw(4)[0]}\ns_mov_b32 s{SRD_T+1}, s{pw(4)[1]}\ns_sub_u32 s{sA3}, s{sG}, 17\ns_lshl_b32 s{sA3}, s{sA3}, 6")
        e(f"s_cmp_lt_u32 s{sG}, 33\ns_cbranch_scc1 {Lgo}")
        e(f"s_mov_b32 s{SRD_T}, s{pw(6)[0]}\ns_mov_b32 s{SRD_T+1}, s{pw(6)[1]}\ns_mov_b32 s{SRD_T+2}, {512*3072}\ns_mov_b32 s{sA2}, 3072\ns_sub_u32 s{sA3}, s{sG}, 33\ns_lshl_b32 s{sA3}, s{sA3}, 6")
        e(f"s_cmp_lt_u32 s{sG}, 81\ns_cbranch_scc1 {Lgo}")
        e(f"s_mov_b32 s{SRD_T}, s{pw(7)[0]}\ns_mov_b32 s{SRD_T+1}, s{pw(7)[1]}\ns_mov_b32 s{SRD_T+2}, {512*1024}\ns_mov_b32 s{sA2}, 1024\ns_sub_u32 s{sA3}, s{sG}, 81\ns_lshl_b32 s{sA3}, s{sA3}, 6")
        e.label(Lgo)
        e(f"s_mov_b32 s{SRD_T+3}, 0x20000")
        e(f"v_lshrrev_b32 v16, 2, v{vL}\nv_mul_lo_u32 v16, v16, s{sA2}\nv_and_b32 v17, 3, v{vL}\nv_lshl_add_u32 v16, v17, 4, v16")
        e(f"s_lshl_b32 s{sT0}, s{sW}, 7\ns_mul_i32 s{sT0}, s{sT0}, s{sA2}\ns_add_u32 s{sT0}, s{sT0}, s{sA3}\ns_lshl_b32 s{sT1}, s{sA2}, 4")
        for it in range(8):
            e(f"buffer_load_dwordx4 v[{32+4*it}:{35+4*it}], v16, s[{SRD_T}:{SRD_T+3}], s{sT0} offen")
            if it < 7: e(f"s_add_u32 s{sT0}, s{sT0}, s{sT1}")
        e(f"s_branch {Lld}")
        e.label(Lkv)
        e(f"v_lshrrev_b32 v16, 2, v{vL}\nv_lshlrev_b32 v16, 5, v16\nv_and_b32 v17, 1, v{vL}\nv_lshl_add_u32 v16, v17, 4, v16")
        e(f"s_lshl_b32 s{sT0}, s{sW}, 12")
        e(f"v_and_b32 v17, 2, v{vL}\nv_cmp_eq_u32 vcc, 0, v17")
        e(f"s_mov_b32 s{SRD_T}, s{pw(3)[0]}\ns_mov_b32 s{SRD_T+1}, s{pw(3)[1]}\ns_mov_b32 s{SRD_T+2}, {512*32}\ns_mov_b32 s{SRD_T+3}, 0x20000")
        e(f"s_mov_b64 s[{sM0}:{sM0+1}], vcc")
        e(f"s_mov_b64 exec, s[{sM0}:{sM0+1}]")
        for it in range(8):
            e(f"buffer_load_dwordx4 v[{32+4*it}:{35+4*it}], v16, s[{SRD_T}:{SRD_T+3}], s{sT0} offen offset:{it*512}")
        e(f"s_mov_b64 exec, -1\ns_andn2_b64 exec, exec, s[{sM0}:{sM0+1}]")
        e(f"s_mov_b32 s{SRD_T}, s{pw(2)[0]}\ns_mov_b32 s{SRD_T+1}, s{pw(2)[1]}\ns_mov_b32 s{SRD_T+2}, {512*32}\ns_mov_b32 s{SRD_T+3}, 0x20000")
        for it in range(8):
            e(f"buffer_load_dwordx4 v[{32+4*it}:{35+4*it}], v16, s[{SRD_T}:{SRD_T+3}], s{sT0} offen offset:{it*512}")
        e("s_mov_b64 exec, -1")
        e.label(Lld)
        e("s_waitcnt vmcnt(0)")
        e(f"s_lshl_b32 s{sT0}, s{sW}, 13\nv_add_u32 v17, s{sT0}, v{vL16}")
        for it in range(8):
            e(f"ds_write_b128 v17, v[{32+4*it}:{35+4*it}] offset:{it*1024}")
        e(f"v_and_b32 v18, 15, v{vL}\nv_lshrrev_b32 v19, 2, v18\nv_lshrrev_b32 v20, 5, v{vL}\nv_lshl_add_u32 v19, v20, 2, v19\nv_lshlrev_b32 v19, 6, v19")
        e(f"v_and_b32 v20, 3, v18\nv_lshl_add_u32 v19, v20, 3, v19\nv_bfe_u32 v20, v{vL}, 4, 1\nv_lshl_add_u32 v19, v20, 5, v19\nv_add_u32 v19, s{sT0}, v19")
        e("s_waitcnt lgkmcnt(0)")
        for t in range(8):
            e(f"ds_read_b64_tr_b16 v[{64+4*t}:{65+4*t}], v19 offset:{t*1024}")
            e(f"ds_read_b64_tr_b16 v[{66+4*t}:{67+4*t}], v19 offset:{t*1024+512}")
        e("s_waitcnt lgkmcnt(0)")
        e(f"s_lshl_b32 s{sT0}, s{sG}, 15\ns_lshl_b32 s{sT1}, s{sW}, 13\ns_add_u32 s{sT0}, s{sT0}, s{sT1}\ns_add_u32 s{sT0}, s{sT0}, {WF}\ns_add_u32 s{sT1}, s{sT0}, 4096")
        for t in range(8):
            self.ws_store(64 + 4 * t, f"s{sT0 if t < 4 else sT1}", (t % 4) * 1024)
        e("v_mov_b32 v16, 0x3f803f80\nv_mov_b32 v17, 0")
        for i in range(32):
            e(f"v_dot2_f32_bf16 v17, v{64+i}, v16, v17")
        e("v_mov_b32 v18, v17\nv_permlane32_swap_b32 v17, v18\nv_add_f32 v17, v17, v18")
        e(f"s_lshl_b32 s{sT0}, s{sW}, 8\nv_add_u32 v18, s{sT0}, v{vL4}\nds_write_b32 v18, v17 offset:32768\ns_waitcnt lgkmcnt(0)\ns_barrier")
        e(f"ds_read_b32 v20, v{vL4} offset:32768\nds_read_b32 v21, v{vL4} offset:{32768+256}\nds_read_b32 v22, v{vL4} offset:{32768+512}\nds_read_b32 v23, v{vL4} offset:{32768+768}\ns_waitcnt lgkmcnt(0)")
        e("v_add_f32 v20, v20, v21\nv_add_f32 v22, v22, v23\nv_add_f32 v20, v20, v22")
        Lcs = e.newlabel("P0CS")
        e(f"s_cmp_lg_u32 s{sW}, 0\ns_cbranch_scc1 {Lcs}")
        e(f"s_lshl_b32 s{sT0}, s{sG}, 7\ns_add_u32 s{sT0}, s{sT0}, {CS}\ns_mov_b32 exec_hi, 0")
        self.ws_store(20, f"s{sT0}", 0, voff=vL4, n=1)
        e("s_mov_b64 exec, -1")
        e.label(Lcs)
        e.label(Lskip)
        e.wait_vm(); e("s_barrier")
        L = e.newlabel("G0")
        e(f"s_cmp_lg_u32 s{sW}, 0\ns_cbranch_scc1 {L}")
        e(f"v_lshlrev_b32 v16, 10, v{vL}\ns_lshl_b32 s{sT0}, s{sG}, 2\ns_add_u32 s{sT0}, s{sT0}, {FL_G0}\nv_mov_b32 v17, s{sTAG}")
        e(f"s_mov_b64 exec, 0xff\nbuffer_store_dword v17, v16, s[{SRD_WS}:{SRD_WS+3}], s{sT0} offen sc1\ns_mov_b64 exec, -1")
        e(f"s_and_b32 s{sT0}, s{sG}, 7\ns_lshl_b32 s{sT0}, s{sT0}, 10\ns_add_u32 s{sT0}, s{sT0}, {FL_G0}")
        def setup():
            e(f"buffer_load_dwordx4 v[16:19], v{vL16}, s[{SRD_WS}:{SRD_WS+3}], s{sT0} offen sc1\ns_waitcnt vmcnt(0)")
            e(f"v_xor_b32 v16, s{sTAG}, v16\nv_xor_b32 v17, s{sTAG}, v17\nv_xor_b32 v18, s{sTAG}, v18\nv_xor_b32 v19, s{sTAG}, v19")
            e("v_or_b32 v16, v16, v17\nv_or_b32 v18, v18, v19\nv_or_b32 v16, v16, v18\nv_cmp_ne_u32 vcc, 0, v16")
        self.poll("g", setup)
        self.mode_detect()
        e.label(L)
        e("s_barrier")
        self.mode_read()
        e.reset_counters()

    def mode_detect(self):
        e = self.e
        Lp = e.newlabel("XPOLL"); Lok = e.newlabel("XOK")
        e(f"s_lshl_b32 s{sT0}, s{sC}, 5\ns_add_u32 s{sT0}, s{sT0}, {FL_XW}\nv_and_b32 v16, 7, v{vL}\nv_lshlrev_b32 v16, 2, v16\ns_mov_b32 s{sPOLL}, 0")
        e.label(Lp)
        e(f"buffer_load_dword v17, v16, s[{SRD_WS}:{SRD_WS+3}], s{sT0} offen sc1\ns_waitcnt vmcnt(0)")
        e(f"v_subrev_u32 v17, s{sTAG}, v17\nv_subrev_u32 v17, 16, v17\nv_cmp_le_u32 vcc, 16, v17")
        e(f"s_cbranch_vccz {Lok}")
        e(f"s_add_u32 s{sPOLL}, s{sPOLL}, 1\ns_cmp_lt_u32 s{sPOLL}, 400000\ns_cbranch_scc1 {Lp}\ns_branch L_END")
        e.label(Lok)
        e(f"v_cmp_ne_u32 vcc, s3, v17\ns_nop 4\ns_cmp_eq_u64 vcc, 0\ns_cselect_b32 s{sT1}, 1, 0")
        if getattr(self, "force_safe", False): e(f"s_mov_b32 s{sT1}, 0")
        e(f"v_mov_b32 v16, {MODEADDR}\nv_mov_b32 v17, s{sT1}\nds_write_b32 v16, v17\ns_waitcnt lgkmcnt(0)")
    def mode_read(self):
        e = self.e
        e(f"v_mov_b32 v16, {MODEADDR}\nds_read_b32 v17, v16\ns_waitcnt lgkmcnt(0)\nv_readfirstlane_b32 s{sMODE}, v17")


    def first_phase(self):
        e = self.e
        XI, WQI, WVI = 0, 65536, 131072
        STX, CSP, CSK, REDKV, VT, RED = 8192, 9216, 9728, 12288, 16384, 32768
        SRD_X, SRD_Q, SRD_P = 8, 68, 72
        pw = lambda i: (sIN + 2 * i, sIN + 2 * i + 1)
        sR = sA0
        for k, i in enumerate((1, 2, 3, 4, 6, 7)):
            e(f"s_mov_b32 s{88+2*k}, s{pw(i)[0]}\ns_mov_b32 s{89+2*k}, s{pw(i)[1]}")
        e(f"s_mov_b32 s{SRD_X}, s{sIN}\ns_mov_b32 s{SRD_X+1}, s{sIN+1}\ns_mov_b32 s{SRD_X+2}, {2048*1024}\ns_mov_b32 s{SRD_X+3}, 0x20000")
        e(f"s_mov_b32 s{SRD_Q}, s88\ns_mov_b32 s{SRD_Q+1}, s89\ns_mov_b32 s{SRD_Q+2}, {512*1024}\ns_mov_b32 s{SRD_Q+3}, 0x20000")
        e(f"v_mov_b32 v230, 0")
        e(f"buffer_load_dword v231, v230, s[{SRD_WS}:{SRD_WS+3}], 0 offen sc0 sc1")
        def x_rows(par_expr_sgpr, nrows, srow0):
            e(f"s_lshl_b32 s{sT3}, s{srow0}, 1\ns_add_u32 s{sT3}, s{sT3}, s{par_expr_sgpr}\ns_lshl_b32 s{sT4}, s{sC}, 6\ns_add_u32 s{sT3}, s{sT3}, s{sT4}\ns_lshl_b32 s{sT3}, s{sT3}, 10")
            e(f"s_lshl_b32 s{sT4}, s{par_expr_sgpr}, 5\ns_add_u32 s{sT4}, s{sT4}, s{srow0}\ns_lshl_b32 s{sT4}, s{sT4}, 10")
            e(f"s_and_b32 s{sT5}, s{srow0}, 15\ns_lshl_b32 s{sT5}, s{sT5}, 4")
            for t in range(nrows):
                e(f"v_xor_b32 v232, s{sT5}, v{vL16}\ns_mov_b32 m0, s{sT4}")
                e(f"buffer_load_dwordx4 v232, s[{SRD_X}:{SRD_X+3}], s{sT3} offen lds")
                if t < nrows - 1: e(f"s_add_u32 s{sT3}, s{sT3}, 2048\ns_add_u32 s{sT4}, s{sT4}, 1024\ns_add_u32 s{sT5}, s{sT5}, 16")
        def wq_rows(nit, srow_shift_expr):
            e(f"s_lshl_b32 s{sT3}, s{sT6}, 10\ns_lshl_b32 s{sT4}, s{sJ}, 7\ns_add_u32 s{sT3}, s{sT3}, s{sT4}\ns_lshl_b32 s{sT4}, s{sT6}, 7\ns_add_u32 s{sT4}, s{sT4}, {WQI}")
            for t in range(nit):
                e(f"s_mov_b32 m0, s{sT4}\ns_add_u32 s{sT4}, s{sT4}, 1024")
                e(f"buffer_load_dwordx4 v233, s[{SRD_Q}:{SRD_Q+3}], s{sT3} offen lds")
                if t < nit - 1: e(f"s_add_u32 s{sT3}, s{sT3}, 8192")
        e(f"v_lshrrev_b32 v233, 3, v{vL}\nv_lshlrev_b32 v233, 10, v233\nv_and_b32 v234, 7, v{vL}\nv_lshl_add_u32 v233, v234, 4, v233")
        e(f"s_mul_i32 s{sR}, s{sC}, 6\ns_add_u32 s{sR}, s{sR}, s{sJ}\ns_sub_u32 s{sR}, s{sR}, 2\ns_cmp_lt_u32 s{sJ}, 2\ns_cselect_b32 s{sR}, 255, s{sR}")
        def _pl():
            Lnp = e.newlabel("FNP"); Lgo = e.newlabel("FGO"); Lkvb = e.newlabel("FKVB")
            e(f"s_cmp_ge_u32 s{sR}, 97\ns_cbranch_scc1 {Lnp}")
            e(f"s_cmp_eq_u32 s{sR}, 16\ns_cbranch_scc1 {Lkvb}")
            e(f"s_mov_b32 s{SRD_P}, s88\ns_mov_b32 s{SRD_P+1}, s89\ns_mov_b32 s{SRD_P+2}, {512*1024}\ns_mov_b32 s{sA2}, 1024\ns_lshl_b32 s{sA3}, s{sR}, 6")
            e(f"s_cmp_lt_u32 s{sR}, 16\ns_cbranch_scc1 {Lgo}")
            e(f"s_mov_b32 s{SRD_P}, s94\ns_mov_b32 s{SRD_P+1}, s95\ns_sub_u32 s{sA3}, s{sR}, 17\ns_lshl_b32 s{sA3}, s{sA3}, 6")
            e(f"s_cmp_lt_u32 s{sR}, 33\ns_cbranch_scc1 {Lgo}")
            e(f"s_mov_b32 s{SRD_P}, s96\ns_mov_b32 s{SRD_P+1}, s97\ns_mov_b32 s{SRD_P+2}, {512*3072}\ns_mov_b32 s{sA2}, 3072\ns_sub_u32 s{sA3}, s{sR}, 33\ns_lshl_b32 s{sA3}, s{sA3}, 6")
            e(f"s_cmp_lt_u32 s{sR}, 81\ns_cbranch_scc1 {Lgo}")
            e(f"s_mov_b32 s{SRD_P}, s98\ns_mov_b32 s{SRD_P+1}, s99\ns_mov_b32 s{SRD_P+2}, {512*1024}\ns_mov_b32 s{sA2}, 1024\ns_sub_u32 s{sA3}, s{sR}, 81\ns_lshl_b32 s{sA3}, s{sA3}, 6")
            e.label(Lgo)
            e(f"s_mov_b32 s{SRD_P+3}, 0x20000")
            e(f"v_lshrrev_b32 v235, 2, v{vL}\nv_mul_lo_u32 v235, v235, s{sA2}\nv_and_b32 v236, 3, v{vL}\nv_lshl_add_u32 v235, v236, 4, v235")
            e(f"s_lshl_b32 s{sT0}, s{sW}, 7\ns_mul_i32 s{sT0}, s{sT0}, s{sA2}\ns_add_u32 s{sT0}, s{sT0}, s{sA3}\ns_lshl_b32 s{sT1}, s{sA2}, 4")
            for it in range(8):
                e(f"buffer_load_dwordx4 a[{4*it}:{4*it+3}], v235, s[{SRD_P}:{SRD_P+3}], s{sT0} offen")
                if it < 7: e(f"s_add_u32 s{sT0}, s{sT0}, s{sT1}")
            e(f"s_branch {Lnp}")
            e.label(Lkvb)
            e(f"v_lshrrev_b32 v235, 2, v{vL}\nv_lshlrev_b32 v235, 5, v235\nv_and_b32 v236, 1, v{vL}\nv_lshl_add_u32 v235, v236, 4, v235")
            e(f"s_lshl_b32 s{sT0}, s{sW}, 12")
            e(f"v_and_b32 v236, 2, v{vL}\nv_cmp_eq_u32 vcc, 0, v236")
            e(f"s_mov_b32 s{SRD_P}, s92\ns_mov_b32 s{SRD_P+1}, s93\ns_mov_b32 s{SRD_P+2}, {512*32}\ns_mov_b32 s{SRD_P+3}, 0x20000")
            e(f"s_mov_b64 s[{sM0}:{sM0+1}], vcc\ns_mov_b64 exec, s[{sM0}:{sM0+1}]")
            for it in range(8):
                e(f"buffer_load_dwordx4 a[{4*it}:{4*it+3}], v235, s[{SRD_P}:{SRD_P+3}], s{sT0} offen offset:{it*512}")
            e(f"s_mov_b64 exec, -1\ns_andn2_b64 exec, exec, s[{sM0}:{sM0+1}]")
            e(f"s_mov_b32 s{SRD_P}, s90\ns_mov_b32 s{SRD_P+1}, s91\ns_mov_b32 s{SRD_P+2}, {512*32}\ns_mov_b32 s{SRD_P+3}, 0x20000")
            for it in range(8):
                e(f"buffer_load_dwordx4 a[{4*it}:{4*it+3}], v235, s[{SRD_P}:{SRD_P+3}], s{sT0} offen offset:{it*512}")
            e("s_mov_b64 exec, -1")
            e.label(Lnp)
        self._prep_loads = _pl
        Lnk = e.newlabel("FNK"); Lcommon = e.newlabel("FCOM"); Lkvw = e.newlabel("FKVW")
        e(f"s_cmp_ge_u32 s{sJ}, 2\ns_cbranch_scc1 {Lnk}")
        for m, (ptr, base) in enumerate(((92, WVI), (90, WVI + 16384))):
            e(f"s_mov_b32 s{SRD_P}, s{ptr}\ns_mov_b32 s{SRD_P+1}, s{ptr+1}\ns_mov_b32 s{SRD_P+2}, 16384\ns_mov_b32 s{SRD_P+3}, 0x20000")
            e(f"s_lshl_b32 s{sT0}, s{sW}, 12\ns_add_u32 s{sT1}, s{sT0}, {base}\ns_mov_b32 m0, s{sT1}\ns_nop 0")
            for t in range(4):
                e(f"buffer_load_dwordx4 v{vL16}, s[{SRD_P}:{SRD_P+3}], s{sT0} offen offset:{t*1024} lds")
        e(f"s_lshl_b32 s{sT6}, s{sW}, 3")
        x_rows(sJ, 8, sT6)
        e(f"s_branch {Lcommon}")
        e.label(Lnk)
        self._prep_loads()
        e(f"s_lshr_b32 s{sT7}, s{sW}, 1\ns_and_b32 s{sT6}, s{sW}, 1\ns_lshl_b32 s{sT6}, s{sT6}, 4")
        x_rows(sT7, 16, sT6)
        e(f"s_lshl_b32 s{sT6}, s{sW}, 7")
        wq_rows(16, None)
        e.label(Lcommon)
        e(f"v_and_b32 v16, 31, v{vL}\nv_lshlrev_b32 v16, 11, v16\nv_lshrrev_b32 v17, 5, v{vL}\nv_lshl_add_u32 v16, v17, 3, v16")
        e(f"s_lshl_b32 s{sT0}, s{sC}, 6\ns_add_u32 s{sT0}, s{sT0}, s{sP}\ns_lshl_b32 s{sT0}, s{sT0}, 10\ns_lshl_b32 s{sT1}, s{sNB}, 6\ns_add_u32 s{sT0}, s{sT0}, s{sT1}")
        for q in range(4):
            e(f"buffer_load_dwordx2 v[{XR+2*q}:{XR+2*q+1}], v16, s[{SRD_X}:{SRD_X+3}], s{sT0} offen offset:{16*q}")
        self.stamp("f_issued")
        e(f"v_and_b32 v16, 31, v{vL}\nv_lshrrev_b32 v17, 5, v{vL}\nv_and_b32 v18, 15, v16\nv_lshlrev_b32 v19, 10, v16")
        e(f"s_lshl_b32 s{sT0}, s{sP}, 15\ns_lshl_b32 s{sT1}, s{sKH}, 9\ns_add_u32 s{sT0}, s{sT0}, s{sT1}\nv_add_u32 v19, s{sT0}, v19")
        for b in range(8):
            e(f"v_add_u32 v20, {2*b}, v17\nv_xor_b32 v20, v20, v18\nv_lshl_add_u32 v{240+b}, v20, 4, v19")
        e(f"v_and_b32 v18, 15, v{vL}\nv_lshrrev_b32 v20, 2, v18\nv_lshl_add_u32 v20, v17, 3, v20\nv_lshlrev_b32 v21, 7, v20")
        e(f"v_bfe_u32 v22, v{vL}, 4, 1\nv_lshl_add_u32 v21, v22, 5, v21\nv_and_b32 v23, 3, v18\nv_lshl_add_u32 v21, v23, 3, v21")
        e(f"s_lshl_b32 s{sT0}, s{sKH}, 15\ns_add_u32 s{sT0}, s{sT0}, {WQI}\ns_lshl_b32 s{sT1}, s{sKH}, 6\ns_add_u32 s{sT2}, s{sT0}, s{sT1}\nv_add_u32 v248, s{sT2}, v21")
        e(f"s_xor_b32 s{sT1}, s{sT1}, 64\ns_add_u32 s{sT2}, s{sT0}, s{sT1}\nv_add_u32 v249, s{sT2}, v21")
        e(f"v_lshlrev_b32 v21, 5, v20\nv_lshl_add_u32 v21, v22, 14, v21\nv_lshl_add_u32 v21, v23, 3, v21")
        e(f"s_lshl_b32 s{sT0}, s{sKH}, 13\ns_add_u32 s{sT0}, s{sT0}, {WVI}\nv_add_u32 v250, s{sT0}, v21")
        STXK, CSK, REDKV, VT = WVI, WVI + 256, WVI + 8192 + 512, WVI + 1024
        STX2, CSP, RED = WVI + 13312, WVI + 14336, WVI + 16384
        ONE = 229
        def xreads():
            for t in range(16):
                e(f"ds_read_b128 v[{16+4*t}:{19+4*t}], v{240+(t&7)} offset:{(t>>3)*256}")
            e(f"v_mov_b32 v{ONE}, 0x3f803f80\nv_mov_b32 v224, 0\nv_mov_b32 v225, 0\nv_mov_b32 v226, 0\nv_mov_b32 v236, 0\nv_mov_b32 v237, 0\nv_mov_b32 v238, 0")
            e("s_waitcnt lgkmcnt(0)")
        def stats_ops(t):
            acc = lambda k, d: ((224, 236), (225, 237))[k][d & 1]
            return [f"v_dot2_f32_bf16 v{acc(k,d)}, v{16+4*t+d}, v{ONE if k == 0 else 16+4*t+d}, v{acc(k,d)}" for d in range(4) for k in range(2)]
        def stats_write(sbase):
            e("v_add_f32 v224, v224, v236\nv_add_f32 v225, v225, v237")
            e("v_permlane32_swap_b32 v224, v225\nv_add_f32 v224, v224, v225")
            e(f"v_add_u32 v227, s{sbase}, v{vL4}\nds_write_b32 v227, v224")
        def stats_read(sbase, second):
            e(f"v_and_b32 v227, 31, v{vL}\nv_lshlrev_b32 v227, 2, v227\nv_add_u32 v227, s{sbase}, v227")
            e(f"ds_read_b32 v224, v227\nds_read_b32 v225, v227 offset:128\nds_read_b32 v226, v227 offset:{second}\nds_read_b32 v228, v227 offset:{second+128}")
            e("s_waitcnt lgkmcnt(0)")
            e(f"v_add_f32 v224, v224, v226\nv_add_f32 v225, v225, v228")
            e(f"v_mul_f32 v178, {fbits(1/512)}, v224\nv_mul_f32 v225, {fbits(1/512)}, v225\nv_fma_f32 v225, -v178, v178, v225\nv_add_f32 v225, {fbits(1e-5)}, v225\nv_rsq_f32 v179, v225")
        def cs_read(dst, base, second):
            e(f"v_lshrrev_b32 v228, 5, v{vL}\nv_lshlrev_b32 v228, 4, v228\nv_add_u32 v228, {base}, v228")
            for q in range(4):
                e(f"ds_read_b128 v[{dst+4*q}:{dst+3+4*q}], v228 offset:{32*q}\nds_read_b128 v[{112+4*q}:{115+4*q}], v228 offset:{second+32*q}")
            e("s_waitcnt lgkmcnt(0)")
            for r in range(16): e(f"v_add_f32 v{dst+r}, v{dst+r}, v{112+r}")
        def qpass(with_stats):
            Lp1 = e.newlabel("FQP1"); Lpd = e.newlabel("FQPD")
            e("v_mov_b32 v226, 0\nv_mov_b32 v238, 0")
            e(f"s_cmp_eq_u32 s{sP}, 1\ns_cbranch_scc1 {Lp1}")
            for var in range(2):
                if var == 1: e.label(Lp1)
                def rd(t):
                    r = 112 + (t % 4) * 8
                    e(f"ds_read_b64_tr_b16 v[{r}:{r+1}], v248 offset:{t*2048}\nds_read_b64_tr_b16 v[{r+2}:{r+3}], v248 offset:{t*2048+512}")
                    e(f"ds_read_b64_tr_b16 v[{r+4}:{r+5}], v249 offset:{t*2048}\nds_read_b64_tr_b16 v[{r+6}:{r+7}], v249 offset:{t*2048+512}")
                for t in range(3): rd(t)
                for t in range(16):
                    if t + 3 < 16: rd(t + 3)
                    e(f"s_waitcnt lgkmcnt({4*min(3, 15-t)})")
                    r = 112 + (t % 4) * 8
                    e(f"v_mfma_f32_32x32x16_bf16 v[80:95], v[{r}:{r+3}], v[{16+4*t}:{19+4*t}], {'0' if t == 0 else 'v[80:95]'}")
                    e(f"v_mfma_f32_32x32x16_bf16 v[96:111], v[{r+4}:{r+7}], v[{16+4*t}:{19+4*t}], {'0' if t == 0 else 'v[96:111]'}")
                    so = stats_ops(t) if with_stats else [None] * 8
                    for d in range(4):
                        if so[2*d]: e(so[2*d])
                        e(f"v_dot2_f32_bf16 v{226 if d % 2 == 0 else 238}, v{r+4*var+d}, v{ONE}, v{226 if d % 2 == 0 else 238}")
                        if so[2*d+1]: e(so[2*d+1])
                if var == 0: e(f"s_branch {Lpd}")
            e.label(Lpd)
            e(f"s_xor_b32 s{sT1}, s{sKH}, s{sP}\ns_lshl_b32 s{sT1}, s{sT1}, 8\ns_lshl_b32 s{sT2}, s{sKH}, 7\ns_add_u32 s{sT1}, s{sT1}, s{sT2}\ns_add_u32 s{sT1}, s{sT1}, {CSP}")
            e("v_add_f32 v226, v226, v238\nv_mov_b32 v228, v226\nv_permlane32_swap_b32 v226, v228\nv_add_f32 v226, v226, v228")
            e(f"v_add_u32 v228, s{sT1}, v{vL4}\ns_mov_b32 exec_hi, 0\nds_write_b32 v228, v226\ns_mov_b64 exec, -1")
        def prep_process():
            Lcs = e.newlabel("FPCS")
            PL = WVI
            e("s_waitcnt vmcnt(36)")
            e(f"s_lshl_b32 s{sT0}, s{sW}, 13\ns_add_u32 s{sT0}, s{sT0}, {PL}\nv_add_u32 v17, s{sT0}, v{vL16}")
            for it in range(8):
                e(f"ds_write_b128 v17, a[{4*it}:{4*it+3}] offset:{it*1024}")
            e(f"v_and_b32 v18, 15, v{vL}\nv_lshrrev_b32 v19, 2, v18\nv_lshrrev_b32 v20, 5, v{vL}\nv_lshl_add_u32 v19, v20, 2, v19\nv_lshlrev_b32 v19, 6, v19")
            e(f"v_and_b32 v20, 3, v18\nv_lshl_add_u32 v19, v20, 3, v19\nv_bfe_u32 v20, v{vL}, 4, 1\nv_lshl_add_u32 v19, v20, 5, v19\nv_add_u32 v19, s{sT0}, v19")
            e("s_waitcnt lgkmcnt(0)")
            for t in range(8):
                e(f"ds_read_b64_tr_b16 v[{32+4*t}:{33+4*t}], v19 offset:{t*1024}")
                e(f"ds_read_b64_tr_b16 v[{34+4*t}:{35+4*t}], v19 offset:{t*1024+512}")
            e(f"s_lshl_b32 s{sT2}, s{sR}, 15\ns_lshl_b32 s{sT1}, s{sW}, 13\ns_add_u32 s{sT2}, s{sT2}, s{sT1}\ns_add_u32 s{sT2}, s{sT2}, {WF}\ns_add_u32 s{sT1}, s{sT2}, 4096")
            e("v_mov_b32 v16, 0x3f803f80\nv_mov_b32 v17, 0")
            e("s_waitcnt lgkmcnt(0)")
            for t in range(8):
                e(f"buffer_store_dwordx4 v[{32+4*t}:{35+4*t}], v{vL16}, s[{SRD_WS}:{SRD_WS+3}], s{sT2 if t < 4 else sT1} offen offset:{(t%4)*1024} sc1")
            e("v_mov_b32 v21, 0\nv_mov_b32 v22, 0\nv_mov_b32 v23, 0")
            for i in range(32):
                ac = (17, 21, 22, 23)[i % 4]
                e(f"v_dot2_f32_bf16 v{ac}, v{32+i}, v16, v{ac}")
            e("v_add_f32 v21, v21, v22\nv_add_f32 v17, v17, v23\nv_add_f32 v17, v17, v21")
            e("v_mov_b32 v18, v17\nv_permlane32_swap_b32 v17, v18\nv_add_f32 v17, v17, v18")
            e(f"v_add_u32 v18, s{sT0}, v{vL4}\nds_write_b32 v18, v17\ns_waitcnt lgkmcnt(0)\ns_barrier")
            e(f"s_cmp_lg_u32 s{sW}, 0\ns_cbranch_scc1 {Lcs}")
            e(f"v_add_u32 v18, {PL}, v{vL4}")
            e(f"ds_read_b32 v20, v18\nds_read_b32 v21, v18 offset:8192\nds_read_b32 v22, v18 offset:16384\nds_read_b32 v23, v18 offset:24576\ns_waitcnt lgkmcnt(0)")
            e("v_add_f32 v20, v20, v21\nv_add_f32 v22, v22, v23\nv_add_f32 v20, v20, v22")
            e(f"s_lshl_b32 s{sT0}, s{sR}, 7\ns_add_u32 s{sT0}, s{sT0}, {CS}\ns_mov_b32 exec_hi, 0")
            e(f"buffer_store_dword v20, v{vL4}, s[{SRD_WS}:{SRD_WS+3}], s{sT0} offen sc1\ns_mov_b64 exec, -1")
            e.label(Lcs)
        Lkvp = e.newlabel("FKVP"); Lnkw = e.newlabel("FNKW"); Lqs = e.newlabel("FQS"); Lq2 = e.newlabel("FQ2"); Lred = e.newlabel("FRED"); Lep = e.newlabel("FEP")
        e(f"s_cmp_ge_u32 s{sJ}, 2\ns_cbranch_scc1 {Lnkw}")
        e(f"s_cmp_eq_u32 s{sP}, s{sJ}\ns_cbranch_scc1 {Lkvp}")
        e("s_waitcnt vmcnt(4)")
        self.tag_from(231)
        e("s_barrier")
        e(f"s_xor_b32 s{sT7}, s{sJ}, 1\ns_lshl_b32 s{sT6}, s{sKH}, 4")
        x_rows(sT7, 16, sT6)
        e(f"s_lshl_b32 s{sT6}, s{sKH}, 8")
        wq_rows(12, None)
        e("s_barrier")
        e(f"s_lshl_b32 s{sT6}, s{sKH}, 8\ns_add_u32 s{sT6}, s{sT6}, 96")
        wq_rows(20, None)
        e("s_waitcnt vmcnt(0)")
        e("s_barrier")
        e(f"s_branch {Lqs}")
        e.label(Lkvp)
        e("s_waitcnt vmcnt(4)")
        self.tag_from(231)
        e("s_barrier")
        self.stamp("f_b0")
        fl = getattr(self, "light", None) == "fkv"
        if fl: self.lstamp(0)
        xreads()
        if fl: self.lstamp(1)
        def kvrd(t): e(f"ds_read_b64_tr_b16 v[{160+4*t}:{161+4*t}], v250 offset:{t*512}\nds_read_b64_tr_b16 v[{162+4*t}:{163+4*t}], v250 offset:{t*512+128}")
        for t in range(5): kvrd(t)
        for t in range(16):
            if t + 5 < 16: kvrd(t + 5)
            e(f"s_waitcnt lgkmcnt({2*min(5, 15-t)})")
            e(f"v_mfma_f32_32x32x16_bf16 v[144:159], v[{160+4*t}:{163+4*t}], v[{16+4*t}:{19+4*t}], {'0' if t == 0 else 'v[144:159]'}")
            so = stats_ops(t)
            for d in range(4):
                e(so[2*d]); e(f"v_dot2_f32_bf16 v{226 if d % 2 == 0 else 238}, v{160+4*t+d}, v{ONE}, v{226 if d % 2 == 0 else 238}"); e(so[2*d+1])
        if fl: self.lstamp(2)
        e(f"s_lshl_b32 s{sT0}, s{sKH}, 13\ns_add_u32 s{sT0}, s{sT0}, {STXK}")
        stats_write(sT0)
        e(f"s_add_u32 s{sT1}, s{sT0}, 256")
        e("v_add_f32 v226, v226, v238\nv_mov_b32 v228, v226\nv_permlane32_swap_b32 v226, v228\nv_add_f32 v226, v226, v228")
        e(f"v_add_u32 v228, s{sT1}, v{vL4}\ns_mov_b32 exec_hi, 0\nds_write_b32 v228, v226\ns_mov_b64 exec, -1")
        Lx = e.newlabel("FKW")
        e(f"s_cmp_eq_u32 s{sKH}, 0\ns_cbranch_scc1 {Lx}")
        e(f"v_add_u32 v{vT0}, {REDKV}, v{vL16}")
        for q in range(4):
            e(f"ds_write_b128 v{vT0}, v[{144+4*q}:{147+4*q}] offset:{q*1024}")
        e.label(Lx)
        e("s_waitcnt lgkmcnt(0)")
        if fl: self.lstamp(3)
        e("s_barrier")
        if fl: self.lstamp(4)
        e(f"s_mov_b32 s{sT0}, {STXK}")
        stats_read(sT0, 8192)
        if fl: self.lstamp(5)
        Lk1 = e.newlabel("FK1")
        e(f"s_cmp_lg_u32 s{sKH}, 0\ns_cbranch_scc1 {Lk1}")
        self.kv_epilogue(REDKV, VT, 196, 178, 179, pre=lambda: cs_read(196, CSK, 8192), before_drain=(lambda: self.lstamp(6)) if fl else None)
        if fl:
            self.lstamp(7); self.lflush("fkv")
        self.stamp("f_kv")
        e("s_barrier")
        e(f"s_branch {Lq2}")
        e.label(Lk1)
        e("s_waitcnt vmcnt(0)\ns_barrier")
        e.label(Lq2)
        qpass(False)
        e(f"s_branch {Lred}")
        e.label(Lnkw)
        Lw0 = e.newlabel("FW0"); Lw1 = e.newlabel("FW1")
        e(f"s_cmp_ge_u32 s{sR}, 97\ns_cbranch_scc1 {Lw0}")
        prep_process()
        Lw2 = e.newlabel("FW2")
        e(f"s_cmp_eq_u32 s{sW}, 0\ns_cbranch_scc1 {Lw2}")
        e(f"s_waitcnt vmcnt(8)\ns_branch {Lw1}")
        e.label(Lw2)
        e(f"s_waitcnt vmcnt(9)\ns_branch {Lw1}")
        e.label(Lw0)
        e("s_waitcnt vmcnt(0)")
        e.label(Lw1)
        self.tag_from(231)
        e("s_barrier")
        e.label(Lqs)
        self.stamp("f_landed")
        xreads()
        qpass(True)
        e(f"s_lshl_b32 s{sT0}, s{sW}, 8\ns_add_u32 s{sT0}, s{sT0}, {STX2}")
        stats_write(sT0)
        e.label(Lred)
        self.reduce_pair(red=RED)
        Lst = e.newlabel("FST")
        e(f"s_cmp_eq_u32 s{sP}, s{sJ}\ns_cbranch_scc1 {Lst}")
        e(f"s_lshl_b32 s{sT0}, s{sP}, 8\ns_add_u32 s{sT0}, s{sT0}, {STX2}")
        stats_read(sT0, 512)
        e.label(Lst)
        e(f"s_lshl_b32 s{sT1}, s{sKH}, 8\ns_add_u32 s{sT1}, s{sT1}, {CSP}")
        e(f"v_lshrrev_b32 v228, 5, v{vL}\nv_lshlrev_b32 v228, 4, v228\nv_add_u32 v228, s{sT1}, v228")
        for q in range(4):
            e(f"ds_read_b128 v[{196+4*q}:{199+4*q}], v228 offset:{32*q}\nds_read_b128 v[{112+4*q}:{115+4*q}], v228 offset:{128+32*q}")
        e("s_waitcnt lgkmcnt(0)")
        for r in range(16): e(f"v_add_f32 v{196+r}, v{196+r}, v{112+r}")
        self.q_epilogue(196, 178, 179)
        self.stamp("f_q")
        e(f"s_mov_b32 s{sRANK}, s{sR}")
        e.reset_counters()

    def half_setup(self):
        e = self.e
        e(f"s_lshl_b32 s{sT0}, s{sHALF}, 22")
        e(f"s_add_u32 s{sXIN}, s{sT0}, {X0}\ns_add_u32 s{sXMID}, s{sXIN}, 0x200000\ns_add_u32 s{sXOUT}, s{sXIN}, 0x400000")
        e(f"s_lshl_b32 s{sT0}, s{sHALF}, 19")
        e(f"s_add_u32 s{sSTIN}, s{sT0}, {ST0}\ns_add_u32 s{sSTMID}, s{sSTIN}, 0x40000\ns_add_u32 s{sSTOUT}, s{sSTIN}, 0x80000")
        e(f"s_lshl_b32 s{sT0}, s{sHALF}, 21")
        e(f"s_add_u32 s{sOA}, s{sT0}, {OA}\ns_add_u32 s{sOB}, s{sT0}, {OB}")
        e(f"s_lshl_b32 s{sT0}, s{sHALF}, 20\ns_add_u32 s{sHX}, s{sT0}, {HX}")
        e(f"s_lshl_b32 s{sT0}, s{sHALF}, 18\ns_add_u32 s{sKF}, s{sT0}, {KF}")
        e(f"s_lshl_b32 s{sT0}, s{sHALF}, 14\ns_add_u32 s{sFLC}, s{sT0}, {FL_C}")
        e(f"s_lshl_b32 s{sT0}, s{sHALF}, 18\ns_add_u32 s{sSTH}, s{sT0}, {STH}")


    def w_pair_bases(self, wb, sK, sS):
        e = self.e
        e(f"s_lshl_b32 s{sT2}, s{sKH}, 14")
        e(f"s_add_u32 s{sK}, s{sNB}, {wb}\ns_lshl_b32 s{sK}, s{sK}, 15\ns_add_u32 s{sK}, s{sK}, s{sT2}\ns_add_u32 s{sK}, s{sK}, {WF}")
        e(f"s_xor_b32 s{sS}, s{sNB}, 1\ns_add_u32 s{sS}, s{sS}, {wb}\ns_lshl_b32 s{sS}, s{sS}, 15\ns_add_u32 s{sS}, s{sS}, s{sT2}\ns_add_u32 s{sS}, s{sS}, {WF}")
    def alias_setup(self):
        if getattr(self, "noalias", False): return
        e = self.e
        L = e.newlabel("ALIAS")
        e(f"s_cmp_eq_u32 s{sMODE}, 0\ns_cbranch_scc1 {L}")
        e(f"s_mov_b32 s{sOA}, {OA}\ns_mov_b32 s{sOB}, {OA}")
        e(f"s_mov_b32 s{sXIN}, {X0 + 0x200000}\ns_mov_b32 s{sXMID}, {X0 + 0x200000}\ns_mov_b32 s{sXOUT}, {X0 + 0x200000}")
        e(f"s_mov_b32 s{sSTIN}, {ST0 + 0x40000}\ns_mov_b32 s{sSTMID}, {ST0 + 0x40000}\ns_mov_b32 s{sSTOUT}, {ST0 + 0x40000}")
        e.label(L)

    def load_w_pair(self, wb, dk, ds, acc=True):
        self.w_pair_bases(wb, sT0, sT1)
        self.load_frags(dk, sT0, 16, acc=acc)
        return self.load_frags(ds, sT1, 16, acc=acc)

    def load_act_half(self, sbuf, nfirst=16):
        e = self.e
        e(f"s_lshl_b32 s{sACT}, s{sRB}, 15\ns_lshl_b32 s{sT1}, s{sKH}, 14\ns_add_u32 s{sACT}, s{sACT}, s{sT1}\ns_add_u32 s{sACT}, s{sACT}, s{sbuf}")
        self._act = {}
        for t in range(nfirst): self.act_issue(t)
        return self._act
    def act_issue(self, t):
        if t >= 16 or t in self._act: return
        e = self.e
        if t % 4 == 0 and t: e(f"s_add_u32 s{sACT}, s{sACT}, 4096")
        self._act[t] = self.ws_load(16 + 4 * t, f"s{sACT}", (t % 4) * 1024)

    RED = 131072; REDKV = 147456; VT = 151552
    WL0 = 0; WL1 = 65536
    WKVL = 0
    def reduce_pair(self, red=None, extra_write=None):
        e = self.e
        red = self.RED if red is None else red
        e(f"s_lshl_b32 s{sT0}, s{sW}, 12\ns_add_u32 s{sT0}, s{sT0}, {red}\nv_add_u32 v{vT0}, s{sT0}, v{vL16}")
        e(f"s_xor_b32 s{sT0}, s{sT0}, 8192\nv_add_u32 v{vT1}, s{sT0}, v{vL16}")
        for q in range(4):
            e(f"ds_write_b128 v{vT0}, v[{96+4*q}:{99+4*q}] offset:{q*1024}")
        if extra_write: extra_write()
        e("s_waitcnt lgkmcnt(0)\ns_barrier")
        for q in range(4):
            e(f"ds_read_b128 v[{96+4*q}:{99+4*q}], v{vT1} offset:{q*1024}")
        for q in range(4):
            e(f"s_waitcnt lgkmcnt({3-q})")
            for r in range(4 * q, 4 * q + 4):
                e(f"v_add_f32 v{80+r}, v{80+r}, v{96+r}")
        e.lg = []

    def load_cs(self, dst, sidx_expr_reg, vaddr):
        tok = None
        for q in range(4):
            tok = self.ws_load(dst + 4 * q, f"s{sidx_expr_reg}", 32 * q, voff=vaddr)
        return tok

    def dma(self, soff, imm):
        return self.e.vmem(f"buffer_load_dwordx4 v{vL16}, s[{SRD_WS}:{SRD_WS+3}], {soff} offen offset:{imm} sc1 lds")
    def wpair_dma_list(self, wb, ldsbase, sM, sS):
        setup = [f"s_lshl_b32 s{sT0}, s{sW}, 14", f"s_add_u32 s{sM}, s{sT0}, {ldsbase}",
                 f"s_lshl_b32 s{sS}, s{sJ}, 16", f"s_add_u32 s{sS}, s{sS}, s{sT0}", f"s_add_u32 s{sS}, s{sS}, {WF + wb*32768}"]
        items = []
        for g in range(4):
            for t in range(4):
                pre = [f"s_mov_b32 m0, s{sM}", f"s_add_u32 s{sM}, s{sM}, 4096"] if t == 0 else []
                post = [f"s_add_u32 s{sS}, s{sS}, 4096"] if t == 3 else []
                items.append((pre, f"buffer_load_dwordx4 v{vL16}, s[{SRD_WS}:{SRD_WS+3}], s{sS} offen offset:{t*1024} sc1 lds", post))
        return setup, items
    def emit_item(self, it):
        pre, ld, post = it
        for x in pre: self.e(x)
        t = self.e.vmem(ld)
        for x in post: self.e(x)
        return t
    def wpair_dma(self, wb, ldsbase):
        setup, items = self.wpair_dma_list(wb, ldsbase, sA4, sA5)
        for x in setup: self.e(x)
        t = None
        for it in items: t = self.emit_item(it)
        return t

    WR = 112
    def pair_addrs(self, ldsbase):
        e = self.e
        e(f"s_lshl_b32 s{sT2}, s{sKH}, 14\ns_lshl_b32 s{sT3}, s{sKH}, 15\ns_add_u32 s{sT3}, s{sT3}, s{sT2}\ns_add_u32 s{sT3}, s{sT3}, {ldsbase}\nv_add_u32 v{vWK}, s{sT3}, v{vL16}")
        e(f"s_xor_b32 s{sT3}, s{sKH}, 1\ns_lshl_b32 s{sT3}, s{sT3}, 15\ns_add_u32 s{sT3}, s{sT3}, s{sT2}\ns_add_u32 s{sT3}, s{sT3}, {ldsbase}\nv_add_u32 v{vWS}, s{sT3}, v{vL16}")
    def pair_prime(self):
        e = self.e; self._wt = {}
        for t in range(3): self._pair_read(t)
    def _pair_read(self, t):
        e = self.e; r = self.WR + (t % 4) * 8
        e.lds(f"ds_read_b128 v[{r}:{r+3}], v{vWK} offset:{t*1024}")
        self._wt[t] = e.lds(f"ds_read_b128 v[{r+4}:{r+7}], v{vWS} offset:{t*1024}")
    def pair_mfma(self, toks, inter=None, AH=10):
        e = self.e
        for t in range(16):
            if t + 3 < 16: self._pair_read(t + 3)
            if toks is not None:
                self.act_issue(t + AH)
                e.wait_vm(toks[t])
            e.wait_lg(self._wt[t])
            r = self.WR + (t % 4) * 8
            e(f"v_mfma_f32_32x32x16_bf16 v[80:95], v[{r}:{r+3}], v[{16+4*t}:{19+4*t}], {'0' if t == 0 else 'v[80:95]'}")
            e(f"v_mfma_f32_32x32x16_bf16 v[96:111], v[{r+4}:{r+7}], v[{16+4*t}:{19+4*t}], {'0' if t == 0 else 'v[96:111]'}")
            if inter: inter(t)

    QL = 0; PS = 8192; SLOT = 2304; FAIL = 63488
    CSQ, CSKV = 180, 196
    def g4_prefetch_cs(self):
        e = self.e
        e(f"v_lshrrev_b32 v212, 5, v{vL}\nv_lshlrev_b32 v212, 4, v212")
        e(f"s_add_u32 s{sT0}, s{sNB}, {WB_Q}\ns_lshl_b32 s{sT0}, s{sT0}, 7\ns_add_u32 s{sT0}, s{sT0}, {CS}")
        self.load_cs(self.CSQ, sT0, 212)
        e(f"s_mov_b32 s{sT0}, {CS + WB_KV*128}")
        return self.load_cs(self.CSKV, sT0, 212)
    def g4_prefetch_kv(self):
        e = self.e
        L = e.newlabel("PFKV")
        e(f"s_cmp_eq_u32 s{sP}, s{sJ}\ns_cbranch_scc0 {L}")
        e(f"s_lshl_b32 s{sT2}, s{sKH}, 14\ns_add_u32 s{sT0}, s{sT2}, {WF + WB_KV*32768}")
        for t in range(16):
            if t % 4 == 0 and t: e(f"s_add_u32 s{sT0}, s{sT0}, 4096")
            e(f"buffer_load_dwordx4 a[{4*t}:{4*t+3}], v{vL16}, s[{SRD_WS}:{SRD_WS+3}], s{sT0} offen offset:{(t%4)*1024} sc1")
        e.label(L)

    def kv_epilogue(self, redkv, vt, CSKV, vmean, vrstd, pre=None, before_drain=None):
        e = self.e
        e(f"v_add_u32 v{vT0}, {redkv}, v{vL16}")
        for q in range(4):
            e(f"ds_read_b128 v[{96+4*q}:{99+4*q}], v{vT0} offset:{q*1024}")
        e(f"v_and_b32 v216, 31, v{vL}\nv_lshlrev_b32 v216, 5, v216\nv_lshrrev_b32 v217, 5, v{vL}\nv_lshl_add_u32 v216, v217, 3, v216\nv_add_u32 v216, {vt}, v216")
        e(f"v_and_b32 v218, 15, v{vL}\nv_bfe_u32 v219, v{vL}, 4, 1\nv_lshlrev_b32 v219, 4, v219\nv_lshl_add_u32 v219, v217, 2, v219\nv_lshrrev_b32 v220, 2, v218\nv_add_u32 v219, v219, v220\nv_lshlrev_b32 v219, 5, v219")
        e(f"v_and_b32 v220, 3, v218\nv_lshl_add_u32 v219, v220, 3, v219\nv_add_u32 v219, {vt}, v219")
        e(f"v_bfe_u32 v220, v{vL}, 4, 1\nv_mul_u32_u24 v220, 544, v220\nv_mul_u32_u24 v222, 272, v217\nv_add_u32 v220, v220, v222\nv_lshl_add_u32 v220, v218, 4, v220")
        e(f"s_lshl_b32 s{sT0}, s{sRB}, 10\ns_add_u32 s{sT0}, s{sT0}, s{sKF}")
        e(f"s_mul_i32 s{sT1}, s{sRB}, {VT_STRIDE}\ns_add_u32 s{sT1}, s{sT1}, s{sKF}\ns_add_u32 s{sT1}, s{sT1}, 0x10000")
        e(f"v_mul_u32_u24 v222, 272, v{vL}\nv_add_u32 v222, 256, v222")
        for r in range(4): e(f"v_mov_b32 v{224+r}, 0x3f803f80")
        e(f"s_mov_b64 exec, 0xf\nbuffer_store_dwordx4 v[224:227], v222, s[{SRD_WS}:{SRD_WS+3}], s{sT1} offen sc1\ns_mov_b64 exec, -1")
        e("s_waitcnt lgkmcnt(0)")
        if pre: pre()
        e(f"v_mul_f32 v214, v{vmean}, v{vrstd}\nv_sub_f32 v214, 0, v214")
        for r in range(16):
            e(f"v_add_f32 v{144+r}, v{144+r}, v{96+r}")
            e(f"v_mul_f32 v{96+r}, v214, v{CSKV+r}\nv_fma_f32 v{144+r}, v{144+r}, v{vrstd}, v{96+r}")
        for d in range(8):
            e(f"v_cvt_pk_bf16_f32 v{96+d}, v{144+2*d}, v{145+2*d}")
        e("ds_write_b64 v216, v[96:97]\nds_write_b64 v216, v[98:99] offset:16")
        e(f"buffer_store_dwordx4 v[100:103], v{vL16}, s[{SRD_WS}:{SRD_WS+3}], s{sT0} offen sc1")
        e("s_waitcnt lgkmcnt(0)")
        e("ds_read_b64_tr_b16 v[104:105], v219\nds_read_b64_tr_b16 v[106:107], v219 offset:256\ns_waitcnt lgkmcnt(0)")
        e(f"buffer_store_dwordx4 v[104:107], v220, s[{SRD_WS}:{SRD_WS+3}], s{sT1} offen sc1")
        e(f"s_lshl_b32 s{sT0}, s{sHALF}, 11\ns_lshl_b32 s{sT1}, s{sRB}, 2\ns_add_u32 s{sT0}, s{sT0}, s{sT1}\ns_add_u32 s{sT0}, s{sT0}, {FL_GK}")
        e(f"v_lshlrev_b32 v220, 8, v{vL}\nv_mov_b32 v221, s{sTAG}")
        if before_drain: before_drain()
        e("s_waitcnt vmcnt(0)")
        e(f"s_mov_b64 exec, 0xff\nbuffer_store_dword v221, v220, s[{SRD_WS}:{SRD_WS+3}], s{sT0} offen sc1\ns_mov_b64 exec, -1")

    def q_epilogue(self, CSQ, vmean, vrstd):
        e = self.e
        e(f"v_mul_f32 v214, {fbits(QSCALE)}, v{vrstd}")
        e(f"v_mul_f32 v215, v{vmean}, v214\nv_sub_f32 v215, 0, v215")
        e(f"s_lshl_b32 s{sT0}, s{sKH}, 2\ns_add_u32 s{sT0}, s{sT0}, s{sP}\ns_lshl_b32 s{sT0}, s{sT0}, 10\nv_add_u32 v{vT0}, s{sT0}, v{vL16}")
        for r in range(16):
            e(f"v_mul_f32 v{96+r}, v215, v{CSQ+r}\nv_fma_f32 v{80+r}, v{80+r}, v214, v{96+r}")
        for d in range(8):
            e(f"v_cvt_pk_bf16_f32 v{96+d}, v{80+2*d}, v{81+2*d}")
        e(f"ds_write_b128 v{vT0}, v[96:99] offset:{self.QL}\nds_write_b128 v{vT0}, v[100:103] offset:{self.QL+2048}")

    def g4(self):
        e = self.e
        CSQ, CSKV = self.CSQ, self.CSKV
        Lq = e.newlabel("G4Q"); Lb1 = e.newlabel("G4B1"); Lq2 = e.newlabel("G4Q2"); Lred = e.newlabel("G4RED")
        toks = self.load_act_half(sXIN, 10)
        e(f"v_and_b32 v176, 31, v{vL}\nv_lshlrev_b32 v176, 3, v176\nv_lshrrev_b32 v177, 5, v{vL}\nv_lshl_add_u32 v176, v177, 11, v176")
        e(f"s_lshl_b32 s90, s{sRB}, 12\ns_add_u32 s90, s90, s{sSTIN}")
        def stat_inter(t):
            if 6 <= t <= 9:
                for q in (2 * (t - 6), 2 * (t - 6) + 1):
                    self.ws_load(160 + 2 * q, "s90", q * 256, voff=176, n=2)
        self.pair_addrs(self.WL1)
        saved = list(e.vm); saved_act = dict(self._act)
        e(f"s_cmp_eq_u32 s{sP}, s{sJ}\ns_cbranch_scc0 {Lq}")
        for t in range(16):
            self.act_issue(t + 10)
            e.wait_vm(toks[t])
            e(f"v_mfma_f32_32x32x16_bf16 v[144:159], a[{4*t}:{4*t+3}], v[{16+4*t}:{19+4*t}], {'0' if t == 0 else 'v[144:159]'}")
            stat_inter(t)
        e(f"s_cmp_eq_u32 s{sKH}, 0\ns_cbranch_scc1 {Lb1}")
        e(f"v_add_u32 v{vT0}, {self.REDKV}, v{vL16}")
        for q in range(4):
            e(f"ds_write_b128 v{vT0}, v[{144+4*q}:{147+4*q}] offset:{q*1024}")
        e("s_waitcnt lgkmcnt(0)")
        e(f"s_branch {Lb1}")
        e.label(Lq)
        e.vm = list(saved); e.lg = []
        self._act = saved_act
        e(f"s_lshl_b32 s{sACT}, s{sRB}, 15\ns_lshl_b32 s{sT1}, s{sKH}, 14\ns_add_u32 s{sACT}, s{sACT}, s{sT1}\ns_add_u32 s{sACT}, s{sACT}, s{sXIN}\ns_add_u32 s{sACT}, s{sACT}, 8192")
        self.pair_prime()
        self.pair_mfma(self._act, stat_inter)
        e.label(Lb1)
        e("s_waitcnt vmcnt(0)"); e.reset_counters()
        self.stats_finish(160, 178, 179)
        e(f"s_cmp_ge_u32 s{sJ}, 2\ns_cbranch_scc1 {Lred}")
        e("s_barrier")
        e(f"s_cmp_eq_u32 s{sP}, s{sJ}\ns_cbranch_scc0 {Lred}")
        e(f"s_cmp_lg_u32 s{sKH}, 0\ns_cbranch_scc1 {Lq2}")
        self.kv_epilogue(self.REDKV, self.VT, CSKV, 178, 179)
        e.label(Lq2)
        e.lg = []
        self.pair_prime()
        self.pair_mfma(None)
        e.label(Lred)
        e.lg = []
        self.reduce_pair()
        self.q_epilogue(CSQ, 178, 179)
        e.reset_counters()

    def att_unit(self, u, Sc, Sn, Pc, Pn, Qnext, Oc, Oprev, extra, first, cin="0"):
        e = self.e
        tn = (u + 1) % 16; tp = (u - 1) % 16
        for x in extra.get(-1, []): e(x)
        for i in range(16):
            if i == 2 and Qnext is not None: e(f"v_mfma_f32_32x32x16_bf16 {v(Sn,16)}, {a(4*tn,4)}, {v(Qnext,4)}, {cin}")
            if i == 7: e(f"v_mfma_f32_32x32x16_bf16 {v(Oprev,16)}, {a(64+8*tp+4,4)}, {v(Pn+4,4)}, {v(Oprev,16)}")
            if i == 12: e(f"v_mfma_f32_32x32x16_bf16 {v(Oc,16)}, {a(64+8*u,4)}, {v(Pc,4)}, {'0' if first else v(Oc,16)}")
            e(f"v_exp_f32 v{Sc+i}, v{Sc+i}")
            if i == 0: e(f"v_cvt_pk_bf16_f32 v{Pn+7}, v{Sn+14}, v{Sn+15}")
            if i >= 3 and (i - 3) % 2 == 0:
                k = (i - 3) // 2
                e(f"v_cvt_pk_bf16_f32 v{Pc+k}, v{Sc+2*k}, v{Sc+2*k+1}")
            for x in extra.get(i, []): e(x)

    def attention(self):
        e = self.e
        QA, QB = 16, 20
        S = [32, 48]; P = [64, 72]; O = [80, 96]
        PS, SL, QL, WS1 = self.PS, self.SLOT, self.QL, self.WL1
        sM0V, sSOFF = sA4, sA5
        sK, sV = 88, 89
        self.g2_w_bases()
        e(f"v_mov_b32 v27, 0\nds_write_b32 v27, v27 offset:{self.FAIL}\ns_mov_b32 s{sFB}, 0")
        for r in range(8): e(f"v_mov_b32 v{P[1]+r}, 0")
        for r in range(2): e(f"v_mov_b32 v{S[1]+14+r}, 0")
        e(f"s_mul_i32 s{sT0}, s{sW}, {6*SL}\ns_add_u32 s{sT0}, s{sT0}, {PS}\nv_add_u32 v24, s{sT0}, v{vL16}\ns_add_u32 s{sT0}, s{sT0}, 2048\nv_add_u32 v25, s{sT0}, v{vL4}")
        setup, dmaitems = self.wpair_dma_list(WB_OA, WS1, sM0V, sSOFF)
        for x in setup: e(x)
        e(f"v_and_b32 v27, 31, v{vL}\nv_min_u32 v26, 16, v27\nv_lshlrev_b32 v26, 4, v26\nv_lshrrev_b32 v29, 5, v{vL}\nv_mul_u32_u24 v29, 272, v29\nv_add_u32 v26, v26, v29")
        e(f"v_and_b32 v29, 27, v27\nv_cmp_eq_u32 vcc, 16, v29\nv_cmp_gt_u32 s[{sM0}:{sM0+1}], 16, v27\ns_or_b64 vcc, vcc, s[{sM0}:{sM0+1}]\nv_mov_b32 v29, {WS_BYTES}\nv_cndmask_b32 v26, v29, v26, vcc")
        e(f"s_mov_b32 s{sLOOP}, 0\ns_lshl_b32 s{sT2}, s{sW}, 1\ns_add_u32 s{sT2}, s{sT2}, 2\ns_and_b32 s{sT2}, s{sT2}, 7")
        e(f"s_lshl_b32 s{sT2}, s{sT2}, 10\nv_add_u32 v28, s{sT2}, v{vL16}")
        e("s_waitcnt lgkmcnt(0)")
        self.stamp("att_poll")
        L = e.newlabel("GK")
        e(f"s_cmp_lg_u32 s{sW}, 0\ns_cbranch_scc1 {L}")
        Lm = e.newlabel("NOMODE")
        e(f"s_cmp_lg_u32 s{sHALF}, 0\ns_cbranch_scc1 {Lm}")
        self.mode_detect()
        e.label(Lm)
        e(f"s_lshl_b32 s{sT0}, s{sHALF}, 11\ns_and_b32 s{sT1}, s{sG}, 7\ns_lshl_b32 s{sT1}, s{sT1}, 8\ns_add_u32 s{sT0}, s{sT0}, s{sT1}\ns_add_u32 s{sT0}, s{sT0}, {FL_GK}")
        def setup_():
            e(f"buffer_load_dword v17, v{vL4}, s[{SRD_WS}:{SRD_WS+3}], s{sT0} offen sc1\ns_waitcnt vmcnt(0)")
            e(f"v_cmp_ne_u32 vcc, s{sTAG}, v17")
        self.poll("g", setup_)
        L2 = e.newlabel("EPOCH")
        e(f"s_cmp_lg_u32 s{sG}, 0\ns_cbranch_scc1 {L2}\ns_cmp_eq_u32 s{sHALF}, 0\ns_cbranch_scc1 {L2}")
        e(f"v_mov_b32 v16, 0\nv_mov_b32 v17, s{sTAG}\ns_mov_b64 exec, 1\nbuffer_store_dword v17, v16, s[{SRD_WS}:{SRD_WS+3}], 0 offen sc0 sc1\ns_mov_b64 exec, -1\ns_waitcnt vmcnt(0)")
        e.label(L2)
        e.label(L)
        e("s_waitcnt vmcnt(0)")
        e("s_barrier")
        Lm2 = e.newlabel("NOMODE2"); Lpf = e.newlabel("NOPF")
        e(f"s_cmp_lg_u32 s{sHALF}, 0\ns_cbranch_scc1 {Lm2}")
        self.mode_read()
        self.alias_setup()
        e(f"s_cmp_ge_u32 s{sRANK}, 97\ns_cbranch_scc1 {Lpf}\ns_cmp_lg_u32 s{sW}, 0\ns_cbranch_scc1 {Lpf}")
        e(f"v_lshlrev_b32 v16, 9, v{vL}\ns_lshl_b32 s{sT0}, s{sRANK}, 2\ns_add_u32 s{sT0}, s{sT0}, {FL_G0}\nv_mov_b32 v17, s{sTAG}")
        e(f"s_mov_b64 exec, 0xff\nbuffer_store_dword v17, v16, s[{SRD_WS}:{SRD_WS+3}], s{sT0} offen sc1\ns_mov_b64 exec, -1")
        e.label(Lpf)
        e.label(Lm2)
        self.stamp("att_start")
        e.reset_counters()
        e(f"ds_read_b128 v[{QA}:{QA+3}], v28 offset:{QL}")
        e(f"s_lshl_b32 s{sK}, s{sW}, 14\ns_add_u32 s{sK}, s{sK}, s{sKF}")
        e(f"s_mul_i32 s{sV}, s{sW}, {16*VT_STRIDE}\ns_add_u32 s{sV}, s{sV}, s{sKF}\ns_add_u32 s{sV}, s{sV}, 0x10000")
        def kv_lines(t):
            Ls = []
            if t % 4 == 0 and t: Ls += [f"s_add_u32 s{sK}, s{sK}, 4096"]
            if t % 2 == 0 and t: Ls += [f"s_add_u32 s{sV}, s{sV}, {2*VT_STRIDE}"]
            vo = (t % 2) * VT_STRIDE
            Ls += [f"buffer_load_dwordx4 a[{4*t}:{4*t+3}], v{vL16}, s[{SRD_WS}:{SRD_WS+3}], s{sK} offen offset:{(t%4)*1024} sc1",
                   f"buffer_load_dwordx4 a[{64+8*t}:{67+8*t}], v26, s[{SRD_WS}:{SRD_WS+3}], s{sV} offen offset:{vo} sc1",
                   f"buffer_load_dwordx4 a[{68+8*t}:{71+8*t}], v26, s[{SRD_WS}:{SRD_WS+3}], s{sV} offen offset:{vo+544} sc1"]
            return Ls
        AHEAD = 4
        for t in range(AHEAD):
            for x in kv_lines(t): e(x)
        e(f"s_waitcnt vmcnt({3*AHEAD-1}) lgkmcnt(0)")
        e(f"v_mfma_f32_32x32x16_bf16 {v(S[0],16)}, {a(0,4)}, {v(QA,4)}, 0")
        e("s_nop 7\ns_nop 7")
        self.stamp("att_kv")
        def wA_line(f):
            return [f"s_add_u32 s{sT7}, s{sA2}, {(f//4)*4096}",
                    f"buffer_load_dwordx4 a[{4*f}:{4*f+3}], v{vL16}, s[{SRD_WS}:{SRD_WS+3}], s{sT7} offen offset:{(f%4)*1024} sc1"]
        def position(pos, kind):
            Qc, Qn = (QA, QB) if pos == 0 else (QB, QA)
            Oc, On = (O[0], O[1]) if pos == 0 else (O[1], O[0])
            for u in range(16):
                c = u & 1; n = c ^ 1
                extra = {}
                if kind == 'first':
                    issued = min(AHEAD + u, 16)
                    need_idx = min(3 * (u + 1), 47) if u < 15 else 47
                    nw = 3*issued - need_idx - 1
                    if u in (13, 14): nw += 1
                    extra[-1] = [f"s_waitcnt vmcnt({nw})"]
                    if AHEAD + u < 16:
                        extra[3] = kv_lines(AHEAD + u)
                    if u == 12:
                        extra[5] = [f"s_and_b32 s{sT0}, s{sG}, 7", f"s_lshl_b32 s{sT0}, s{sT0}, 9", f"s_add_u32 s{sT0}, s{sT0}, {FL_G0}",
                                    f"v_lshlrev_b32 v29, 3, v{vL}",
                                    f"buffer_load_dwordx2 v[30:31], v29, s[{SRD_WS}:{SRD_WS+3}], s{sT0} offen sc1"]
                    if u == 15:
                        Lok = e.newlabel("G0OK"); Lp = e.newlabel("G0P")
                        chk = [f"v_xor_b32 v30, s{sTAG}, v30", f"v_xor_b32 v31, s{sTAG}, v31",
                               f"v_cmp_lt_u32 vcc, 48, v{vL}", "s_nop 1", "v_cndmask_b32 v30, v30, 0, vcc",
                               f"v_cmp_le_u32 vcc, 48, v{vL}", "s_nop 1", "v_cndmask_b32 v31, v31, 0, vcc",
                               "v_or_b32 v30, v30, v31", "v_cmp_ne_u32 vcc, 0, v30"]
                        extra[6] = chk + [f"s_cbranch_vccz {Lok}", f"s_mov_b32 s{sPOLL}, 0", f"{Lp}:",
                                          f"buffer_load_dwordx2 v[30:31], v29, s[{SRD_WS}:{SRD_WS+3}], s{sT0} offen sc1", "s_waitcnt vmcnt(0)"] + chk + \
                                         [f"s_cbranch_vccz {Lok}", f"s_add_u32 s{sPOLL}, s{sPOLL}, 1", f"s_cmp_lt_u32 s{sPOLL}, 400000", f"s_cbranch_scc1 {Lp}", "s_branch L_END", f"{Lok}:"]
                if u == 0 and kind != 'last':
                    extra[9] = ["v_add_u32 v28, 0x400, v28", "v_and_b32 v28, 0x1fff, v28"]
                if u == 1 and kind == 'loop':
                    extra[6] = [f"ds_write_b128 v24, v[{On}:{On+3}]", f"ds_write_b128 v24, v[{On+4}:{On+7}] offset:1024", f"ds_write_b32 v25, v{On+8}",
                                f"v_add_u32 v24, {SL}, v24", f"v_add_u32 v25, {SL}, v25"]
                if u == 4 and kind != 'last':
                    extra[5] = [f"ds_read_b128 v[{Qn}:{Qn+3}], v28 offset:{QL}"]
                if pos == 1 and kind == 'loop' and u == 2:
                    for t in range(4):
                        pre, ld, post = dmaitems[t]
                        extra[5 + 2 * t] = pre + [ld] + post
                if kind == 'last' and u == 0 and not getattr(self, "nopf", False):
                    Lp = e.newlabel("PF2")
                    extra[1] = [f"s_lshr_b32 s{sT4}, s{sG}, 3", f"s_lshl_b32 s{sT4}, s{sT4}, 2", f"s_add_u32 s{sT4}, s{sT4}, s{sW}", f"s_lshl_b32 s{sT4}, s{sT4}, 10",
                                f"s_add_u32 s{sT5}, s{sT4}, 1024", f"s_cmp_gt_u32 s{sT5}, L_CODE_END-L_PFBASE", f"s_cbranch_scc1 {Lp}",
                                f"s_add_u32 s{sT4}, s{sT4}, s{sPFB}", f"s_addc_u32 s{sT5}, s{sPFB+1}, 0",
                                f"global_load_dwordx4 v[128:131], v{vL16}, s[{sT4}:{sT4+1}]", f"{Lp}:"]
                if kind == 'last':
                    if u < 4:
                        pre, ld, post = dmaitems[u]
                        extra[8] = pre + [ld] + post
                    extra.setdefault(4, []).extend(wA_line(u))
                    if u >= 2: extra.setdefault(10, []).extend(wA_line(16 + u - 2))
                    if u >= 14: extra.setdefault(13, []).extend(wA_line(16 + u))
                if u == 14 and kind != 'last':
                    extra.setdefault(4, []).append("s_waitcnt lgkmcnt(0)")
                if u == 15 and kind != 'last':
                    extra[14] = [f"s_add_u32 s{sLOOP}, s{sLOOP}, 1"]
                Qx = Qn if u == 15 else Qc
                if u == 15 and kind == 'last': Qx = None
                Op = On if u == 0 else Oc
                self.att_unit(u, S[c], S[n], P[c], P[n], Qx, Oc, Op, extra, first=(u == 0))
        position(0, 'first')
        Lloop = e.newlabel("ATTLOOP")
        e(".p2align 3")
        e.label(Lloop)
        position(1, 'loop')
        position(0, 'loop')
        e(f"s_cmp_lt_u32 s{sLOOP}, 7\ns_cbranch_scc1 {Lloop}")
        position(1, 'last')
        e(f"v_cvt_pk_bf16_f32 v{P[1]+7}, v{S[1]+14}, v{S[1]+15}")
        e(f"v_mfma_f32_32x32x16_bf16 {v(O[1],16)}, {a(64+8*15+4,4)}, {v(P[1]+4,4)}, {v(O[1],16)}")
        e.label("L_ATT_TAIL")
        for vis in range(3):
            e(f"s_sub_u32 s{sT0}, s{sW}, {1+vis}\ns_and_b32 s{sT0}, s{sT0}, 3\ns_mul_i32 s{sT0}, s{sT0}, {6*SL}\ns_add_u32 s{sT0}, s{sT0}, {PS + 2*vis*SL}")
            e(f"v_add_u32 v{24+vis}, s{sT0}, v{vL16}\ns_add_u32 s{sT0}, s{sT0}, 2048\nv_add_u32 v{28+vis}, s{sT0}, v{vL4}")
        e("s_waitcnt vmcnt(27) lgkmcnt(0)\ns_barrier")
        self.stamp("att_loopend")
        slots = {}
        base = [32, 44, 56, 68, 112, 16]
        k = 0
        for pp in range(2):
            for vis in range(3):
                b = base[k]; k += 1; slots[(pp, vis)] = b
                lreg = 31 if b == 16 else b + 8
                e(f"ds_read_b128 v[{b}:{b+3}], v{24+vis} offset:{pp*SL}\nds_read_b128 v[{b+4}:{b+7}], v{24+vis} offset:{pp*SL+1024}\nds_read_b32 v{lreg}, v{28+vis} offset:{pp*SL}")
        e(f"s_lshl_b32 s{sT0}, s{sJ}, 2\ns_add_u32 s{sT0}, s{sT0}, s{sW}\ns_lshl_b32 s{sT0}, s{sT0}, 10")
        e(f"s_lshl_b32 s{sT1}, s{sC}, 16\ns_add_u32 s{sT0}, s{sT0}, s{sT1}\ns_add_u32 s{sT0}, s{sT0}, s{sOA}\ns_add_u32 s{sT1}, s{sT0}, 32768")
        tok = None
        for pp in range(2):
            Oo = O[pp]
            e(f"s_waitcnt lgkmcnt({9 if pp == 0 else 0})")
            for vis in range(3):
                b = slots[(pp, vis)]
                for r in range(9):
                    src = 31 if (b == 16 and r == 8) else b + r
                    e(f"v_add_f32 v{Oo+r}, v{Oo+r}, v{src}")
            e(f"v_rcp_f32 v{Oo+9}, v{Oo+8}")
            for r in range(8):
                e(f"v_mul_f32 v{Oo+r}, v{Oo+9}, v{Oo+r}")
            for d in range(4):
                e(f"v_cvt_pk_bf16_f32 v{Oo+12+d}, v{Oo+2*d}, v{Oo+2*d+1}")
            tok = self.moded(lambda fl: self.ws_store(Oo + 12, f"s{sT0 if pp == 0 else sT1}", 0, flag=fl))
        e(f"v_cmp_nle_f32 vcc, 0x1f800000, v{O[0]+8}\ns_mov_b64 s[{sBAD}:{sBAD+1}], vcc")
        e(f"v_cmp_nge_f32 vcc, 0x5f800000, v{O[0]+8}\ns_or_b64 s[{sBAD}:{sBAD+1}], s[{sBAD}:{sBAD+1}], vcc")
        e(f"v_cmp_nle_f32 vcc, 0x1f800000, v{O[1]+8}\ns_or_b64 s[{sBAD}:{sBAD+1}], s[{sBAD}:{sBAD+1}], vcc")
        e(f"v_cmp_nge_f32 vcc, 0x5f800000, v{O[1]+8}\ns_or_b64 s[{sBAD}:{sBAD+1}], s[{sBAD}:{sBAD+1}], vcc")
        Lok = e.newlabel("LSUMOK")
        e(f"s_cmp_eq_u64 s[{sBAD}:{sBAD+1}], 0\ns_cbranch_scc1 {Lok}")
        e(f"v_mov_b32 v24, 1\nv_mov_b32 v25, 0\nds_write_b32 v25, v24 offset:{self.FAIL}")
        e.label(Lok)
        return tok

    def fallback_check(self):
        e = self.e
        L = e.newlabel("NOFB")
        e(f"v_mov_b32 v16, 0\nds_read_b32 v17, v16 offset:{self.FAIL}\ns_waitcnt lgkmcnt(0)\nv_readfirstlane_b32 s{sT0}, v17")
        e(f"s_cmp_eq_u32 s{sT0}, 0\ns_cbranch_scc1 {L}\ns_cmp_eq_u32 s{sFB}, 0\ns_cbranch_scc1 L_FALLBACK")
        e.label(L)

    def fallback(self):
        e = self.e
        PS, SL, QL = self.PS, self.SLOT, self.QL
        MX = 131072
        K, V, Q, S, P, CM, M, ACC = 128, 132, 140, 144, 160, 168, 184, 192
        sI, sT, sKA, sVA, sB = 88, 89, 90, 92, 93
        e.label("L_FALLBACK")
        e(f"s_mov_b32 s{sFB}, 1\ns_waitcnt vmcnt(0) lgkmcnt(0)")
        e(f"v_and_b32 v187, 31, v{vL}\nv_min_u32 v186, 16, v187\nv_lshlrev_b32 v186, 4, v186\nv_lshrrev_b32 v188, 5, v{vL}\nv_mul_u32_u24 v188, 272, v188\nv_add_u32 v186, v186, v188")
        e(f"v_and_b32 v188, 27, v187\nv_cmp_eq_u32 vcc, 16, v188\nv_cmp_gt_u32 s[{sM0}:{sM0+1}], 16, v187\ns_or_b64 vcc, vcc, s[{sM0}:{sM0+1}]\nv_mov_b32 v188, {WS_BYTES}\nv_cndmask_b32 v186, v188, v186, vcc")
        e(f"v_and_b32 v187, 31, v{vL}\nv_lshlrev_b32 v187, 2, v187")
        for ps in range(2):
            Li = e.newlabel("FBI"); Lt = e.newlabel("FBT")
            e(f"s_mov_b32 s{sI}, 0")
            e.label(Li)
            e(f"s_lshl_b32 s{sB}, s{sW}, 1\ns_add_u32 s{sB}, s{sB}, 2\ns_add_u32 s{sB}, s{sB}, s{sI}\ns_and_b32 s{sB}, s{sB}, 7")
            e(f"s_lshl_b32 s{sT0}, s{sB}, 10\nv_add_u32 v185, s{sT0}, v{vL16}\nds_read_b128 v[{Q}:{Q+3}], v185 offset:{QL}")
            if ps == 0:
                e(f"v_mov_b32 v{M}, 0xff800000")
            else:
                e(f"s_lshl_b32 s{sT0}, s{sB}, 9\ns_add_u32 s{sT0}, s{sT0}, {MX}\nv_add_u32 v185, s{sT0}, v187")
                e(f"ds_read_b32 v{M}, v185\nds_read_b32 v189, v185 offset:128\nds_read_b32 v190, v185 offset:256\nds_read_b32 v191, v185 offset:384\ns_waitcnt lgkmcnt(0)")
                e(f"v_max_f32 v{M}, v{M}, v189\nv_max_f32 v190, v190, v191\nv_max_f32 v{M}, v{M}, v190")
                for r in range(16): e(f"v_sub_f32 v{CM+r}, 0, v{M}\nv_mov_b32 v{ACC+r}, 0")
            e(f"s_lshl_b32 s{sKA}, s{sW}, 14\ns_add_u32 s{sKA}, s{sKA}, s{sKF}")
            e(f"s_mul_i32 s{sVA}, s{sW}, {16*VT_STRIDE}\ns_add_u32 s{sVA}, s{sVA}, s{sKF}\ns_add_u32 s{sVA}, s{sVA}, 0x10000")
            e(f"s_mov_b32 s{sT}, 0")
            e.label(Lt)
            e(f"buffer_load_dwordx4 v[{K}:{K+3}], v{vL16}, s[{SRD_WS}:{SRD_WS+3}], s{sKA} offen sc1")
            if ps == 1:
                e(f"buffer_load_dwordx4 v[{V}:{V+3}], v186, s[{SRD_WS}:{SRD_WS+3}], s{sVA} offen sc1")
                e(f"buffer_load_dwordx4 v[{V+4}:{V+7}], v186, s[{SRD_WS}:{SRD_WS+3}], s{sVA} offen offset:544 sc1")
            e("s_waitcnt vmcnt(0) lgkmcnt(0)")
            e(f"v_mfma_f32_32x32x16_bf16 {v(S,16)}, {v(K,4)}, {v(Q,4)}, {'0' if ps == 0 else v(CM,16)}")
            if ps == 0:
                for r in range(0, 16, 2): e(f"v_max3_f32 v{M}, v{M}, v{S+r}, v{S+r+1}")
            else:
                for r in range(16): e(f"v_exp_f32 v{S+r}, v{S+r}")
                for d in range(8): e(f"v_cvt_pk_bf16_f32 v{P+d}, v{S+2*d}, v{S+2*d+1}")
                e(f"v_mfma_f32_32x32x16_bf16 {v(ACC,16)}, {v(V,4)}, {v(P,4)}, {v(ACC,16)}")
                e(f"v_mfma_f32_32x32x16_bf16 {v(ACC,16)}, {v(V+4,4)}, {v(P+4,4)}, {v(ACC,16)}")
            e(f"s_add_u32 s{sKA}, s{sKA}, 1024\ns_add_u32 s{sVA}, s{sVA}, {VT_STRIDE}\ns_add_u32 s{sT}, s{sT}, 1\ns_cmp_lt_u32 s{sT}, 16\ns_cbranch_scc1 {Lt}")
            if ps == 0:
                e(f"v_mov_b32 v189, v{M}\nv_permlane32_swap_b32 v{M}, v189\nv_max_f32 v{M}, v{M}, v189")
                e(f"s_lshl_b32 s{sT0}, s{sB}, 9\ns_lshl_b32 s{sT1}, s{sW}, 7\ns_add_u32 s{sT0}, s{sT0}, s{sT1}\ns_add_u32 s{sT0}, s{sT0}, {MX}\nv_add_u32 v185, s{sT0}, v187")
                e(f"ds_write_b32 v185, v{M}\ns_waitcnt lgkmcnt(0)")
            else:
                L6 = e.newlabel("FB6"); L7 = e.newlabel("FB7"); Ln = e.newlabel("FBN")
                e(f"s_cmp_eq_u32 s{sI}, 6\ns_cbranch_scc1 {L6}\ns_cmp_eq_u32 s{sI}, 7\ns_cbranch_scc1 {L7}")
                e(f"s_mul_i32 s{sT0}, s{sW}, 6\ns_add_u32 s{sT0}, s{sT0}, s{sI}\ns_mul_i32 s{sT0}, s{sT0}, {SL}\ns_add_u32 s{sT0}, s{sT0}, {PS}")
                e(f"v_add_u32 v185, s{sT0}, v{vL16}\ns_add_u32 s{sT0}, s{sT0}, 2048\nv_add_u32 v188, s{sT0}, v{vL4}")
                e(f"ds_write_b128 v185, v[{ACC}:{ACC+3}]\nds_write_b128 v185, v[{ACC+4}:{ACC+7}] offset:1024\nds_write_b32 v188, v{ACC+8}\ns_waitcnt lgkmcnt(0)\ns_branch {Ln}")
                e.label(L6)
                for r in range(9): e(f"v_mov_b32 v{80+r}, v{ACC+r}")
                e(f"s_branch {Ln}")
                e.label(L7)
                for r in range(9): e(f"v_mov_b32 v{96+r}, v{ACC+r}")
                e.label(Ln)
            e(f"s_add_u32 s{sI}, s{sI}, 1\ns_cmp_lt_u32 s{sI}, 8\ns_cbranch_scc1 {Li}")
            if ps == 0: e("s_barrier")
        e("s_waitcnt vmcnt(0) lgkmcnt(0)\ns_branch L_ATT_TAIL")

    def g2_w_bases(self):
        e = self.e
        e(f"s_lshl_b32 s{sT0}, s{sJ}, 1")
        tblA = [WB_BQ, WB_BK, WB_BK + 1, WB_BV + 1]; tblB = [WB_BQ + 1, WB_BK + 1, WB_BV, WB_BV]
        e(f"s_mov_b32 s{sA0}, {tblA[0]}\ns_mov_b32 s{sA1}, {tblB[0]}")
        for w in range(1, 4):
            e(f"s_cmp_eq_u32 s{sW}, {w}\ns_cselect_b32 s{sA0}, {tblA[w]}, s{sA0}\ns_cselect_b32 s{sA1}, {tblB[w]}, s{sA1}")
        e(f"s_add_u32 s{sA0}, s{sA0}, s{sT0}\ns_add_u32 s{sA1}, s{sA1}, s{sT0}")
        e(f"s_lshl_b32 s{sA2}, s{sA0}, 15\ns_add_u32 s{sA2}, s{sA2}, {WF}\ns_lshl_b32 s{sA3}, s{sA1}, 15\ns_add_u32 s{sA3}, s{sA3}, {WF}")
    def g2_w_load(self, f0, f1):
        e = self.e; tok = None
        cur = None
        for f in range(f0, f1):
            st = 0 if f < 32 else 1; ks = f % 32
            grp = (st, ks // 4)
            if grp != cur:
                e(f"s_add_u32 s{sT7}, s{sA2 if st == 0 else sA3}, {(ks//4)*4096}"); cur = grp
            tok = self.ws_load(st * 128 + 4 * ks, f"s{sT7}", (ks % 4) * 1024, acc=True)
        return tok

    def outproj(self, g1, sO, sXdst, sSTdst, sHXdst, wl, inter=None):
        e = self.e
        tag = "g1" if g1 else "g3"
        on = getattr(self, "light", None) == tag
        if on: self.lstamp(0)
        toks = self.load_act_half(sO, 10)
        self.pair_addrs(wl)
        e.lg = []
        self.pair_prime()
        if on:
            e.wait_vm(toks[0]); self.lstamp(1)
        self.pair_mfma(toks, inter)
        if on: self.lstamp(2)
        for d in range(8):
            e(f"v_lshlrev_b32 v{16+2*d}, 16, v{XR+d}\nv_and_b32 v{17+2*d}, 0xffff0000, v{XR+d}")
        self.reduce_pair()
        if on: self.lstamp(3)
        for d in range(8):
            e(f"v_add_f32 v{80+2*d}, v{80+2*d}, v{16+2*d}\nv_add_f32 v{81+2*d}, v{81+2*d}, v{17+2*d}")
            e(f"v_cvt_pk_bf16_f32 v{XR+d}, v{80+2*d}, v{81+2*d}")
        if not g1:
            Lf = e.newlabel("FINAL"); Ld = e.newlabel("FDONE")
            e(f"s_cmp_eq_u32 s{sHALF}, 1\ns_cbranch_scc1 {Lf}")
            tok = self.publish_x(sXdst, sSTdst, sHXdst)
            saved = list(e.vm)
            e(f"s_branch {Ld}")
            e.label(Lf)
            for c in range(2):
                e(f"v_permlane32_swap_b32 v{XR+4*c}, v{XR+4*c+2}\nv_permlane32_swap_b32 v{XR+4*c+1}, v{XR+4*c+3}")
            e(f"v_and_b32 v16, 31, v{vL}\nv_lshlrev_b32 v16, 11, v16\nv_lshrrev_b32 v17, 5, v{vL}\nv_lshl_add_u32 v16, v17, 4, v16")
            e(f"s_lshl_b32 s{sT0}, s{sC}, 6\ns_add_u32 s{sT0}, s{sT0}, s{sP}\ns_lshl_b32 s{sT0}, s{sT0}, 10\ns_lshl_b32 s{sT1}, s{sNB}, 6\ns_add_u32 s{sT0}, s{sT0}, s{sT1}")
            for c in range(2):
                e(f"buffer_store_dwordx4 v[{XR+4*c}:{XR+4*c+3}], v16, s[{SRD_OUT}:{SRD_OUT+3}], s{sT0} offen offset:{32*c} {getattr(self, 'outflag', '')}")
            self.stamp("end")
            e("s_endpgm")
            e.label(Ld)
            e.vm = saved
        else:
            tok = self.publish_x(sXdst, sSTdst, sHXdst)
        if on:
            self.lstamp(4); self.lflush(tag)
        return tok

    XL = 0; QB_ = 98304; KB_ = 106496; VB_ = 118784; TB = 131072
    CSA, CSB, CSN = 176, 192, 208
    BIAS, BH = 210, 226
    def g2_consts(self):
        e = self.e
        e(f"v_lshrrev_b32 v16, 5, v{vL}\nv_lshlrev_b32 v16, 4, v16")
        e(f"s_lshl_b32 s{sT0}, s{sA0}, 7\ns_add_u32 s{sT0}, s{sT0}, {CS}\ns_lshl_b32 s{sT1}, s{sA1}, 7\ns_add_u32 s{sT1}, s{sT1}, {CS}")
        self.load_cs(self.CSA, sT0, 16)
        self.load_cs(self.CSB, sT1, 16)
        e(f"v_and_b32 v17, 31, v{vL}\nv_lshlrev_b32 v17, 2, v17")
        self.ws_load(self.CSN, f"s{sT0}", 0, voff=17, n=1)
        tok = self.ws_load(self.CSN + 1, f"s{sT1}", 0, voff=17, n=1)
        NEG = "0xff800000"
        e(f"v_and_b32 v18, 31, v{vL}\nv_lshrrev_b32 v19, 5, v{vL}\nv_lshlrev_b32 v19, 2, v19\nv_sub_u32 v18, v18, v19")
        e(f"v_mov_b32 v19, {NEG}")
        for r in range(16):
            kk = 8 * (r >> 2) + (r & 3)
            e(f"v_subrev_u32 v20, {kk}, v18\nv_cmp_ge_u32 vcc, 7, v20\nv_cndmask_b32 v{212+r}, v19, 0, vcc")
        e(f"s_cmp_eq_u32 s{sC}, 0\ns_cselect_b32 s{sT0}, -64, 0")
        for jj in range(4):
            e(f"s_add_u32 s{sT1}, s{sT0}, {jj-1}\nv_cmp_ge_i32 vcc, s{sT1}, v18\nv_cndmask_b32 v{232+jj}, v19, 0, vcc\nv_mov_b32 v{240+jj}, v{232+jj}")
            e(f"v_mov_b32 v{228+jj}, 0\nv_mov_b32 v{236+jj}, 0")
        return tok

    def g2(self):
        e = self.e
        XL, QB_, KB_, VB_, TB = self.XL, self.QB_, self.KB_, self.VB_, self.TB
        CSA, CSB, CSN = self.CSA, self.CSB, self.CSN
        def dma(soff, imm): return e.vmem(f"buffer_load_dwordx4 v{vL16}, s[{SRD_WS}:{SRD_WS+3}], {soff} offen offset:{imm} sc1 lds")
        sXB, sHB, sSB = 88, 89, 90
        e(f"s_lshl_b32 s{sXB}, s{sC}, 16\ns_add_u32 s{sXB}, s{sXB}, s{sXMID}")
        def grp(blk, ks_mul, ks_add, n):
            its = []
            for t in range(n):
                pre = []
                if t == 0:
                    pre = [f"s_mul_i32 s{sT1}, s{sW}, {ks_mul*1024}", f"s_add_u32 s{sT1}, s{sT1}, {blk*32768 + ks_add*1024}",
                           f"s_mov_b32 m0, s{sT1}", f"s_add_u32 s{sT2}, s{sXB}, s{sT1}"]
                its.append((pre, f"buffer_load_dwordx4 v{vL16}, s[{SRD_WS}:{SRD_WS+3}], s{sT2} offen offset:{t*1024} sc1 lds", []))
            return its
        def grp2(ks_mul, ks_add, n):
            its = []
            for t in range(n):
                pre = []
                if t % 4 == 0:
                    pre = [f"s_mul_i32 s{sT1}, s{sKH}, {ks_mul*1024}", f"s_lshl_b32 s{sT2}, s{sP}, 15", f"s_add_u32 s{sT1}, s{sT1}, s{sT2}",
                           f"s_add_u32 s{sT1}, s{sT1}, {(ks_add + t)*1024}", f"s_mov_b32 m0, s{sT1}", f"s_add_u32 s{sT3}, s{sXB}, s{sT1}"]
                its.append((pre, f"buffer_load_dwordx4 v{vL16}, s[{SRD_WS}:{SRD_WS+3}], s{sT3} offen offset:{(t%4)*1024} sc1 lds", []))
            return its
        C0 = grp2(3, 0, 3); C1 = grp2(5, 6, 5); C2 = grp2(8, 16, 8)
        tok0 = None; tok1 = None
        for it in C0: tok0 = self.emit_item(it)
        for it in C1: tok1 = self.emit_item(it)
        sHS = 92
        e(f"v_and_b32 v18, 31, v{vL}\nv_lshrrev_b32 v19, 5, v{vL}")
        e(f"s_lshl_b32 s{sSB}, s{sC}, 1\ns_and_b32 s{sT5}, s{sW}, 1\ns_add_u32 s{sSB}, s{sSB}, s{sT5}\ns_lshl_b32 s{sSB}, s{sSB}, 12\ns_add_u32 s{sSB}, s{sSB}, s{sSTMID}")
        e(f"v_lshlrev_b32 v20, 3, v18\nv_lshl_add_u32 v20, v19, 11, v20")
        e(f"s_lshl_b32 s{sHS}, s{sHC}, 13\ns_add_u32 s{sHS}, s{sHS}, s{sSTH}")
        e("v_and_b32 v22, 15, v18\nv_add_u32 v22, 16, v22\nv_lshlrev_b32 v22, 3, v22\nv_lshrrev_b32 v23, 4, v18\nv_lshl_add_u32 v22, v23, 12, v22\nv_lshl_add_u32 v22, v19, 11, v22")
        statitems = [([], f"buffer_load_dwordx2 v[{144+2*t}:{145+2*t}], v20, s[{SRD_WS}:{SRD_WS+3}], s{sSB} offen offset:{t*256} sc1", []) for t in range(8)]
        hstat = lambda dst: [([], f"buffer_load_dwordx2 v[{dst+2*t}:{dst+1+2*t}], v22, s[{SRD_WS}:{SRD_WS+3}], s{sHS} offen offset:{t*256} sc1", []) for t in range(8)]
        e(f"s_lshl_b32 s93, s{sHALF}, 12\ns_lshl_b32 s{sT1}, s{sHC}, 7\ns_add_u32 s93, s93, s{sT1}\ns_add_u32 s93, s93, {FL_H}\nv_and_b32 v23, 7, v{vL}\nv_lshlrev_b32 v23, 2, v23")
        e(f"s_lshl_b32 s{sHB}, s{sHC}, 15\ns_add_u32 s{sHB}, s{sHB}, s{sHX}")
        haloitems = []
        for t in range(8):
            pre = []
            if t == 0: pre = [f"s_lshl_b32 s{sT1}, s{sW}, 13", f"s_add_u32 s{sT2}, s{sHB}, s{sT1}", f"s_add_u32 s{sT1}, s{sT1}, 65536", f"s_mov_b32 m0, s{sT1}", "s_nop 0"]
            if t == 4: pre = [f"s_lshl_b32 s{sT1}, s{sW}, 13", f"s_add_u32 s{sT1}, s{sT1}, 4096", f"s_add_u32 s{sT2}, s{sHB}, s{sT1}", f"s_add_u32 s{sT1}, s{sT1}, 65536", f"s_mov_b32 m0, s{sT1}", "s_nop 0"]
            haloitems.append((pre, f"buffer_load_dwordx4 v{vL16}, s[{SRD_WS}:{SRD_WS+3}], s{sT2} offen offset:{(t%4)*1024} sc1 lds", []))
        def wB_item(ks):
            return ([f"s_add_u32 s{sT7}, s{sA3}, {(ks//4)*4096}"], f"buffer_load_dwordx4 a[{128+4*ks}:{131+4*ks}], v{vL16}, s[{SRD_WS}:{SRD_WS+3}], s{sT7} offen offset:{(ks%4)*1024} sc1", [])
        e(f"v_add_u32 v21, 0x10000, v{vL16}")
        ACC = [32, 48, 64, 80]
        def xread(dst, blk, ks):
            off = blk * 32768 + ks * 1024
            if off < 65536: return e.lds(f"ds_read_b128 v[{dst}:{dst+3}], v{vL16} offset:{off}")
            return e.lds(f"ds_read_b128 v[{dst}:{dst+3}], v21 offset:{off-65536}")
        def mm(acc, wset, ks, xreg, orient, first):
            wr = a(wset * 128 + 4 * ks, 4); xr = v(xreg, 4); c = "0" if first else v(acc, 16)
            if orient == "T": e(f"v_mfma_f32_32x32x16_bf16 {v(acc,16)}, {wr}, {xr}, {c}")
            else: e(f"v_mfma_f32_32x32x16_bf16 {v(acc,16)}, {xr}, {wr}, {c}")
        RN = 4
        def epi(acc, kind, blk, cbi, cset, tmp):
            L = []
            if kind in ("q", "k"):
                cs = CSA if cset == 'A' else CSB
                rs, nm = 136 + 2 * blk, 137 + 2 * blk
                if kind == "q":
                    L += [f"v_mul_f32 v142, {fbits(QSCALE)}, v{rs}", f"v_mul_f32 v143, {fbits(QSCALE)}, v{nm}"]; rs, nm = 142, 143
                for r in range(16):
                    L += [f"v_mul_f32 v{tmp+r}, v{nm}, v{cs+r}", f"v_fmac_f32 v{tmp+r}, v{acc+r}, v{rs}"]
                src = tmp
                base = (QB_ if kind == "q" else KB_) + blk * 4096 + cbi * 2048
            else:
                csn = CSN if cset == 'A' else CSN + 1
                for q in range(4):
                    L += [f"ds_read_b128 v[{tmp+4*q}:{tmp+3+4*q}], v135 offset:{blk*256+32*q}", f"ds_read_b128 v[{tmp+16+4*q}:{tmp+19+4*q}], v135 offset:{blk*256+128+32*q}"]
                L += ["@wait"]
                for r in range(16):
                    L += [f"v_mul_f32 v{tmp+16+r}, v{tmp+16+r}, v{csn}", f"v_fmac_f32 v{tmp+16+r}, v{acc+r}, v{tmp+r}"]
                src = tmp + 16
                base = VB_ + blk * 4096 + cbi * 2048
            for d in range(8):
                L += [f"v_cvt_pk_bf16_f32 v{acc+d}, v{src+2*d}, v{src+2*d+1}"]
            L += [f"v_add_u32 v133, {base}, v{vL16}", f"ds_write_b128 v133, v[{acc}:{acc+3}]", f"ds_write_b128 v133, v[{acc+4}:{acc+7}] offset:1024"]
            return L
        class Fill:
            def __init__(s_, items): s_.items = list(items); s_.last = None
            def emit(s_, n=1):
                for _ in range(n):
                    if not s_.items: return
                    l = s_.items.pop(0)
                    if l == "@wait":
                        e.wait_lg(s_.last); continue
                    if l.startswith("ds_"): s_.last = e.lds(l)
                    else: e(l)
            def flush(s_): s_.emit(10**6)
        desc = {
            0: [("q", 0, 0, 'A'), ("q", 1, 0, 'A'), ("q", 0, 1, 'B'), ("q", 1, 1, 'B')],
            1: [("k", 0, 0, 'A'), ("k", 1, 0, 'A'), ("k", 2, 0, 'A'), ("k", 2, 1, 'B')],
            2: [("k", 0, 1, 'A'), ("k", 1, 1, 'A'), ("v", 0, 0, 'B'), ("v", 1, 0, 'B')],
            3: [("v", 0, 1, 'A'), ("v", 1, 1, 'A'), ("v", 2, 1, 'A'), ("v", 2, 0, 'B')],
        }
        units = {
            0: [(ACC[0], 0, 0, "T"), (ACC[1], 0, 1, "T"), (ACC[2], 1, 0, "T"), (ACC[3], 1, 1, "T")],
            1: [(ACC[0], 0, 0, "T"), (ACC[1], 0, 1, "T"), (ACC[2], 0, 0, "T"), (ACC[3], 1, 0, "T")],
            2: [(ACC[0], 0, 0, "T"), (ACC[1], 0, 1, "T"), (ACC[2], 1, 0, "N"), (ACC[3], 1, 1, "N")],
            3: [(ACC[0], 0, 0, "N"), (ACC[1], 0, 1, "N"), (ACC[2], 0, 0, "N"), (ACC[3], 1, 0, "N")],
        }
        labs = [e.newlabel(f"G2W{w}") for w in range(4)]; Lgd = e.newlabel("G2GD")
        e(f"v_and_b32 v134, 31, v{vL}\nv_lshlrev_b32 v134, 2, v134\nv_add_u32 v134, {TB}, v134")
        e(f"v_lshrrev_b32 v135, 5, v{vL}\nv_lshlrev_b32 v135, 4, v135\nv_add_u32 v135, {TB}, v135")
        e.wait_vm(tok0); e("s_barrier")
        self.stamp("g2A")
        vmA = list(e.vm)
        for w in range(1, 4):
            e(f"s_cmp_eq_u32 s{sW}, {w}\ns_cbranch_scc1 {labs[w]}")
        vm_end = None
        for w in range(4):
            e.label(labs[w]); e.lg = []; e.vm = list(vmA)
            U = units[w]; d = desc[w]
            if w in (0, 2):
                steps = [([0, 1], ks, [0, 1, 2, 3]) for ks in range(16)] + [([0, 1], ks, [0, 1]) for ks in range(16, 32)] + [([0, 1], ks, [2, 3]) for ks in range(16, 32)]
            else:
                steps = [([0, 1], ks, [0, 1]) for ks in range(32)] + [([2], ks, [2, 3]) for ks in range(32)]
            cnt0 = []; c_ = 0
            for (b_, k_, u_) in steps: cnt0.append(c_); c_ += len(u_)
            B1, B2, BC = 10, 30, 62
            def avail(step_idx, count):
                blks, ks, _ = steps[step_idx]
                if blks == [2]: return count >= BC
                if ks >= 16: return count >= B2
                if ks >= 6: return count >= B1
                return True
            side = {}
            def put(c, it): side.setdefault(c, []).append(it)
            named = {}
            for i, it in enumerate(C2): put(2 * i, ("vm", f"C2_{i}", it))
            wBneed = {}
            if w in (0, 2):
                lo = {10: 17, 11: 22, 12: 27, 13: 28, 14: 31, 15: 35} if w == 0 else {10: 17, 11: 20, 12: 23, 13: 26, 14: 31, 15: 35}
                for ks, c in lo.items(): put(c, ("vm", f"wB{ks}", wB_item(ks)))
                for i, ks in enumerate(range(16, 32)): put(46 + 2 * i, ("vm", f"wB{ks}", wB_item(ks)))
            else:
                for i, ks in enumerate(range(10, 16)): put(46 + 2 * i, ("vm", f"wB{ks}", wB_item(ks)))
                for i, ks in enumerate(range(16, 32)): put(58 + 2 * i, ("vm", f"wB{ks}", wB_item(ks)))
                for i, it in enumerate(hstat(160 if w == 1 else 176)): put(65 + 2 * i, ("vm", f"hs{i}", it))
            if w == 0:
                put(16, ("vm", "poll", ([], f"buffer_load_dword v24, v23, s[{SRD_WS}:{SRD_WS+3}], s93 offen sc1", [])))
                for i, c in enumerate((18, 19, 20, 21, 23, 24, 25, 26)): put(c, ("vm", f"st{i}", statitems[i]))
            if w == 1:
                for i in range(8): put(16 + i, ("vm", f"st{i}", statitems[i]))
            for i, it in enumerate(haloitems): put(30 + 2 * i, ("vm", f"halo{i}", it))
            stfill = None
            if w < 2:
                sub = Emitter(); old = self.e; self.e = sub
                self.stats_finish(144, 130, 131)
                sub(f"v_mul_f32 v130, v130, v131\nv_sub_f32 v130, 0, v130\nv_cmp_gt_u32 vcc, 32, v{vL}\ns_nop 1\nv_cndmask_b32 v130, v130, v131, vcc")
                sub(f"v_add_u32 v131, {TB + w*256}, v{vL4}\nds_write_b32 v131, v130")
                self.e = old
                stfill = Fill([l.strip() for l in sub.lines])
            f12 = None
            fstart = 98 if w in (0, 2) else 67
            hfill = None
            xt = {}
            ringslot = lambda si, b: 96 + ((si % RN) * 2 + b) * 4
            count = 0
            def do_barrier(c):
                if c == B1: e.wait_vm(tok1); e("s_barrier")
                if c == B2:
                    if w == 0:
                        Lok = e.newlabel("HOK"); Lp = e.newlabel("HPOLL")
                        e.wait_vm(named["poll"])
                        e(f"v_cmp_ne_u32 vcc, s{sTAG}, v24\ns_cbranch_vccz {Lok}")
                        saved = list(e.vm)
                        e(f"s_mov_b32 s{sPOLL}, 0")
                        e.label(Lp)
                        e(f"buffer_load_dword v24, v23, s[{SRD_WS}:{SRD_WS+3}], s93 offen sc1\ns_waitcnt vmcnt(0)\nv_cmp_ne_u32 vcc, s{sTAG}, v24\ns_cbranch_vccz {Lok}")
                        e(f"s_add_u32 s{sPOLL}, s{sPOLL}, 1\ns_cmp_lt_u32 s{sPOLL}, 400000\ns_cbranch_scc1 {Lp}\ns_branch L_END")
                        e.label(Lok)
                        e.vm = saved
                    e.wait_vm(named["C2_7"]); e("s_barrier")
                if c == BC:
                    if stfill: stfill.flush()
                    if w == 0: self.stamp("g2p1")
                    e.wait_vm(named["halo7"]); e("s_waitcnt lgkmcnt(0)\ns_barrier"); e.lg = []
                    for blk in range(2):
                        e.lds(f"ds_read_b32 v{136+2*blk}, v134 offset:{blk*256}"); named["tb"] = e.lds(f"ds_read_b32 v{137+2*blk}, v134 offset:{blk*256+128}")
            for si, (blks, ks, us) in enumerate(steps):
                for ui_i, ui in enumerate(us):
                    if count in (B1, B2, BC): do_barrier(count)
                    if ui_i == 0:
                        for sj in range(si, min(si + RN, len(steps))):
                            if sj not in xt and avail(sj, count):
                                bl, kk, _ = steps[sj]
                                t_ = None
                                for b, blk in enumerate(bl): t_ = xread(ringslot(sj, b), blk, kk)
                                xt[sj] = t_
                        e.wait_lg(xt[si])
                    acc, wset, b, orient = U[ui]
                    if wset == 1 and f"wB{ks}" in named: e.wait_vm(named[f"wB{ks}"])
                    first = (ks == 0)
                    mm(acc, wset, ks, ringslot(si, b), orient, first)
                    for kind, nm_, it in side.get(count, []): named[nm_] = self.emit_item(it)
                    if stfill and 46 <= count < BC:
                        if count == 46: e.wait_vm(named["st7"])
                        stfill.emit(3)
                    if count == fstart - 1:
                        e.wait_lg(named["tb"])
                        f12 = Fill(epi(ACC[0], *d[0], 144) + epi(ACC[1], *d[1], 144))
                    if f12 and count >= fstart: f12.emit(4 if w in (0, 2) else 2)
                    count += 1
            if f12: f12.flush()
            if w in (1, 3):
                e.wait_vm(named["hs7"])
                self.stats_finish(160 if w == 1 else 176, 130, 131)
                e("v_mul_f32 v130, v130, v131\nv_sub_f32 v130, 0, v130")
                if w == 1:
                    e("v_mov_b32 v140, v131\nv_mov_b32 v141, v130")
                else:
                    e(f"v_cmp_gt_u32 vcc, 32, v{vL}\ns_nop 1\nv_cndmask_b32 v130, v130, v131, vcc\nv_add_u32 v131, {TB + 2*256}, v{vL4}")
                    e.lds("ds_write_b32 v131, v130")
                    e("s_waitcnt lgkmcnt(0)"); e.lg = []
            if w == 0: self.stamp("g2p2")
            Fill(epi(ACC[2], *d[2], 144)).flush()
            Fill(epi(ACC[3], *d[3], 96)).flush()
            vm_end = list(e.vm)
            if w < 3: e(f"s_branch {Lgd}")
        e.label(Lgd)
        e.vm = vm_end
        e("s_waitcnt lgkmcnt(0)\ns_barrier")
        e.lg = []
        self.stamp("g2gemm")
        e(f"s_lshl_b32 s{sT0}, s{sW}, 10\ns_add_u32 s{sT0}, s{sT0}, {QB_}\nv_add_u32 v20, s{sT0}, v{vL16}")
        e(f"s_lshr_b32 s{sT1}, s{sW}, 1\ns_lshl_b32 s{sT1}, s{sT1}, 11\ns_add_u32 s{sT1}, s{sT1}, {VB_}\nv_add_u32 v21, s{sT1}, v{vL16}")
        Q = [32, 36]; Kf = [40, 44, 48]; V = {(0, 0): 52, (0, 1): 56, (1, 0): 60, (1, 1): 64, (2, 0): 68, (2, 1): 72}
        e(f"ds_read_b128 v[{Kf[2]}:{Kf[2]+3}], v20 offset:{(KB_-QB_)+2*4096}")
        for p in range(2):
            e(f"ds_read_b128 v[{Q[p]}:{Q[p]+3}], v20 offset:{p*4096}\nds_read_b128 v[{Kf[p]}:{Kf[p]+3}], v20 offset:{(KB_-QB_)+p*4096}")
        for (b, c), r in V.items(): e(f"ds_read_b128 v[{r}:{r+3}], v21 offset:{b*4096+c*1024}")
        e(f"s_lshl_b32 s{sT0}, s{sJ}, 2\ns_add_u32 s{sT0}, s{sT0}, s{sW}\ns_lshl_b32 s{sT0}, s{sT0}, 10")
        e(f"s_lshl_b32 s{sT1}, s{sC}, 16\ns_add_u32 s{sT0}, s{sT0}, s{sT1}\ns_add_u32 s{sT0}, s{sT0}, s{sOB}\ns_add_u32 s{sT1}, s{sT0}, 32768")
        So = [80, 96]; Sh = [112, 128]; Oo = [144, 160]
        setup, g3items = self.wpair_dma_list(WB_OB, self.WL0, sA4, sA5)
        e(f"s_mov_b32 s88, s{sT0}\ns_mov_b32 s89, s{sT1}")
        for x in setup: e(x)
        def g3dma(n):
            for _ in range(n):
                if g3items: self.emit_item(g3items.pop(0))
        g3dma(3)
        e("s_waitcnt lgkmcnt(8)")
        e(f"v_mfma_f32_32x32x16_bf16 {v(So[0],16)}, {v(Kf[0],4)}, {v(Q[0],4)}, v[212:227]")
        e(f"v_mfma_f32_32x32x16_bf16 {v(Sh[0],16)}, {v(Kf[2],4)}, {v(Q[0],4)}, v[228:243]")
        e("s_waitcnt lgkmcnt(6)")
        e(f"v_mfma_f32_32x32x16_bf16 {v(So[1],16)}, {v(Kf[1],4)}, {v(Q[1],4)}, v[212:227]")
        e(f"v_mfma_f32_32x32x16_bf16 {v(Sh[1],16)}, {v(Kf[2],4)}, {v(Q[1],4)}, v[228:243]")
        g3dma(2)
        e("v_mov_b32 v26, 0x3f803f80")
        vals = [[So[p] + r for r in range(16)] + [Sh[p] + 4 * (2 * p + 1) + jj for jj in range(4)] for p in range(2)]
        mx = [22, 23]; tm = [24, 25]
        PP = [176, 192]
        for p in range(2):
            vl = vals[p]
            e(f"v_max3_f32 v{mx[p]}, v{vl[0]}, v{vl[1]}, v{vl[2]}")
            i = 3
            while i < 20:
                if i + 1 < 20: e(f"v_max3_f32 v{mx[p]}, v{mx[p]}, v{vl[i]}, v{vl[i+1]}"); i += 2
                else: e(f"v_max_f32 v{mx[p]}, v{mx[p]}, v{vl[i]}"); i += 1
        for p in range(2): e(f"v_mov_b32 v{tm[p]}, v{mx[p]}")
        for p in range(2): e(f"v_permlane32_swap_b32 v{mx[p]}, v{tm[p]}")
        for p in range(2): e(f"v_max_f32 v{mx[p]}, v{mx[p]}, v{tm[p]}")
        for p in range(2):
            for i_, x in enumerate(vals[p]):
                e(f"v_sub_f32 v{x}, v{x}, v{mx[p]}")
                if i_ % 8 == 7: g3dma(1)
        for p in range(2):
            for i_, x in enumerate(vals[p]):
                e(f"v_exp_f32 v{x}, v{x}")
                if i_ % 5 == 4: g3dma(1)
            S_ = So[p]; H_ = vals[p][16]; Pp = PP[p]
            e(f"v_mov_b32 v{Pp+8}, 0\nv_mov_b32 v{Pp+9}, 0")
            for d in range(8): e(f"v_cvt_pk_bf16_f32 v{Pp+d}, v{S_+2*d}, v{S_+2*d+1}")
            e(f"v_cvt_pk_bf16_f32 v{Pp+10}, v{H_}, v{H_+1}\nv_cvt_pk_bf16_f32 v{Pp+11}, v{H_+2}, v{H_+3}")
            O_ = Oo[p]
            if p == 0: e("s_waitcnt lgkmcnt(0)")
            e(f"v_mfma_f32_32x32x16_bf16 {v(O_,16)}, {v(V[(p,0)],4)}, {v(Pp,4)}, 0")
            e(f"v_mfma_f32_32x32x16_bf16 {v(O_,16)}, {v(V[(p,1)],4)}, {v(Pp+4,4)}, {v(O_,16)}")
            e(f"v_mfma_f32_32x32x16_bf16 {v(O_,16)}, {v(V[(2,p)],4)}, {v(Pp+8,4)}, {v(O_,16)}")
            e(f"v_dot2_f32_bf16 v{mx[p]}, v{Pp}, v26, 0")
            for d in list(range(1, 8)) + [10, 11]: e(f"v_dot2_f32_bf16 v{mx[p]}, v{Pp+d}, v26, v{mx[p]}")
        for p in range(2): e(f"v_mov_b32 v{tm[p]}, v{mx[p]}")
        for p in range(2): e(f"v_permlane32_swap_b32 v{mx[p]}, v{tm[p]}")
        for p in range(2): e(f"v_add_f32 v{mx[p]}, v{mx[p]}, v{tm[p]}")
        for p in range(2): e(f"v_rcp_f32 v{mx[p]}, v{mx[p]}")
        Lodd = e.newlabel("ODD"); Ldone = e.newlabel("ODDD")
        e(f"s_bitcmp1_b32 s{sW}, 0\ns_cbranch_scc1 {Lodd}")
        for half in range(2):
            if half == 1: e.label(Lodd)
            for p in range(2):
                b0 = Oo[p] + 8 * half
                for r in range(8): e(f"v_mul_f32 v{b0+r}, v{mx[p]}, v{b0+r}")
                for d in range(4): e(f"v_cvt_pk_bf16_f32 v{28+4*p+d}, v{b0+2*d}, v{b0+2*d+1}")
            if half == 0: e(f"s_branch {Ldone}")
        e.label(Ldone)
        tok = self.moded(lambda fl: (self.ws_store(28, "s88", 0, flag=fl), self.ws_store(32, "s89", 0, flag=fl))[1])
        g3dma(16)
        return tok

    def build(self):
        e = self.e
        self.prologue()
        self.stamp("start")
        def stop(name):
            if self.stop_after == name:
                e("s_waitcnt vmcnt(0) lgkmcnt(0)\ns_endpgm")
                return True
            return False
        self.half_setup()
        self.first_phase()
        self.stamp("fdone")
        e.label("L_ATT")
        tok = self.attention()
        self.stamp("attdone")
        if stop("att"): return self.finish()
        self.sync_cluster(0, tok=tok, window=lambda: self.g2_consts(), pre_barrier=lambda: e("s_waitcnt lgkmcnt(0)"), post_barrier=self.fallback_check)
        self.stamp("c0")
        tok = self.outproj(True, sOA, sXMID, sSTMID, sHX, self.WL1)
        self.stamp("g1done")
        if stop("g1"): return self.finish()
        self.sync_cluster(1, tok=tok, window=lambda: self.g2_w_load(32, 42), drain=True, halo_flag=True)
        e.reset_counters()
        self.stamp("c1")
        tok = self.g2()
        self.stamp("g2done")
        if stop("g2"): return self.finish()
        self.sync_cluster(2, tok=tok, window=lambda: (self.g4_prefetch_cs(), self.g4_prefetch_kv()), drain=True)
        e.reset_counters()
        self.stamp("c2")
        tok = self.outproj(False, sOB, sXOUT, sSTOUT, None, self.WL0)
        self.stamp("g3done")
        if stop("g3"): return self.finish()
        self.sync_cluster(3, tok=tok, window=lambda: self.wpair_dma(WB_Q, self.WL1), drain=True)
        e.reset_counters()
        self.stamp("c3")
        e(f"s_mov_b32 s{sHALF}, 1")
        self.half_setup()
        self.alias_setup()
        self.g4()
        self.stamp("g4done")
        e("s_branch L_ATT")
        self.fallback()
        return self.finish()

    def finish(self):
        e = self.e
        e.label("L_END")
        e("s_endpgm")
        e.label("L_CODE_END")
        lines, n = fix_hazards(e.lines)
        hdr = open('cdna_kernels/' + NAME + '.s.ref').read().split("\n")
        head = [l for l in hdr if l.startswith(";") and "@launch" not in l and "Override launch" not in l and "grid=ceil" not in l]
        out = head + ["; @launch grid=(256,1,1) block=(256,1,1) lds=163840"]
        out += ['.amdgcn_target "amdgcn-amd-amdhsa--gfx950"', ".text", f".globl {KN}", ".p2align 8", f".type {KN},@function", f"{KN}:"]
        out += lines
        out += ['.section .rodata,"a"', ".p2align 6", f".amdhsa_kernel {KN}",
                "  .amdhsa_next_free_vgpr 512", "  .amdhsa_next_free_sgpr 102", "  .amdhsa_accum_offset 256",
                "  .amdhsa_group_segment_fixed_size 0", "  .amdhsa_kernarg_size 88", "  .amdhsa_user_sgpr_count 2",
                "  .amdhsa_user_sgpr_kernarg_segment_ptr 1", "  .amdhsa_system_sgpr_workgroup_id_x 1", ".end_amdhsa_kernel", ""]
        self.nops = n
        return "\n".join(out)

if __name__ == "__main__":
    import argparse
    ap = argparse.ArgumentParser()
    ap.add_argument("-o", default="k.s")
    ap.add_argument("--stop", default=None)
    ap.add_argument("--stamps", action="store_true")
    ap.add_argument("--attvar", default="")
    ap.add_argument("--light", default=None)
    ap.add_argument("--safe", action="store_true")
    ap.add_argument("--nopf", action="store_true")
    ap.add_argument("--outflag", default="")
    ap.add_argument("--noalias", action="store_true")
    args = ap.parse_args()
    g = Gen(stop_after=args.stop, stamps=args.stamps)
    g.attvar = args.attvar
    g.light = args.light
    g.force_safe = args.safe
    g.nopf = args.nopf
    g.outflag = args.outflag
    g.noalias = args.noalias
    txt = g.build()
    open(args.o, "w").write(txt)
    print("wrote", args.o, "lines", txt.count("\n"), "nop states", g.nops)
    if args.stamps: print(g.stampnames)
```

```python
import sys
from asmlib import *

NAME = 'interleave_layers__grouped_kv_mqa__sliding_local_dilated__prompt'
KN = NAME + '_kernel'

FL_C   = 0x10000
FL_G0  = 0x18000
FL_GK  = 0x1A000
FL_XW  = 0x1C000
FL_H   = 0x20000
DBG    = 0x40000
WF     = 0x100000
CS     = 0x480000
X0     = 0x500000
OA     = 0xD00000
OB     = 0x1100000
HX     = 0x1500000
ST0    = 0x1700000
KF     = 0x1800000
VT_STRIDE = 1088
STH    = 0x1A00000
WS_BYTES = 0x10000000
MODEADDR = 163832
WB_Q, WB_KV, WB_OA, WB_BQ, WB_BK, WB_BV, WB_OB = 0, 16, 17, 33, 49, 65, 81

LOG2E = 1.4426950408889634
QSCALE = 0.25 * LOG2E
import struct
def fbits(x): return "0x%08x" % struct.unpack("<I", struct.pack("<f", x))[0]

sG = 2
SRD_WS = 4
SRD_T  = 8
SRD_OUT = 12
sC, sJ, sW, sP, sKH, sTAG, sHALF, sHC = 16, 17, 18, 19, 20, 21, 22, 23
sRBOFF = 24
sSTOFF = 25
sRB    = 26
sNB    = 27
sXIN, sXMID, sXOUT = 28, 29, 30
sSTIN, sSTMID, sSTOUT = 31, 32, 33
sOA, sOB, sHX, sKF = 34, 35, 36, 37
sFLC = 38
sT0, sT1, sT2, sT3, sT4, sT5, sT6, sT7 = 40, 41, 42, 43, 44, 45, 46, 47
sM0, sM1 = 48, 50
sPOLL = 52
sTS = 54
sIN = 64
sOUTP = 80
sLOOP = 56
sA0, sA1, sA2, sA3 = 57, 58, 59, 60
sFA = 61
sA4, sA5 = 62, 63
sACT = 91
sRANK = 100
sDBGP = 98
sAD = 96
sCSA, sCSB = 94, 95
sFB = 101
sBAD = 48
sPFB = 86
sMODE = 39
sSTH = 53

vTID, vL, vL16, vL4 = 0, 1, 2, 3
XR = 4
vSTAT = 12
vHALO = 13
vT0, vT1 = 14, 15
vFA, vFT, vPA, vPD = 244, 245, 246, 247
vOUT = 250
vCSH, vCSN = 248, 249
vWK, vWS = 254, 255

LS = [64, 66, 76, 78, 80, 84, 56, 58]
class Gen:
    AH = 8
    def __init__(self, stop_after=None, stamps=False, safe=True):
        self.e = Emitter()
        self.stop_after = stop_after
        self.stamps = stamps
        self.st = "sc1"
        self.ld = "sc1"
        self.nstamp = 0

    def stamp(self, name):
        if getattr(self, "dbgstamps", False):
            names = ["start", "att_kv", "att_loopend", "c3", "end"]
            if name not in names: return
            e = self.e
            k = names.index(name)
            L = e.newlabel("DST")
            e(f"s_cmp_lg_u32 s{sW}, 0\ns_cbranch_scc1 {L}\ns_and_b32 s{sT6}, s{sG}, 0xfb\ns_cmp_lg_u32 s{sT6}, 0\ns_cbranch_scc1 {L}")
            base = {"start": 0, "att_kv": 1, "att_loopend": 3, "c3": 5, "end": 6}[name]
            e(f"s_memrealtime s[84:85]\ns_waitcnt lgkmcnt(0)")
            e(f"s_lshl_b32 s{sT6}, s{sG}, 3")
            if name in ("att_kv", "att_loopend"): e(f"s_lshl_b32 s{sT7}, s{sHALF}, 2\ns_add_u32 s{sT6}, s{sT6}, s{sT7}")
            e(f"s_add_u32 s{sT6}, s{sT6}, {base*4}")
            e(f"s_mov_b32 s{SRD_T}, s82\ns_mov_b32 s{SRD_T+1}, s83\ns_mov_b32 s{SRD_T+2}, 256\ns_mov_b32 s{SRD_T+3}, 0x20000")
            e(f"v_mov_b32 v{vT0}, s84\nv_mov_b32 v{vT1}, 0\ns_mov_b64 exec, 1\nbuffer_store_dword v{vT0}, v{vT1}, s[{SRD_T}:{SRD_T+3}], s{sT6} offen\ns_mov_b64 exec, -1")
            e.label(L)
            return
        if not self.stamps: return
        e = self.e
        idx = self.nstamp; self.nstamp += 1
        L = e.newlabel("STAMP")
        e(f"s_cmp_lg_u32 s{sW}, 0\ns_cbranch_scc1 {L}")
        e(f"s_memrealtime s[{sTS}:{sTS+1}]\ns_memtime s[50:51]\ns_waitcnt lgkmcnt(0)")
        e(f"s_lshl_b32 s{sT7}, s{sG}, 9\ns_add_u32 s{sT7}, s{sT7}, {DBG}\ns_mul_i32 s{sT6}, s{sHALF}, 256\ns_add_u32 s{sT7}, s{sT7}, s{sT6}")
        e(f"v_mov_b32 v{vT0}, s{sTS}\nv_mov_b32 v{vT1}, 0")
        e(f"s_mov_b64 exec, 1\nbuffer_store_dword v{vT0}, v{vT1}, s[{SRD_WS}:{SRD_WS+3}], s{sT7} offen offset:{(idx % 32) * 4}")
        e(f"v_mov_b32 v{vT0}, s50\nbuffer_store_dword v{vT0}, v{vT1}, s[{SRD_WS}:{SRD_WS+3}], s{sT7} offen offset:{128 + (idx % 32) * 4}\ns_mov_b64 exec, -1")
        e.label(L)
        self.stampnames = getattr(self, "stampnames", []) + [name]

    def lstamp(self, k):
        if self.stamps and getattr(self, "light", None): self.e(f"s_memtime s[{LS[k]}:{LS[k]+1}]")
    def lflush(self, name):
        if not (self.stamps and getattr(self, "light", None) == name): return
        e = self.e
        L = e.newlabel("LST")
        e(f"s_cmp_lg_u32 s{sW}, 0\ns_cbranch_scc1 {L}\ns_waitcnt lgkmcnt(0)")
        e(f"s_lshl_b32 s{sT7}, s{sG}, 6\ns_add_u32 s{sT7}, s{sT7}, 0x60000\ns_lshl_b32 s{sT6}, s{sHALF}, 5\ns_add_u32 s{sT7}, s{sT7}, s{sT6}")
        e(f"v_mov_b32 v{vT1}, 0\ns_mov_b64 exec, 1")
        for k in range(8):
            e(f"v_mov_b32 v{vT0}, s{LS[k]}\nbuffer_store_dword v{vT0}, v{vT1}, s[{SRD_WS}:{SRD_WS+3}], s{sT7} offen offset:{4*k}")
        e("s_mov_b64 exec, -1")
        e.label(L)

    def ws_load(self, dst, soff, imm=0, voff=vL16, n=4, flag=None, acc=False):
        flag = self.ld if flag is None else flag
        mn = {1: "buffer_load_dword", 2: "buffer_load_dwordx2", 4: "buffer_load_dwordx4"}[n]
        d = a(dst, n) if acc else v(dst, n)
        return self.e.vmem(f"{mn} {d}, v{voff}, s[{SRD_WS}:{SRD_WS+3}], {soff} offen offset:{imm} {flag}")
    def ws_store(self, src, soff, imm=0, voff=vL16, n=4, flag=None):
        flag = self.st if flag is None else flag
        mn = {1: "buffer_store_dword", 2: "buffer_store_dwordx2", 4: "buffer_store_dwordx4"}[n]
        return self.e.vmem(f"{mn} {v(src, n)}, v{voff}, s[{SRD_WS}:{SRD_WS+3}], {soff} offen offset:{imm} {flag}")

    def moded(self, fn):
        e = self.e
        Lf = e.newlabel("FAST"); Ld = e.newlabel("MDONE")
        e(f"s_cmp_eq_u32 s{sMODE}, 1\ns_cbranch_scc1 {Lf}")
        saved = list(e.vm); nt = e.ntok
        fn("sc1")
        e(f"s_branch {Ld}")
        e.label(Lf)
        e.vm = saved; e.ntok = nt
        r = fn("")
        e.label(Ld)
        return r

    def load_frags(self, dst, sbase, nfr, acc=False, flag=None, stmp=sT7):
        e = self.e; toks = []
        for t in range(nfr):
            if t % 4 == 0:
                if t == 0: so = f"s{sbase}"
                else:
                    e(f"s_add_u32 s{stmp}, s{sbase}, {t*1024}"); so = f"s{stmp}"
            toks.append(self.ws_load(dst + 4 * t, so, (t % 4) * 1024, acc=acc, flag=flag))
        return toks

    def poll(self, kind, setup):
        e = self.e
        Lp = e.newlabel("POLL"); Lok = e.newlabel("POLLOK")
        e(f"s_mov_b32 s{sPOLL}, 0")
        e.label(Lp)
        setup()
        e(f"s_cbranch_vccz {Lok}")
        e(f"s_add_u32 s{sPOLL}, s{sPOLL}, 1\ns_cmp_lt_u32 s{sPOLL}, 400000\ns_cbranch_scc1 {Lp}")
        e("s_branch L_END")
        e.label(Lok)

    def poll2(self, vaddr, soff):
        e = self.e
        Lp = e.newlabel("POLL"); Lok = e.newlabel("POLLOK")
        ld = lambda r: e(f"buffer_load_dword v{r}, v{vaddr}, s[{SRD_WS}:{SRD_WS+3}], {soff} offen sc1")
        e(f"s_mov_b32 s{sPOLL}, 0")
        ld(17); e("s_nop 15\ns_nop 15\ns_nop 15"); ld(18); e("s_nop 15\ns_nop 15\ns_nop 15"); ld(19)
        e.label(Lp)
        for r in (17, 18, 19):
            e(f"s_waitcnt vmcnt(2)\nv_cmp_ne_u32 vcc, s{sTAG}, v{r}\ns_cbranch_vccz {Lok}")
            ld(r)
        e(f"s_add_u32 s{sPOLL}, s{sPOLL}, 1\ns_cmp_lt_u32 s{sPOLL}, 150000\ns_cbranch_scc1 {Lp}")
        e("s_branch L_END")
        e.label(Lok)

    def sync_consts(self):
        e = self.e
        e(f"s_lshl_b32 s{sT1}, s{sJ}, 2\nv_mov_b32 v{vFA}, s{sT1}\nv_mov_b32 v{vFT}, s{sTAG}\nv_and_b32 v{vPA}, 7, v{vL}\nv_lshlrev_b32 v{vPA}, 2, v{vPA}")
        e(f"v_lshrrev_b32 v{vCSH}, 5, v{vL}\nv_lshlrev_b32 v{vCSH}, 4, v{vCSH}\nv_and_b32 v{vCSN}, 31, v{vL}\nv_lshlrev_b32 v{vCSN}, 2, v{vCSN}")

    def sync_cluster(self, sid, tok=None, pre_barrier=None, window=None, drain=False, halo_flag=False, post_barrier=None):
        e = self.e
        e(f"s_lshl_b32 s{sFA}, s{sC}, 7\ns_add_u32 s{sFA}, s{sFA}, s{sFLC}\ns_add_u32 s{sFA}, s{sFA}, {sid*4096}")
        if halo_flag:
            e(f"s_lshl_b32 s{sAD}, s{sHALF}, 12\ns_lshl_b32 s{sT1}, s{sC}, 7\ns_add_u32 s{sAD}, s{sAD}, s{sT1}\ns_add_u32 s{sAD}, s{sAD}, {FL_H}")
        e.wait_vm(tok)
        if pre_barrier: pre_barrier()
        e("s_barrier")
        if post_barrier: post_barrier()
        L0 = e.newlabel("SYNCA"); L = e.newlabel("SYNC")
        srd = f"s[{SRD_WS}:{SRD_WS+3}]"
        e(f"s_cmp_lg_u32 s{sW}, 0\ns_cbranch_scc1 {L0}")
        e("s_mov_b64 exec, 1")
        saved = list(e.vm)
        self.moded(lambda fl: e(f"buffer_store_dword v{vFT}, v{vFA}, {srd}, s{sFA} offen {fl}"))
        e.vm = saved
        e("s_mov_b64 exec, -1")
        e(f"buffer_load_dword v{vPD}, v{vPA}, {srd}, s{sFA} offen sc1")
        e.label(L0)
        n0 = len(e.vm)
        if window: window()
        nwin = len(e.vm) - n0
        Lp = e.newlabel("POLL")
        e(f"s_cmp_lg_u32 s{sW}, 0\ns_cbranch_scc1 {L}")
        e(f"s_mov_b32 s{sPOLL}, 0\ns_waitcnt vmcnt({min(nwin, 63)})\nv_cmp_ne_u32 vcc, s{sTAG}, v{vPD}\ns_cbranch_vccz {L}")
        e.label(Lp)
        e(f"buffer_load_dword v{vPD}, v{vPA}, {srd}, s{sFA} offen sc1\ns_waitcnt vmcnt(0)\nv_cmp_ne_u32 vcc, s{sTAG}, v{vPD}\ns_cbranch_vccz {L}")
        e(f"s_add_u32 s{sPOLL}, s{sPOLL}, 1\ns_cmp_lt_u32 s{sPOLL}, 400000\ns_cbranch_scc1 {Lp}\ns_branch L_END")
        e.label(L)
        if drain:
            e("s_waitcnt vmcnt(0)"); e.vm = []
        e("s_barrier")
        if halo_flag:
            L2 = e.newlabel("HF")
            e(f"s_cmp_lg_u32 s{sW}, 0\ns_cbranch_scc1 {L2}")
            e(f"s_mov_b64 exec, 1\nbuffer_store_dword v{vFT}, v{vFA}, {srd}, s{sAD} offen sc1\ns_mov_b64 exec, -1")
            e.label(L2)

    def prologue(self):
        e = self.e
        e(f"s_cmp_ge_u32 s{sG}, 256\ns_cbranch_scc1 L_END")
        e(f"s_load_dwordx16 s[{sIN}:{sIN+15}], s[0:1], 0")
        if not getattr(self, "nopf", False):
            Lpf = e.newlabel("PF")
            e(f"s_getpc_b64 s[40:41]")
            e.label("L_PFBASE")
            e(f"s_mov_b32 s{sPFB}, s40\ns_mov_b32 s{sPFB+1}, s41")
            e(f"s_lshr_b32 s42, s{sG}, 3\ns_mul_i32 s42, s42, 3072\ns_add_u32 s43, s42, 3072\ns_cmp_gt_u32 s43, L_CODE_END-L_PFBASE\ns_cbranch_scc1 {Lpf}")
            e(f"s_add_u32 s40, s40, s42\ns_addc_u32 s41, s41, 0\nv_and_b32 v250, 63, v0\nv_lshrrev_b32 v251, 6, v0\nv_lshlrev_b32 v250, 4, v250\nv_min_u32 v251, 2, v251\nv_lshl_add_u32 v250, v251, 10, v250")
            e("global_load_dwordx4 v[252:255], v250, s[40:41]")
            e.label(Lpf)
        e(f"s_load_dwordx4 s[{sOUTP}:{sOUTP+3}], s[0:1], 64")
        e(f"s_load_dwordx2 s[{sOUTP+4}:{sOUTP+5}], s[0:1], 80")
        e(f"v_and_b32 v{vL}, 63, v{vTID}\nv_lshrrev_b32 v{vT0}, 6, v{vTID}")
        e(f"v_lshlrev_b32 v{vL16}, 4, v{vL}\nv_lshlrev_b32 v{vL4}, 2, v{vL}")
        e(f"v_readfirstlane_b32 s{sW}, v{vT0}")
        e(f"s_and_b32 s{sT0}, s{sG}, 7\ns_lshr_b32 s{sT1}, s{sG}, 3\ns_and_b32 s{sT2}, s{sT1}, 3")
        e(f"s_lshl_b32 s{sC}, s{sT0}, 2\ns_add_u32 s{sC}, s{sC}, s{sT2}\ns_lshr_b32 s{sJ}, s{sT1}, 2")
        e(f"s_and_b32 s{sP}, s{sW}, 1\ns_lshr_b32 s{sKH}, s{sW}, 1")
        e(f"s_max_u32 s{sHC}, s{sC}, 1\ns_sub_u32 s{sHC}, s{sHC}, 1")
        e(f"s_lshl_b32 s{sRB}, s{sC}, 1\ns_add_u32 s{sRB}, s{sRB}, s{sP}")
        e(f"s_lshl_b32 s{sNB}, s{sJ}, 1\ns_add_u32 s{sNB}, s{sNB}, s{sKH}")
        e(f"s_lshl_b32 s{sRBOFF}, s{sRB}, 15\ns_lshl_b32 s{sT0}, s{sNB}, 11\ns_add_u32 s{sRBOFF}, s{sRBOFF}, s{sT0}")
        e(f"s_lshl_b32 s{sSTOFF}, s{sRB}, 12\ns_lshl_b32 s{sT0}, s{sNB}, 8\ns_add_u32 s{sSTOFF}, s{sSTOFF}, s{sT0}")
        e(f"v_and_b32 v{vT0}, 31, v{vL}\nv_lshrrev_b32 v{vT1}, 5, v{vL}\nv_lshlrev_b32 v{vSTAT}, 3, v{vT0}\nv_lshl_add_u32 v{vSTAT}, v{vT1}, 2, v{vSTAT}")
        e(f"s_lshl_b32 s{sT0}, s{sP}, 4\ns_sub_u32 s{sT0}, s{sT0}, 16\nv_add_u32 v{vHALO}, s{sT0}, v{vL}\nv_lshlrev_b32 v{vHALO}, 4, v{vHALO}")
        e("s_waitcnt lgkmcnt(0)")
        e(f"s_mov_b32 s{SRD_WS}, s{sOUTP+4}\ns_mov_b32 s{SRD_WS+1}, s{sOUTP+5}\ns_mov_b32 s{SRD_WS+2}, {WS_BYTES}\ns_mov_b32 s{SRD_WS+3}, 0x20000")
        e(f"s_mov_b32 s{SRD_OUT}, s{sOUTP}\ns_mov_b32 s{SRD_OUT+1}, s{sOUTP+1}\ns_mov_b32 s{SRD_OUT+2}, {2048*512*2}\ns_mov_b32 s{SRD_OUT+3}, 0x20000")
        e(f"s_mov_b32 s{sHALF}, 0")
        e(f"s_getreg_b32 s3, hwreg(HW_REG_XCC_ID)\ns_and_b32 s3, s3, 15\ns_mov_b32 s{sMODE}, 0")

    def tag_from(self, vreg):
        e = self.e
        e(f"v_readfirstlane_b32 s{sTAG}, v{vreg}")
        e(f"s_mul_i32 s{sTAG}, s{sTAG}, 0x9E3779B1\ns_add_u32 s{sTAG}, s{sTAG}, 0x7F4A7C15")
        Lx = e.newlabel("XW")
        e(f"s_cmp_lg_u32 s{sW}, 0\ns_cbranch_scc1 {Lx}")
        e(f"s_add_u32 s{sT0}, s{sTAG}, s3\ns_add_u32 s{sT0}, s{sT0}, 16\nv_mov_b32 v{vT0}, s{sT0}")
        e(f"s_lshl_b32 s{sT1}, s{sC}, 3\ns_add_u32 s{sT1}, s{sT1}, s{sJ}\ns_lshl_b32 s{sT1}, s{sT1}, 2\ns_add_u32 s{sT1}, s{sT1}, {FL_XW}\nv_mov_b32 v{vT1}, 0")
        e(f"s_mov_b64 exec, 1\nbuffer_store_dword v{vT0}, v{vT1}, s[{SRD_WS}:{SRD_WS+3}], s{sT1} offen sc1\ns_mov_b64 exec, -1")
        e.label(Lx)

    def publish_x(self, sX, sST, sHXr=None, moded=True):
        e = self.e
        e(f"s_add_u32 s{sT0}, s{sX}, s{sRBOFF}")
        def st1(fl):
            for c in range(2): t = self.ws_store(XR + 4 * c, f"s{sT0}", c * 1024, flag=fl)
            return t
        if moded: self.moded(st1)
        else: st1("sc1")
        e(f"v_mov_b32 v16, 0x3f803f80\nv_mov_b32 v17, 0\nv_mov_b32 v18, 0\nv_mov_b32 v19, 0\nv_mov_b32 v20, 0")
        for i in range(8):
            e(f"v_dot2c_f32_bf16 v{17 if i % 2 == 0 else 19}, v16, v{XR+i}\nv_dot2c_f32_bf16 v{18 if i % 2 == 0 else 20}, v{XR+i}, v{XR+i}")
        e("v_add_f32 v17, v17, v19\nv_add_f32 v18, v18, v20")
        e("v_permlane32_swap_b32 v17, v18\nv_add_f32 v17, v17, v18")
        e(f"s_add_u32 s{sT0}, s{sST}, s{sSTOFF}")
        st2 = lambda fl: self.ws_store(17, f"s{sT0}", 0, voff=vSTAT, n=1, flag=fl)
        tok = self.moded(st2) if moded else st2("sc1")
        if sHXr is not None:
            e(f"s_lshl_b32 s{sT1}, s{sC}, 15\ns_add_u32 s{sT1}, s{sT1}, s{sHXr}\ns_lshl_b32 s{sT2}, s{sNB}, 11\ns_add_u32 s{sT1}, s{sT1}, s{sT2}")
            e("s_mov_b32 exec_lo, 0xffff0000\ns_mov_b32 exec_hi, 0xffff0000")
            for c in range(2):
                self.ws_store(XR + 4 * c, f"s{sT1}", c * 1024, voff=vHALO, flag="sc1")
            e("s_mov_b64 exec, -1")
            e(f"s_add_u32 s{sT0}, s{sSTH}, s{sSTOFF}")
            self.ws_store(17, f"s{sT0}", 0, voff=vSTAT, n=1, flag="sc1")
        return tok

    def load_stats_issue(self, dst, sST, srb):
        e = self.e
        e(f"v_and_b32 v{dst+16}, 31, v{vL}\nv_lshlrev_b32 v{dst+16}, 3, v{dst+16}\nv_lshrrev_b32 v{dst+17}, 5, v{vL}\nv_lshl_add_u32 v{dst+16}, v{dst+17}, 11, v{dst+16}")
        e(f"s_lshl_b32 s{sT0}, s{srb}, 12\ns_add_u32 s{sT0}, s{sT0}, s{sST}")
        tok = None
        for t in range(8):
            tok = self.ws_load(dst + 2 * t, f"s{sT0}", t * 256, voff=dst + 16, n=2)
        return tok
    def stats_finish(self, src, vmean, vrstd):
        e = self.e
        for t in range(1, 8):
            e(f"v_add_f32 v{src}, v{src}, v{src+2*t}\nv_add_f32 v{src+1}, v{src+1}, v{src+2*t+1}")
        e(f"v_permlane32_swap_b32 v{src}, v{src+1}\nv_add_f32 v{src}, v{src}, v{src+1}\nv_mov_b32 v{src+1}, v{src}")
        e(f"v_permlane32_swap_b32 v{src}, v{src+1}")
        e(f"v_mul_f32 v{vmean}, {fbits(1/512)}, v{src}")
        e(f"v_mul_f32 v{src+1}, {fbits(1/512)}, v{src+1}")
        e(f"v_fma_f32 v{src+1}, -v{vmean}, v{vmean}, v{src+1}")
        e(f"v_add_f32 v{src+1}, {fbits(1e-5)}, v{src+1}")
        e(f"v_rsq_f32 v{vrstd}, v{src+1}")

    def p0(self):
        e = self.e
        e(f"s_mov_b32 s{SRD_T}, s{sIN}\ns_mov_b32 s{SRD_T+1}, s{sIN+1}\ns_mov_b32 s{SRD_T+2}, {2048*1024}\ns_mov_b32 s{SRD_T+3}, 0x20000")
        e(f"v_and_b32 v16, 31, v{vL}\nv_lshlrev_b32 v16, 11, v16\nv_lshrrev_b32 v17, 5, v{vL}\nv_lshl_add_u32 v16, v17, 3, v16")
        e(f"s_lshl_b32 s{sT0}, s{sC}, 6\ns_add_u32 s{sT0}, s{sT0}, s{sP}\ns_lshl_b32 s{sT0}, s{sT0}, 10\ns_lshl_b32 s{sT1}, s{sNB}, 6\ns_add_u32 s{sT0}, s{sT0}, s{sT1}")
        for q in range(4):
            e.vmem(f"buffer_load_dwordx2 v[{XR+2*q}:{XR+2*q+1}], v16, s[{SRD_T}:{SRD_T+3}], s{sT0} offen offset:{16*q}")
        e.wait_vm()
        e(f"s_mov_b32 s{sA0}, {X0}\ns_mov_b32 s{sA1}, {ST0}")
        self.publish_x(sA0, sA1, moded=False)
        Lskip = e.newlabel("P0SKIP"); Lkv = e.newlabel("P0KV"); Lgo = e.newlabel("P0GO"); Lld = e.newlabel("P0LD")
        e(f"s_cmp_ge_u32 s{sG}, 97\ns_cbranch_scc1 {Lskip}")
        pw = lambda i: (sIN + 2 * i, sIN + 2 * i + 1)
        e(f"s_cmp_eq_u32 s{sG}, 16\ns_cbranch_scc1 {Lkv}")
        e(f"s_mov_b32 s{SRD_T}, s{pw(1)[0]}\ns_mov_b32 s{SRD_T+1}, s{pw(1)[1]}\ns_mov_b32 s{SRD_T+2}, {512*1024}\ns_mov_b32 s{sA2}, 1024\ns_lshl_b32 s{sA3}, s{sG}, 6")
        e(f"s_cmp_lt_u32 s{sG}, 16\ns_cbranch_scc1 {Lgo}")
        e(f"s_mov_b32 s{SRD_T}, s{pw(4)[0]}\ns_mov_b32 s{SRD_T+1}, s{pw(4)[1]}\ns_sub_u32 s{sA3}, s{sG}, 17\ns_lshl_b32 s{sA3}, s{sA3}, 6")
        e(f"s_cmp_lt_u32 s{sG}, 33\ns_cbranch_scc1 {Lgo}")
        e(f"s_mov_b32 s{SRD_T}, s{pw(6)[0]}\ns_mov_b32 s{SRD_T+1}, s{pw(6)[1]}\ns_mov_b32 s{SRD_T+2}, {512*3072}\ns_mov_b32 s{sA2}, 3072\ns_sub_u32 s{sA3}, s{sG}, 33\ns_lshl_b32 s{sA3}, s{sA3}, 6")
        e(f"s_cmp_lt_u32 s{sG}, 81\ns_cbranch_scc1 {Lgo}")
        e(f"s_mov_b32 s{SRD_T}, s{pw(7)[0]}\ns_mov_b32 s{SRD_T+1}, s{pw(7)[1]}\ns_mov_b32 s{SRD_T+2}, {512*1024}\ns_mov_b32 s{sA2}, 1024\ns_sub_u32 s{sA3}, s{sG}, 81\ns_lshl_b32 s{sA3}, s{sA3}, 6")
        e.label(Lgo)
        e(f"s_mov_b32 s{SRD_T+3}, 0x20000")
        e(f"v_lshrrev_b32 v16, 2, v{vL}\nv_mul_lo_u32 v16, v16, s{sA2}\nv_and_b32 v17, 3, v{vL}\nv_lshl_add_u32 v16, v17, 4, v16")
        e(f"s_lshl_b32 s{sT0}, s{sW}, 7\ns_mul_i32 s{sT0}, s{sT0}, s{sA2}\ns_add_u32 s{sT0}, s{sT0}, s{sA3}\ns_lshl_b32 s{sT1}, s{sA2}, 4")
        for it in range(8):
            e(f"buffer_load_dwordx4 v[{32+4*it}:{35+4*it}], v16, s[{SRD_T}:{SRD_T+3}], s{sT0} offen")
            if it < 7: e(f"s_add_u32 s{sT0}, s{sT0}, s{sT1}")
        e(f"s_branch {Lld}")
        e.label(Lkv)
        e(f"v_lshrrev_b32 v16, 2, v{vL}\nv_lshlrev_b32 v16, 5, v16\nv_and_b32 v17, 1, v{vL}\nv_lshl_add_u32 v16, v17, 4, v16")
        e(f"s_lshl_b32 s{sT0}, s{sW}, 12")
        e(f"v_and_b32 v17, 2, v{vL}\nv_cmp_eq_u32 vcc, 0, v17")
        e(f"s_mov_b32 s{SRD_T}, s{pw(3)[0]}\ns_mov_b32 s{SRD_T+1}, s{pw(3)[1]}\ns_mov_b32 s{SRD_T+2}, {512*32}\ns_mov_b32 s{SRD_T+3}, 0x20000")
        e(f"s_mov_b64 s[{sM0}:{sM0+1}], vcc")
        e(f"s_mov_b64 exec, s[{sM0}:{sM0+1}]")
        for it in range(8):
            e(f"buffer_load_dwordx4 v[{32+4*it}:{35+4*it}], v16, s[{SRD_T}:{SRD_T+3}], s{sT0} offen offset:{it*512}")
        e(f"s_mov_b64 exec, -1\ns_andn2_b64 exec, exec, s[{sM0}:{sM0+1}]")
        e(f"s_mov_b32 s{SRD_T}, s{pw(2)[0]}\ns_mov_b32 s{SRD_T+1}, s{pw(2)[1]}\ns_mov_b32 s{SRD_T+2}, {512*32}\ns_mov_b32 s{SRD_T+3}, 0x20000")
        for it in range(8):
            e(f"buffer_load_dwordx4 v[{32+4*it}:{35+4*it}], v16, s[{SRD_T}:{SRD_T+3}], s{sT0} offen offset:{it*512}")
        e("s_mov_b64 exec, -1")
        e.label(Lld)
        e("s_waitcnt vmcnt(0)")
        e(f"s_lshl_b32 s{sT0}, s{sW}, 13\nv_add_u32 v17, s{sT0}, v{vL16}")
        for it in range(8):
            e(f"ds_write_b128 v17, v[{32+4*it}:{35+4*it}] offset:{it*1024}")
        e(f"v_and_b32 v18, 15, v{vL}\nv_lshrrev_b32 v19, 2, v18\nv_lshrrev_b32 v20, 5, v{vL}\nv_lshl_add_u32 v19, v20, 2, v19\nv_lshlrev_b32 v19, 6, v19")
        e(f"v_and_b32 v20, 3, v18\nv_lshl_add_u32 v19, v20, 3, v19\nv_bfe_u32 v20, v{vL}, 4, 1\nv_lshl_add_u32 v19, v20, 5, v19\nv_add_u32 v19, s{sT0}, v19")
        e("s_waitcnt lgkmcnt(0)")
        for t in range(8):
            e(f"ds_read_b64_tr_b16 v[{64+4*t}:{65+4*t}], v19 offset:{t*1024}")
            e(f"ds_read_b64_tr_b16 v[{66+4*t}:{67+4*t}], v19 offset:{t*1024+512}")
        e("s_waitcnt lgkmcnt(0)")
        e(f"s_lshl_b32 s{sT0}, s{sG}, 15\ns_lshl_b32 s{sT1}, s{sW}, 13\ns_add_u32 s{sT0}, s{sT0}, s{sT1}\ns_add_u32 s{sT0}, s{sT0}, {WF}\ns_add_u32 s{sT1}, s{sT0}, 4096")
        for t in range(8):
            self.ws_store(64 + 4 * t, f"s{sT0 if t < 4 else sT1}", (t % 4) * 1024)
        e("v_mov_b32 v16, 0x3f803f80\nv_mov_b32 v17, 0")
        for i in range(32):
            e(f"v_dot2_f32_bf16 v17, v{64+i}, v16, v17")
        e("v_mov_b32 v18, v17\nv_permlane32_swap_b32 v17, v18\nv_add_f32 v17, v17, v18")
        e(f"s_lshl_b32 s{sT0}, s{sW}, 8\nv_add_u32 v18, s{sT0}, v{vL4}\nds_write_b32 v18, v17 offset:32768\ns_waitcnt lgkmcnt(0)\ns_barrier")
        e(f"ds_read_b32 v20, v{vL4} offset:32768\nds_read_b32 v21, v{vL4} offset:{32768+256}\nds_read_b32 v22, v{vL4} offset:{32768+512}\nds_read_b32 v23, v{vL4} offset:{32768+768}\ns_waitcnt lgkmcnt(0)")
        e("v_add_f32 v20, v20, v21\nv_add_f32 v22, v22, v23\nv_add_f32 v20, v20, v22")
        Lcs = e.newlabel("P0CS")
        e(f"s_cmp_lg_u32 s{sW}, 0\ns_cbranch_scc1 {Lcs}")
        e(f"s_lshl_b32 s{sT0}, s{sG}, 7\ns_add_u32 s{sT0}, s{sT0}, {CS}\ns_mov_b32 exec_hi, 0")
        self.ws_store(20, f"s{sT0}", 0, voff=vL4, n=1)
        e("s_mov_b64 exec, -1")
        e.label(Lcs)
        e.label(Lskip)
        e.wait_vm(); e("s_barrier")
        L = e.newlabel("G0")
        e(f"s_cmp_lg_u32 s{sW}, 0\ns_cbranch_scc1 {L}")
        e(f"v_lshlrev_b32 v16, 10, v{vL}\ns_lshl_b32 s{sT0}, s{sG}, 2\ns_add_u32 s{sT0}, s{sT0}, {FL_G0}\nv_mov_b32 v17, s{sTAG}")
        e(f"s_mov_b64 exec, 0xff\nbuffer_store_dword v17, v16, s[{SRD_WS}:{SRD_WS+3}], s{sT0} offen sc1\ns_mov_b64 exec, -1")
        e(f"s_and_b32 s{sT0}, s{sG}, 7\ns_lshl_b32 s{sT0}, s{sT0}, 10\ns_add_u32 s{sT0}, s{sT0}, {FL_G0}")
        def setup():
            e(f"buffer_load_dwordx4 v[16:19], v{vL16}, s[{SRD_WS}:{SRD_WS+3}], s{sT0} offen sc1\ns_waitcnt vmcnt(0)")
            e(f"v_xor_b32 v16, s{sTAG}, v16\nv_xor_b32 v17, s{sTAG}, v17\nv_xor_b32 v18, s{sTAG}, v18\nv_xor_b32 v19, s{sTAG}, v19")
            e("v_or_b32 v16, v16, v17\nv_or_b32 v18, v18, v19\nv_or_b32 v16, v16, v18\nv_cmp_ne_u32 vcc, 0, v16")
        self.poll("g", setup)
        self.mode_detect()
        e.label(L)
        e("s_barrier")
        self.mode_read()
        e.reset_counters()

    def mode_detect(self):
        e = self.e
        Lp = e.newlabel("XPOLL"); Lok = e.newlabel("XOK")
        e(f"s_lshl_b32 s{sT0}, s{sC}, 5\ns_add_u32 s{sT0}, s{sT0}, {FL_XW}\nv_and_b32 v16, 7, v{vL}\nv_lshlrev_b32 v16, 2, v16\ns_mov_b32 s{sPOLL}, 0")
        e.label(Lp)
        e(f"buffer_load_dword v17, v16, s[{SRD_WS}:{SRD_WS+3}], s{sT0} offen sc1\ns_waitcnt vmcnt(0)")
        e(f"v_subrev_u32 v17, s{sTAG}, v17\nv_subrev_u32 v17, 16, v17\nv_cmp_le_u32 vcc, 16, v17")
        e(f"s_cbranch_vccz {Lok}")
        e(f"s_add_u32 s{sPOLL}, s{sPOLL}, 1\ns_cmp_lt_u32 s{sPOLL}, 400000\ns_cbranch_scc1 {Lp}\ns_branch L_END")
        e.label(Lok)
        e(f"v_cmp_ne_u32 vcc, s3, v17\ns_nop 4\ns_cmp_eq_u64 vcc, 0\ns_cselect_b32 s{sT1}, 1, 0")
        if getattr(self, "force_safe", False): e(f"s_mov_b32 s{sT1}, 0")
        e(f"v_mov_b32 v16, {MODEADDR}\nv_mov_b32 v17, s{sT1}\nds_write_b32 v16, v17\ns_waitcnt lgkmcnt(0)")
    def mode_read(self):
        e = self.e
        e(f"v_mov_b32 v16, {MODEADDR}\nds_read_b32 v17, v16\ns_waitcnt lgkmcnt(0)\nv_readfirstlane_b32 s{sMODE}, v17")


    def first_phase(self):
        e = self.e
        XI, WQI, WVI = 0, 65536, 131072
        STX, CSP, CSK, REDKV, VT, RED = 8192, 9216, 9728, 12288, 16384, 32768
        SRD_X, SRD_Q, SRD_P = 8, 68, 72
        pw = lambda i: (sIN + 2 * i, sIN + 2 * i + 1)
        sR = sA0
        for k, i in enumerate((1, 2, 3, 4, 6, 7)):
            e(f"s_mov_b32 s{88+2*k}, s{pw(i)[0]}\ns_mov_b32 s{89+2*k}, s{pw(i)[1]}")
        e(f"s_mov_b32 s{SRD_X}, s{sIN}\ns_mov_b32 s{SRD_X+1}, s{sIN+1}\ns_mov_b32 s{SRD_X+2}, {2048*1024}\ns_mov_b32 s{SRD_X+3}, 0x20000")
        e(f"s_mov_b32 s{SRD_Q}, s88\ns_mov_b32 s{SRD_Q+1}, s89\ns_mov_b32 s{SRD_Q+2}, {512*1024}\ns_mov_b32 s{SRD_Q+3}, 0x20000")
        e(f"v_mov_b32 v230, 0")
        e(f"buffer_load_dword v231, v230, s[{SRD_WS}:{SRD_WS+3}], 0 offen sc0 sc1")
        def x_rows(par_expr_sgpr, nrows, srow0):
            e(f"s_lshl_b32 s{sT3}, s{srow0}, 1\ns_add_u32 s{sT3}, s{sT3}, s{par_expr_sgpr}\ns_lshl_b32 s{sT4}, s{sC}, 6\ns_add_u32 s{sT3}, s{sT3}, s{sT4}\ns_lshl_b32 s{sT3}, s{sT3}, 10")
            e(f"s_lshl_b32 s{sT4}, s{par_expr_sgpr}, 5\ns_add_u32 s{sT4}, s{sT4}, s{srow0}\ns_lshl_b32 s{sT4}, s{sT4}, 10")
            e(f"s_and_b32 s{sT5}, s{srow0}, 15\ns_lshl_b32 s{sT5}, s{sT5}, 4")
            for t in range(nrows):
                e(f"v_xor_b32 v232, s{sT5}, v{vL16}\ns_mov_b32 m0, s{sT4}")
                e(f"buffer_load_dwordx4 v232, s[{SRD_X}:{SRD_X+3}], s{sT3} offen lds")
                if t < nrows - 1: e(f"s_add_u32 s{sT3}, s{sT3}, 2048\ns_add_u32 s{sT4}, s{sT4}, 1024\ns_add_u32 s{sT5}, s{sT5}, 16")
        def wq_rows(nit, srow_shift_expr):
            e(f"s_lshl_b32 s{sT3}, s{sT6}, 10\ns_lshl_b32 s{sT4}, s{sJ}, 7\ns_add_u32 s{sT3}, s{sT3}, s{sT4}\ns_lshl_b32 s{sT4}, s{sT6}, 7\ns_add_u32 s{sT4}, s{sT4}, {WQI}")
            for t in range(nit):
                e(f"s_mov_b32 m0, s{sT4}\ns_add_u32 s{sT4}, s{sT4}, 1024")
                e(f"buffer_load_dwordx4 v233, s[{SRD_Q}:{SRD_Q+3}], s{sT3} offen lds")
                if t < nit - 1: e(f"s_add_u32 s{sT3}, s{sT3}, 8192")
        e(f"v_lshrrev_b32 v233, 3, v{vL}\nv_lshlrev_b32 v233, 10, v233\nv_and_b32 v234, 7, v{vL}\nv_lshl_add_u32 v233, v234, 4, v233")
        if getattr(self, "prepmap", 0) == 0:
            e(f"s_sub_u32 s{sR}, s{sJ}, 2\ns_lshl_b32 s{sR}, s{sR}, 5\ns_add_u32 s{sR}, s{sR}, s{sC}\ns_cmp_lt_u32 s{sJ}, 2\ns_cselect_b32 s{sR}, 255, s{sR}")
        else:
            e(f"s_mul_i32 s{sR}, s{sC}, 6\ns_add_u32 s{sR}, s{sR}, s{sJ}\ns_sub_u32 s{sR}, s{sR}, 2\ns_cmp_lt_u32 s{sJ}, 2\ns_cselect_b32 s{sR}, 255, s{sR}")
        def _pl():
            Lnp = e.newlabel("FNP"); Lgo = e.newlabel("FGO"); Lkvb = e.newlabel("FKVB")
            e(f"s_cmp_ge_u32 s{sR}, 97\ns_cbranch_scc1 {Lnp}")
            e(f"s_cmp_eq_u32 s{sR}, 16\ns_cbranch_scc1 {Lkvb}")
            e(f"s_mov_b32 s{SRD_P}, s88\ns_mov_b32 s{SRD_P+1}, s89\ns_mov_b32 s{SRD_P+2}, {512*1024}\ns_mov_b32 s{sA2}, 1024\ns_lshl_b32 s{sA3}, s{sR}, 6")
            e(f"s_cmp_lt_u32 s{sR}, 16\ns_cbranch_scc1 {Lgo}")
            e(f"s_mov_b32 s{SRD_P}, s94\ns_mov_b32 s{SRD_P+1}, s95\ns_sub_u32 s{sA3}, s{sR}, 17\ns_lshl_b32 s{sA3}, s{sA3}, 6")
            e(f"s_cmp_lt_u32 s{sR}, 33\ns_cbranch_scc1 {Lgo}")
            e(f"s_mov_b32 s{SRD_P}, s96\ns_mov_b32 s{SRD_P+1}, s97\ns_mov_b32 s{SRD_P+2}, {512*3072}\ns_mov_b32 s{sA2}, 3072\ns_sub_u32 s{sA3}, s{sR}, 33\ns_lshl_b32 s{sA3}, s{sA3}, 6")
            e(f"s_cmp_lt_u32 s{sR}, 81\ns_cbranch_scc1 {Lgo}")
            e(f"s_mov_b32 s{SRD_P}, s98\ns_mov_b32 s{SRD_P+1}, s99\ns_mov_b32 s{SRD_P+2}, {512*1024}\ns_mov_b32 s{sA2}, 1024\ns_sub_u32 s{sA3}, s{sR}, 81\ns_lshl_b32 s{sA3}, s{sA3}, 6")
            e.label(Lgo)
            e(f"s_mov_b32 s{SRD_P+3}, 0x20000")
            e(f"v_lshrrev_b32 v235, 2, v{vL}\nv_mul_lo_u32 v235, v235, s{sA2}\nv_and_b32 v236, 3, v{vL}\nv_lshl_add_u32 v235, v236, 4, v235")
            e(f"s_lshl_b32 s{sT0}, s{sW}, 7\ns_mul_i32 s{sT0}, s{sT0}, s{sA2}\ns_add_u32 s{sT0}, s{sT0}, s{sA3}\ns_lshl_b32 s{sT1}, s{sA2}, 4")
            for it in range(8):
                e(f"buffer_load_dwordx4 a[{4*it}:{4*it+3}], v235, s[{SRD_P}:{SRD_P+3}], s{sT0} offen")
                if it < 7: e(f"s_add_u32 s{sT0}, s{sT0}, s{sT1}")
            e(f"s_branch {Lnp}")
            e.label(Lkvb)
            e(f"v_lshrrev_b32 v235, 2, v{vL}\nv_lshlrev_b32 v235, 5, v235\nv_and_b32 v236, 1, v{vL}\nv_lshl_add_u32 v235, v236, 4, v235")
            e(f"s_lshl_b32 s{sT0}, s{sW}, 12")
            e(f"v_and_b32 v236, 2, v{vL}\nv_cmp_eq_u32 vcc, 0, v236")
            e(f"s_mov_b32 s{SRD_P}, s92\ns_mov_b32 s{SRD_P+1}, s93\ns_mov_b32 s{SRD_P+2}, {512*32}\ns_mov_b32 s{SRD_P+3}, 0x20000")
            e(f"s_mov_b64 s[{sM0}:{sM0+1}], vcc\ns_mov_b64 exec, s[{sM0}:{sM0+1}]")
            for it in range(8):
                e(f"buffer_load_dwordx4 a[{4*it}:{4*it+3}], v235, s[{SRD_P}:{SRD_P+3}], s{sT0} offen offset:{it*512}")
            e(f"s_mov_b64 exec, -1\ns_andn2_b64 exec, exec, s[{sM0}:{sM0+1}]")
            e(f"s_mov_b32 s{SRD_P}, s90\ns_mov_b32 s{SRD_P+1}, s91\ns_mov_b32 s{SRD_P+2}, {512*32}\ns_mov_b32 s{SRD_P+3}, 0x20000")
            for it in range(8):
                e(f"buffer_load_dwordx4 a[{4*it}:{4*it+3}], v235, s[{SRD_P}:{SRD_P+3}], s{sT0} offen offset:{it*512}")
            e("s_mov_b64 exec, -1")
            e.label(Lnp)
        self._prep_loads = _pl
        Lnk = e.newlabel("FNK"); Lcommon = e.newlabel("FCOM"); Lkvw = e.newlabel("FKVW")
        e(f"s_cmp_ge_u32 s{sJ}, 2\ns_cbranch_scc1 {Lnk}")
        for m, (ptr, base) in enumerate(((92, WVI), (90, WVI + 16384))):
            e(f"s_mov_b32 s{SRD_P}, s{ptr}\ns_mov_b32 s{SRD_P+1}, s{ptr+1}\ns_mov_b32 s{SRD_P+2}, 16384\ns_mov_b32 s{SRD_P+3}, 0x20000")
            e(f"s_lshl_b32 s{sT0}, s{sW}, 12\ns_add_u32 s{sT1}, s{sT0}, {base}\ns_mov_b32 m0, s{sT1}\ns_nop 0")
            for t in range(4):
                e(f"buffer_load_dwordx4 v{vL16}, s[{SRD_P}:{SRD_P+3}], s{sT0} offen offset:{t*1024} lds")
        e(f"s_lshl_b32 s{sT6}, s{sW}, 3")
        x_rows(sJ, 8, sT6)
        e(f"s_branch {Lcommon}")
        e.label(Lnk)
        self._prep_loads()
        e(f"s_lshr_b32 s{sT7}, s{sW}, 1\ns_and_b32 s{sT6}, s{sW}, 1\ns_lshl_b32 s{sT6}, s{sT6}, 4")
        x_rows(sT7, 16, sT6)
        e(f"s_lshl_b32 s{sT6}, s{sW}, 7")
        wq_rows(16, None)
        e.label(Lcommon)
        e(f"v_and_b32 v16, 31, v{vL}\nv_lshlrev_b32 v16, 11, v16\nv_lshrrev_b32 v17, 5, v{vL}\nv_lshl_add_u32 v16, v17, 3, v16")
        e(f"s_lshl_b32 s{sT0}, s{sC}, 6\ns_add_u32 s{sT0}, s{sT0}, s{sP}\ns_lshl_b32 s{sT0}, s{sT0}, 10\ns_lshl_b32 s{sT1}, s{sNB}, 6\ns_add_u32 s{sT0}, s{sT0}, s{sT1}")
        for q in range(4):
            e(f"buffer_load_dwordx2 v[{XR+2*q}:{XR+2*q+1}], v16, s[{SRD_X}:{SRD_X+3}], s{sT0} offen offset:{16*q}")
        self.stamp("f_issued")
        e(f"v_and_b32 v16, 31, v{vL}\nv_lshrrev_b32 v17, 5, v{vL}\nv_and_b32 v18, 15, v16\nv_lshlrev_b32 v19, 10, v16")
        e(f"s_lshl_b32 s{sT0}, s{sP}, 15\ns_lshl_b32 s{sT1}, s{sKH}, 9\ns_add_u32 s{sT0}, s{sT0}, s{sT1}\nv_add_u32 v19, s{sT0}, v19")
        for b in range(8):
            e(f"v_add_u32 v20, {2*b}, v17\nv_xor_b32 v20, v20, v18\nv_lshl_add_u32 v{240+b}, v20, 4, v19")
        e(f"v_and_b32 v18, 15, v{vL}\nv_lshrrev_b32 v20, 2, v18\nv_lshl_add_u32 v20, v17, 3, v20\nv_lshlrev_b32 v21, 7, v20")
        e(f"v_bfe_u32 v22, v{vL}, 4, 1\nv_lshl_add_u32 v21, v22, 5, v21\nv_and_b32 v23, 3, v18\nv_lshl_add_u32 v21, v23, 3, v21")
        e(f"s_lshl_b32 s{sT0}, s{sKH}, 15\ns_add_u32 s{sT0}, s{sT0}, {WQI}\ns_lshl_b32 s{sT1}, s{sKH}, 6\ns_add_u32 s{sT2}, s{sT0}, s{sT1}\nv_add_u32 v248, s{sT2}, v21")
        e(f"s_xor_b32 s{sT1}, s{sT1}, 64\ns_add_u32 s{sT2}, s{sT0}, s{sT1}\nv_add_u32 v249, s{sT2}, v21")
        e(f"v_lshlrev_b32 v21, 5, v20\nv_lshl_add_u32 v21, v22, 14, v21\nv_lshl_add_u32 v21, v23, 3, v21")
        e(f"s_lshl_b32 s{sT0}, s{sKH}, 13\ns_add_u32 s{sT0}, s{sT0}, {WVI}\nv_add_u32 v250, s{sT0}, v21")
        STXK, CSK, REDKV, VT = WVI, WVI + 256, WVI + 8192 + 512, WVI + 1024
        STX2, CSP, RED = WVI + 13312, WVI + 14336, WVI + 16384
        ONE = 229
        def xreads():
            for t in range(16):
                e(f"ds_read_b128 v[{16+4*t}:{19+4*t}], v{240+(t&7)} offset:{(t>>3)*256}")
            e(f"v_mov_b32 v{ONE}, 0x3f803f80\nv_mov_b32 v224, 0\nv_mov_b32 v225, 0\nv_mov_b32 v226, 0\nv_mov_b32 v236, 0\nv_mov_b32 v237, 0\nv_mov_b32 v238, 0")
            e("s_waitcnt lgkmcnt(0)")
        def stats_ops(t):
            acc = lambda k, d: ((224, 236), (225, 237))[k][d & 1]
            return [f"v_dot2c_f32_bf16 v{acc(k,d)}, v{ONE if k == 0 else 16+4*t+d}, v{16+4*t+d}" for d in range(4) for k in range(2)]
        def stats_write(sbase):
            e("v_add_f32 v224, v224, v236\nv_add_f32 v225, v225, v237")
            e("v_permlane32_swap_b32 v224, v225\nv_add_f32 v224, v224, v225")
            e(f"v_add_u32 v227, s{sbase}, v{vL4}\nds_write_b32 v227, v224")
        def stats_read(sbase, second):
            e(f"v_and_b32 v227, 31, v{vL}\nv_lshlrev_b32 v227, 2, v227\nv_add_u32 v227, s{sbase}, v227")
            e(f"ds_read_b32 v224, v227\nds_read_b32 v225, v227 offset:128\nds_read_b32 v226, v227 offset:{second}\nds_read_b32 v228, v227 offset:{second+128}")
            e("s_waitcnt lgkmcnt(0)")
            e(f"v_add_f32 v224, v224, v226\nv_add_f32 v225, v225, v228")
            e(f"v_mul_f32 v178, {fbits(1/512)}, v224\nv_mul_f32 v225, {fbits(1/512)}, v225\nv_fma_f32 v225, -v178, v178, v225\nv_add_f32 v225, {fbits(1e-5)}, v225\nv_rsq_f32 v179, v225")
        def cs_read(dst, base, second):
            e(f"v_lshrrev_b32 v228, 5, v{vL}\nv_lshlrev_b32 v228, 4, v228\nv_add_u32 v228, {base}, v228")
            for q in range(4):
                e(f"ds_read_b128 v[{dst+4*q}:{dst+3+4*q}], v228 offset:{32*q}\nds_read_b128 v[{112+4*q}:{115+4*q}], v228 offset:{second+32*q}")
            e("s_waitcnt lgkmcnt(0)")
            for r in range(16): e(f"v_add_f32 v{dst+r}, v{dst+r}, v{112+r}")
        def qpass(with_stats, mid=None, after_stats=None):
            Lp1 = e.newlabel("FQP1"); Lpd = e.newlabel("FQPD")
            for r in range(4): e(f"v_mov_b32 v{232+r}, 0x3f803f80")
            if with_stats:
                for t in range(16):
                    for x in stats_ops(t): e(x)
            if after_stats: after_stats()
            e(f"s_cmp_eq_u32 s{sP}, 1\ns_cbranch_scc1 {Lp1}")
            for var in range(2):
                if var == 1: e.label(Lp1)
                def rd(t):
                    r = 112 + (t % 4) * 8
                    e(f"ds_read_b64_tr_b16 v[{r}:{r+1}], v248 offset:{t*2048}\nds_read_b64_tr_b16 v[{r+2}:{r+3}], v248 offset:{t*2048+512}")
                    e(f"ds_read_b64_tr_b16 v[{r+4}:{r+5}], v249 offset:{t*2048}\nds_read_b64_tr_b16 v[{r+6}:{r+7}], v249 offset:{t*2048+512}")
                for t in range(3): rd(t)
                for t in range(16):
                    if t + 3 < 16: rd(t + 3)
                    e(f"s_waitcnt lgkmcnt({4*min(3, 15-t)})")
                    r = 112 + (t % 4) * 8
                    e(f"v_mfma_f32_32x32x16_bf16 v[80:95], v[{r}:{r+3}], v[{16+4*t}:{19+4*t}], {'0' if t == 0 else 'v[80:95]'}")
                    e(f"v_mfma_f32_32x32x16_bf16 v[96:111], v[{r+4}:{r+7}], v[{16+4*t}:{19+4*t}], {'0' if t == 0 else 'v[96:111]'}")
                    e(f"v_mfma_f32_32x32x16_bf16 v[144:159], v[{r+4*var}:{r+4*var+3}], v[232:235], {'0' if t == 0 else 'v[144:159]'}")
                    if mid and t == 7: mid()
                if var == 0: e(f"s_branch {Lpd}")
            e.label(Lpd)
            e(f"s_xor_b32 s{sT1}, s{sKH}, s{sP}\ns_lshl_b32 s{sT1}, s{sT1}, 8\ns_lshl_b32 s{sT2}, s{sKH}, 7\ns_add_u32 s{sT1}, s{sT1}, s{sT2}\ns_add_u32 s{sT1}, s{sT1}, {CSP}")
            e(f"v_lshrrev_b32 v228, 5, v{vL}\nv_lshlrev_b32 v228, 4, v228\nv_add_u32 v228, s{sT1}, v228")
            e("s_mov_b32 exec_lo, 1\ns_mov_b32 exec_hi, 1")
            for q in range(4): e(f"ds_write_b128 v228, v[{144+4*q}:{147+4*q}] offset:{32*q}")
            e("s_mov_b64 exec, -1")
        def prep_process():
            Lcs = e.newlabel("FPCS")
            PL = WVI
            e("s_waitcnt vmcnt(36)")
            e(f"s_lshl_b32 s{sT0}, s{sW}, 13\ns_add_u32 s{sT0}, s{sT0}, {PL}\nv_add_u32 v17, s{sT0}, v{vL16}")
            for it in range(8):
                e(f"ds_write_b128 v17, a[{4*it}:{4*it+3}] offset:{it*1024}")
            e(f"v_and_b32 v18, 15, v{vL}\nv_lshrrev_b32 v19, 2, v18\nv_lshrrev_b32 v20, 5, v{vL}\nv_lshl_add_u32 v19, v20, 2, v19\nv_lshlrev_b32 v19, 6, v19")
            e(f"v_and_b32 v20, 3, v18\nv_lshl_add_u32 v19, v20, 3, v19\nv_bfe_u32 v20, v{vL}, 4, 1\nv_lshl_add_u32 v19, v20, 5, v19\nv_add_u32 v19, s{sT0}, v19")
            e("s_waitcnt lgkmcnt(0)")
            for t in range(8):
                e(f"ds_read_b64_tr_b16 v[{32+4*t}:{33+4*t}], v19 offset:{t*1024}")
                e(f"ds_read_b64_tr_b16 v[{34+4*t}:{35+4*t}], v19 offset:{t*1024+512}")
            e(f"s_lshl_b32 s{sT2}, s{sR}, 15\ns_lshl_b32 s{sT1}, s{sW}, 13\ns_add_u32 s{sT2}, s{sT2}, s{sT1}\ns_add_u32 s{sT2}, s{sT2}, {WF}\ns_add_u32 s{sT1}, s{sT2}, 4096")
            e("v_mov_b32 v16, 0x3f803f80\nv_mov_b32 v17, 0")
            e("s_waitcnt lgkmcnt(0)")
            for t in range(8):
                e(f"buffer_store_dwordx4 v[{32+4*t}:{35+4*t}], v{vL16}, s[{SRD_WS}:{SRD_WS+3}], s{sT2 if t < 4 else sT1} offen offset:{(t%4)*1024} sc1")
            e("v_mov_b32 v21, 0\nv_mov_b32 v22, 0\nv_mov_b32 v23, 0")
            for i in range(32):
                ac = (17, 21, 22, 23)[i % 4]
                e(f"v_dot2c_f32_bf16 v{ac}, v16, v{32+i}")
            e("v_add_f32 v21, v21, v22\nv_add_f32 v17, v17, v23\nv_add_f32 v17, v17, v21")
            e("v_mov_b32 v18, v17\nv_permlane32_swap_b32 v17, v18\nv_add_f32 v17, v17, v18")
            e(f"v_add_u32 v18, s{sT0}, v{vL4}\nds_write_b32 v18, v17\ns_waitcnt lgkmcnt(0)\ns_barrier")
            e(f"s_cmp_lg_u32 s{sW}, 0\ns_cbranch_scc1 {Lcs}")
            e(f"v_add_u32 v18, {PL}, v{vL4}")
            e(f"ds_read_b32 v20, v18\nds_read_b32 v21, v18 offset:8192\nds_read_b32 v22, v18 offset:16384\nds_read_b32 v23, v18 offset:24576\ns_waitcnt lgkmcnt(0)")
            e("v_add_f32 v20, v20, v21\nv_add_f32 v22, v22, v23\nv_add_f32 v20, v20, v22")
            e(f"s_lshl_b32 s{sT0}, s{sR}, 7\ns_add_u32 s{sT0}, s{sT0}, {CS}\ns_mov_b32 exec_hi, 0")
            e(f"buffer_store_dword v20, v{vL4}, s[{SRD_WS}:{SRD_WS+3}], s{sT0} offen sc1\ns_mov_b64 exec, -1")
            e.label(Lcs)
        Lkvp = e.newlabel("FKVP"); Lnkw = e.newlabel("FNKW"); Lqs = e.newlabel("FQS"); Lq2 = e.newlabel("FQ2"); Lred = e.newlabel("FRED"); Lep = e.newlabel("FEP")
        e(f"s_cmp_ge_u32 s{sJ}, 2\ns_cbranch_scc1 {Lnkw}")
        e(f"s_cmp_eq_u32 s{sP}, s{sJ}\ns_cbranch_scc1 {Lkvp}")
        e("s_waitcnt vmcnt(4)")
        self.tag_from(231)
        e("s_barrier")
        e(f"s_xor_b32 s{sT7}, s{sJ}, 1\ns_lshl_b32 s{sT6}, s{sKH}, 4")
        x_rows(sT7, 16, sT6)
        e(f"s_lshl_b32 s{sT6}, s{sKH}, 8")
        wq_rows(12, None)
        e("s_barrier")
        e(f"s_lshl_b32 s{sT6}, s{sKH}, 8\ns_add_u32 s{sT6}, s{sT6}, 96")
        wq_rows(20, None)
        e("s_waitcnt vmcnt(0)")
        e("s_barrier")
        e(f"s_branch {Lqs}")
        e.label(Lkvp)
        e("s_waitcnt vmcnt(4)")
        self.tag_from(231)
        e("s_barrier")
        self.stamp("f_b0")
        fl = getattr(self, "light", None) == "fkv"
        if fl: self.lstamp(0)
        xreads()
        if fl: self.lstamp(1)
        def kvrd(t): e(f"ds_read_b64_tr_b16 v[{160+4*t}:{161+4*t}], v250 offset:{t*512}\nds_read_b64_tr_b16 v[{162+4*t}:{163+4*t}], v250 offset:{t*512+128}")
        for t in range(6): kvrd(t)
        for t in range(16):
            for x in stats_ops(t): e(x)
            if 6 + t < 16: kvrd(6 + t)
        e("s_waitcnt lgkmcnt(0)")
        for t in range(16):
            for d in range(4): e(f"v_dot2c_f32_bf16 v{226 if d % 2 == 0 else 238}, v{ONE}, v{160+4*t+d}")
        for t in range(16):
            e(f"v_mfma_f32_32x32x16_bf16 v[144:159], v[{160+4*t}:{163+4*t}], v[{16+4*t}:{19+4*t}], {'0' if t == 0 else 'v[144:159]'}")
        if fl: self.lstamp(2)
        e(f"s_lshl_b32 s{sT0}, s{sKH}, 13\ns_add_u32 s{sT0}, s{sT0}, {STXK}")
        stats_write(sT0)
        e(f"s_add_u32 s{sT1}, s{sT0}, 256")
        e("v_add_f32 v226, v226, v238\nv_mov_b32 v228, v226\nv_permlane32_swap_b32 v226, v228\nv_add_f32 v226, v226, v228")
        e(f"v_add_u32 v228, s{sT1}, v{vL4}\ns_mov_b32 exec_hi, 0\nds_write_b32 v228, v226\ns_mov_b64 exec, -1")
        Lx = e.newlabel("FKW")
        e(f"s_cmp_eq_u32 s{sKH}, 0\ns_cbranch_scc1 {Lx}")
        e(f"v_add_u32 v{vT0}, {REDKV}, v{vL16}")
        for q in range(4):
            e(f"ds_write_b128 v{vT0}, v[{144+4*q}:{147+4*q}] offset:{q*1024}")
        e.label(Lx)
        e("s_waitcnt lgkmcnt(0)")
        if fl: self.lstamp(3)
        e("s_barrier")
        if fl: self.lstamp(4)
        e(f"s_mov_b32 s{sT0}, {STXK}")
        stats_read(sT0, 8192)
        if fl: self.lstamp(5)
        Lk1 = e.newlabel("FK1")
        e(f"s_cmp_lg_u32 s{sKH}, 0\ns_cbranch_scc1 {Lk1}")
        self.kv_epilogue(REDKV, VT, 196, 178, 179, pre=lambda: cs_read(196, CSK, 8192), defer_flag=True)
        e.label(Lk1)
        e("s_barrier")
        def mid():
            Lm = e.newlabel("FKF")
            e(f"s_cmp_lg_u32 s{sKH}, 0\ns_cbranch_scc1 {Lm}")
            self.kv_flag()
            e.label(Lm)
        qpass(False, mid)
        self.stamp("f_kv")
        e("s_waitcnt vmcnt(0)")
        e(f"s_branch {Lred}")
        e.label(Lnkw)
        Lw0 = e.newlabel("FW0"); Lw1 = e.newlabel("FW1")
        e(f"s_cmp_ge_u32 s{sR}, 97\ns_cbranch_scc1 {Lw0}")
        prep_process()
        Lw2 = e.newlabel("FW2")
        e(f"s_cmp_eq_u32 s{sW}, 0\ns_cbranch_scc1 {Lw2}")
        e(f"s_waitcnt vmcnt(8)\ns_branch {Lw1}")
        e.label(Lw2)
        e(f"s_waitcnt vmcnt(9)\ns_branch {Lw1}")
        e.label(Lw0)
        e("s_waitcnt vmcnt(0)")
        e.label(Lw1)
        self.tag_from(231)
        e("s_barrier")
        e.label(Lqs)
        self.stamp("f_landed")
        fq = getattr(self, "light", None) == "fq"
        if fq: self.lstamp(0)
        xreads()
        if fq: self.lstamp(1)
        qpass(True, after_stats=(lambda: self.lstamp(2)) if fq else None)
        if fq: self.lstamp(3)
        e(f"s_lshl_b32 s{sT0}, s{sW}, 8\ns_add_u32 s{sT0}, s{sT0}, {STX2}")
        stats_write(sT0)
        e.label(Lred)
        self.reduce_pair(red=RED)
        if fq: self.lstamp(4)
        Lst = e.newlabel("FST"); Lst2 = e.newlabel("FST2")
        e(f"s_lshl_b32 s{sT1}, s{sKH}, 8\ns_add_u32 s{sT1}, s{sT1}, {CSP}")
        e(f"v_lshrrev_b32 v228, 5, v{vL}\nv_lshlrev_b32 v228, 4, v228\nv_add_u32 v228, s{sT1}, v228")
        for q in range(4):
            e(f"ds_read_b128 v[{196+4*q}:{199+4*q}], v228 offset:{32*q}\nds_read_b128 v[{112+4*q}:{115+4*q}], v228 offset:{128+32*q}")
        e(f"s_cmp_eq_u32 s{sP}, s{sJ}\ns_cbranch_scc1 {Lst}")
        e(f"s_lshl_b32 s{sT0}, s{sP}, 8\ns_add_u32 s{sT0}, s{sT0}, {STX2}")
        stats_read(sT0, 512)
        e.label(Lst)
        e("s_waitcnt lgkmcnt(0)")
        for r in range(0, 16, 2): e(f"v_pk_add_f32 v[{196+r}:{197+r}], v[{196+r}:{197+r}], v[{112+r}:{113+r}]")
        if fq: self.lstamp(5)
        self.q_epilogue(196, 178, 179)
        if fq:
            self.lstamp(6); self.lstamp(7); self.lflush("fq")
        self.stamp("f_q")
        e(f"s_mov_b32 s{sRANK}, s{sR}")
        e.reset_counters()

    def half_setup(self):
        e = self.e
        e(f"s_lshl_b32 s{sT0}, s{sHALF}, 22")
        e(f"s_add_u32 s{sXIN}, s{sT0}, {X0}\ns_add_u32 s{sXMID}, s{sXIN}, 0x200000\ns_add_u32 s{sXOUT}, s{sXIN}, 0x400000")
        e(f"s_lshl_b32 s{sT0}, s{sHALF}, 19")
        e(f"s_add_u32 s{sSTIN}, s{sT0}, {ST0}\ns_add_u32 s{sSTMID}, s{sSTIN}, 0x40000\ns_add_u32 s{sSTOUT}, s{sSTIN}, 0x80000")
        e(f"s_lshl_b32 s{sT0}, s{sHALF}, 21")
        e(f"s_add_u32 s{sOA}, s{sT0}, {OA}\ns_add_u32 s{sOB}, s{sT0}, {OB}")
        e(f"s_lshl_b32 s{sT0}, s{sHALF}, 20\ns_add_u32 s{sHX}, s{sT0}, {HX}")
        e(f"s_lshl_b32 s{sT0}, s{sHALF}, 18\ns_add_u32 s{sKF}, s{sT0}, {KF}")
        e(f"s_lshl_b32 s{sT0}, s{sHALF}, 14\ns_add_u32 s{sFLC}, s{sT0}, {FL_C}")
        e(f"s_lshl_b32 s{sT0}, s{sHALF}, 18\ns_add_u32 s{sSTH}, s{sT0}, {STH}")


    def w_pair_bases(self, wb, sK, sS):
        e = self.e
        e(f"s_lshl_b32 s{sT2}, s{sKH}, 14")
        e(f"s_add_u32 s{sK}, s{sNB}, {wb}\ns_lshl_b32 s{sK}, s{sK}, 15\ns_add_u32 s{sK}, s{sK}, s{sT2}\ns_add_u32 s{sK}, s{sK}, {WF}")
        e(f"s_xor_b32 s{sS}, s{sNB}, 1\ns_add_u32 s{sS}, s{sS}, {wb}\ns_lshl_b32 s{sS}, s{sS}, 15\ns_add_u32 s{sS}, s{sS}, s{sT2}\ns_add_u32 s{sS}, s{sS}, {WF}")
    def alias_setup(self):
        if getattr(self, "noalias", False): return
        e = self.e
        L = e.newlabel("ALIAS")
        e(f"s_cmp_eq_u32 s{sMODE}, 0\ns_cbranch_scc1 {L}")
        e(f"s_mov_b32 s{sOA}, {OA}\ns_mov_b32 s{sOB}, {OA}")
        e(f"s_mov_b32 s{sXIN}, {X0 + 0x200000}\ns_mov_b32 s{sXMID}, {X0 + 0x200000}\ns_mov_b32 s{sXOUT}, {X0 + 0x200000}")
        e(f"s_mov_b32 s{sSTIN}, {ST0 + 0x40000}\ns_mov_b32 s{sSTMID}, {ST0 + 0x40000}\ns_mov_b32 s{sSTOUT}, {ST0 + 0x40000}")
        e.label(L)

    def wpair_dma3(self, wb, ldsbase):
        e = self.e
        L = e.newlabel("DMA3")
        e(f"s_cmp_eq_u32 s{sW}, 0\ns_cbranch_scc1 {L}")
        e(f"s_sub_u32 s{sT0}, s{sW}, 1\ns_mul_i32 s{sT0}, s{sT0}, {21*1024}\ns_add_u32 s{sA4}, s{sT0}, {ldsbase}")
        e(f"s_lshl_b32 s{sA5}, s{sJ}, 16\ns_add_u32 s{sA5}, s{sA5}, s{sT0}\ns_add_u32 s{sA5}, s{sA5}, {WF + wb*32768}")
        for t in range(22):
            if t % 4 == 0:
                e(f"s_mov_b32 m0, s{sA4}\ns_add_u32 s{sA4}, s{sA4}, 4096")
                if t: e(f"s_add_u32 s{sA5}, s{sA5}, 4096")
                else: e("s_nop 0")
            e(f"buffer_load_dwordx4 v{vL16}, s[{SRD_WS}:{SRD_WS+3}], s{sA5} offen offset:{(t%4)*1024} sc1 lds")
        e.label(L)

    def load_w_pair(self, wb, dk, ds, acc=True):
        self.w_pair_bases(wb, sT0, sT1)
        self.load_frags(dk, sT0, 16, acc=acc)
        return self.load_frags(ds, sT1, 16, acc=acc)

    def load_act_half(self, sbuf, nfirst=16):
        e = self.e
        e(f"s_lshl_b32 s{sACT}, s{sRB}, 15\ns_lshl_b32 s{sT1}, s{sKH}, 14\ns_add_u32 s{sACT}, s{sACT}, s{sT1}\ns_add_u32 s{sACT}, s{sACT}, s{sbuf}")
        self._act = {}
        for t in range(nfirst): self.act_issue(t)
        return self._act
    def act_issue(self, t):
        if t >= 16 or t in self._act: return
        e = self.e
        if t % 4 == 0 and t: e(f"s_add_u32 s{sACT}, s{sACT}, 4096")
        self._act[t] = self.ws_load(16 + 4 * t, f"s{sACT}", (t % 4) * 1024)

    RED = 131072; REDKV = 147456; VT = 151552
    WL0 = 0; WL1 = 65536
    WKVL = 0
    def reduce_pair(self, red=None, extra_write=None, after_writes=None, after_reads=None):
        e = self.e
        red = self.RED if red is None else red
        e(f"s_lshl_b32 s{sT0}, s{sW}, 12\ns_add_u32 s{sT0}, s{sT0}, {red}\nv_add_u32 v{vT0}, s{sT0}, v{vL16}")
        e(f"s_xor_b32 s{sT0}, s{sT0}, 8192\nv_add_u32 v{vT1}, s{sT0}, v{vL16}")
        for q in range(4):
            e(f"ds_write_b128 v{vT0}, v[{96+4*q}:{99+4*q}] offset:{q*1024}")
        if extra_write: extra_write()
        if after_writes: after_writes()
        e("s_waitcnt lgkmcnt(0)\ns_barrier")
        for q in range(4):
            e(f"ds_read_b128 v[{96+4*q}:{99+4*q}], v{vT1} offset:{q*1024}")
        if after_reads: after_reads()
        for q in range(4):
            e(f"s_waitcnt lgkmcnt({3-q})")
            for r in range(4 * q, 4 * q + 4, 2):
                e(f"v_pk_add_f32 v[{80+r}:{81+r}], v[{80+r}:{81+r}], v[{96+r}:{97+r}]")
        e.lg = []

    def load_cs(self, dst, sidx_expr_reg, vaddr):
        tok = None
        for q in range(4):
            tok = self.ws_load(dst + 4 * q, f"s{sidx_expr_reg}", 32 * q, voff=vaddr)
        return tok

    def dma(self, soff, imm):
        return self.e.vmem(f"buffer_load_dwordx4 v{vL16}, s[{SRD_WS}:{SRD_WS+3}], {soff} offen offset:{imm} sc1 lds")
    def wpair_dma_list(self, wb, ldsbase, sM, sS):
        setup = [f"s_lshl_b32 s{sT0}, s{sW}, 14", f"s_add_u32 s{sM}, s{sT0}, {ldsbase}",
                 f"s_lshl_b32 s{sS}, s{sJ}, 16", f"s_add_u32 s{sS}, s{sS}, s{sT0}", f"s_add_u32 s{sS}, s{sS}, {WF + wb*32768}"]
        items = []
        for g in range(4):
            for t in range(4):
                pre = [f"s_mov_b32 m0, s{sM}", f"s_add_u32 s{sM}, s{sM}, 4096"] if t == 0 else []
                post = [f"s_add_u32 s{sS}, s{sS}, 4096"] if t == 3 else []
                items.append((pre, f"buffer_load_dwordx4 v{vL16}, s[{SRD_WS}:{SRD_WS+3}], s{sS} offen offset:{t*1024} sc1 lds", post))
        return setup, items
    def emit_item(self, it):
        pre, ld, post = it
        for x in pre: self.e(x)
        t = self.e.vmem(ld)
        for x in post: self.e(x)
        return t
    def wpair_dma(self, wb, ldsbase):
        setup, items = self.wpair_dma_list(wb, ldsbase, sA4, sA5)
        for x in setup: self.e(x)
        t = None
        for it in items: t = self.emit_item(it)
        return t

    WR = 112
    def pair_addrs(self, ldsbase):
        e = self.e
        e(f"s_lshl_b32 s{sT2}, s{sKH}, 14\ns_lshl_b32 s{sT3}, s{sKH}, 15\ns_add_u32 s{sT3}, s{sT3}, s{sT2}\ns_add_u32 s{sT3}, s{sT3}, {ldsbase}\nv_add_u32 v{vWK}, s{sT3}, v{vL16}")
        e(f"s_xor_b32 s{sT3}, s{sKH}, 1\ns_lshl_b32 s{sT3}, s{sT3}, 15\ns_add_u32 s{sT3}, s{sT3}, s{sT2}\ns_add_u32 s{sT3}, s{sT3}, {ldsbase}\nv_add_u32 v{vWS}, s{sT3}, v{vL16}")
    def pair_prime(self):
        e = self.e; self._wt = {}
        for t in range(3): self._pair_read(t)
    def _pair_read(self, t):
        e = self.e; r = self.WR + (t % 4) * 8
        e.lds(f"ds_read_b128 v[{r}:{r+3}], v{vWK} offset:{t*1024}")
        self._wt[t] = e.lds(f"ds_read_b128 v[{r+4}:{r+7}], v{vWS} offset:{t*1024}")
    def pair_mfma(self, toks, inter=None, AH=None):
        AH = self.AH if AH is None else AH
        e = self.e
        for t in range(16):
            if t + 3 < 16: self._pair_read(t + 3)
            if toks is not None:
                self.act_issue(t + AH)
                e.wait_vm(toks[t])
            e.wait_lg(self._wt[t])
            r = self.WR + (t % 4) * 8
            e(f"v_mfma_f32_32x32x16_bf16 v[80:95], v[{r}:{r+3}], v[{16+4*t}:{19+4*t}], {'0' if t == 0 else 'v[80:95]'}")
            e(f"v_mfma_f32_32x32x16_bf16 v[96:111], v[{r+4}:{r+7}], v[{16+4*t}:{19+4*t}], {'0' if t == 0 else 'v[96:111]'}")
            if inter: inter(t)

    QL = 0; PS = 8192; SLOT = 2304; FAIL = 63488
    CSQ, CSKV = 180, 196
    def g4_prefetch_cs(self):
        e = self.e
        e(f"v_lshrrev_b32 v212, 5, v{vL}\nv_lshlrev_b32 v212, 4, v212")
        e(f"s_add_u32 s{sT0}, s{sNB}, {WB_Q}\ns_lshl_b32 s{sT0}, s{sT0}, 7\ns_add_u32 s{sT0}, s{sT0}, {CS}")
        self.load_cs(self.CSQ, sT0, 212)
        e(f"s_mov_b32 s{sT0}, {CS + WB_KV*128}")
        return self.load_cs(self.CSKV, sT0, 212)
    def g4_prefetch_kv(self):
        e = self.e
        L = e.newlabel("PFKV")
        e(f"s_cmp_eq_u32 s{sP}, s{sJ}\ns_cbranch_scc0 {L}")
        e(f"s_lshl_b32 s{sT2}, s{sKH}, 14\ns_add_u32 s{sT0}, s{sT2}, {WF + WB_KV*32768}")
        for t in range(16):
            if t % 4 == 0 and t: e(f"s_add_u32 s{sT0}, s{sT0}, 4096")
            e(f"buffer_load_dwordx4 a[{4*t}:{4*t+3}], v{vL16}, s[{SRD_WS}:{SRD_WS+3}], s{sT0} offen offset:{(t%4)*1024} sc1")
        e.label(L)

    def kv_epilogue(self, redkv, vt, CSKV, vmean, vrstd, pre=None, before_drain=None, defer_flag=False):
        e = self.e
        e(f"v_add_u32 v{vT0}, {redkv}, v{vL16}")
        for q in range(4):
            e(f"ds_read_b128 v[{96+4*q}:{99+4*q}], v{vT0} offset:{q*1024}")
        e(f"v_and_b32 v216, 31, v{vL}\nv_lshlrev_b32 v216, 5, v216\nv_lshrrev_b32 v217, 5, v{vL}\nv_lshl_add_u32 v216, v217, 3, v216\nv_add_u32 v216, {vt}, v216")
        e(f"v_and_b32 v218, 15, v{vL}\nv_bfe_u32 v219, v{vL}, 4, 1\nv_lshlrev_b32 v219, 4, v219\nv_lshl_add_u32 v219, v217, 2, v219\nv_lshrrev_b32 v220, 2, v218\nv_add_u32 v219, v219, v220\nv_lshlrev_b32 v219, 5, v219")
        e(f"v_and_b32 v220, 3, v218\nv_lshl_add_u32 v219, v220, 3, v219\nv_add_u32 v219, {vt}, v219")
        e(f"v_bfe_u32 v220, v{vL}, 4, 1\nv_mul_u32_u24 v220, 544, v220\nv_mul_u32_u24 v222, 272, v217\nv_add_u32 v220, v220, v222\nv_lshl_add_u32 v220, v218, 4, v220")
        e(f"s_lshl_b32 s{sT0}, s{sRB}, 10\ns_add_u32 s{sT0}, s{sT0}, s{sKF}")
        e(f"s_mul_i32 s{sT1}, s{sRB}, {VT_STRIDE}\ns_add_u32 s{sT1}, s{sT1}, s{sKF}\ns_add_u32 s{sT1}, s{sT1}, 0x10000")
        e(f"v_mul_u32_u24 v222, 272, v{vL}\nv_add_u32 v222, 256, v222")
        for r in range(4): e(f"v_mov_b32 v{224+r}, 0x3f803f80")
        e(f"s_mov_b64 exec, 0xf\nbuffer_store_dwordx4 v[224:227], v222, s[{SRD_WS}:{SRD_WS+3}], s{sT1} offen sc1\ns_mov_b64 exec, -1")
        e("s_waitcnt lgkmcnt(0)")
        if pre: pre()
        e(f"v_mul_f32 v214, v{vmean}, v{vrstd}\nv_sub_f32 v214, 0, v214\nv_mov_b32 v212, v{vrstd}")
        for r in range(0, 16, 2):
            e(f"v_pk_add_f32 v[{144+r}:{145+r}], v[{144+r}:{145+r}], v[{96+r}:{97+r}]")
        for r in range(0, 16, 2):
            e(f"v_pk_mul_f32 v[{96+r}:{97+r}], v[{CSKV+r}:{CSKV+r+1}], v[214:215] op_sel_hi:[1,0]")
        for r in range(0, 16, 2):
            e(f"v_pk_fma_f32 v[{144+r}:{145+r}], v[{144+r}:{145+r}], v[212:213], v[{96+r}:{97+r}] op_sel_hi:[1,0,1]")
        for d in range(8):
            e(f"v_cvt_pk_bf16_f32 v{96+d}, v{144+2*d}, v{145+2*d}")
        e("ds_write_b64 v216, v[96:97]\nds_write_b64 v216, v[98:99] offset:16")
        e(f"buffer_store_dwordx4 v[100:103], v{vL16}, s[{SRD_WS}:{SRD_WS+3}], s{sT0} offen sc1")
        e("s_waitcnt lgkmcnt(0)")
        e("ds_read_b64_tr_b16 v[104:105], v219\nds_read_b64_tr_b16 v[106:107], v219 offset:256\ns_waitcnt lgkmcnt(0)")
        e(f"buffer_store_dwordx4 v[104:107], v220, s[{SRD_WS}:{SRD_WS+3}], s{sT1} offen sc1")
        if not defer_flag: self.kv_flag()

    def kv_flag(self):
        e = self.e
        e(f"s_lshl_b32 s{sT4}, s{sHALF}, 11\ns_lshl_b32 s{sT5}, s{sRB}, 2\ns_add_u32 s{sT4}, s{sT4}, s{sT5}\ns_add_u32 s{sT4}, s{sT4}, {FL_GK}")
        e(f"v_lshlrev_b32 v220, 8, v{vL}\nv_mov_b32 v221, s{sTAG}")
        e("s_waitcnt vmcnt(0)")
        e(f"s_mov_b64 exec, 0xff\nbuffer_store_dword v221, v220, s[{SRD_WS}:{SRD_WS+3}], s{sT4} offen sc1\ns_mov_b64 exec, -1")

    def q_epilogue(self, CSQ, vmean, vrstd):
        e = self.e
        e(f"v_mul_f32 v214, {fbits(QSCALE)}, v{vrstd}")
        e(f"v_mul_f32 v216, v{vmean}, v214\nv_sub_f32 v216, 0, v216")
        e(f"s_lshl_b32 s{sT0}, s{sKH}, 2\ns_add_u32 s{sT0}, s{sT0}, s{sP}\ns_lshl_b32 s{sT0}, s{sT0}, 10\nv_add_u32 v{vT0}, s{sT0}, v{vL16}")
        for r in range(0, 16, 2):
            e(f"v_pk_mul_f32 v[{96+r}:{97+r}], v[{CSQ+r}:{CSQ+r+1}], v[216:217] op_sel_hi:[1,0]")
        for r in range(0, 16, 2):
            e(f"v_pk_fma_f32 v[{80+r}:{81+r}], v[{80+r}:{81+r}], v[214:215], v[{96+r}:{97+r}] op_sel_hi:[1,0,1]")
        for d in range(8):
            e(f"v_cvt_pk_bf16_f32 v{96+d}, v{80+2*d}, v{81+2*d}")
        e(f"ds_write_b128 v{vT0}, v[96:99] offset:{self.QL}\nds_write_b128 v{vT0}, v[100:103] offset:{self.QL+2048}")

    def g4(self):
        e = self.e
        CSQ, CSKV = self.CSQ, self.CSKV
        Lq = e.newlabel("G4Q"); Lb1 = e.newlabel("G4B1"); Lq2 = e.newlabel("G4Q2"); Lred = e.newlabel("G4RED")
        toks = self.load_act_half(sXIN, self.AH)
        e(f"v_and_b32 v176, 31, v{vL}\nv_lshlrev_b32 v176, 3, v176\nv_lshrrev_b32 v177, 5, v{vL}\nv_lshl_add_u32 v176, v177, 11, v176")
        e(f"s_lshl_b32 s90, s{sRB}, 12\ns_add_u32 s90, s90, s{sSTIN}")
        def stat_inter(t):
            t0 = 16 - self.AH
            if t0 <= t <= t0 + 3:
                for q in (2 * (t - t0), 2 * (t - t0) + 1):
                    self.ws_load(160 + 2 * q, "s90", q * 256, voff=176, n=2)
        self.pair_addrs(self.WL1)
        saved = list(e.vm); saved_act = dict(self._act)
        e(f"s_cmp_eq_u32 s{sP}, s{sJ}\ns_cbranch_scc0 {Lq}")
        for t in range(16):
            self.act_issue(t + self.AH)
            e.wait_vm(toks[t])
            e(f"v_mfma_f32_32x32x16_bf16 v[144:159], a[{4*t}:{4*t+3}], v[{16+4*t}:{19+4*t}], {'0' if t == 0 else 'v[144:159]'}")
            stat_inter(t)
        e(f"s_cmp_eq_u32 s{sKH}, 0\ns_cbranch_scc1 {Lb1}")
        e(f"v_add_u32 v{vT0}, {self.REDKV}, v{vL16}")
        for q in range(4):
            e(f"ds_write_b128 v{vT0}, v[{144+4*q}:{147+4*q}] offset:{q*1024}")
        e("s_waitcnt lgkmcnt(0)")
        e(f"s_branch {Lb1}")
        e.label(Lq)
        e.vm = list(saved); e.lg = []
        self._act = saved_act
        e(f"s_lshl_b32 s{sACT}, s{sRB}, 15\ns_lshl_b32 s{sT1}, s{sKH}, 14\ns_add_u32 s{sACT}, s{sACT}, s{sT1}\ns_add_u32 s{sACT}, s{sACT}, s{sXIN}\ns_add_u32 s{sACT}, s{sACT}, {((self.AH-1)//4)*4096}")
        self.pair_prime()
        self.pair_mfma(self._act, stat_inter)
        e.label(Lb1)
        e("s_waitcnt vmcnt(0)"); e.reset_counters()
        self.stats_finish(160, 178, 179)
        e(f"s_cmp_ge_u32 s{sJ}, 2\ns_cbranch_scc1 {Lred}")
        e("s_barrier")
        e(f"s_cmp_eq_u32 s{sP}, s{sJ}\ns_cbranch_scc0 {Lred}")
        e(f"s_cmp_lg_u32 s{sKH}, 0\ns_cbranch_scc1 {Lq2}")
        self.kv_epilogue(self.REDKV, self.VT, CSKV, 178, 179, defer_flag=True)
        e.label(Lq2)
        e.lg = []
        self.pair_prime()
        def g4mid(t):
            if t == 7:
                Lm = e.newlabel("G4KF")
                e(f"s_cmp_lg_u32 s{sKH}, 0\ns_cbranch_scc1 {Lm}")
                self.kv_flag()
                e.label(Lm)
        self.pair_mfma(None, g4mid)
        e.label(Lred)
        e.lg = []
        self.reduce_pair()
        self.q_epilogue(CSQ, 178, 179)
        e.reset_counters()

    def att_unit(self, u, Sc, Sn, Pc, Pn, Qnext, Oc, Oprev, extra, first, cin="0"):
        e = self.e
        tn = (u + 1) % 16; tp = (u - 1) % 16
        for x in extra.get(-1, []): e(x)
        for i in range(16):
            if i == 2 and Qnext is not None: e(f"v_mfma_f32_32x32x16_bf16 {v(Sn,16)}, {a(4*tn,4)}, {v(Qnext,4)}, {cin}")
            if i == 7: e(f"v_mfma_f32_32x32x16_bf16 {v(Oprev,16)}, {a(64+8*tp+4,4)}, {v(Pn+4,4)}, {v(Oprev,16)}")
            if i == 12: e(f"v_mfma_f32_32x32x16_bf16 {v(Oc,16)}, {a(64+8*u,4)}, {v(Pc,4)}, {'0' if first else v(Oc,16)}")
            e(f"v_exp_f32 v{Sc+i}, v{Sc+i}")
            if i == 0: e(f"v_cvt_pk_bf16_f32 v{Pn+7}, v{Sn+14}, v{Sn+15}")
            if i >= 3 and (i - 3) % 2 == 0:
                k = (i - 3) // 2
                e(f"v_cvt_pk_bf16_f32 v{Pc+k}, v{Sc+2*k}, v{Sc+2*k+1}")
            for x in extra.get(i, []): e(x)

    def attention(self):
        e = self.e
        QA, QB = 16, 20
        S = [32, 48]; P = [64, 72]; O = [80, 96]
        PS, SL, QL, WS1 = self.PS, self.SLOT, self.QL, self.WL1
        sM0V, sSOFF = sA4, sA5
        sK, sV = 88, 89
        self.g2_w_bases()
        e(f"v_mov_b32 v27, 0\nds_write_b32 v27, v27 offset:{self.FAIL}\ns_mov_b32 s{sFB}, 0")
        for r in range(8): e(f"v_mov_b32 v{P[1]+r}, 0")
        for r in range(2): e(f"v_mov_b32 v{S[1]+14+r}, 0")
        e(f"s_mul_i32 s{sT0}, s{sW}, {6*SL}\ns_add_u32 s{sT0}, s{sT0}, {PS}\nv_add_u32 v24, s{sT0}, v{vL16}\ns_add_u32 s{sT0}, s{sT0}, 2048\nv_add_u32 v25, s{sT0}, v{vL4}")
        setup, dmaitems = self.wpair_dma_list(WB_OA, WS1, sM0V, sSOFF)
        for x in setup: e(x)
        e(f"v_and_b32 v27, 31, v{vL}\nv_min_u32 v26, 16, v27\nv_lshlrev_b32 v26, 4, v26\nv_lshrrev_b32 v29, 5, v{vL}\nv_mul_u32_u24 v29, 272, v29\nv_add_u32 v26, v26, v29")
        e(f"v_and_b32 v29, 27, v27\nv_cmp_eq_u32 vcc, 16, v29\nv_cmp_gt_u32 s[{sM0}:{sM0+1}], 16, v27\ns_or_b64 vcc, vcc, s[{sM0}:{sM0+1}]\nv_mov_b32 v29, {WS_BYTES}\nv_cndmask_b32 v26, v29, v26, vcc")
        e(f"s_mov_b32 s{sLOOP}, 0\ns_lshl_b32 s{sT2}, s{sW}, 1\ns_add_u32 s{sT2}, s{sT2}, 2\ns_and_b32 s{sT2}, s{sT2}, 7")
        e(f"s_lshl_b32 s{sT2}, s{sT2}, 10\nv_add_u32 v28, s{sT2}, v{vL16}")
        e("s_waitcnt lgkmcnt(0)")
        self.stamp("att_poll")
        L = e.newlabel("GK")
        e(f"s_cmp_lg_u32 s{sW}, 0\ns_cbranch_scc1 {L}")
        Lm = e.newlabel("NOMODE")
        e(f"s_cmp_lg_u32 s{sHALF}, 0\ns_cbranch_scc1 {Lm}")
        self.mode_detect()
        e.label(Lm)
        e(f"s_lshl_b32 s{sT0}, s{sHALF}, 11\ns_and_b32 s{sT1}, s{sG}, 7\ns_lshl_b32 s{sT1}, s{sT1}, 8\ns_add_u32 s{sT0}, s{sT0}, s{sT1}\ns_add_u32 s{sT0}, s{sT0}, {FL_GK}")
        def setup_():
            e(f"buffer_load_dword v17, v{vL4}, s[{SRD_WS}:{SRD_WS+3}], s{sT0} offen sc1\ns_waitcnt vmcnt(0)")
            e(f"v_cmp_ne_u32 vcc, s{sTAG}, v17")
        self.poll("g", setup_)
        L2 = e.newlabel("EPOCH")
        e(f"s_cmp_lg_u32 s{sG}, 0\ns_cbranch_scc1 {L2}\ns_cmp_eq_u32 s{sHALF}, 0\ns_cbranch_scc1 {L2}")
        e(f"v_mov_b32 v16, 0\nv_mov_b32 v17, s{sTAG}\ns_mov_b64 exec, 1\nbuffer_store_dword v17, v16, s[{SRD_WS}:{SRD_WS+3}], 0 offen sc0 sc1\ns_mov_b64 exec, -1\ns_waitcnt vmcnt(0)")
        e.label(L2)
        e.label(L)
        e("s_waitcnt vmcnt(0)")
        e("s_barrier")
        Lm2 = e.newlabel("NOMODE2"); Lpf = e.newlabel("NOPF")
        e(f"s_cmp_lg_u32 s{sHALF}, 0\ns_cbranch_scc1 {Lm2}")
        self.mode_read()
        self.alias_setup()
        e(f"s_cmp_ge_u32 s{sRANK}, 97\ns_cbranch_scc1 {Lpf}\ns_cmp_lg_u32 s{sW}, 0\ns_cbranch_scc1 {Lpf}")
        e(f"v_lshlrev_b32 v16, 9, v{vL}\ns_lshl_b32 s{sT0}, s{sRANK}, 2\ns_add_u32 s{sT0}, s{sT0}, {FL_G0}\nv_mov_b32 v17, s{sTAG}")
        e(f"s_mov_b64 exec, 0xff\nbuffer_store_dword v17, v16, s[{SRD_WS}:{SRD_WS+3}], s{sT0} offen sc1\ns_mov_b64 exec, -1")
        e.label(Lpf)
        e.label(Lm2)
        self.stamp("att_start")
        e.reset_counters()
        e(f"ds_read_b128 v[{QA}:{QA+3}], v28 offset:{QL}")
        e(f"s_lshl_b32 s{sK}, s{sW}, 14\ns_add_u32 s{sK}, s{sK}, s{sKF}")
        e(f"s_mul_i32 s{sV}, s{sW}, {16*VT_STRIDE}\ns_add_u32 s{sV}, s{sV}, s{sKF}\ns_add_u32 s{sV}, s{sV}, 0x10000")
        def kv_lines(t):
            Ls = []
            if t % 4 == 0 and t: Ls += [f"s_add_u32 s{sK}, s{sK}, 4096"]
            if t % 2 == 0 and t: Ls += [f"s_add_u32 s{sV}, s{sV}, {2*VT_STRIDE}"]
            vo = (t % 2) * VT_STRIDE
            Ls += [f"buffer_load_dwordx4 a[{4*t}:{4*t+3}], v{vL16}, s[{SRD_WS}:{SRD_WS+3}], s{sK} offen offset:{(t%4)*1024} sc1",
                   f"buffer_load_dwordx4 a[{64+8*t}:{67+8*t}], v26, s[{SRD_WS}:{SRD_WS+3}], s{sV} offen offset:{vo} sc1",
                   f"buffer_load_dwordx4 a[{68+8*t}:{71+8*t}], v26, s[{SRD_WS}:{SRD_WS+3}], s{sV} offen offset:{vo+544} sc1"]
            return Ls
        AHEAD = 4
        for t in range(AHEAD):
            for x in kv_lines(t): e(x)
        e(f"s_waitcnt vmcnt({3*AHEAD-1}) lgkmcnt(0)")
        e(f"v_mfma_f32_32x32x16_bf16 {v(S[0],16)}, {a(0,4)}, {v(QA,4)}, 0")
        e("s_nop 7\ns_nop 7")
        self.stamp("att_kv")
        def wA_line(f):
            return [f"s_add_u32 s{sT7}, s{sA2}, {(f//4)*4096}",
                    f"buffer_load_dwordx4 a[{4*f}:{4*f+3}], v{vL16}, s[{SRD_WS}:{SRD_WS+3}], s{sT7} offen offset:{(f%4)*1024} sc1"]
        def position(pos, kind):
            Qc, Qn = (QA, QB) if pos == 0 else (QB, QA)
            Oc, On = (O[0], O[1]) if pos == 0 else (O[1], O[0])
            for u in range(16):
                c = u & 1; n = c ^ 1
                extra = {}
                if kind == 'first':
                    issued = min(AHEAD + u, 16)
                    need_idx = min(3 * (u + 1), 47) if u < 15 else 47
                    nw = 3*issued - need_idx - 1
                    if u in (13, 14): nw += 1
                    extra[-1] = [f"s_waitcnt vmcnt({nw})"]
                    if AHEAD + u < 16:
                        extra[3] = kv_lines(AHEAD + u)
                    if u == 12:
                        extra[5] = [f"s_and_b32 s{sT0}, s{sG}, 7", f"s_lshl_b32 s{sT0}, s{sT0}, 9", f"s_add_u32 s{sT0}, s{sT0}, {FL_G0}",
                                    f"v_lshlrev_b32 v29, 3, v{vL}",
                                    f"buffer_load_dwordx2 v[30:31], v29, s[{SRD_WS}:{SRD_WS+3}], s{sT0} offen sc1"]
                    if u == 15 and not getattr(self, "nopretouch", False):
                        Lh1 = e.newlabel("PTH1"); Lpd = e.newlabel("PTD")
                        srd = f"s[{SRD_WS}:{SRD_WS+3}]"
                        extra[10] = [f"s_cmp_lg_u32 s{sHALF}, 0", f"s_cbranch_scc1 {Lh1}",
                            f"s_add_u32 s{sT0}, s{sXMID}, s{sRBOFF}",
                            f"buffer_load_dwordx4 v[128:131], v{vL16}, {srd}, s{sT0} offen",
                            f"buffer_load_dwordx4 v[132:135], v{vL16}, {srd}, s{sT0} offen offset:1024",
                            f"s_add_u32 s{sT0}, s{sSTMID}, s{sSTOFF}", f"buffer_load_dword v136, v{vSTAT}, {srd}, s{sT0} offen",
                            f"s_lshl_b32 s{sT0}, s{sJ}, 2", f"s_add_u32 s{sT0}, s{sT0}, s{sW}", f"s_lshl_b32 s{sT0}, s{sT0}, 10", f"s_lshl_b32 s{sT1}, s{sC}, 16",
                            f"s_add_u32 s{sT0}, s{sT0}, s{sT1}", f"s_add_u32 s{sT0}, s{sT0}, s{sOA}", f"s_add_u32 s{sT1}, s{sT0}, 32768",
                            f"buffer_load_dwordx4 v[140:143], v{vL16}, {srd}, s{sT0} offen", f"buffer_load_dwordx4 v[144:147], v{vL16}, {srd}, s{sT1} offen",
                            f"s_lshl_b32 s{sT1}, s{sC}, 15", f"s_add_u32 s{sT1}, s{sT1}, s{sHX}", f"buffer_load_dword v137, v{vL4}, {srd}, s{sT1} offen",
                            f"buffer_load_dword v138, v{vL4}, {srd}, s{sSTH} offen",
                            f"s_branch {Lpd}", f"{Lh1}:",
                            f"v_and_b32 v139, 31, v{vL}", f"v_lshlrev_b32 v139, 11, v139", f"v_lshrrev_b32 v148, 5, v{vL}", f"v_lshl_add_u32 v139, v148, 4, v139",
                            f"s_lshl_b32 s{sT0}, s{sC}, 6", f"s_add_u32 s{sT0}, s{sT0}, s{sP}", f"s_lshl_b32 s{sT0}, s{sT0}, 10", f"s_lshl_b32 s{sT1}, s{sNB}, 6", f"s_add_u32 s{sT0}, s{sT0}, s{sT1}",
                            f"buffer_load_dwordx4 v[128:131], v139, s[{SRD_OUT}:{SRD_OUT+3}], s{sT0} offen",
                            f"{Lpd}:"]
                    if u == 15:
                        Lok = e.newlabel("G0OK"); Lp = e.newlabel("G0P")
                        chk = [f"v_xor_b32 v30, s{sTAG}, v30", f"v_xor_b32 v31, s{sTAG}, v31",
                               f"v_cmp_lt_u32 vcc, 48, v{vL}", "s_nop 1", "v_cndmask_b32 v30, v30, 0, vcc",
                               f"v_cmp_le_u32 vcc, 48, v{vL}", "s_nop 1", "v_cndmask_b32 v31, v31, 0, vcc",
                               "v_or_b32 v30, v30, v31", "v_cmp_ne_u32 vcc, 0, v30"]
                        extra[6] = chk + [f"s_cbranch_vccz {Lok}", f"s_mov_b32 s{sPOLL}, 0", f"{Lp}:",
                                          f"buffer_load_dwordx2 v[30:31], v29, s[{SRD_WS}:{SRD_WS+3}], s{sT0} offen sc1", "s_waitcnt vmcnt(0)"] + chk + \
                                         [f"s_cbranch_vccz {Lok}", f"s_add_u32 s{sPOLL}, s{sPOLL}, 1", f"s_cmp_lt_u32 s{sPOLL}, 400000", f"s_cbranch_scc1 {Lp}", "s_branch L_END", f"{Lok}:"]
                if u == 0 and kind != 'last':
                    extra[9] = ["v_add_u32 v28, 0x400, v28", "v_and_b32 v28, 0x1fff, v28"]
                if u == 1 and kind == 'loop':
                    extra[6] = [f"ds_write_b128 v24, v[{On}:{On+3}]", f"ds_write_b128 v24, v[{On+4}:{On+7}] offset:1024", f"ds_write_b32 v25, v{On+8}",
                                f"v_add_u32 v24, {SL}, v24", f"v_add_u32 v25, {SL}, v25"]
                if u == 4 and kind != 'last':
                    extra[5] = [f"ds_read_b128 v[{Qn}:{Qn+3}], v28 offset:{QL}"]
                if pos == 1 and kind == 'loop' and u == 2:
                    for t in range(4):
                        pre, ld, post = dmaitems[t]
                        extra[5 + 2 * t] = pre + [ld] + post
                if kind == 'last' and u == 0 and not getattr(self, "nopf", False):
                    Lp = e.newlabel("PF2")
                    extra[1] = [f"s_lshr_b32 s{sT4}, s{sG}, 3", f"s_lshl_b32 s{sT4}, s{sT4}, 2", f"s_add_u32 s{sT4}, s{sT4}, s{sW}", f"s_lshl_b32 s{sT4}, s{sT4}, 10",
                                f"s_add_u32 s{sT5}, s{sT4}, 1024", f"s_cmp_gt_u32 s{sT5}, L_CODE_END-L_PFBASE", f"s_cbranch_scc1 {Lp}",
                                f"s_add_u32 s{sT4}, s{sT4}, s{sPFB}", f"s_addc_u32 s{sT5}, s{sPFB+1}, 0",
                                f"global_load_dwordx4 v[128:131], v{vL16}, s[{sT4}:{sT4+1}]", f"{Lp}:"]
                if kind == 'last':
                    if u < 4:
                        pre, ld, post = dmaitems[u]
                        extra[8] = pre + [ld] + post
                    extra.setdefault(4, []).extend(wA_line(u))
                    if u >= 2: extra.setdefault(10, []).extend(wA_line(16 + u - 2))
                    if u >= 14: extra.setdefault(13, []).extend(wA_line(16 + u))
                if u == 14 and kind != 'last':
                    extra.setdefault(4, []).append("s_waitcnt lgkmcnt(0)")
                if u == 15 and kind != 'last':
                    extra[14] = [f"s_add_u32 s{sLOOP}, s{sLOOP}, 1"]
                Qx = Qn if u == 15 else Qc
                if u == 15 and kind == 'last': Qx = None
                Op = On if u == 0 else Oc
                self.att_unit(u, S[c], S[n], P[c], P[n], Qx, Oc, Op, extra, first=(u == 0))
        position(0, 'first')
        Lloop = e.newlabel("ATTLOOP")
        e(".p2align 3")
        e.label(Lloop)
        position(1, 'loop')
        position(0, 'loop')
        e(f"s_cmp_lt_u32 s{sLOOP}, 7\ns_cbranch_scc1 {Lloop}")
        position(1, 'last')
        e(f"v_cvt_pk_bf16_f32 v{P[1]+7}, v{S[1]+14}, v{S[1]+15}")
        e(f"v_mfma_f32_32x32x16_bf16 {v(O[1],16)}, {a(64+8*15+4,4)}, {v(P[1]+4,4)}, {v(O[1],16)}")
        e.label("L_ATT_TAIL")
        for vis in range(3):
            e(f"s_sub_u32 s{sT0}, s{sW}, {1+vis}\ns_and_b32 s{sT0}, s{sT0}, 3\ns_mul_i32 s{sT0}, s{sT0}, {6*SL}\ns_add_u32 s{sT0}, s{sT0}, {PS + 2*vis*SL}")
            e(f"v_add_u32 v{24+vis}, s{sT0}, v{vL16}\ns_add_u32 s{sT0}, s{sT0}, 2048\nv_add_u32 v{28+vis}, s{sT0}, v{vL4}")
        e("s_waitcnt vmcnt(27) lgkmcnt(0)\ns_barrier")
        self.stamp("att_loopend")
        slots = {}
        base = [32, 44, 56, 68, 112, 16]
        k = 0
        for pp in range(2):
            for vis in range(3):
                b = base[k]; k += 1; slots[(pp, vis)] = b
                lreg = 31 if b == 16 else b + 8
                e(f"ds_read_b128 v[{b}:{b+3}], v{24+vis} offset:{pp*SL}\nds_read_b128 v[{b+4}:{b+7}], v{24+vis} offset:{pp*SL+1024}\nds_read_b32 v{lreg}, v{28+vis} offset:{pp*SL}")
        e(f"s_lshl_b32 s{sT0}, s{sJ}, 2\ns_add_u32 s{sT0}, s{sT0}, s{sW}\ns_lshl_b32 s{sT0}, s{sT0}, 10")
        e(f"s_lshl_b32 s{sT1}, s{sC}, 16\ns_add_u32 s{sT0}, s{sT0}, s{sT1}\ns_add_u32 s{sT0}, s{sT0}, s{sOA}\ns_add_u32 s{sT1}, s{sT0}, 32768")
        tok = None
        for pp in range(2):
            Oo = O[pp]
            e(f"s_waitcnt lgkmcnt({9 if pp == 0 else 0})")
            for vis in range(3):
                b = slots[(pp, vis)]
                e(f"v_add_f32 v{Oo+8}, v{Oo+8}, v{31 if b == 16 else b + 8}")
                for r in range(0, 8, 2):
                    e(f"v_pk_add_f32 v[{Oo+r}:{Oo+r+1}], v[{Oo+r}:{Oo+r+1}], v[{b+r}:{b+r+1}]")
            e(f"v_rcp_f32 v{Oo+10}, v{Oo+8}")
            for r in range(0, 8, 2):
                e(f"v_pk_mul_f32 v[{Oo+r}:{Oo+r+1}], v[{Oo+r}:{Oo+r+1}], v[{Oo+10}:{Oo+11}] op_sel_hi:[1,0]")
            for d in range(4):
                e(f"v_cvt_pk_bf16_f32 v{Oo+12+d}, v{Oo+2*d}, v{Oo+2*d+1}")
            tok = self.moded(lambda fl: self.ws_store(Oo + 12, f"s{sT0 if pp == 0 else sT1}", 0, flag=fl))
        e(f"v_cmp_nle_f32 vcc, 0x1f800000, v{O[0]+8}\ns_mov_b64 s[{sBAD}:{sBAD+1}], vcc")
        e(f"v_cmp_nge_f32 vcc, 0x5f800000, v{O[0]+8}\ns_or_b64 s[{sBAD}:{sBAD+1}], s[{sBAD}:{sBAD+1}], vcc")
        e(f"v_cmp_nle_f32 vcc, 0x1f800000, v{O[1]+8}\ns_or_b64 s[{sBAD}:{sBAD+1}], s[{sBAD}:{sBAD+1}], vcc")
        e(f"v_cmp_nge_f32 vcc, 0x5f800000, v{O[1]+8}\ns_or_b64 s[{sBAD}:{sBAD+1}], s[{sBAD}:{sBAD+1}], vcc")
        Lok = e.newlabel("LSUMOK")
        e(f"s_cmp_eq_u64 s[{sBAD}:{sBAD+1}], 0\ns_cbranch_scc1 {Lok}")
        e(f"v_mov_b32 v24, 1\nv_mov_b32 v25, 0\nds_write_b32 v25, v24 offset:{self.FAIL}")
        e.label(Lok)
        return tok

    def fallback_check(self):
        e = self.e
        L = e.newlabel("NOFB")
        e(f"v_mov_b32 v16, 0\nds_read_b32 v17, v16 offset:{self.FAIL}\ns_waitcnt lgkmcnt(0)\nv_readfirstlane_b32 s{sT0}, v17")
        e(f"s_cmp_eq_u32 s{sT0}, 0\ns_cbranch_scc1 {L}\ns_cmp_eq_u32 s{sFB}, 0\ns_cbranch_scc1 L_FALLBACK")
        e.label(L)

    def fallback(self):
        e = self.e
        PS, SL, QL = self.PS, self.SLOT, self.QL
        MX = 131072
        K, V, Q, S, P, CM, M, ACC = 128, 132, 140, 144, 160, 168, 184, 192
        sI, sT, sKA, sVA, sB = 88, 89, 90, 92, 93
        e.label("L_FALLBACK")
        e(f"s_mov_b32 s{sFB}, 1\ns_waitcnt vmcnt(0) lgkmcnt(0)")
        e(f"v_and_b32 v187, 31, v{vL}\nv_min_u32 v186, 16, v187\nv_lshlrev_b32 v186, 4, v186\nv_lshrrev_b32 v188, 5, v{vL}\nv_mul_u32_u24 v188, 272, v188\nv_add_u32 v186, v186, v188")
        e(f"v_and_b32 v188, 27, v187\nv_cmp_eq_u32 vcc, 16, v188\nv_cmp_gt_u32 s[{sM0}:{sM0+1}], 16, v187\ns_or_b64 vcc, vcc, s[{sM0}:{sM0+1}]\nv_mov_b32 v188, {WS_BYTES}\nv_cndmask_b32 v186, v188, v186, vcc")
        e(f"v_and_b32 v187, 31, v{vL}\nv_lshlrev_b32 v187, 2, v187")
        for ps in range(2):
            Li = e.newlabel("FBI"); Lt = e.newlabel("FBT")
            e(f"s_mov_b32 s{sI}, 0")
            e.label(Li)
            e(f"s_lshl_b32 s{sB}, s{sW}, 1\ns_add_u32 s{sB}, s{sB}, 2\ns_add_u32 s{sB}, s{sB}, s{sI}\ns_and_b32 s{sB}, s{sB}, 7")
            e(f"s_lshl_b32 s{sT0}, s{sB}, 10\nv_add_u32 v185, s{sT0}, v{vL16}\nds_read_b128 v[{Q}:{Q+3}], v185 offset:{QL}")
            if ps == 0:
                e(f"v_mov_b32 v{M}, 0xff800000")
            else:
                e(f"s_lshl_b32 s{sT0}, s{sB}, 9\ns_add_u32 s{sT0}, s{sT0}, {MX}\nv_add_u32 v185, s{sT0}, v187")
                e(f"ds_read_b32 v{M}, v185\nds_read_b32 v189, v185 offset:128\nds_read_b32 v190, v185 offset:256\nds_read_b32 v191, v185 offset:384\ns_waitcnt lgkmcnt(0)")
                e(f"v_max_f32 v{M}, v{M}, v189\nv_max_f32 v190, v190, v191\nv_max_f32 v{M}, v{M}, v190")
                for r in range(16): e(f"v_sub_f32 v{CM+r}, 0, v{M}\nv_mov_b32 v{ACC+r}, 0")
            e(f"s_lshl_b32 s{sKA}, s{sW}, 14\ns_add_u32 s{sKA}, s{sKA}, s{sKF}")
            e(f"s_mul_i32 s{sVA}, s{sW}, {16*VT_STRIDE}\ns_add_u32 s{sVA}, s{sVA}, s{sKF}\ns_add_u32 s{sVA}, s{sVA}, 0x10000")
            e(f"s_mov_b32 s{sT}, 0")
            e.label(Lt)
            e(f"buffer_load_dwordx4 v[{K}:{K+3}], v{vL16}, s[{SRD_WS}:{SRD_WS+3}], s{sKA} offen sc1")
            if ps == 1:
                e(f"buffer_load_dwordx4 v[{V}:{V+3}], v186, s[{SRD_WS}:{SRD_WS+3}], s{sVA} offen sc1")
                e(f"buffer_load_dwordx4 v[{V+4}:{V+7}], v186, s[{SRD_WS}:{SRD_WS+3}], s{sVA} offen offset:544 sc1")
            e("s_waitcnt vmcnt(0) lgkmcnt(0)")
            e(f"v_mfma_f32_32x32x16_bf16 {v(S,16)}, {v(K,4)}, {v(Q,4)}, {'0' if ps == 0 else v(CM,16)}")
            if ps == 0:
                for r in range(0, 16, 2): e(f"v_max3_f32 v{M}, v{M}, v{S+r}, v{S+r+1}")
            else:
                for r in range(16): e(f"v_exp_f32 v{S+r}, v{S+r}")
                for d in range(8): e(f"v_cvt_pk_bf16_f32 v{P+d}, v{S+2*d}, v{S+2*d+1}")
                e(f"v_mfma_f32_32x32x16_bf16 {v(ACC,16)}, {v(V,4)}, {v(P,4)}, {v(ACC,16)}")
                e(f"v_mfma_f32_32x32x16_bf16 {v(ACC,16)}, {v(V+4,4)}, {v(P+4,4)}, {v(ACC,16)}")
            e(f"s_add_u32 s{sKA}, s{sKA}, 1024\ns_add_u32 s{sVA}, s{sVA}, {VT_STRIDE}\ns_add_u32 s{sT}, s{sT}, 1\ns_cmp_lt_u32 s{sT}, 16\ns_cbranch_scc1 {Lt}")
            if ps == 0:
                e(f"v_mov_b32 v189, v{M}\nv_permlane32_swap_b32 v{M}, v189\nv_max_f32 v{M}, v{M}, v189")
                e(f"s_lshl_b32 s{sT0}, s{sB}, 9\ns_lshl_b32 s{sT1}, s{sW}, 7\ns_add_u32 s{sT0}, s{sT0}, s{sT1}\ns_add_u32 s{sT0}, s{sT0}, {MX}\nv_add_u32 v185, s{sT0}, v187")
                e(f"ds_write_b32 v185, v{M}\ns_waitcnt lgkmcnt(0)")
            else:
                L6 = e.newlabel("FB6"); L7 = e.newlabel("FB7"); Ln = e.newlabel("FBN")
                e(f"s_cmp_eq_u32 s{sI}, 6\ns_cbranch_scc1 {L6}\ns_cmp_eq_u32 s{sI}, 7\ns_cbranch_scc1 {L7}")
                e(f"s_mul_i32 s{sT0}, s{sW}, 6\ns_add_u32 s{sT0}, s{sT0}, s{sI}\ns_mul_i32 s{sT0}, s{sT0}, {SL}\ns_add_u32 s{sT0}, s{sT0}, {PS}")
                e(f"v_add_u32 v185, s{sT0}, v{vL16}\ns_add_u32 s{sT0}, s{sT0}, 2048\nv_add_u32 v188, s{sT0}, v{vL4}")
                e(f"ds_write_b128 v185, v[{ACC}:{ACC+3}]\nds_write_b128 v185, v[{ACC+4}:{ACC+7}] offset:1024\nds_write_b32 v188, v{ACC+8}\ns_waitcnt lgkmcnt(0)\ns_branch {Ln}")
                e.label(L6)
                for r in range(9): e(f"v_mov_b32 v{80+r}, v{ACC+r}")
                e(f"s_branch {Ln}")
                e.label(L7)
                for r in range(9): e(f"v_mov_b32 v{96+r}, v{ACC+r}")
                e.label(Ln)
            e(f"s_add_u32 s{sI}, s{sI}, 1\ns_cmp_lt_u32 s{sI}, 8\ns_cbranch_scc1 {Li}")
            if ps == 0: e("s_barrier")
        e("s_waitcnt vmcnt(0) lgkmcnt(0)\ns_branch L_ATT_TAIL")

    def g2_w_bases(self):
        e = self.e
        e(f"s_lshl_b32 s{sT0}, s{sJ}, 1")
        tblA = [WB_BQ, WB_BK, WB_BK + 1, WB_BV + 1]; tblB = [WB_BQ + 1, WB_BK + 1, WB_BV, WB_BV]
        e(f"s_mov_b32 s{sA0}, {tblA[0]}\ns_mov_b32 s{sA1}, {tblB[0]}")
        for w in range(1, 4):
            e(f"s_cmp_eq_u32 s{sW}, {w}\ns_cselect_b32 s{sA0}, {tblA[w]}, s{sA0}\ns_cselect_b32 s{sA1}, {tblB[w]}, s{sA1}")
        e(f"s_add_u32 s{sA0}, s{sA0}, s{sT0}\ns_add_u32 s{sA1}, s{sA1}, s{sT0}")
        e(f"s_lshl_b32 s{sA2}, s{sA0}, 15\ns_add_u32 s{sA2}, s{sA2}, {WF}\ns_lshl_b32 s{sA3}, s{sA1}, 15\ns_add_u32 s{sA3}, s{sA3}, {WF}")
    def g2_w_load(self, f0, f1):
        e = self.e; tok = None
        cur = None
        for f in range(f0, f1):
            st = 0 if f < 32 else 1; ks = f % 32
            grp = (st, ks // 4)
            if grp != cur:
                e(f"s_add_u32 s{sT7}, s{sA2 if st == 0 else sA3}, {(ks//4)*4096}"); cur = grp
            tok = self.ws_load(st * 128 + 4 * ks, f"s{sT7}", (ks % 4) * 1024, acc=True)
        return tok

    def outproj(self, g1, sO, sXdst, sSTdst, sHXdst, wl, side=None, final=False, staged=False):
        e = self.e
        tag = "g1" if g1 else "g3"
        on = getattr(self, "light", None) == tag
        if on: self.lstamp(0)
        toks = self.load_act_half(sO, self.AH)
        self.pair_addrs(wl)
        if staged:
            e(f"s_waitcnt vmcnt({self.AH})\ns_barrier")
        e.lg = []
        self.pair_prime()
        if on:
            e.wait_vm(toks[0]); self.lstamp(1)
        side = list(side or [])
        def take(n):
            for _ in range(n):
                if side: self.emit_item(side.pop(0))
        self.pair_mfma(toks, lambda t: take(1) if t >= 16 - self.AH else None)
        if on: self.lstamp(2)
        for d in range(8):
            e(f"v_lshlrev_b32 v{16+2*d}, 16, v{XR+d}\nv_and_b32 v{17+2*d}, 0xffff0000, v{XR+d}")
            if d % 2 == 1: take(1)
        self.reduce_pair(after_writes=lambda: take(4), after_reads=lambda: take(100))
        if on: self.lstamp(3)
        for d in range(8):
            e(f"v_pk_add_f32 v[{80+2*d}:{81+2*d}], v[{80+2*d}:{81+2*d}], v[{16+2*d}:{17+2*d}]")
        for d in range(8):
            e(f"v_cvt_pk_bf16_f32 v{XR+d}, v{80+2*d}, v{81+2*d}")
        if final:
            for c in range(2):
                e(f"v_permlane32_swap_b32 v{XR+4*c}, v{XR+4*c+2}\nv_permlane32_swap_b32 v{XR+4*c+1}, v{XR+4*c+3}")
            for c in range(2):
                e(f"buffer_store_dwordx4 v[{XR+4*c}:{XR+4*c+3}], v{vOUT}, s[{SRD_OUT}:{SRD_OUT+3}], s{sAD} offen offset:{32*c} {getattr(self, 'outflag', '')}")
            self.stamp("end")
            e("s_endpgm")
            return None
        tok = self.publish_x(sXdst, sSTdst, sHXdst)
        if on:
            self.lstamp(4); self.lflush(tag)
        return tok

    XL = 0; QB_ = 98304; KB_ = 106496; VB_ = 118784; TB = 131072
    CSA, CSB, CSN = 176, 192, 208
    BIAS, BH = 210, 226
    def g2_const_items(self):
        srd = f"s[{SRD_WS}:{SRD_WS+3}]"
        its = []
        for q in range(4): its.append(([], f"buffer_load_dwordx4 v[{self.CSA+4*q}:{self.CSA+4*q+3}], v{vCSH}, {srd}, s{sCSA} offen offset:{32*q} sc1", []))
        for q in range(4): its.append(([], f"buffer_load_dwordx4 v[{self.CSB+4*q}:{self.CSB+4*q+3}], v{vCSH}, {srd}, s{sCSB} offen offset:{32*q} sc1", []))
        its.append(([], f"buffer_load_dword v{self.CSN}, v{vCSN}, {srd}, s{sCSA} offen sc1", []))
        its.append(([], f"buffer_load_dword v{self.CSN+1}, v{vCSN}, {srd}, s{sCSB} offen sc1", []))
        return its
    def g2_masks(self):
        e = self.e
        e(f"s_lshl_b32 s{sCSA}, s{sA0}, 7\ns_add_u32 s{sCSA}, s{sCSA}, {CS}\ns_lshl_b32 s{sCSB}, s{sA1}, 7\ns_add_u32 s{sCSB}, s{sCSB}, {CS}")
        NEG = "0xff800000"
        e(f"v_and_b32 v18, 31, v{vL}\nv_lshrrev_b32 v19, 5, v{vL}\nv_lshlrev_b32 v19, 2, v19\nv_sub_u32 v18, v18, v19")
        e(f"v_mov_b32 v19, {NEG}")
        for r in range(16):
            kk = 8 * (r >> 2) + (r & 3)
            e(f"v_subrev_u32 v20, {kk}, v18\nv_cmp_ge_u32 vcc, 7, v20\nv_cndmask_b32 v{212+r}, v19, 0, vcc")
        e(f"s_cmp_eq_u32 s{sC}, 0\ns_cselect_b32 s{sT0}, -64, 0")
        for jj in range(4):
            e(f"s_add_u32 s{sT1}, s{sT0}, {jj-1}\nv_cmp_ge_i32 vcc, s{sT1}, v18\nv_cndmask_b32 v{232+jj}, v19, 0, vcc\nv_mov_b32 v{240+jj}, v{232+jj}")
            e(f"v_mov_b32 v{228+jj}, 0\nv_mov_b32 v{236+jj}, 0")

    def g2_addrs(self):
        e = self.e
        sXB, sHB, sSB = 88, 89, 90
        TB = self.TB
        e(f"s_lshl_b32 s{sXB}, s{sC}, 16\ns_add_u32 s{sXB}, s{sXB}, s{sXMID}")
        sHS = 92
        e(f"v_and_b32 v18, 31, v{vL}\nv_lshrrev_b32 v19, 5, v{vL}")
        e(f"s_lshl_b32 s{sSB}, s{sC}, 1\ns_and_b32 s{sT5}, s{sW}, 1\ns_add_u32 s{sSB}, s{sSB}, s{sT5}\ns_lshl_b32 s{sSB}, s{sSB}, 12\ns_add_u32 s{sSB}, s{sSB}, s{sSTMID}")
        e(f"v_lshlrev_b32 v20, 3, v18\nv_lshl_add_u32 v20, v19, 11, v20")
        e(f"s_lshl_b32 s{sHS}, s{sHC}, 13\ns_add_u32 s{sHS}, s{sHS}, s{sSTH}")
        e("v_and_b32 v22, 15, v18\nv_add_u32 v22, 16, v22\nv_lshlrev_b32 v22, 3, v22\nv_lshrrev_b32 v23, 4, v18\nv_lshl_add_u32 v22, v23, 12, v22\nv_lshl_add_u32 v22, v19, 11, v22")
        e(f"s_lshl_b32 s93, s{sHALF}, 12\ns_lshl_b32 s{sT1}, s{sHC}, 7\ns_add_u32 s93, s93, s{sT1}\ns_add_u32 s93, s93, {FL_H}\nv_and_b32 v23, 7, v{vL}\nv_lshlrev_b32 v23, 2, v23")
        e(f"s_lshl_b32 s{sHB}, s{sHC}, 15\ns_add_u32 s{sHB}, s{sHB}, s{sHX}")
        e(f"v_and_b32 v134, 31, v{vL}\nv_lshlrev_b32 v134, 2, v134\nv_add_u32 v134, {TB}, v134")
        e(f"v_lshrrev_b32 v135, 5, v{vL}\nv_lshlrev_b32 v135, 4, v135\nv_add_u32 v135, {TB}, v135")
        e(f"v_add_u32 v21, 0x10000, v{vL16}")

    def g2(self):
        e = self.e
        XL, QB_, KB_, VB_, TB = self.XL, self.QB_, self.KB_, self.VB_, self.TB
        CSA, CSB, CSN = self.CSA, self.CSB, self.CSN
        def dma(soff, imm): return e.vmem(f"buffer_load_dwordx4 v{vL16}, s[{SRD_WS}:{SRD_WS+3}], {soff} offen offset:{imm} sc1 lds")
        sXB, sHB, sSB = 88, 89, 90
        def grp(blk, ks_mul, ks_add, n):
            its = []
            for t in range(n):
                pre = []
                if t == 0:
                    pre = [f"s_mul_i32 s{sT1}, s{sW}, {ks_mul*1024}", f"s_add_u32 s{sT1}, s{sT1}, {blk*32768 + ks_add*1024}",
                           f"s_mov_b32 m0, s{sT1}", f"s_add_u32 s{sT2}, s{sXB}, s{sT1}"]
                its.append((pre, f"buffer_load_dwordx4 v{vL16}, s[{SRD_WS}:{SRD_WS+3}], s{sT2} offen offset:{t*1024} sc1 lds", []))
            return its
        def grp2(ks_mul, ks_add, n):
            its = []
            for t in range(n):
                pre = []
                if t % 4 == 0:
                    pre = [f"s_mul_i32 s{sT1}, s{sKH}, {ks_mul*1024}", f"s_lshl_b32 s{sT2}, s{sP}, 15", f"s_add_u32 s{sT1}, s{sT1}, s{sT2}",
                           f"s_add_u32 s{sT1}, s{sT1}, {(ks_add + t)*1024}", f"s_mov_b32 m0, s{sT1}", f"s_add_u32 s{sT3}, s{sXB}, s{sT1}"]
                its.append((pre, f"buffer_load_dwordx4 v{vL16}, s[{SRD_WS}:{SRD_WS+3}], s{sT3} offen offset:{(t%4)*1024} sc1 lds", []))
            return its
        C0 = grp2(3, 0, 3); C1 = grp2(5, 6, 5); C2 = grp2(8, 16, 8)
        tok0 = None; tok1 = None
        for it in C0: tok0 = self.emit_item(it)
        for it in C1: tok1 = self.emit_item(it)
        sHS = 92
        statitems = [([], f"buffer_load_dwordx2 v[{144+2*t}:{145+2*t}], v20, s[{SRD_WS}:{SRD_WS+3}], s{sSB} offen offset:{t*256} sc1", []) for t in range(8)]
        hstat = lambda dst: [([], f"buffer_load_dwordx2 v[{dst+2*t}:{dst+1+2*t}], v22, s[{SRD_WS}:{SRD_WS+3}], s{sHS} offen offset:{t*256} sc1", []) for t in range(8)]
        haloitems = []
        for t in range(8):
            pre = []
            if t == 0: pre = [f"s_lshl_b32 s{sT1}, s{sW}, 13", f"s_add_u32 s{sT2}, s{sHB}, s{sT1}", f"s_add_u32 s{sT1}, s{sT1}, 65536", f"s_mov_b32 m0, s{sT1}", "s_nop 0"]
            if t == 4: pre = [f"s_lshl_b32 s{sT1}, s{sW}, 13", f"s_add_u32 s{sT1}, s{sT1}, 4096", f"s_add_u32 s{sT2}, s{sHB}, s{sT1}", f"s_add_u32 s{sT1}, s{sT1}, 65536", f"s_mov_b32 m0, s{sT1}", "s_nop 0"]
            haloitems.append((pre, f"buffer_load_dwordx4 v{vL16}, s[{SRD_WS}:{SRD_WS+3}], s{sT2} offen offset:{(t%4)*1024} sc1 lds", []))
        def wB_item(ks):
            return ([f"s_add_u32 s{sT7}, s{sA3}, {(ks//4)*4096}"], f"buffer_load_dwordx4 a[{128+4*ks}:{131+4*ks}], v{vL16}, s[{SRD_WS}:{SRD_WS+3}], s{sT7} offen offset:{(ks%4)*1024} sc1", [])
        ACC = [32, 48, 64, 80]
        def xread(dst, blk, ks):
            off = blk * 32768 + ks * 1024
            if off < 65536: return e.lds(f"ds_read_b128 v[{dst}:{dst+3}], v{vL16} offset:{off}")
            return e.lds(f"ds_read_b128 v[{dst}:{dst+3}], v21 offset:{off-65536}")
        def mm(acc, wset, ks, xreg, orient, first):
            wr = a(wset * 128 + 4 * ks, 4); xr = v(xreg, 4); c = "0" if first else v(acc, 16)
            if orient == "T": e(f"v_mfma_f32_32x32x16_bf16 {v(acc,16)}, {wr}, {xr}, {c}")
            else: e(f"v_mfma_f32_32x32x16_bf16 {v(acc,16)}, {xr}, {wr}, {c}")
        RN = 4
        def epi(acc, kind, blk, cbi, cset, tmp, pk=False):
            L = []
            if kind in ("q", "k"):
                cs = CSA if cset == 'A' else CSB
                rs, nm = 136 + 2 * blk, 137 + 2 * blk
                if kind == "q":
                    L += [f"v_mul_f32 v142, {fbits(QSCALE)}, v{rs}", f"v_mul_f32 v143, {fbits(QSCALE)}, v{nm}"]; rs, nm = 142, 143
                if pk:
                    L += [f"v_mov_b32 v128, v{rs}", f"v_mov_b32 v130, v{nm}"]
                    for r in range(0, 16, 2): L += [f"v_pk_mul_f32 v[{tmp+r}:{tmp+r+1}], v[{cs+r}:{cs+r+1}], v[130:131] op_sel_hi:[1,0]"]
                    for r in range(0, 16, 2): L += [f"v_pk_fma_f32 v[{tmp+r}:{tmp+r+1}], v[{acc+r}:{acc+r+1}], v[128:129], v[{tmp+r}:{tmp+r+1}] op_sel_hi:[1,0,1]"]
                else:
                    for r in range(16):
                        L += [f"v_mul_f32 v{tmp+r}, v{nm}, v{cs+r}", f"v_fmac_f32 v{tmp+r}, v{acc+r}, v{rs}"]
                src = tmp
                base = (QB_ if kind == "q" else KB_) + blk * 4096 + cbi * 2048
            else:
                csn = CSN if cset == 'A' else CSN + 1
                for q in range(4):
                    L += [f"ds_read_b128 v[{tmp+4*q}:{tmp+3+4*q}], v135 offset:{blk*256+32*q}", f"ds_read_b128 v[{tmp+16+4*q}:{tmp+19+4*q}], v135 offset:{blk*256+128+32*q}"]
                L += ["@wait"]
                if pk:
                    L += [f"v_mov_b32 v128, v{csn}"]
                    for r in range(0, 16, 2): L += [f"v_pk_mul_f32 v[{tmp+16+r}:{tmp+17+r}], v[{tmp+16+r}:{tmp+17+r}], v[128:129] op_sel_hi:[1,0]"]
                    for r in range(0, 16, 2): L += [f"v_pk_fma_f32 v[{tmp+16+r}:{tmp+17+r}], v[{acc+r}:{acc+r+1}], v[{tmp+r}:{tmp+r+1}], v[{tmp+16+r}:{tmp+17+r}]"]
                else:
                    for r in range(16):
                        L += [f"v_mul_f32 v{tmp+16+r}, v{tmp+16+r}, v{csn}", f"v_fmac_f32 v{tmp+16+r}, v{acc+r}, v{tmp+r}"]
                src = tmp + 16
                base = VB_ + blk * 4096 + cbi * 2048
            for d in range(8):
                L += [f"v_cvt_pk_bf16_f32 v{acc+d}, v{src+2*d}, v{src+2*d+1}"]
            L += [f"v_add_u32 v133, {base}, v{vL16}", f"ds_write_b128 v133, v[{acc}:{acc+3}]", f"ds_write_b128 v133, v[{acc+4}:{acc+7}] offset:1024"]
            return L
        class Fill:
            def __init__(s_, items): s_.items = list(items); s_.last = None
            def emit(s_, n=1):
                for _ in range(n):
                    if not s_.items: return
                    l = s_.items.pop(0)
                    if l == "@wait":
                        e.wait_lg(s_.last); continue
                    if l.startswith("ds_"): s_.last = e.lds(l)
                    else: e(l)
            def flush(s_): s_.emit(10**6)
        desc = {
            0: [("q", 0, 0, 'A'), ("q", 1, 0, 'A'), ("q", 0, 1, 'B'), ("q", 1, 1, 'B')],
            1: [("k", 0, 0, 'A'), ("k", 1, 0, 'A'), ("k", 2, 0, 'A'), ("k", 2, 1, 'B')],
            2: [("k", 0, 1, 'A'), ("k", 1, 1, 'A'), ("v", 0, 0, 'B'), ("v", 1, 0, 'B')],
            3: [("v", 0, 1, 'A'), ("v", 1, 1, 'A'), ("v", 2, 1, 'A'), ("v", 2, 0, 'B')],
        }
        units = {
            0: [(ACC[0], 0, 0, "T"), (ACC[1], 0, 1, "T"), (ACC[2], 1, 0, "T"), (ACC[3], 1, 1, "T")],
            1: [(ACC[0], 0, 0, "T"), (ACC[1], 0, 1, "T"), (ACC[2], 0, 0, "T"), (ACC[3], 1, 0, "T")],
            2: [(ACC[0], 0, 0, "T"), (ACC[1], 0, 1, "T"), (ACC[2], 1, 0, "N"), (ACC[3], 1, 1, "N")],
            3: [(ACC[0], 0, 0, "N"), (ACC[1], 0, 1, "N"), (ACC[2], 0, 0, "N"), (ACC[3], 1, 0, "N")],
        }
        labs = [e.newlabel(f"G2W{w}") for w in range(4)]; Lgd = e.newlabel("G2GD")
        e.wait_vm(tok0); e("s_barrier")
        self.stamp("g2A")
        vmA = list(e.vm)
        for w in range(1, 4):
            e(f"s_cmp_eq_u32 s{sW}, {w}\ns_cbranch_scc1 {labs[w]}")
        vm_end = None
        for w in range(4):
            e.label(labs[w]); e.lg = []; e.vm = list(vmA)
            U = units[w]; d = desc[w]
            if w in (0, 2):
                steps = [([0, 1], ks, [0, 1, 2, 3]) for ks in range(16)] + [([0, 1], ks, [0, 1]) for ks in range(16, 32)] + [([0, 1], ks, [2, 3]) for ks in range(16, 32)]
            else:
                steps = [([0, 1], ks, [0, 1]) for ks in range(32)] + [([2], ks, [2, 3]) for ks in range(32)]
            cnt0 = []; c_ = 0
            for (b_, k_, u_) in steps: cnt0.append(c_); c_ += len(u_)
            B1, B2, BC = 10, 30, 62
            def avail(step_idx, count):
                blks, ks, _ = steps[step_idx]
                if blks == [2]: return count >= BC
                if ks >= 16: return count >= B2
                if ks >= 6: return count >= B1
                return True
            side = {}
            def put(c, it): side.setdefault(c, []).append(it)
            named = {}
            for i, it in enumerate(C2): put(2 * i, ("vm", f"C2_{i}", it))
            wBneed = {}
            if w in (0, 2):
                lo = {10: 17, 11: 22, 12: 27, 13: 28, 14: 31, 15: 35} if w == 0 else {10: 17, 11: 20, 12: 23, 13: 26, 14: 31, 15: 35}
                for ks, c in lo.items(): put(c, ("vm", f"wB{ks}", wB_item(ks)))
                for i, ks in enumerate(range(16, 32)): put(46 + 2 * i, ("vm", f"wB{ks}", wB_item(ks)))
            else:
                for i, ks in enumerate(range(10, 16)): put(46 + 2 * i, ("vm", f"wB{ks}", wB_item(ks)))
                for i, ks in enumerate(range(16, 32)): put(58 + 2 * i, ("vm", f"wB{ks}", wB_item(ks)))
                for i, it in enumerate(hstat(160 if w == 1 else 176)): put(65 + 2 * i, ("vm", f"hs{i}", it))
            if w == 0:
                put(16, ("vm", "poll", ([], f"buffer_load_dword v24, v23, s[{SRD_WS}:{SRD_WS+3}], s93 offen sc1", [])))
                for i, c in enumerate((18, 19, 20, 21, 23, 24, 25, 26)): put(c, ("vm", f"st{i}", statitems[i]))
            if w == 1:
                for i in range(8): put(16 + i, ("vm", f"st{i}", statitems[i]))
            for i, it in enumerate(haloitems): put(30 + 2 * i, ("vm", f"halo{i}", it))
            stfill = None
            if w < 2:
                sub = Emitter(); old = self.e; self.e = sub
                self.stats_finish(144, 130, 131)
                sub(f"v_mul_f32 v130, v130, v131\nv_sub_f32 v130, 0, v130\nv_cmp_gt_u32 vcc, 32, v{vL}\ns_nop 1\nv_cndmask_b32 v130, v130, v131, vcc")
                sub(f"v_add_u32 v131, {TB + w*256}, v{vL4}\nds_write_b32 v131, v130")
                self.e = old
                stfill = Fill([l.strip() for l in sub.lines])
            f12 = None
            fstart = 98 if w in (0, 2) else 67
            hfill = None
            xt = {}
            ringslot = lambda si, b: 96 + ((si % RN) * 2 + b) * 4
            count = 0
            def do_barrier(c):
                if c == B1: e.wait_vm(tok1); e("s_barrier")
                if c == B2:
                    if w == 0:
                        Lok = e.newlabel("HOK"); Lp = e.newlabel("HPOLL")
                        e.wait_vm(named["poll"])
                        e(f"v_cmp_ne_u32 vcc, s{sTAG}, v24\ns_cbranch_vccz {Lok}")
                        saved = list(e.vm)
                        e(f"s_mov_b32 s{sPOLL}, 0")
                        e.label(Lp)
                        e(f"buffer_load_dword v24, v23, s[{SRD_WS}:{SRD_WS+3}], s93 offen sc1\ns_waitcnt vmcnt(0)\nv_cmp_ne_u32 vcc, s{sTAG}, v24\ns_cbranch_vccz {Lok}")
                        e(f"s_add_u32 s{sPOLL}, s{sPOLL}, 1\ns_cmp_lt_u32 s{sPOLL}, 400000\ns_cbranch_scc1 {Lp}\ns_branch L_END")
                        e.label(Lok)
                        e.vm = saved
                    e.wait_vm(named["C2_7"]); e("s_barrier")
                if c == BC:
                    if stfill: stfill.flush()
                    if w == 0: self.stamp("g2p1")
                    e.wait_vm(named["halo7"]); e("s_waitcnt lgkmcnt(0)\ns_barrier"); e.lg = []
                    for blk in range(2):
                        e.lds(f"ds_read_b32 v{136+2*blk}, v134 offset:{blk*256}"); named["tb"] = e.lds(f"ds_read_b32 v{137+2*blk}, v134 offset:{blk*256+128}")
            for si, (blks, ks, us) in enumerate(steps):
                for ui_i, ui in enumerate(us):
                    if count in (B1, B2, BC): do_barrier(count)
                    if ui_i == 0:
                        for sj in range(si, min(si + RN, len(steps))):
                            if sj not in xt and avail(sj, count):
                                bl, kk, _ = steps[sj]
                                t_ = None
                                for b, blk in enumerate(bl): t_ = xread(ringslot(sj, b), blk, kk)
                                xt[sj] = t_
                        e.wait_lg(xt[si])
                    acc, wset, b, orient = U[ui]
                    if wset == 1 and f"wB{ks}" in named: e.wait_vm(named[f"wB{ks}"])
                    first = (ks == 0)
                    mm(acc, wset, ks, ringslot(si, b), orient, first)
                    for kind, nm_, it in side.get(count, []): named[nm_] = self.emit_item(it)
                    if stfill and 46 <= count < BC:
                        if count == 46: e.wait_vm(named["st7"])
                        stfill.emit(3)
                    if count == fstart - 1:
                        e.wait_lg(named["tb"])
                        f12 = Fill(epi(ACC[0], *d[0], 144) + epi(ACC[1], *d[1], 144))
                    if f12 and count >= fstart: f12.emit(4 if w in (0, 2) else 2)
                    count += 1
            if f12: f12.flush()
            if w in (1, 3):
                e.wait_vm(named["hs7"])
                self.stats_finish(160 if w == 1 else 176, 130, 131)
                e("v_mul_f32 v130, v130, v131\nv_sub_f32 v130, 0, v130")
                if w == 1:
                    e("v_mov_b32 v140, v131\nv_mov_b32 v141, v130")
                else:
                    e(f"v_cmp_gt_u32 vcc, 32, v{vL}\ns_nop 1\nv_cndmask_b32 v130, v130, v131, vcc\nv_add_u32 v131, {TB + 2*256}, v{vL4}")
                    e.lds("ds_write_b32 v131, v130")
                    e("s_waitcnt lgkmcnt(0)"); e.lg = []
            if w == 0: self.stamp("g2p2")
            Fill(epi(ACC[2], *d[2], 144, pk=True)).flush()
            Fill(epi(ACC[3], *d[3], 96, pk=True)).flush()
            vm_end = list(e.vm)
            if w < 3: e(f"s_branch {Lgd}")
        e.label(Lgd)
        e.vm = vm_end
        e("s_waitcnt lgkmcnt(0)\ns_barrier")
        e.lg = []
        self.stamp("g2gemm")
        e(f"s_lshl_b32 s{sT0}, s{sW}, 10\ns_add_u32 s{sT0}, s{sT0}, {QB_}\nv_add_u32 v20, s{sT0}, v{vL16}")
        e(f"s_lshr_b32 s{sT1}, s{sW}, 1\ns_lshl_b32 s{sT1}, s{sT1}, 11\ns_add_u32 s{sT1}, s{sT1}, {VB_}\nv_add_u32 v21, s{sT1}, v{vL16}")
        Q = [32, 36]; Kf = [40, 44, 48]; V = {(0, 0): 52, (0, 1): 56, (1, 0): 60, (1, 1): 64, (2, 0): 68, (2, 1): 72}
        e(f"ds_read_b128 v[{Kf[2]}:{Kf[2]+3}], v20 offset:{(KB_-QB_)+2*4096}")
        for p in range(2):
            e(f"ds_read_b128 v[{Q[p]}:{Q[p]+3}], v20 offset:{p*4096}\nds_read_b128 v[{Kf[p]}:{Kf[p]+3}], v20 offset:{(KB_-QB_)+p*4096}")
        for (b, c), r in V.items(): e(f"ds_read_b128 v[{r}:{r+3}], v21 offset:{b*4096+c*1024}")
        e(f"s_lshl_b32 s{sT0}, s{sJ}, 2\ns_add_u32 s{sT0}, s{sT0}, s{sW}\ns_lshl_b32 s{sT0}, s{sT0}, 10")
        e(f"s_lshl_b32 s{sT1}, s{sC}, 16\ns_add_u32 s{sT0}, s{sT0}, s{sT1}\ns_add_u32 s{sT0}, s{sT0}, s{sOB}\ns_add_u32 s{sT1}, s{sT0}, 32768")
        So = [80, 96]; Sh = [112, 128]; Oo = [144, 160]
        setup, g3items = self.wpair_dma_list(WB_OB, self.WL0, sA4, sA5)
        e(f"s_mov_b32 s88, s{sT0}\ns_mov_b32 s89, s{sT1}")
        for x in setup: e(x)
        def g3dma(n):
            for _ in range(n):
                if g3items: self.emit_item(g3items.pop(0))
        g3dma(5)
        e("s_waitcnt lgkmcnt(8)")
        e(f"v_mfma_f32_32x32x16_bf16 {v(So[0],16)}, {v(Kf[0],4)}, {v(Q[0],4)}, v[212:227]")
        e(f"v_mfma_f32_32x32x16_bf16 {v(Sh[0],16)}, {v(Kf[2],4)}, {v(Q[0],4)}, v[228:243]")
        e("s_waitcnt lgkmcnt(6)")
        e(f"v_mfma_f32_32x32x16_bf16 {v(So[1],16)}, {v(Kf[1],4)}, {v(Q[1],4)}, v[212:227]")
        e(f"v_mfma_f32_32x32x16_bf16 {v(Sh[1],16)}, {v(Kf[2],4)}, {v(Q[1],4)}, v[228:243]")
        g3dma(3)
        e("v_mov_b32 v26, 0x3f803f80")
        vals = [[So[p] + r for r in range(16)] + [Sh[p] + 4 * (2 * p + 1) + jj for jj in range(4)] for p in range(2)]
        mx = [22, 24]; tm = [23, 25]
        PP = [176, 192]
        for p in range(2):
            vl = vals[p]
            e(f"v_max3_f32 v{mx[p]}, v{vl[0]}, v{vl[1]}, v{vl[2]}")
            i = 3
            while i < 20:
                if i + 1 < 20: e(f"v_max3_f32 v{mx[p]}, v{mx[p]}, v{vl[i]}, v{vl[i+1]}"); i += 2
                else: e(f"v_max_f32 v{mx[p]}, v{mx[p]}, v{vl[i]}"); i += 1
        for p in range(2): e(f"v_mov_b32 v{tm[p]}, v{mx[p]}")
        for p in range(2): e(f"v_permlane32_swap_b32 v{mx[p]}, v{tm[p]}")
        for p in range(2): e(f"v_max_f32 v{mx[p]}, v{mx[p]}, v{tm[p]}")
        for p in range(2):
            for x in vals[p][::2]:
                e(f"v_pk_add_f32 v[{x}:{x+1}], v[{x}:{x+1}], v[{mx[p]}:{mx[p]+1}] op_sel_hi:[1,0] neg_lo:[0,1] neg_hi:[0,1]")
        for p in range(2):
            for i_, x in enumerate(vals[p]):
                e(f"v_exp_f32 v{x}, v{x}")
                if i_ % 5 == 4: g3dma(1)
            S_ = So[p]; H_ = vals[p][16]; Pp = PP[p]
            e(f"v_mov_b32 v{Pp+8}, 0\nv_mov_b32 v{Pp+9}, 0")
            for d in range(8): e(f"v_cvt_pk_bf16_f32 v{Pp+d}, v{S_+2*d}, v{S_+2*d+1}")
            e(f"v_cvt_pk_bf16_f32 v{Pp+10}, v{H_}, v{H_+1}\nv_cvt_pk_bf16_f32 v{Pp+11}, v{H_+2}, v{H_+3}")
            e(f"v_mov_b32 v{mx[p]}, 0\nv_mov_b32 v{tm[p]}, 0")
            for k_, d in enumerate(list(range(8)) + [10, 11]): e(f"v_dot2c_f32_bf16 v{mx[p] if k_ % 2 == 0 else tm[p]}, v26, v{Pp+d}")
            O_ = Oo[p]
            if p == 0: e("s_waitcnt lgkmcnt(0)")
            e(f"v_mfma_f32_32x32x16_bf16 {v(O_,16)}, {v(V[(p,0)],4)}, {v(Pp,4)}, 0")
            e(f"v_mfma_f32_32x32x16_bf16 {v(O_,16)}, {v(V[(p,1)],4)}, {v(Pp+4,4)}, {v(O_,16)}")
            e(f"v_mfma_f32_32x32x16_bf16 {v(O_,16)}, {v(V[(2,p)],4)}, {v(Pp+8,4)}, {v(O_,16)}")
        for p in range(2): e(f"v_add_f32 v{mx[p]}, v{mx[p]}, v{tm[p]}")
        for p in range(2): e(f"v_mov_b32 v{tm[p]}, v{mx[p]}")
        for p in range(2): e(f"v_permlane32_swap_b32 v{mx[p]}, v{tm[p]}")
        for p in range(2): e(f"v_add_f32 v{mx[p]}, v{mx[p]}, v{tm[p]}")
        for p in range(2): e(f"v_rcp_f32 v{mx[p]}, v{mx[p]}")
        Lodd = e.newlabel("ODD"); Ldone = e.newlabel("ODDD")
        e(f"s_bitcmp1_b32 s{sW}, 0\ns_cbranch_scc1 {Lodd}")
        for half in range(2):
            if half == 1: e.label(Lodd)
            for p in range(2):
                b0 = Oo[p] + 8 * half
                for r in range(0, 8, 2): e(f"v_pk_mul_f32 v[{b0+r}:{b0+r+1}], v[{b0+r}:{b0+r+1}], v[{mx[p]}:{mx[p]+1}] op_sel_hi:[1,0]")
                for d in range(4): e(f"v_cvt_pk_bf16_f32 v{28+4*p+d}, v{b0+2*d}, v{b0+2*d+1}")
            if half == 0: e(f"s_branch {Ldone}")
        e.label(Ldone)
        tok = self.moded(lambda fl: (self.ws_store(28, "s88", 0, flag=fl), self.ws_store(32, "s89", 0, flag=fl))[1])
        g3dma(16)
        return tok

    def build(self):
        e = self.e
        self.prologue()
        self.stamp("start")
        def stop(name):
            if self.stop_after == name:
                e("s_waitcnt vmcnt(0) lgkmcnt(0)\ns_endpgm")
                return True
            return False
        self.half_setup()
        self.first_phase()
        self.sync_consts()
        self.stamp("fdone")
        e.label("L_ATT")
        tok = self.attention()
        self.stamp("attdone")
        if stop("att"): return self.finish()
        self.sync_cluster(0, tok=tok, window=lambda: self.g2_masks(), pre_barrier=lambda: e("s_waitcnt lgkmcnt(0)"), post_barrier=self.fallback_check)
        self.stamp("c0")
        def wB_it(ks):
            return ([f"s_add_u32 s{sT7}, s{sA3}, {(ks//4)*4096}"], f"buffer_load_dwordx4 a[{128+4*ks}:{131+4*ks}], v{vL16}, s[{SRD_WS}:{SRD_WS+3}], s{sT7} offen offset:{(ks%4)*1024} sc1", [])
        tok = self.outproj(True, sOA, sXMID, sSTMID, sHX, self.WL1, side=[wB_it(ks) for ks in range(10)] + self.g2_const_items())
        self.stamp("g1done")
        if stop("g1"): return self.finish()
        self.sync_cluster(1, tok=tok, window=lambda: self.g2_addrs(), drain=True, halo_flag=True)
        e.reset_counters()
        self.stamp("c1")
        tok = self.g2()
        self.stamp("g2done")
        if stop("g2"): return self.finish()
        Lh0 = e.newlabel("NOTLAST")
        e(f"s_cmp_eq_u32 s{sHALF}, 0\ns_cbranch_scc1 {Lh0}")
        saved_vm = list(e.vm)
        def out_addr():
            e(f"v_and_b32 v{vOUT}, 31, v{vL}\nv_lshlrev_b32 v{vOUT}, 11, v{vOUT}\nv_lshrrev_b32 v18, 5, v{vL}\nv_lshl_add_u32 v{vOUT}, v18, 4, v{vOUT}")
            e(f"s_lshl_b32 s{sAD}, s{sC}, 6\ns_add_u32 s{sAD}, s{sAD}, s{sP}\ns_lshl_b32 s{sAD}, s{sAD}, 10\ns_lshl_b32 s{sT1}, s{sNB}, 6\ns_add_u32 s{sAD}, s{sAD}, s{sT1}")
        self.sync_cluster(2, tok=tok, window=out_addr, drain=True)
        e.reset_counters()
        self.stamp("c2")
        self.outproj(False, sOB, None, None, None, self.WL0, final=True)
        e.label(Lh0)
        e.vm = saved_vm
        self.nstamp -= 2; self.stampnames = self.stampnames[:-2] if self.stamps else []
        self.sync_cluster(2, tok=tok, window=lambda: (self.g4_prefetch_cs(), self.g4_prefetch_kv()), drain=True)
        e.reset_counters()
        self.stamp("c2")
        setup, qitems = self.wpair_dma_list(WB_Q, self.WL1, sA4, sA5)
        for x in setup: e(x)
        tok = self.outproj(False, sOB, sXOUT, sSTOUT, None, self.WL0, side=qitems)
        self.nstamp += 1
        if self.stamps: self.stampnames.append("end")
        self.stamp("g3done")
        if stop("g3"): return self.finish()
        self.sync_cluster(3, tok=tok, drain=True)
        e.reset_counters()
        self.stamp("c3")
        e(f"s_mov_b32 s{sHALF}, 1")
        self.half_setup()
        self.alias_setup()
        self.g4()
        self.stamp("g4done")
        e("s_branch L_ATT")
        self.fallback()
        return self.finish()

    def finish(self):
        e = self.e
        e.label("L_END")
        e("s_endpgm")
        e.label("L_CODE_END")
        lines, n = fix_hazards(e.lines)
        hdr = open('cdna_kernels/' + NAME + '.s.ref').read().split("\n")
        head = [l for l in hdr if l.startswith(";") and "@launch" not in l and "Override launch" not in l and "grid=ceil" not in l]
        out = head + ["; @launch grid=(256,1,1) block=(256,1,1) lds=163840"]
        out += ['.amdgcn_target "amdgcn-amd-amdhsa--gfx950"', ".text", f".globl {KN}", ".p2align 8", f".type {KN},@function", f"{KN}:"]
        out += lines
        out += ['.section .rodata,"a"', ".p2align 6", f".amdhsa_kernel {KN}",
                "  .amdhsa_next_free_vgpr 512", "  .amdhsa_next_free_sgpr 102", "  .amdhsa_accum_offset 256",
                "  .amdhsa_group_segment_fixed_size 0", "  .amdhsa_kernarg_size 88", "  .amdhsa_user_sgpr_count 2",
                "  .amdhsa_user_sgpr_kernarg_segment_ptr 1", "  .amdhsa_system_sgpr_workgroup_id_x 1", ".end_amdhsa_kernel", ""]
        self.nops = n
        return "\n".join(out)

if __name__ == "__main__":
    import argparse
    ap = argparse.ArgumentParser()
    ap.add_argument("-o", default="k.s")
    ap.add_argument("--stop", default=None)
    ap.add_argument("--stamps", action="store_true")
    ap.add_argument("--attvar", default="")
    ap.add_argument("--light", default=None)
    ap.add_argument("--safe", action="store_true")
    ap.add_argument("--nopf", action="store_true")
    ap.add_argument("--outflag", default="")
    ap.add_argument("--noalias", action="store_true")
    ap.add_argument("--ah", type=int, default=8)
    ap.add_argument("--pp", action="store_true")
    ap.add_argument("--dbgstamps", action="store_true")
    ap.add_argument("--prepmap", type=int, default=0)
    ap.add_argument("--nopretouch", action="store_true")
    args = ap.parse_args()
    g = Gen(stop_after=args.stop, stamps=args.stamps)
    g.attvar = args.attvar
    g.light = args.light
    g.force_safe = args.safe
    g.nopf = args.nopf
    g.outflag = args.outflag
    g.noalias = args.noalias
    g.AH = args.ah
    g.pp = args.pp
    g.dbgstamps = args.dbgstamps
    g.prepmap = args.prepmap
    g.nopretouch = args.nopretouch
    txt = g.build()
    open(args.o, "w").write(txt)
    print("wrote", args.o, "lines", txt.count("\n"), "nop states", g.nops)
    if args.stamps: print(g.stampnames)
```

```python
import sys
from asmlib import *

NAME = 'interleave_layers__grouped_kv_mqa__sliding_local_dilated__prompt'
KN = NAME + '_kernel'

FL_C   = 0x10000
FL_G0  = 0x18000
FL_GK  = 0x1A000
FL_XW  = 0x1C000
FL_H   = 0x20000
DBG    = 0x40000
WF     = 0x100000
CS     = 0x480000
X0     = 0x500000
OA     = 0xD00000
OB     = 0x1100000
HX     = 0x1500000
ST0    = 0x1700000
KF     = 0x1800000
VT_STRIDE = 1088
STH    = 0x1A00000
WS_BYTES = 0x10000000
MODEADDR = 163832
WB_Q, WB_KV, WB_OA, WB_BQ, WB_BK, WB_BV, WB_OB = 0, 16, 17, 33, 49, 65, 81

LOG2E = 1.4426950408889634
QSCALE = 0.25 * LOG2E
import struct
def fbits(x): return "0x%08x" % struct.unpack("<I", struct.pack("<f", x))[0]

sG = 2
SRD_WS = 4
SRD_T  = 8
SRD_OUT = 12
sC, sJ, sW, sP, sKH, sTAG, sHALF, sHC = 16, 17, 18, 19, 20, 21, 22, 23
sRBOFF = 24
sSTOFF = 25
sRB    = 26
sNB    = 27
sXIN, sXMID, sXOUT = 28, 29, 30
sSTIN, sSTMID, sSTOUT = 31, 32, 33
sOA, sOB, sHX, sKF = 34, 35, 36, 37
sFLC = 38
sT0, sT1, sT2, sT3, sT4, sT5, sT6, sT7 = 40, 41, 42, 43, 44, 45, 46, 47
sM0, sM1 = 48, 50
sPOLL = 52
sTS = 54
sIN = 64
sOUTP = 80
sLOOP = 56
sA0, sA1, sA2, sA3 = 57, 58, 59, 60
sFA = 61
sA4, sA5 = 62, 63
sACT = 91
sRANK = 100
sPERM = 97
sDBGP = 98
sAD = 96
sCSA, sCSB = 94, 95
sFB = 101
sBAD = 48
sPFB = 86
sMODE = 39
sSTH = 53

vTID, vL, vL16, vL4 = 0, 1, 2, 3
XR = 4
vSTAT = 12
vHALO = 13
vT0, vT1 = 14, 15
vFA, vFT, vPA, vPD = 244, 245, 246, 247
vOUT = 250
vCSH, vCSN = 248, 249
vWK, vWS = 254, 255

LS = [64, 66, 76, 78, 80, 84, 56, 58]
class Gen:
    AH = 8
    def __init__(self, stop_after=None, stamps=False, safe=True):
        self.e = Emitter()
        self.stop_after = stop_after
        self.stamps = stamps
        self.st = "sc1"
        self.ld = "sc1"
        self.nstamp = 0

    def stamp(self, name):
        if getattr(self, "dbgstamps", False):
            names = ["start", "att_kv", "att_loopend", "c3", "end"]
            if name not in names: return
            e = self.e
            k = names.index(name)
            L = e.newlabel("DST")
            e(f"s_cmp_lg_u32 s{sW}, 0\ns_cbranch_scc1 {L}\ns_and_b32 s{sT6}, s{sG}, 0xfb\ns_cmp_lg_u32 s{sT6}, 0\ns_cbranch_scc1 {L}")
            base = {"start": 0, "att_kv": 1, "att_loopend": 3, "c3": 5, "end": 6}[name]
            e(f"s_memrealtime s[84:85]\ns_waitcnt lgkmcnt(0)")
            e(f"s_lshl_b32 s{sT6}, s{sG}, 3")
            if name in ("att_kv", "att_loopend"): e(f"s_lshl_b32 s{sT7}, s{sHALF}, 2\ns_add_u32 s{sT6}, s{sT6}, s{sT7}")
            e(f"s_add_u32 s{sT6}, s{sT6}, {base*4}")
            e(f"s_mov_b32 s{SRD_T}, s82\ns_mov_b32 s{SRD_T+1}, s83\ns_mov_b32 s{SRD_T+2}, 256\ns_mov_b32 s{SRD_T+3}, 0x20000")
            e(f"v_mov_b32 v{vT0}, s84\nv_mov_b32 v{vT1}, 0\ns_mov_b64 exec, 1\nbuffer_store_dword v{vT0}, v{vT1}, s[{SRD_T}:{SRD_T+3}], s{sT6} offen")
            if name == "start": e(f"v_mov_b32 v{vT0}, s36\nbuffer_store_dword v{vT0}, v{vT1}, s[{SRD_T}:{SRD_T+3}], s{sT6} offen offset:28")
            e("s_mov_b64 exec, -1")
            e.label(L)
            return
        if not self.stamps: return
        e = self.e
        idx = self.nstamp; self.nstamp += 1
        L = e.newlabel("STAMP")
        e(f"s_cmp_lg_u32 s{sW}, 0\ns_cbranch_scc1 {L}")
        e(f"s_memrealtime s[{sTS}:{sTS+1}]\ns_memtime s[50:51]\ns_waitcnt lgkmcnt(0)")
        e(f"s_lshl_b32 s{sT7}, s{sG}, 9\ns_add_u32 s{sT7}, s{sT7}, {DBG}\ns_mul_i32 s{sT6}, s{sHALF}, 256\ns_add_u32 s{sT7}, s{sT7}, s{sT6}")
        e(f"v_mov_b32 v{vT0}, s{sTS}\nv_mov_b32 v{vT1}, 0")
        e(f"s_mov_b64 exec, 1\nbuffer_store_dword v{vT0}, v{vT1}, s[{SRD_WS}:{SRD_WS+3}], s{sT7} offen offset:{(idx % 32) * 4}")
        e(f"v_mov_b32 v{vT0}, s50\nbuffer_store_dword v{vT0}, v{vT1}, s[{SRD_WS}:{SRD_WS+3}], s{sT7} offen offset:{128 + (idx % 32) * 4}\ns_mov_b64 exec, -1")
        e.label(L)
        self.stampnames = getattr(self, "stampnames", []) + [name]

    def lstamp(self, k):
        if self.stamps and getattr(self, "light", None): self.e(f"s_memtime s[{LS[k]}:{LS[k]+1}]")
    def lflush(self, name):
        if not (self.stamps and getattr(self, "light", None) == name): return
        e = self.e
        L = e.newlabel("LST")
        e(f"s_cmp_lg_u32 s{sW}, 0\ns_cbranch_scc1 {L}\ns_waitcnt lgkmcnt(0)")
        e(f"s_lshl_b32 s{sT7}, s{sG}, 6\ns_add_u32 s{sT7}, s{sT7}, 0x60000\ns_lshl_b32 s{sT6}, s{sHALF}, 5\ns_add_u32 s{sT7}, s{sT7}, s{sT6}")
        e(f"v_mov_b32 v{vT1}, 0\ns_mov_b64 exec, 1")
        for k in range(8):
            e(f"v_mov_b32 v{vT0}, s{LS[k]}\nbuffer_store_dword v{vT0}, v{vT1}, s[{SRD_WS}:{SRD_WS+3}], s{sT7} offen offset:{4*k}")
        e("s_mov_b64 exec, -1")
        e.label(L)

    def ws_load(self, dst, soff, imm=0, voff=vL16, n=4, flag=None, acc=False):
        flag = self.ld if flag is None else flag
        mn = {1: "buffer_load_dword", 2: "buffer_load_dwordx2", 4: "buffer_load_dwordx4"}[n]
        d = a(dst, n) if acc else v(dst, n)
        return self.e.vmem(f"{mn} {d}, v{voff}, s[{SRD_WS}:{SRD_WS+3}], {soff} offen offset:{imm} {flag}")
    def ws_store(self, src, soff, imm=0, voff=vL16, n=4, flag=None):
        flag = self.st if flag is None else flag
        mn = {1: "buffer_store_dword", 2: "buffer_store_dwordx2", 4: "buffer_store_dwordx4"}[n]
        return self.e.vmem(f"{mn} {v(src, n)}, v{voff}, s[{SRD_WS}:{SRD_WS+3}], {soff} offen offset:{imm} {flag}")

    def moded(self, fn):
        e = self.e
        Lf = e.newlabel("FAST"); Ld = e.newlabel("MDONE")
        e(f"s_cmp_eq_u32 s{sMODE}, 1\ns_cbranch_scc1 {Lf}")
        saved = list(e.vm); nt = e.ntok
        fn("sc1")
        e(f"s_branch {Ld}")
        e.label(Lf)
        e.vm = saved; e.ntok = nt
        r = fn("")
        e.label(Ld)
        return r

    def load_frags(self, dst, sbase, nfr, acc=False, flag=None, stmp=sT7):
        e = self.e; toks = []
        for t in range(nfr):
            if t % 4 == 0:
                if t == 0: so = f"s{sbase}"
                else:
                    e(f"s_add_u32 s{stmp}, s{sbase}, {t*1024}"); so = f"s{stmp}"
            toks.append(self.ws_load(dst + 4 * t, so, (t % 4) * 1024, acc=acc, flag=flag))
        return toks

    def poll(self, kind, setup):
        e = self.e
        Lp = e.newlabel("POLL"); Lok = e.newlabel("POLLOK")
        e(f"s_mov_b32 s{sPOLL}, 0")
        e.label(Lp)
        setup()
        e(f"s_cbranch_vccz {Lok}")
        e(f"s_add_u32 s{sPOLL}, s{sPOLL}, 1\ns_cmp_lt_u32 s{sPOLL}, 400000\ns_cbranch_scc1 {Lp}")
        e("s_branch L_END")
        e.label(Lok)

    def poll2(self, vaddr, soff):
        e = self.e
        Lp = e.newlabel("POLL"); Lok = e.newlabel("POLLOK")
        ld = lambda r: e(f"buffer_load_dword v{r}, v{vaddr}, s[{SRD_WS}:{SRD_WS+3}], {soff} offen sc1")
        e(f"s_mov_b32 s{sPOLL}, 0")
        ld(17); e("s_nop 15\ns_nop 15\ns_nop 15"); ld(18); e("s_nop 15\ns_nop 15\ns_nop 15"); ld(19)
        e.label(Lp)
        for r in (17, 18, 19):
            e(f"s_waitcnt vmcnt(2)\nv_cmp_ne_u32 vcc, s{sTAG}, v{r}\ns_cbranch_vccz {Lok}")
            ld(r)
        e(f"s_add_u32 s{sPOLL}, s{sPOLL}, 1\ns_cmp_lt_u32 s{sPOLL}, 150000\ns_cbranch_scc1 {Lp}")
        e("s_branch L_END")
        e.label(Lok)

    def sync_consts(self):
        e = self.e
        e(f"s_lshl_b32 s{sT1}, s{sJ}, 2\nv_mov_b32 v{vFA}, s{sT1}\nv_mov_b32 v{vFT}, s{sTAG}\nv_and_b32 v{vPA}, 7, v{vL}\nv_lshlrev_b32 v{vPA}, 2, v{vPA}")
        e(f"v_lshrrev_b32 v{vCSH}, 5, v{vL}\nv_lshlrev_b32 v{vCSH}, 4, v{vCSH}\nv_and_b32 v{vCSN}, 31, v{vL}\nv_lshlrev_b32 v{vCSN}, 2, v{vCSN}")

    def sync_cluster(self, sid, tok=None, pre_barrier=None, window=None, drain=False, halo_flag=False, post_barrier=None):
        e = self.e
        e(f"s_lshl_b32 s{sFA}, s{sC}, 7\ns_add_u32 s{sFA}, s{sFA}, s{sFLC}\ns_add_u32 s{sFA}, s{sFA}, {sid*4096}")
        if halo_flag:
            e(f"s_lshl_b32 s{sAD}, s{sHALF}, 12\ns_lshl_b32 s{sT1}, s{sC}, 7\ns_add_u32 s{sAD}, s{sAD}, s{sT1}\ns_add_u32 s{sAD}, s{sAD}, {FL_H}")
        e.wait_vm(tok)
        if pre_barrier: pre_barrier()
        e("s_barrier")
        if post_barrier: post_barrier()
        L0 = e.newlabel("SYNCA"); L = e.newlabel("SYNC")
        srd = f"s[{SRD_WS}:{SRD_WS+3}]"
        e(f"s_cmp_lg_u32 s{sW}, 0\ns_cbranch_scc1 {L0}")
        e("s_mov_b64 exec, 1")
        saved = list(e.vm)
        self.moded(lambda fl: e(f"buffer_store_dword v{vFT}, v{vFA}, {srd}, s{sFA} offen {fl}"))
        e.vm = saved
        e("s_mov_b64 exec, -1")
        e(f"buffer_load_dword v{vPD}, v{vPA}, {srd}, s{sFA} offen sc1")
        e.label(L0)
        n0 = len(e.vm)
        if window: window()
        nwin = len(e.vm) - n0
        Lp = e.newlabel("POLL")
        e(f"s_cmp_lg_u32 s{sW}, 0\ns_cbranch_scc1 {L}")
        e(f"s_mov_b32 s{sPOLL}, 0\ns_waitcnt vmcnt({min(nwin, 63)})\nv_cmp_ne_u32 vcc, s{sTAG}, v{vPD}\ns_cbranch_vccz {L}")
        e.label(Lp)
        e(f"buffer_load_dword v{vPD}, v{vPA}, {srd}, s{sFA} offen sc1\ns_waitcnt vmcnt(0)\nv_cmp_ne_u32 vcc, s{sTAG}, v{vPD}\ns_cbranch_vccz {L}")
        e(f"s_add_u32 s{sPOLL}, s{sPOLL}, 1\ns_cmp_lt_u32 s{sPOLL}, 400000\ns_cbranch_scc1 {Lp}\ns_branch L_END")
        e.label(L)
        if drain:
            e("s_waitcnt vmcnt(0)"); e.vm = []
        e("s_barrier")
        if halo_flag:
            L2 = e.newlabel("HF")
            e(f"s_cmp_lg_u32 s{sW}, 0\ns_cbranch_scc1 {L2}")
            e(f"s_mov_b64 exec, 1\nbuffer_store_dword v{vFT}, v{vFA}, {srd}, s{sAD} offen sc1\ns_mov_b64 exec, -1")
            e.label(L2)

    def prologue(self):
        e = self.e
        if getattr(self, "dbgstamps", False): e("s_memrealtime s[36:37]")
        e(f"s_cmp_ge_u32 s{sG}, 256\ns_cbranch_scc1 L_END")
        e(f"s_load_dwordx16 s[{sIN}:{sIN+15}], s[0:1], 0")
        if not getattr(self, "nopf", False):
            Lpf = e.newlabel("PF")
            e(f"s_getpc_b64 s[40:41]")
            e.label("L_PFBASE")
            e(f"s_mov_b32 s{sPFB}, s40\ns_mov_b32 s{sPFB+1}, s41")
            e(f"s_lshr_b32 s42, s{sG}, 3\ns_mul_i32 s42, s42, 3072\ns_add_u32 s43, s42, 3072\ns_cmp_gt_u32 s43, L_CODE_END-L_PFBASE\ns_cbranch_scc1 {Lpf}")
            e(f"s_add_u32 s40, s40, s42\ns_addc_u32 s41, s41, 0\nv_and_b32 v250, 63, v0\nv_lshrrev_b32 v251, 6, v0\nv_lshlrev_b32 v250, 4, v250\nv_min_u32 v251, 2, v251\nv_lshl_add_u32 v250, v251, 10, v250")
            e("global_load_dwordx4 v[252:255], v250, s[40:41]")
            e.label(Lpf)
        e(f"s_load_dwordx4 s[{sOUTP}:{sOUTP+3}], s[0:1], 64")
        e(f"s_load_dwordx2 s[{sOUTP+4}:{sOUTP+5}], s[0:1], 80")
        e(f"v_and_b32 v{vL}, 63, v{vTID}\nv_lshrrev_b32 v{vT0}, 6, v{vTID}")
        e(f"v_lshlrev_b32 v{vL16}, 4, v{vL}\nv_lshlrev_b32 v{vL4}, 2, v{vL}")
        e(f"v_readfirstlane_b32 s{sW}, v{vT0}")
        e(f"s_and_b32 s{sT0}, s{sG}, 7\ns_lshr_b32 s{sT1}, s{sG}, 3\ns_and_b32 s{sT2}, s{sT1}, 3")
        e(f"s_lshl_b32 s{sC}, s{sT0}, 2\ns_add_u32 s{sC}, s{sC}, s{sT2}\ns_lshr_b32 s{sJ}, s{sT1}, 2")
        e(f"s_and_b32 s{sP}, s{sW}, 1\ns_lshr_b32 s{sKH}, s{sW}, 1")
        e(f"s_max_u32 s{sHC}, s{sC}, 1\ns_sub_u32 s{sHC}, s{sHC}, 1")
        e(f"s_lshl_b32 s{sRB}, s{sC}, 1\ns_add_u32 s{sRB}, s{sRB}, s{sP}")
        e(f"s_lshl_b32 s{sNB}, s{sJ}, 1\ns_add_u32 s{sNB}, s{sNB}, s{sKH}")
        e(f"s_lshl_b32 s{sRBOFF}, s{sRB}, 15\ns_lshl_b32 s{sT0}, s{sNB}, 11\ns_add_u32 s{sRBOFF}, s{sRBOFF}, s{sT0}")
        e(f"s_lshl_b32 s{sSTOFF}, s{sRB}, 12\ns_lshl_b32 s{sT0}, s{sNB}, 8\ns_add_u32 s{sSTOFF}, s{sSTOFF}, s{sT0}")
        e(f"v_and_b32 v{vT0}, 31, v{vL}\nv_lshrrev_b32 v{vT1}, 5, v{vL}\nv_lshlrev_b32 v{vSTAT}, 3, v{vT0}\nv_lshl_add_u32 v{vSTAT}, v{vT1}, 2, v{vSTAT}")
        e(f"s_lshl_b32 s{sT0}, s{sP}, 4\ns_sub_u32 s{sT0}, s{sT0}, 16\nv_add_u32 v{vHALO}, s{sT0}, v{vL}\nv_lshlrev_b32 v{vHALO}, 4, v{vHALO}")
        e("s_waitcnt lgkmcnt(0)")
        e(f"s_mov_b32 s{SRD_WS}, s{sOUTP+4}\ns_mov_b32 s{SRD_WS+1}, s{sOUTP+5}\ns_mov_b32 s{SRD_WS+2}, {WS_BYTES}\ns_mov_b32 s{SRD_WS+3}, 0x20000")
        e(f"s_mov_b32 s{SRD_OUT}, s{sOUTP}\ns_mov_b32 s{SRD_OUT+1}, s{sOUTP+1}\ns_mov_b32 s{SRD_OUT+2}, {2048*512*2}\ns_mov_b32 s{SRD_OUT+3}, 0x20000")
        e(f"s_mov_b32 s{sHALF}, 0")
        e(f"s_getreg_b32 s3, hwreg(HW_REG_XCC_ID)\ns_and_b32 s3, s3, 15\ns_mov_b32 s{sMODE}, 0")

    def tag_from(self, vreg):
        e = self.e
        e(f"v_readfirstlane_b32 s{sTAG}, v{vreg}")
        e(f"s_mul_i32 s{sTAG}, s{sTAG}, 0x9E3779B1\ns_add_u32 s{sTAG}, s{sTAG}, 0x7F4A7C15")
        Lx = e.newlabel("XW")
        e(f"s_cmp_lg_u32 s{sW}, 0\ns_cbranch_scc1 {Lx}")
        e(f"s_add_u32 s{sT0}, s{sTAG}, s3\ns_add_u32 s{sT0}, s{sT0}, 16\nv_mov_b32 v{vT0}, s{sT0}")
        e(f"s_lshl_b32 s{sT1}, s{sC}, 3\ns_add_u32 s{sT1}, s{sT1}, s{sJ}\ns_lshl_b32 s{sT1}, s{sT1}, 2\ns_add_u32 s{sT1}, s{sT1}, {FL_XW}\nv_mov_b32 v{vT1}, 0")
        e(f"s_mov_b64 exec, 1\nbuffer_store_dword v{vT0}, v{vT1}, s[{SRD_WS}:{SRD_WS+3}], s{sT1} offen sc1\ns_mov_b64 exec, -1")
        e.label(Lx)

    def publish_x(self, sX, sST, sHXr=None, moded=True):
        e = self.e
        e(f"s_add_u32 s{sT0}, s{sX}, s{sRBOFF}")
        def st1(fl):
            for c in range(2): t = self.ws_store(XR + 4 * c, f"s{sT0}", c * 1024, flag=fl)
            return t
        if moded: self.moded(st1)
        else: st1("sc1")
        e(f"v_mov_b32 v16, 0x3f803f80\nv_mov_b32 v17, 0\nv_mov_b32 v18, 0\nv_mov_b32 v19, 0\nv_mov_b32 v20, 0")
        for i in range(8):
            e(f"v_dot2c_f32_bf16 v{17 if i % 2 == 0 else 19}, v16, v{XR+i}\nv_dot2c_f32_bf16 v{18 if i % 2 == 0 else 20}, v{XR+i}, v{XR+i}")
        e("v_add_f32 v17, v17, v19\nv_add_f32 v18, v18, v20")
        e("v_permlane32_swap_b32 v17, v18\nv_add_f32 v17, v17, v18")
        e(f"s_add_u32 s{sT0}, s{sST}, s{sSTOFF}")
        st2 = lambda fl: self.ws_store(17, f"s{sT0}", 0, voff=vSTAT, n=1, flag=fl)
        tok = self.moded(st2) if moded else st2("sc1")
        if sHXr is not None:
            e(f"s_lshl_b32 s{sT1}, s{sC}, 15\ns_add_u32 s{sT1}, s{sT1}, s{sHXr}\ns_lshl_b32 s{sT2}, s{sNB}, 11\ns_add_u32 s{sT1}, s{sT1}, s{sT2}")
            e("s_mov_b32 exec_lo, 0xffff0000\ns_mov_b32 exec_hi, 0xffff0000")
            for c in range(2):
                self.ws_store(XR + 4 * c, f"s{sT1}", c * 1024, voff=vHALO, flag="sc1")
            e("s_mov_b64 exec, -1")
            e(f"s_add_u32 s{sT0}, s{sSTH}, s{sSTOFF}")
            self.ws_store(17, f"s{sT0}", 0, voff=vSTAT, n=1, flag="sc1")
        return tok

    def load_stats_issue(self, dst, sST, srb):
        e = self.e
        e(f"v_and_b32 v{dst+16}, 31, v{vL}\nv_lshlrev_b32 v{dst+16}, 3, v{dst+16}\nv_lshrrev_b32 v{dst+17}, 5, v{vL}\nv_lshl_add_u32 v{dst+16}, v{dst+17}, 11, v{dst+16}")
        e(f"s_lshl_b32 s{sT0}, s{srb}, 12\ns_add_u32 s{sT0}, s{sT0}, s{sST}")
        tok = None
        for t in range(8):
            tok = self.ws_load(dst + 2 * t, f"s{sT0}", t * 256, voff=dst + 16, n=2)
        return tok
    def stats_finish(self, src, vmean, vrstd):
        e = self.e
        for t in range(1, 8):
            e(f"v_add_f32 v{src}, v{src}, v{src+2*t}\nv_add_f32 v{src+1}, v{src+1}, v{src+2*t+1}")
        e(f"v_permlane32_swap_b32 v{src}, v{src+1}\nv_add_f32 v{src}, v{src}, v{src+1}\nv_mov_b32 v{src+1}, v{src}")
        e(f"v_permlane32_swap_b32 v{src}, v{src+1}")
        e(f"v_mul_f32 v{vmean}, {fbits(1/512)}, v{src}")
        e(f"v_mul_f32 v{src+1}, {fbits(1/512)}, v{src+1}")
        e(f"v_fma_f32 v{src+1}, -v{vmean}, v{vmean}, v{src+1}")
        e(f"v_add_f32 v{src+1}, {fbits(1e-5)}, v{src+1}")
        e(f"v_rsq_f32 v{vrstd}, v{src+1}")

    def p0(self):
        e = self.e
        e(f"s_mov_b32 s{SRD_T}, s{sIN}\ns_mov_b32 s{SRD_T+1}, s{sIN+1}\ns_mov_b32 s{SRD_T+2}, {2048*1024}\ns_mov_b32 s{SRD_T+3}, 0x20000")
        e(f"v_and_b32 v16, 31, v{vL}\nv_lshlrev_b32 v16, 11, v16\nv_lshrrev_b32 v17, 5, v{vL}\nv_lshl_add_u32 v16, v17, 3, v16")
        e(f"s_lshl_b32 s{sT0}, s{sC}, 6\ns_add_u32 s{sT0}, s{sT0}, s{sP}\ns_lshl_b32 s{sT0}, s{sT0}, 10\ns_lshl_b32 s{sT1}, s{sNB}, 6\ns_add_u32 s{sT0}, s{sT0}, s{sT1}")
        for q in range(4):
            e.vmem(f"buffer_load_dwordx2 v[{XR+2*q}:{XR+2*q+1}], v16, s[{SRD_T}:{SRD_T+3}], s{sT0} offen offset:{16*q}")
        e.wait_vm()
        e(f"s_mov_b32 s{sA0}, {X0}\ns_mov_b32 s{sA1}, {ST0}")
        self.publish_x(sA0, sA1, moded=False)
        Lskip = e.newlabel("P0SKIP"); Lkv = e.newlabel("P0KV"); Lgo = e.newlabel("P0GO"); Lld = e.newlabel("P0LD")
        e(f"s_cmp_ge_u32 s{sG}, 97\ns_cbranch_scc1 {Lskip}")
        pw = lambda i: (sIN + 2 * i, sIN + 2 * i + 1)
        e(f"s_cmp_eq_u32 s{sG}, 16\ns_cbranch_scc1 {Lkv}")
        e(f"s_mov_b32 s{SRD_T}, s{pw(1)[0]}\ns_mov_b32 s{SRD_T+1}, s{pw(1)[1]}\ns_mov_b32 s{SRD_T+2}, {512*1024}\ns_mov_b32 s{sA2}, 1024\ns_lshl_b32 s{sA3}, s{sG}, 6")
        e(f"s_cmp_lt_u32 s{sG}, 16\ns_cbranch_scc1 {Lgo}")
        e(f"s_mov_b32 s{SRD_T}, s{pw(4)[0]}\ns_mov_b32 s{SRD_T+1}, s{pw(4)[1]}\ns_sub_u32 s{sA3}, s{sG}, 17\ns_lshl_b32 s{sA3}, s{sA3}, 6")
        e(f"s_cmp_lt_u32 s{sG}, 33\ns_cbranch_scc1 {Lgo}")
        e(f"s_mov_b32 s{SRD_T}, s{pw(6)[0]}\ns_mov_b32 s{SRD_T+1}, s{pw(6)[1]}\ns_mov_b32 s{SRD_T+2}, {512*3072}\ns_mov_b32 s{sA2}, 3072\ns_sub_u32 s{sA3}, s{sG}, 33\ns_lshl_b32 s{sA3}, s{sA3}, 6")
        e(f"s_cmp_lt_u32 s{sG}, 81\ns_cbranch_scc1 {Lgo}")
        e(f"s_mov_b32 s{SRD_T}, s{pw(7)[0]}\ns_mov_b32 s{SRD_T+1}, s{pw(7)[1]}\ns_mov_b32 s{SRD_T+2}, {512*1024}\ns_mov_b32 s{sA2}, 1024\ns_sub_u32 s{sA3}, s{sG}, 81\ns_lshl_b32 s{sA3}, s{sA3}, 6")
        e.label(Lgo)
        e(f"s_mov_b32 s{SRD_T+3}, 0x20000")
        e(f"v_lshrrev_b32 v16, 2, v{vL}\nv_mul_lo_u32 v16, v16, s{sA2}\nv_and_b32 v17, 3, v{vL}\nv_lshl_add_u32 v16, v17, 4, v16")
        e(f"s_lshl_b32 s{sT0}, s{sW}, 7\ns_mul_i32 s{sT0}, s{sT0}, s{sA2}\ns_add_u32 s{sT0}, s{sT0}, s{sA3}\ns_lshl_b32 s{sT1}, s{sA2}, 4")
        for it in range(8):
            e(f"buffer_load_dwordx4 v[{32+4*it}:{35+4*it}], v16, s[{SRD_T}:{SRD_T+3}], s{sT0} offen")
            if it < 7: e(f"s_add_u32 s{sT0}, s{sT0}, s{sT1}")
        e(f"s_branch {Lld}")
        e.label(Lkv)
        e(f"v_lshrrev_b32 v16, 2, v{vL}\nv_lshlrev_b32 v16, 5, v16\nv_and_b32 v17, 1, v{vL}\nv_lshl_add_u32 v16, v17, 4, v16")
        e(f"s_lshl_b32 s{sT0}, s{sW}, 12")
        e(f"v_and_b32 v17, 2, v{vL}\nv_cmp_eq_u32 vcc, 0, v17")
        e(f"s_mov_b32 s{SRD_T}, s{pw(3)[0]}\ns_mov_b32 s{SRD_T+1}, s{pw(3)[1]}\ns_mov_b32 s{SRD_T+2}, {512*32}\ns_mov_b32 s{SRD_T+3}, 0x20000")
        e(f"s_mov_b64 s[{sM0}:{sM0+1}], vcc")
        e(f"s_mov_b64 exec, s[{sM0}:{sM0+1}]")
        for it in range(8):
            e(f"buffer_load_dwordx4 v[{32+4*it}:{35+4*it}], v16, s[{SRD_T}:{SRD_T+3}], s{sT0} offen offset:{it*512}")
        e(f"s_mov_b64 exec, -1\ns_andn2_b64 exec, exec, s[{sM0}:{sM0+1}]")
        e(f"s_mov_b32 s{SRD_T}, s{pw(2)[0]}\ns_mov_b32 s{SRD_T+1}, s{pw(2)[1]}\ns_mov_b32 s{SRD_T+2}, {512*32}\ns_mov_b32 s{SRD_T+3}, 0x20000")
        for it in range(8):
            e(f"buffer_load_dwordx4 v[{32+4*it}:{35+4*it}], v16, s[{SRD_T}:{SRD_T+3}], s{sT0} offen offset:{it*512}")
        e("s_mov_b64 exec, -1")
        e.label(Lld)
        e("s_waitcnt vmcnt(0)")
        e(f"s_lshl_b32 s{sT0}, s{sW}, 13\nv_add_u32 v17, s{sT0}, v{vL16}")
        for it in range(8):
            e(f"ds_write_b128 v17, v[{32+4*it}:{35+4*it}] offset:{it*1024}")
        e(f"v_and_b32 v18, 15, v{vL}\nv_lshrrev_b32 v19, 2, v18\nv_lshrrev_b32 v20, 5, v{vL}\nv_lshl_add_u32 v19, v20, 2, v19\nv_lshlrev_b32 v19, 6, v19")
        e(f"v_and_b32 v20, 3, v18\nv_lshl_add_u32 v19, v20, 3, v19\nv_bfe_u32 v20, v{vL}, 4, 1\nv_lshl_add_u32 v19, v20, 5, v19\nv_add_u32 v19, s{sT0}, v19")
        e("s_waitcnt lgkmcnt(0)")
        for t in range(8):
            e(f"ds_read_b64_tr_b16 v[{64+4*t}:{65+4*t}], v19 offset:{t*1024}")
            e(f"ds_read_b64_tr_b16 v[{66+4*t}:{67+4*t}], v19 offset:{t*1024+512}")
        e("s_waitcnt lgkmcnt(0)")
        e(f"s_lshl_b32 s{sT0}, s{sG}, 15\ns_lshl_b32 s{sT1}, s{sW}, 13\ns_add_u32 s{sT0}, s{sT0}, s{sT1}\ns_add_u32 s{sT0}, s{sT0}, {WF}\ns_add_u32 s{sT1}, s{sT0}, 4096")
        for t in range(8):
            self.ws_store(64 + 4 * t, f"s{sT0 if t < 4 else sT1}", (t % 4) * 1024)
        e("v_mov_b32 v16, 0x3f803f80\nv_mov_b32 v17, 0")
        for i in range(32):
            e(f"v_dot2_f32_bf16 v17, v{64+i}, v16, v17")
        e("v_mov_b32 v18, v17\nv_permlane32_swap_b32 v17, v18\nv_add_f32 v17, v17, v18")
        e(f"s_lshl_b32 s{sT0}, s{sW}, 8\nv_add_u32 v18, s{sT0}, v{vL4}\nds_write_b32 v18, v17 offset:32768\ns_waitcnt lgkmcnt(0)\ns_barrier")
        e(f"ds_read_b32 v20, v{vL4} offset:32768\nds_read_b32 v21, v{vL4} offset:{32768+256}\nds_read_b32 v22, v{vL4} offset:{32768+512}\nds_read_b32 v23, v{vL4} offset:{32768+768}\ns_waitcnt lgkmcnt(0)")
        e("v_add_f32 v20, v20, v21\nv_add_f32 v22, v22, v23\nv_add_f32 v20, v20, v22")
        Lcs = e.newlabel("P0CS")
        e(f"s_cmp_lg_u32 s{sW}, 0\ns_cbranch_scc1 {Lcs}")
        e(f"s_lshl_b32 s{sT0}, s{sG}, 7\ns_add_u32 s{sT0}, s{sT0}, {CS}\ns_mov_b32 exec_hi, 0")
        self.ws_store(20, f"s{sT0}", 0, voff=vL4, n=1)
        e("s_mov_b64 exec, -1")
        e.label(Lcs)
        e.label(Lskip)
        e.wait_vm(); e("s_barrier")
        L = e.newlabel("G0")
        e(f"s_cmp_lg_u32 s{sW}, 0\ns_cbranch_scc1 {L}")
        e(f"v_lshlrev_b32 v16, 10, v{vL}\ns_lshl_b32 s{sT0}, s{sG}, 2\ns_add_u32 s{sT0}, s{sT0}, {FL_G0}\nv_mov_b32 v17, s{sTAG}")
        e(f"s_mov_b64 exec, 0xff\nbuffer_store_dword v17, v16, s[{SRD_WS}:{SRD_WS+3}], s{sT0} offen sc1\ns_mov_b64 exec, -1")
        e(f"s_and_b32 s{sT0}, s{sG}, 7\ns_lshl_b32 s{sT0}, s{sT0}, 10\ns_add_u32 s{sT0}, s{sT0}, {FL_G0}")
        def setup():
            e(f"buffer_load_dwordx4 v[16:19], v{vL16}, s[{SRD_WS}:{SRD_WS+3}], s{sT0} offen sc1\ns_waitcnt vmcnt(0)")
            e(f"v_xor_b32 v16, s{sTAG}, v16\nv_xor_b32 v17, s{sTAG}, v17\nv_xor_b32 v18, s{sTAG}, v18\nv_xor_b32 v19, s{sTAG}, v19")
            e("v_or_b32 v16, v16, v17\nv_or_b32 v18, v18, v19\nv_or_b32 v16, v16, v18\nv_cmp_ne_u32 vcc, 0, v16")
        self.poll("g", setup)
        self.mode_detect()
        e.label(L)
        e("s_barrier")
        self.mode_read()
        e.reset_counters()

    def mode_detect(self):
        e = self.e
        Lp = e.newlabel("XPOLL"); Lok = e.newlabel("XOK")
        e(f"s_lshl_b32 s{sT0}, s{sC}, 5\ns_add_u32 s{sT0}, s{sT0}, {FL_XW}\nv_and_b32 v16, 7, v{vL}\nv_lshlrev_b32 v16, 2, v16\ns_mov_b32 s{sPOLL}, 0")
        e.label(Lp)
        e(f"buffer_load_dword v17, v16, s[{SRD_WS}:{SRD_WS+3}], s{sT0} offen sc1\ns_waitcnt vmcnt(0)")
        e(f"v_subrev_u32 v17, s{sTAG}, v17\nv_subrev_u32 v17, 16, v17\nv_cmp_le_u32 vcc, 16, v17")
        e(f"s_cbranch_vccz {Lok}")
        e(f"s_add_u32 s{sPOLL}, s{sPOLL}, 1\ns_cmp_lt_u32 s{sPOLL}, 400000\ns_cbranch_scc1 {Lp}\ns_branch L_END")
        e.label(Lok)
        e(f"v_cmp_ne_u32 vcc, s3, v17\ns_nop 4\ns_cmp_eq_u64 vcc, 0\ns_cselect_b32 s{sT1}, 1, 0")
        if getattr(self, "force_safe", False): e(f"s_mov_b32 s{sT1}, 0")
        e(f"v_mov_b32 v16, {MODEADDR}\nv_mov_b32 v17, s{sT1}\nds_write_b32 v16, v17\ns_waitcnt lgkmcnt(0)")
    def mode_read(self):
        e = self.e
        e(f"v_mov_b32 v16, {MODEADDR}\nds_read_b32 v17, v16\ns_waitcnt lgkmcnt(0)\nv_readfirstlane_b32 s{sMODE}, v17")


    def first_phase(self):
        e = self.e
        XI, WQI, WVI = 0, 65536, 131072
        STX, CSP, CSK, REDKV, VT, RED = 8192, 9216, 9728, 12288, 16384, 32768
        SRD_X, SRD_Q, SRD_P = 8, 68, 72
        pw = lambda i: (sIN + 2 * i, sIN + 2 * i + 1)
        sR = sA0
        for k, i in enumerate((1, 2, 3, 4, 6, 7)):
            e(f"s_mov_b32 s{88+2*k}, s{pw(i)[0]}\ns_mov_b32 s{89+2*k}, s{pw(i)[1]}")
        e(f"s_mov_b32 s{SRD_X}, s{sIN}\ns_mov_b32 s{SRD_X+1}, s{sIN+1}\ns_mov_b32 s{SRD_X+2}, {2048*1024}\ns_mov_b32 s{SRD_X+3}, 0x20000")
        e(f"s_mov_b32 s{SRD_Q}, s88\ns_mov_b32 s{SRD_Q+1}, s89\ns_mov_b32 s{SRD_Q+2}, {512*1024}\ns_mov_b32 s{SRD_Q+3}, 0x20000")
        if getattr(self, "tlbtouch", False):
            e("v_mov_b32 v230, 0")
            for k, ptr in enumerate((88, 90, 92, 94, 96, 98)):
                e(f"global_load_dword v{128+k}, v230, s[{ptr}:{ptr+1}]")
            e(f"buffer_load_dword v134, v230, s[{SRD_X}:{SRD_X+3}], 0 offen\nbuffer_load_dword v135, v230, s[{SRD_OUT}:{SRD_OUT+3}], 0 offen")
            for k, off in enumerate((WF, WF + 0x200000, X0 + 0x200000, OA, HX, HX + 0x100000, ST0 + 0x40000, KF, STH)):
                e(f"s_mov_b32 s{sT0}, {off}\nbuffer_load_dword v{136+k}, v230, s[{SRD_WS}:{SRD_WS+3}], s{sT0} offen")
        e(f"v_mov_b32 v230, 0")
        e(f"buffer_load_dword v231, v230, s[{SRD_WS}:{SRD_WS+3}], 0 offen sc0 sc1")
        def x_rows(par_expr_sgpr, nrows, srow0):
            e(f"s_lshl_b32 s{sT3}, s{srow0}, 1\ns_add_u32 s{sT3}, s{sT3}, s{par_expr_sgpr}\ns_lshl_b32 s{sT4}, s{sC}, 6\ns_add_u32 s{sT3}, s{sT3}, s{sT4}\ns_lshl_b32 s{sT3}, s{sT3}, 10")
            e(f"s_lshl_b32 s{sT4}, s{par_expr_sgpr}, 5\ns_add_u32 s{sT4}, s{sT4}, s{srow0}\ns_lshl_b32 s{sT4}, s{sT4}, 10")
            e(f"s_and_b32 s{sT5}, s{srow0}, 15\ns_lshl_b32 s{sT5}, s{sT5}, 4")
            for t in range(nrows):
                e(f"v_xor_b32 v232, s{sT5}, v{vL16}\ns_mov_b32 m0, s{sT4}")
                e(f"buffer_load_dwordx4 v232, s[{SRD_X}:{SRD_X+3}], s{sT3} offen lds")
                if t < nrows - 1: e(f"s_add_u32 s{sT3}, s{sT3}, 2048\ns_add_u32 s{sT4}, s{sT4}, 1024\ns_add_u32 s{sT5}, s{sT5}, 16")
        def wq_rows(nit, srow_shift_expr):
            e(f"s_lshl_b32 s{sT3}, s{sT6}, 10\ns_lshl_b32 s{sT4}, s{sJ}, 7\ns_add_u32 s{sT3}, s{sT3}, s{sT4}\ns_lshl_b32 s{sT4}, s{sT6}, 7\ns_add_u32 s{sT4}, s{sT4}, {WQI}")
            for t in range(nit):
                e(f"s_mov_b32 m0, s{sT4}\ns_add_u32 s{sT4}, s{sT4}, 1024")
                e(f"buffer_load_dwordx4 v233, s[{SRD_Q}:{SRD_Q+3}], s{sT3} offen lds")
                if t < nit - 1: e(f"s_add_u32 s{sT3}, s{sT3}, 8192")
        e(f"v_lshrrev_b32 v233, 3, v{vL}\nv_lshlrev_b32 v233, 10, v233\nv_and_b32 v234, 7, v{vL}\nv_lshl_add_u32 v233, v234, 4, v233")
        if getattr(self, "prepmap", 0) == 0:
            e(f"s_sub_u32 s{sR}, s{sJ}, 2\ns_lshl_b32 s{sR}, s{sR}, 5\ns_add_u32 s{sR}, s{sR}, s{sC}\ns_cmp_lt_u32 s{sJ}, 2\ns_cselect_b32 s{sR}, 255, s{sR}")
        else:
            e(f"s_mul_i32 s{sR}, s{sC}, 6\ns_add_u32 s{sR}, s{sR}, s{sJ}\ns_sub_u32 s{sR}, s{sR}, 2\ns_cmp_lt_u32 s{sJ}, 2\ns_cselect_b32 s{sR}, 255, s{sR}")
        def _pl():
            Lnp = e.newlabel("FNP"); Lgo = e.newlabel("FGO"); Lkvb = e.newlabel("FKVB")
            e(f"s_cmp_ge_u32 s{sR}, 97\ns_cbranch_scc1 {Lnp}")
            e(f"s_cmp_eq_u32 s{sR}, 16\ns_cbranch_scc1 {Lkvb}")
            e(f"s_mov_b32 s{SRD_P}, s88\ns_mov_b32 s{SRD_P+1}, s89\ns_mov_b32 s{SRD_P+2}, {512*1024}\ns_mov_b32 s{sA2}, 1024\ns_lshl_b32 s{sA3}, s{sR}, 6")
            e(f"s_cmp_lt_u32 s{sR}, 16\ns_cbranch_scc1 {Lgo}")
            e(f"s_mov_b32 s{SRD_P}, s94\ns_mov_b32 s{SRD_P+1}, s95\ns_sub_u32 s{sA3}, s{sR}, 17\ns_lshl_b32 s{sA3}, s{sA3}, 6")
            e(f"s_cmp_lt_u32 s{sR}, 33\ns_cbranch_scc1 {Lgo}")
            e(f"s_mov_b32 s{SRD_P}, s96\ns_mov_b32 s{SRD_P+1}, s97\ns_mov_b32 s{SRD_P+2}, {512*3072}\ns_mov_b32 s{sA2}, 3072\ns_sub_u32 s{sA3}, s{sR}, 33\ns_lshl_b32 s{sA3}, s{sA3}, 6")
            e(f"s_cmp_lt_u32 s{sR}, 81\ns_cbranch_scc1 {Lgo}")
            e(f"s_mov_b32 s{SRD_P}, s98\ns_mov_b32 s{SRD_P+1}, s99\ns_mov_b32 s{SRD_P+2}, {512*1024}\ns_mov_b32 s{sA2}, 1024\ns_sub_u32 s{sA3}, s{sR}, 81\ns_lshl_b32 s{sA3}, s{sA3}, 6")
            e.label(Lgo)
            e(f"s_mov_b32 s{SRD_P+3}, 0x20000")
            e(f"v_lshrrev_b32 v235, 2, v{vL}\nv_mul_lo_u32 v235, v235, s{sA2}\nv_and_b32 v236, 3, v{vL}\nv_lshl_add_u32 v235, v236, 4, v235")
            e(f"s_lshl_b32 s{sT0}, s{sW}, 7\ns_mul_i32 s{sT0}, s{sT0}, s{sA2}\ns_add_u32 s{sT0}, s{sT0}, s{sA3}\ns_lshl_b32 s{sT1}, s{sA2}, 4")
            for it in range(8):
                e(f"buffer_load_dwordx4 a[{4*it}:{4*it+3}], v235, s[{SRD_P}:{SRD_P+3}], s{sT0} offen")
                if it < 7: e(f"s_add_u32 s{sT0}, s{sT0}, s{sT1}")
            e(f"s_branch {Lnp}")
            e.label(Lkvb)
            e(f"v_lshrrev_b32 v235, 2, v{vL}\nv_lshlrev_b32 v235, 5, v235\nv_and_b32 v236, 1, v{vL}\nv_lshl_add_u32 v235, v236, 4, v235")
            e(f"s_lshl_b32 s{sT0}, s{sW}, 12")
            e(f"v_and_b32 v236, 2, v{vL}\nv_cmp_eq_u32 vcc, 0, v236")
            e(f"s_mov_b32 s{SRD_P}, s92\ns_mov_b32 s{SRD_P+1}, s93\ns_mov_b32 s{SRD_P+2}, {512*32}\ns_mov_b32 s{SRD_P+3}, 0x20000")
            e(f"s_mov_b64 s[{sM0}:{sM0+1}], vcc\ns_mov_b64 exec, s[{sM0}:{sM0+1}]")
            for it in range(8):
                e(f"buffer_load_dwordx4 a[{4*it}:{4*it+3}], v235, s[{SRD_P}:{SRD_P+3}], s{sT0} offen offset:{it*512}")
            e(f"s_mov_b64 exec, -1\ns_andn2_b64 exec, exec, s[{sM0}:{sM0+1}]")
            e(f"s_mov_b32 s{SRD_P}, s90\ns_mov_b32 s{SRD_P+1}, s91\ns_mov_b32 s{SRD_P+2}, {512*32}\ns_mov_b32 s{SRD_P+3}, 0x20000")
            for it in range(8):
                e(f"buffer_load_dwordx4 a[{4*it}:{4*it+3}], v235, s[{SRD_P}:{SRD_P+3}], s{sT0} offen offset:{it*512}")
            e("s_mov_b64 exec, -1")
            e.label(Lnp)
        self._prep_loads = _pl
        Lnk = e.newlabel("FNK"); Lcommon = e.newlabel("FCOM"); Lkvw = e.newlabel("FKVW")
        e(f"s_cmp_ge_u32 s{sJ}, 2\ns_cbranch_scc1 {Lnk}")
        for m, (ptr, base) in enumerate(((92, WVI), (90, WVI + 16384))):
            e(f"s_mov_b32 s{SRD_P}, s{ptr}\ns_mov_b32 s{SRD_P+1}, s{ptr+1}\ns_mov_b32 s{SRD_P+2}, 16384\ns_mov_b32 s{SRD_P+3}, 0x20000")
            e(f"s_lshl_b32 s{sT0}, s{sW}, 12\ns_add_u32 s{sT1}, s{sT0}, {base}\ns_mov_b32 m0, s{sT1}\ns_nop 0")
            for t in range(4):
                e(f"buffer_load_dwordx4 v{vL16}, s[{SRD_P}:{SRD_P+3}], s{sT0} offen offset:{t*1024} lds")
        e(f"s_lshl_b32 s{sT6}, s{sW}, 3")
        x_rows(sJ, 8, sT6)
        e(f"s_branch {Lcommon}")
        e.label(Lnk)
        self._prep_loads()
        e(f"s_lshr_b32 s{sT7}, s{sW}, 1\ns_and_b32 s{sT6}, s{sW}, 1\ns_lshl_b32 s{sT6}, s{sT6}, 4")
        x_rows(sT7, 16, sT6)
        e(f"s_lshl_b32 s{sT6}, s{sW}, 7")
        wq_rows(16, None)
        e.label(Lcommon)
        e(f"v_and_b32 v16, 31, v{vL}\nv_lshlrev_b32 v16, 11, v16\nv_lshrrev_b32 v17, 5, v{vL}\nv_lshl_add_u32 v16, v17, 3, v16")
        e(f"s_lshl_b32 s{sT0}, s{sC}, 6\ns_add_u32 s{sT0}, s{sT0}, s{sP}\ns_lshl_b32 s{sT0}, s{sT0}, 10\ns_lshl_b32 s{sT1}, s{sNB}, 6\ns_add_u32 s{sT0}, s{sT0}, s{sT1}")
        for q in range(4):
            e(f"buffer_load_dwordx2 v[{XR+2*q}:{XR+2*q+1}], v16, s[{SRD_X}:{SRD_X+3}], s{sT0} offen offset:{16*q}")
        self.stamp("f_issued")
        e(f"v_and_b32 v16, 31, v{vL}\nv_lshrrev_b32 v17, 5, v{vL}\nv_and_b32 v18, 15, v16\nv_lshlrev_b32 v19, 10, v16")
        e(f"s_lshl_b32 s{sT0}, s{sP}, 15\ns_lshl_b32 s{sT1}, s{sKH}, 9\ns_add_u32 s{sT0}, s{sT0}, s{sT1}\nv_add_u32 v19, s{sT0}, v19")
        for b in range(8):
            e(f"v_add_u32 v20, {2*b}, v17\nv_xor_b32 v20, v20, v18\nv_lshl_add_u32 v{240+b}, v20, 4, v19")
        e(f"v_and_b32 v18, 15, v{vL}\nv_lshrrev_b32 v20, 2, v18\nv_lshl_add_u32 v20, v17, 3, v20\nv_lshlrev_b32 v21, 7, v20")
        e(f"v_bfe_u32 v22, v{vL}, 4, 1\nv_lshl_add_u32 v21, v22, 5, v21\nv_and_b32 v23, 3, v18\nv_lshl_add_u32 v21, v23, 3, v21")
        e(f"s_lshl_b32 s{sT0}, s{sKH}, 15\ns_add_u32 s{sT0}, s{sT0}, {WQI}\ns_lshl_b32 s{sT1}, s{sKH}, 6\ns_add_u32 s{sT2}, s{sT0}, s{sT1}\nv_add_u32 v248, s{sT2}, v21")
        e(f"s_xor_b32 s{sT1}, s{sT1}, 64\ns_add_u32 s{sT2}, s{sT0}, s{sT1}\nv_add_u32 v249, s{sT2}, v21")
        e(f"v_lshlrev_b32 v21, 5, v20\nv_lshl_add_u32 v21, v22, 14, v21\nv_lshl_add_u32 v21, v23, 3, v21")
        e(f"s_lshl_b32 s{sT0}, s{sKH}, 13\ns_add_u32 s{sT0}, s{sT0}, {WVI}\nv_add_u32 v250, s{sT0}, v21")
        STXK, CSK, REDKV, VT = WVI, WVI + 256, WVI + 8192 + 512, WVI + 1024
        STX2, CSP, RED = WVI + 13312, WVI + 14336, WVI + 16384
        ONE = 229
        def xreads():
            for t in range(16):
                e(f"ds_read_b128 v[{16+4*t}:{19+4*t}], v{240+(t&7)} offset:{(t>>3)*256}")
            e(f"v_mov_b32 v{ONE}, 0x3f803f80\nv_mov_b32 v224, 0\nv_mov_b32 v225, 0\nv_mov_b32 v226, 0\nv_mov_b32 v236, 0\nv_mov_b32 v237, 0\nv_mov_b32 v238, 0")
            e("s_waitcnt lgkmcnt(0)")
        def stats_ops(t):
            acc = lambda k, d: ((224, 236), (225, 237))[k][d & 1]
            return [f"v_dot2c_f32_bf16 v{acc(k,d)}, v{ONE if k == 0 else 16+4*t+d}, v{16+4*t+d}" for d in range(4) for k in range(2)]
        def stats_write(sbase):
            e("v_add_f32 v224, v224, v236\nv_add_f32 v225, v225, v237")
            e("v_permlane32_swap_b32 v224, v225\nv_add_f32 v224, v224, v225")
            e(f"v_add_u32 v227, s{sbase}, v{vL4}\nds_write_b32 v227, v224")
        def stats_read(sbase, second):
            e(f"v_and_b32 v227, 31, v{vL}\nv_lshlrev_b32 v227, 2, v227\nv_add_u32 v227, s{sbase}, v227")
            e(f"ds_read_b32 v224, v227\nds_read_b32 v225, v227 offset:128\nds_read_b32 v226, v227 offset:{second}\nds_read_b32 v228, v227 offset:{second+128}")
            e("s_waitcnt lgkmcnt(0)")
            e(f"v_add_f32 v224, v224, v226\nv_add_f32 v225, v225, v228")
            e(f"v_mul_f32 v178, {fbits(1/512)}, v224\nv_mul_f32 v225, {fbits(1/512)}, v225\nv_fma_f32 v225, -v178, v178, v225\nv_add_f32 v225, {fbits(1e-5)}, v225\nv_rsq_f32 v179, v225")
        def cs_read(dst, base, second):
            e(f"v_lshrrev_b32 v228, 5, v{vL}\nv_lshlrev_b32 v228, 4, v228\nv_add_u32 v228, {base}, v228")
            for q in range(4):
                e(f"ds_read_b128 v[{dst+4*q}:{dst+3+4*q}], v228 offset:{32*q}\nds_read_b128 v[{112+4*q}:{115+4*q}], v228 offset:{second+32*q}")
            e("s_waitcnt lgkmcnt(0)")
            for r in range(16): e(f"v_add_f32 v{dst+r}, v{dst+r}, v{112+r}")
        def qpass(with_stats, mid=None, after_stats=None):
            Lp1 = e.newlabel("FQP1"); Lpd = e.newlabel("FQPD")
            for r in range(4): e(f"v_mov_b32 v{232+r}, 0x3f803f80")
            if with_stats:
                for t in range(16):
                    for x in stats_ops(t): e(x)
            if after_stats: after_stats()
            e(f"s_cmp_eq_u32 s{sP}, 1\ns_cbranch_scc1 {Lp1}")
            for var in range(2):
                if var == 1: e.label(Lp1)
                def rd(t):
                    r = 112 + (t % 4) * 8
                    e(f"ds_read_b64_tr_b16 v[{r}:{r+1}], v248 offset:{t*2048}\nds_read_b64_tr_b16 v[{r+2}:{r+3}], v248 offset:{t*2048+512}")
                    e(f"ds_read_b64_tr_b16 v[{r+4}:{r+5}], v249 offset:{t*2048}\nds_read_b64_tr_b16 v[{r+6}:{r+7}], v249 offset:{t*2048+512}")
                for t in range(3): rd(t)
                for t in range(16):
                    if t + 3 < 16: rd(t + 3)
                    e(f"s_waitcnt lgkmcnt({4*min(3, 15-t)})")
                    r = 112 + (t % 4) * 8
                    e(f"v_mfma_f32_32x32x16_bf16 v[80:95], v[{r}:{r+3}], v[{16+4*t}:{19+4*t}], {'0' if t == 0 else 'v[80:95]'}")
                    e(f"v_mfma_f32_32x32x16_bf16 v[96:111], v[{r+4}:{r+7}], v[{16+4*t}:{19+4*t}], {'0' if t == 0 else 'v[96:111]'}")
                    e(f"v_mfma_f32_32x32x16_bf16 v[144:159], v[{r+4*var}:{r+4*var+3}], v[232:235], {'0' if t == 0 else 'v[144:159]'}")
                    if mid and t == 7: mid()
                if var == 0: e(f"s_branch {Lpd}")
            e.label(Lpd)
            e(f"s_xor_b32 s{sT1}, s{sKH}, s{sP}\ns_lshl_b32 s{sT1}, s{sT1}, 8\ns_lshl_b32 s{sT2}, s{sKH}, 7\ns_add_u32 s{sT1}, s{sT1}, s{sT2}\ns_add_u32 s{sT1}, s{sT1}, {CSP}")
            e(f"v_lshrrev_b32 v228, 5, v{vL}\nv_lshlrev_b32 v228, 4, v228\nv_add_u32 v228, s{sT1}, v228")
            e("s_mov_b32 exec_lo, 1\ns_mov_b32 exec_hi, 1")
            for q in range(4): e(f"ds_write_b128 v228, v[{144+4*q}:{147+4*q}] offset:{32*q}")
            e("s_mov_b64 exec, -1")
        def prep_process():
            Lcs = e.newlabel("FPCS")
            PL = WVI
            e("s_waitcnt vmcnt(36)")
            e(f"s_lshl_b32 s{sT0}, s{sW}, 13\ns_add_u32 s{sT0}, s{sT0}, {PL}\nv_add_u32 v17, s{sT0}, v{vL16}")
            for it in range(8):
                e(f"ds_write_b128 v17, a[{4*it}:{4*it+3}] offset:{it*1024}")
            e(f"v_and_b32 v18, 15, v{vL}\nv_lshrrev_b32 v19, 2, v18\nv_lshrrev_b32 v20, 5, v{vL}\nv_lshl_add_u32 v19, v20, 2, v19\nv_lshlrev_b32 v19, 6, v19")
            e(f"v_and_b32 v20, 3, v18\nv_lshl_add_u32 v19, v20, 3, v19\nv_bfe_u32 v20, v{vL}, 4, 1\nv_lshl_add_u32 v19, v20, 5, v19\nv_add_u32 v19, s{sT0}, v19")
            e("s_waitcnt lgkmcnt(0)")
            for t in range(8):
                e(f"ds_read_b64_tr_b16 v[{32+4*t}:{33+4*t}], v19 offset:{t*1024}")
                e(f"ds_read_b64_tr_b16 v[{34+4*t}:{35+4*t}], v19 offset:{t*1024+512}")
            e(f"s_lshl_b32 s{sT2}, s{sR}, 15\ns_lshl_b32 s{sT1}, s{sW}, 13\ns_add_u32 s{sT2}, s{sT2}, s{sT1}\ns_add_u32 s{sT2}, s{sT2}, {WF}\ns_add_u32 s{sT1}, s{sT2}, 4096")
            e("v_mov_b32 v16, 0x3f803f80\nv_mov_b32 v17, 0")
            e("s_waitcnt lgkmcnt(0)")
            for t in range(8):
                e(f"buffer_store_dwordx4 v[{32+4*t}:{35+4*t}], v{vL16}, s[{SRD_WS}:{SRD_WS+3}], s{sT2 if t < 4 else sT1} offen offset:{(t%4)*1024} sc1")
            e("v_mov_b32 v21, 0\nv_mov_b32 v22, 0\nv_mov_b32 v23, 0")
            for i in range(32):
                ac = (17, 21, 22, 23)[i % 4]
                e(f"v_dot2c_f32_bf16 v{ac}, v16, v{32+i}")
            e("v_add_f32 v21, v21, v22\nv_add_f32 v17, v17, v23\nv_add_f32 v17, v17, v21")
            e("v_mov_b32 v18, v17\nv_permlane32_swap_b32 v17, v18\nv_add_f32 v17, v17, v18")
            e(f"v_add_u32 v18, s{sT0}, v{vL4}\nds_write_b32 v18, v17\ns_waitcnt lgkmcnt(0)\ns_barrier")
            e(f"s_cmp_lg_u32 s{sW}, 0\ns_cbranch_scc1 {Lcs}")
            e(f"v_add_u32 v18, {PL}, v{vL4}")
            e(f"ds_read_b32 v20, v18\nds_read_b32 v21, v18 offset:8192\nds_read_b32 v22, v18 offset:16384\nds_read_b32 v23, v18 offset:24576\ns_waitcnt lgkmcnt(0)")
            e("v_add_f32 v20, v20, v21\nv_add_f32 v22, v22, v23\nv_add_f32 v20, v20, v22")
            e(f"s_lshl_b32 s{sT0}, s{sR}, 7\ns_add_u32 s{sT0}, s{sT0}, {CS}\ns_mov_b32 exec_hi, 0")
            e(f"buffer_store_dword v20, v{vL4}, s[{SRD_WS}:{SRD_WS+3}], s{sT0} offen sc1\ns_mov_b64 exec, -1")
            e.label(Lcs)
        Lkvp = e.newlabel("FKVP"); Lnkw = e.newlabel("FNKW"); Lqs = e.newlabel("FQS"); Lq2 = e.newlabel("FQ2"); Lred = e.newlabel("FRED"); Lep = e.newlabel("FEP")
        e(f"s_cmp_ge_u32 s{sJ}, 2\ns_cbranch_scc1 {Lnkw}")
        e(f"s_cmp_eq_u32 s{sP}, s{sJ}\ns_cbranch_scc1 {Lkvp}")
        e("s_waitcnt vmcnt(4)")
        self.tag_from(231)
        e("s_barrier")
        e(f"s_xor_b32 s{sT7}, s{sJ}, 1\ns_lshl_b32 s{sT6}, s{sKH}, 4")
        x_rows(sT7, 16, sT6)
        e(f"s_lshl_b32 s{sT6}, s{sKH}, 8")
        wq_rows(12, None)
        e("s_barrier")
        e(f"s_lshl_b32 s{sT6}, s{sKH}, 8\ns_add_u32 s{sT6}, s{sT6}, 96")
        wq_rows(20, None)
        e("s_waitcnt vmcnt(0)")
        e("s_barrier")
        e(f"s_branch {Lqs}")
        e.label(Lkvp)
        e("s_waitcnt vmcnt(4)")
        self.tag_from(231)
        e("s_barrier")
        self.stamp("f_b0")
        fl = getattr(self, "light", None) == "fkv"
        if fl: self.lstamp(0)
        xreads()
        if fl: self.lstamp(1)
        def kvrd(t): e(f"ds_read_b64_tr_b16 v[{160+4*t}:{161+4*t}], v250 offset:{t*512}\nds_read_b64_tr_b16 v[{162+4*t}:{163+4*t}], v250 offset:{t*512+128}")
        for t in range(6): kvrd(t)
        for t in range(16):
            for x in stats_ops(t): e(x)
            if 6 + t < 16: kvrd(6 + t)
        e("s_waitcnt lgkmcnt(0)")
        for t in range(16):
            for d in range(4): e(f"v_dot2c_f32_bf16 v{226 if d % 2 == 0 else 238}, v{ONE}, v{160+4*t+d}")
        for t in range(16):
            e(f"v_mfma_f32_32x32x16_bf16 v[144:159], v[{160+4*t}:{163+4*t}], v[{16+4*t}:{19+4*t}], {'0' if t == 0 else 'v[144:159]'}")
        if fl: self.lstamp(2)
        e(f"s_lshl_b32 s{sT0}, s{sKH}, 13\ns_add_u32 s{sT0}, s{sT0}, {STXK}")
        stats_write(sT0)
        e(f"s_add_u32 s{sT1}, s{sT0}, 256")
        e("v_add_f32 v226, v226, v238\nv_mov_b32 v228, v226\nv_permlane32_swap_b32 v226, v228\nv_add_f32 v226, v226, v228")
        e(f"v_add_u32 v228, s{sT1}, v{vL4}\ns_mov_b32 exec_hi, 0\nds_write_b32 v228, v226\ns_mov_b64 exec, -1")
        Lx = e.newlabel("FKW")
        e(f"s_cmp_eq_u32 s{sKH}, 0\ns_cbranch_scc1 {Lx}")
        e(f"v_add_u32 v{vT0}, {REDKV}, v{vL16}")
        for q in range(4):
            e(f"ds_write_b128 v{vT0}, v[{144+4*q}:{147+4*q}] offset:{q*1024}")
        e.label(Lx)
        e("s_waitcnt lgkmcnt(0)")
        if fl: self.lstamp(3)
        e("s_barrier")
        if fl: self.lstamp(4)
        e(f"s_mov_b32 s{sT0}, {STXK}")
        stats_read(sT0, 8192)
        if fl: self.lstamp(5)
        Lk1 = e.newlabel("FK1")
        e(f"s_cmp_lg_u32 s{sKH}, 0\ns_cbranch_scc1 {Lk1}")
        self.kv_epilogue(REDKV, VT, 196, 178, 179, pre=lambda: cs_read(196, CSK, 8192), defer_flag=True)
        e.label(Lk1)
        e("s_barrier")
        def mid():
            Lm = e.newlabel("FKF")
            e(f"s_cmp_lg_u32 s{sKH}, 0\ns_cbranch_scc1 {Lm}")
            self.kv_flag()
            e.label(Lm)
        qpass(False, mid)
        self.stamp("f_kv")
        e("s_waitcnt vmcnt(0)")
        e(f"s_branch {Lred}")
        e.label(Lnkw)
        Lw0 = e.newlabel("FW0"); Lw1 = e.newlabel("FW1")
        e(f"s_cmp_ge_u32 s{sR}, 97\ns_cbranch_scc1 {Lw0}")
        prep_process()
        Lw2 = e.newlabel("FW2")
        e(f"s_cmp_eq_u32 s{sW}, 0\ns_cbranch_scc1 {Lw2}")
        e(f"s_waitcnt vmcnt(8)\ns_branch {Lw1}")
        e.label(Lw2)
        e(f"s_waitcnt vmcnt(9)\ns_branch {Lw1}")
        e.label(Lw0)
        e("s_waitcnt vmcnt(0)")
        e.label(Lw1)
        self.tag_from(231)
        e("s_barrier")
        e.label(Lqs)
        self.stamp("f_landed")
        fq = getattr(self, "light", None) == "fq"
        if fq: self.lstamp(0)
        xreads()
        if fq: self.lstamp(1)
        qpass(True, after_stats=(lambda: self.lstamp(2)) if fq else None)
        if fq: self.lstamp(3)
        e(f"s_lshl_b32 s{sT0}, s{sW}, 8\ns_add_u32 s{sT0}, s{sT0}, {STX2}")
        stats_write(sT0)
        e.label(Lred)
        self.reduce_pair(red=RED)
        if fq: self.lstamp(4)
        Lst = e.newlabel("FST"); Lst2 = e.newlabel("FST2")
        e(f"s_lshl_b32 s{sT1}, s{sKH}, 8\ns_add_u32 s{sT1}, s{sT1}, {CSP}")
        e(f"v_lshrrev_b32 v228, 5, v{vL}\nv_lshlrev_b32 v228, 4, v228\nv_add_u32 v228, s{sT1}, v228")
        for q in range(4):
            e(f"ds_read_b128 v[{196+4*q}:{199+4*q}], v228 offset:{32*q}\nds_read_b128 v[{112+4*q}:{115+4*q}], v228 offset:{128+32*q}")
        e(f"s_cmp_eq_u32 s{sP}, s{sJ}\ns_cbranch_scc1 {Lst}")
        e(f"s_lshl_b32 s{sT0}, s{sP}, 8\ns_add_u32 s{sT0}, s{sT0}, {STX2}")
        stats_read(sT0, 512)
        e.label(Lst)
        e("s_waitcnt lgkmcnt(0)")
        for r in range(0, 16, 2): e(f"v_pk_add_f32 v[{196+r}:{197+r}], v[{196+r}:{197+r}], v[{112+r}:{113+r}]")
        if fq: self.lstamp(5)
        self.q_epilogue(196, 178, 179)
        if fq:
            self.lstamp(6); self.lstamp(7); self.lflush("fq")
        self.stamp("f_q")
        e(f"s_mov_b32 s{sRANK}, s{sR}")
        e.reset_counters()

    def half_setup(self):
        e = self.e
        e(f"s_lshl_b32 s{sT0}, s{sHALF}, 22")
        e(f"s_add_u32 s{sXIN}, s{sT0}, {X0}\ns_add_u32 s{sXMID}, s{sXIN}, 0x200000\ns_add_u32 s{sXOUT}, s{sXIN}, 0x400000")
        e(f"s_lshl_b32 s{sT0}, s{sHALF}, 19")
        e(f"s_add_u32 s{sSTIN}, s{sT0}, {ST0}\ns_add_u32 s{sSTMID}, s{sSTIN}, 0x40000\ns_add_u32 s{sSTOUT}, s{sSTIN}, 0x80000")
        e(f"s_lshl_b32 s{sT0}, s{sHALF}, 21")
        e(f"s_add_u32 s{sOA}, s{sT0}, {OA}\ns_add_u32 s{sOB}, s{sT0}, {OB}")
        e(f"s_lshl_b32 s{sT0}, s{sHALF}, 20\ns_add_u32 s{sHX}, s{sT0}, {HX}")
        e(f"s_lshl_b32 s{sT0}, s{sHALF}, 18\ns_add_u32 s{sKF}, s{sT0}, {KF}")
        e(f"s_lshl_b32 s{sT0}, s{sHALF}, 14\ns_add_u32 s{sFLC}, s{sT0}, {FL_C}")
        e(f"s_lshl_b32 s{sT0}, s{sHALF}, 18\ns_add_u32 s{sSTH}, s{sT0}, {STH}")


    def w_pair_bases(self, wb, sK, sS):
        e = self.e
        e(f"s_lshl_b32 s{sT2}, s{sKH}, 14")
        e(f"s_add_u32 s{sK}, s{sNB}, {wb}\ns_lshl_b32 s{sK}, s{sK}, 15\ns_add_u32 s{sK}, s{sK}, s{sT2}\ns_add_u32 s{sK}, s{sK}, {WF}")
        e(f"s_xor_b32 s{sS}, s{sNB}, 1\ns_add_u32 s{sS}, s{sS}, {wb}\ns_lshl_b32 s{sS}, s{sS}, 15\ns_add_u32 s{sS}, s{sS}, s{sT2}\ns_add_u32 s{sS}, s{sS}, {WF}")
    def alias_setup(self):
        if getattr(self, "noalias", False): return
        e = self.e
        L = e.newlabel("ALIAS")
        e(f"s_cmp_eq_u32 s{sMODE}, 0\ns_cbranch_scc1 {L}")
        e(f"s_mov_b32 s{sOA}, {OA}\ns_mov_b32 s{sOB}, {OA}")
        e(f"s_mov_b32 s{sXIN}, {X0 + 0x200000}\ns_mov_b32 s{sXMID}, {X0 + 0x200000}\ns_mov_b32 s{sXOUT}, {X0 + 0x200000}")
        e(f"s_mov_b32 s{sSTIN}, {ST0 + 0x40000}\ns_mov_b32 s{sSTMID}, {ST0 + 0x40000}\ns_mov_b32 s{sSTOUT}, {ST0 + 0x40000}")
        e.label(L)

    def wpair_dma3(self, wb, ldsbase):
        e = self.e
        L = e.newlabel("DMA3")
        e(f"s_cmp_eq_u32 s{sW}, 0\ns_cbranch_scc1 {L}")
        e(f"s_sub_u32 s{sT0}, s{sW}, 1\ns_mul_i32 s{sT0}, s{sT0}, {21*1024}\ns_add_u32 s{sA4}, s{sT0}, {ldsbase}")
        e(f"s_lshl_b32 s{sA5}, s{sJ}, 16\ns_add_u32 s{sA5}, s{sA5}, s{sT0}\ns_add_u32 s{sA5}, s{sA5}, {WF + wb*32768}")
        for t in range(22):
            if t % 4 == 0:
                e(f"s_mov_b32 m0, s{sA4}\ns_add_u32 s{sA4}, s{sA4}, 4096")
                if t: e(f"s_add_u32 s{sA5}, s{sA5}, 4096")
                else: e("s_nop 0")
            e(f"buffer_load_dwordx4 v{vL16}, s[{SRD_WS}:{SRD_WS+3}], s{sA5} offen offset:{(t%4)*1024} sc1 lds")
        e.label(L)

    def load_w_pair(self, wb, dk, ds, acc=True):
        self.w_pair_bases(wb, sT0, sT1)
        self.load_frags(dk, sT0, 16, acc=acc)
        return self.load_frags(ds, sT1, 16, acc=acc)

    def load_act_half(self, sbuf, nfirst=16):
        e = self.e
        e(f"s_lshl_b32 s{sACT}, s{sRB}, 15\ns_lshl_b32 s{sT1}, s{sKH}, 14\ns_add_u32 s{sACT}, s{sACT}, s{sT1}\ns_add_u32 s{sACT}, s{sACT}, s{sbuf}")
        self._act = {}
        for t in range(nfirst): self.act_issue(t)
        return self._act
    def act_issue(self, t):
        if t >= 16 or t in self._act: return
        e = self.e
        if t % 4 == 0 and t: e(f"s_add_u32 s{sACT}, s{sACT}, 4096")
        self._act[t] = self.ws_load(16 + 4 * t, f"s{sACT}", (t % 4) * 1024)

    RED = 131072; REDKV = 147456; VT = 151552
    WL0 = 0; WL1 = 65536
    WKVL = 0
    def reduce_pair(self, red=None, extra_write=None, after_writes=None, after_reads=None):
        e = self.e
        red = self.RED if red is None else red
        e(f"s_lshl_b32 s{sT0}, s{sW}, 12\ns_add_u32 s{sT0}, s{sT0}, {red}\nv_add_u32 v{vT0}, s{sT0}, v{vL16}")
        e(f"s_xor_b32 s{sT0}, s{sT0}, 8192\nv_add_u32 v{vT1}, s{sT0}, v{vL16}")
        for q in range(4):
            e(f"ds_write_b128 v{vT0}, v[{96+4*q}:{99+4*q}] offset:{q*1024}")
        if extra_write: extra_write()
        if after_writes: after_writes()
        e("s_waitcnt lgkmcnt(0)\ns_barrier")
        for q in range(4):
            e(f"ds_read_b128 v[{96+4*q}:{99+4*q}], v{vT1} offset:{q*1024}")
        if after_reads: after_reads()
        for q in range(4):
            e(f"s_waitcnt lgkmcnt({3-q})")
            for r in range(4 * q, 4 * q + 4, 2):
                e(f"v_pk_add_f32 v[{80+r}:{81+r}], v[{80+r}:{81+r}], v[{96+r}:{97+r}]")
        e.lg = []

    def load_cs(self, dst, sidx_expr_reg, vaddr):
        tok = None
        for q in range(4):
            tok = self.ws_load(dst + 4 * q, f"s{sidx_expr_reg}", 32 * q, voff=vaddr)
        return tok

    def dma(self, soff, imm):
        return self.e.vmem(f"buffer_load_dwordx4 v{vL16}, s[{SRD_WS}:{SRD_WS+3}], {soff} offen offset:{imm} sc1 lds")
    def wpair_dma_list(self, wb, ldsbase, sM, sS):
        setup = [f"s_lshl_b32 s{sT0}, s{sW}, 14", f"s_add_u32 s{sM}, s{sT0}, {ldsbase}",
                 f"s_lshl_b32 s{sS}, s{sJ}, 16", f"s_add_u32 s{sS}, s{sS}, s{sT0}", f"s_add_u32 s{sS}, s{sS}, {WF + wb*32768}"]
        items = []
        for g in range(4):
            for t in range(4):
                pre = [f"s_mov_b32 m0, s{sM}", f"s_add_u32 s{sM}, s{sM}, 4096"] if t == 0 else []
                post = [f"s_add_u32 s{sS}, s{sS}, 4096"] if t == 3 else []
                items.append((pre, f"buffer_load_dwordx4 v{vL16}, s[{SRD_WS}:{SRD_WS+3}], s{sS} offen offset:{t*1024} sc1 lds", post))
        return setup, items
    def emit_item(self, it):
        pre, ld, post = it
        for x in pre: self.e(x)
        t = self.e.vmem(ld)
        for x in post: self.e(x)
        return t
    def wpair_dma(self, wb, ldsbase):
        setup, items = self.wpair_dma_list(wb, ldsbase, sA4, sA5)
        for x in setup: self.e(x)
        t = None
        for it in items: t = self.emit_item(it)
        return t

    WR = 112
    def pair_addrs(self, ldsbase):
        e = self.e
        e(f"s_lshl_b32 s{sT2}, s{sKH}, 14\ns_lshl_b32 s{sT3}, s{sKH}, 15\ns_add_u32 s{sT3}, s{sT3}, s{sT2}\ns_add_u32 s{sT3}, s{sT3}, {ldsbase}\nv_add_u32 v{vWK}, s{sT3}, v{vL16}")
        e(f"s_xor_b32 s{sT3}, s{sKH}, 1\ns_lshl_b32 s{sT3}, s{sT3}, 15\ns_add_u32 s{sT3}, s{sT3}, s{sT2}\ns_add_u32 s{sT3}, s{sT3}, {ldsbase}\nv_add_u32 v{vWS}, s{sT3}, v{vL16}")
    def pair_prime(self):
        e = self.e; self._wt = {}
        for t in range(3): self._pair_read(t)
    def _pair_read(self, t):
        e = self.e; r = self.WR + (t % 4) * 8
        e.lds(f"ds_read_b128 v[{r}:{r+3}], v{vWK} offset:{t*1024}")
        self._wt[t] = e.lds(f"ds_read_b128 v[{r+4}:{r+7}], v{vWS} offset:{t*1024}")
    def pair_mfma(self, toks, inter=None, AH=None):
        AH = self.AH if AH is None else AH
        e = self.e
        for t in range(16):
            if t + 3 < 16: self._pair_read(t + 3)
            if toks is not None:
                self.act_issue(t + AH)
                e.wait_vm(toks[t])
            e.wait_lg(self._wt[t])
            r = self.WR + (t % 4) * 8
            e(f"v_mfma_f32_32x32x16_bf16 v[80:95], v[{r}:{r+3}], v[{16+4*t}:{19+4*t}], {'0' if t == 0 else 'v[80:95]'}")
            e(f"v_mfma_f32_32x32x16_bf16 v[96:111], v[{r+4}:{r+7}], v[{16+4*t}:{19+4*t}], {'0' if t == 0 else 'v[96:111]'}")
            if inter: inter(t)

    QL = 0; PS = 8192; SLOT = 2304; FAIL = 63488
    CSQ, CSKV = 180, 196
    def g4_prefetch_cs(self):
        e = self.e
        e(f"v_lshrrev_b32 v212, 5, v{vL}\nv_lshlrev_b32 v212, 4, v212")
        e(f"s_add_u32 s{sT0}, s{sNB}, {WB_Q}\ns_lshl_b32 s{sT0}, s{sT0}, 7\ns_add_u32 s{sT0}, s{sT0}, {CS}")
        self.load_cs(self.CSQ, sT0, 212)
        e(f"s_mov_b32 s{sT0}, {CS + WB_KV*128}")
        return self.load_cs(self.CSKV, sT0, 212)
    def g4_prefetch_kv(self):
        e = self.e
        L = e.newlabel("PFKV")
        e(f"s_cmp_eq_u32 s{sP}, s{sJ}\ns_cbranch_scc0 {L}")
        e(f"s_lshl_b32 s{sT2}, s{sKH}, 14\ns_add_u32 s{sT0}, s{sT2}, {WF + WB_KV*32768}")
        for t in range(16):
            if t % 4 == 0 and t: e(f"s_add_u32 s{sT0}, s{sT0}, 4096")
            e(f"buffer_load_dwordx4 a[{4*t}:{4*t+3}], v{vL16}, s[{SRD_WS}:{SRD_WS+3}], s{sT0} offen offset:{(t%4)*1024} sc1")
        e.label(L)

    def kv_epilogue(self, redkv, vt, CSKV, vmean, vrstd, pre=None, before_drain=None, defer_flag=False):
        e = self.e
        e(f"v_add_u32 v{vT0}, {redkv}, v{vL16}")
        for q in range(4):
            e(f"ds_read_b128 v[{96+4*q}:{99+4*q}], v{vT0} offset:{q*1024}")
        e(f"v_and_b32 v216, 31, v{vL}\nv_lshlrev_b32 v216, 5, v216\nv_lshrrev_b32 v217, 5, v{vL}\nv_lshl_add_u32 v216, v217, 3, v216\nv_add_u32 v216, {vt}, v216")
        e(f"v_and_b32 v218, 15, v{vL}\nv_bfe_u32 v219, v{vL}, 4, 1\nv_lshlrev_b32 v219, 4, v219\nv_lshl_add_u32 v219, v217, 2, v219\nv_lshrrev_b32 v220, 2, v218\nv_add_u32 v219, v219, v220\nv_lshlrev_b32 v219, 5, v219")
        e(f"v_and_b32 v220, 3, v218\nv_lshl_add_u32 v219, v220, 3, v219\nv_add_u32 v219, {vt}, v219")
        e(f"v_bfe_u32 v220, v{vL}, 4, 1\nv_mul_u32_u24 v220, 544, v220\nv_mul_u32_u24 v222, 272, v217\nv_add_u32 v220, v220, v222\nv_lshl_add_u32 v220, v218, 4, v220")
        e(f"s_lshl_b32 s{sT0}, s{sRB}, 10\ns_add_u32 s{sT0}, s{sT0}, s{sKF}")
        e(f"s_mul_i32 s{sT1}, s{sRB}, {VT_STRIDE}\ns_add_u32 s{sT1}, s{sT1}, s{sKF}\ns_add_u32 s{sT1}, s{sT1}, 0x10000")
        e(f"v_mul_u32_u24 v222, 272, v{vL}\nv_add_u32 v222, 256, v222")
        for r in range(4): e(f"v_mov_b32 v{224+r}, 0x3f803f80")
        e(f"s_mov_b64 exec, 0xf\nbuffer_store_dwordx4 v[224:227], v222, s[{SRD_WS}:{SRD_WS+3}], s{sT1} offen sc1\ns_mov_b64 exec, -1")
        e("s_waitcnt lgkmcnt(0)")
        if pre: pre()
        e(f"v_mul_f32 v214, v{vmean}, v{vrstd}\nv_sub_f32 v214, 0, v214\nv_mov_b32 v212, v{vrstd}")
        for r in range(0, 16, 2):
            e(f"v_pk_add_f32 v[{144+r}:{145+r}], v[{144+r}:{145+r}], v[{96+r}:{97+r}]")
        for r in range(0, 16, 2):
            e(f"v_pk_mul_f32 v[{96+r}:{97+r}], v[{CSKV+r}:{CSKV+r+1}], v[214:215] op_sel_hi:[1,0]")
        for r in range(0, 16, 2):
            e(f"v_pk_fma_f32 v[{144+r}:{145+r}], v[{144+r}:{145+r}], v[212:213], v[{96+r}:{97+r}] op_sel_hi:[1,0,1]")
        for d in range(8):
            e(f"v_cvt_pk_bf16_f32 v{96+d}, v{144+2*d}, v{145+2*d}")
        e("ds_write_b64 v216, v[96:97]\nds_write_b64 v216, v[98:99] offset:16")
        e(f"buffer_store_dwordx4 v[100:103], v{vL16}, s[{SRD_WS}:{SRD_WS+3}], s{sT0} offen sc1")
        e("s_waitcnt lgkmcnt(0)")
        e("ds_read_b64_tr_b16 v[104:105], v219\nds_read_b64_tr_b16 v[106:107], v219 offset:256\ns_waitcnt lgkmcnt(0)")
        e(f"buffer_store_dwordx4 v[104:107], v220, s[{SRD_WS}:{SRD_WS+3}], s{sT1} offen sc1")
        if not defer_flag: self.kv_flag()

    def kv_flag(self):
        e = self.e
        e(f"s_lshl_b32 s{sT4}, s{sHALF}, 11\ns_lshl_b32 s{sT5}, s{sRB}, 2\ns_add_u32 s{sT4}, s{sT4}, s{sT5}\ns_add_u32 s{sT4}, s{sT4}, {FL_GK}")
        e(f"v_lshlrev_b32 v220, 8, v{vL}\nv_mov_b32 v221, s{sTAG}")
        e("s_waitcnt vmcnt(0)")
        e(f"s_mov_b64 exec, 0xff\nbuffer_store_dword v221, v220, s[{SRD_WS}:{SRD_WS+3}], s{sT4} offen sc1\ns_mov_b64 exec, -1")

    def q_epilogue(self, CSQ, vmean, vrstd):
        e = self.e
        e(f"v_mul_f32 v214, {fbits(QSCALE)}, v{vrstd}")
        e(f"v_mul_f32 v216, v{vmean}, v214\nv_sub_f32 v216, 0, v216")
        e(f"s_lshl_b32 s{sT0}, s{sKH}, 2\ns_add_u32 s{sT0}, s{sT0}, s{sP}\ns_lshl_b32 s{sT0}, s{sT0}, 10\nv_add_u32 v{vT0}, s{sT0}, v{vL16}")
        for r in range(0, 16, 2):
            e(f"v_pk_mul_f32 v[{96+r}:{97+r}], v[{CSQ+r}:{CSQ+r+1}], v[216:217] op_sel_hi:[1,0]")
        for r in range(0, 16, 2):
            e(f"v_pk_fma_f32 v[{80+r}:{81+r}], v[{80+r}:{81+r}], v[214:215], v[{96+r}:{97+r}] op_sel_hi:[1,0,1]")
        for d in range(8):
            e(f"v_cvt_pk_bf16_f32 v{96+d}, v{80+2*d}, v{81+2*d}")
        e(f"ds_write_b128 v{vT0}, v[96:99] offset:{self.QL}\nds_write_b128 v{vT0}, v[100:103] offset:{self.QL+2048}")

    def g4(self):
        e = self.e
        CSQ, CSKV = self.CSQ, self.CSKV
        Lq = e.newlabel("G4Q"); Lb1 = e.newlabel("G4B1"); Lq2 = e.newlabel("G4Q2"); Lred = e.newlabel("G4RED")
        toks = self.load_act_half(sXIN, self.AH)
        e(f"v_and_b32 v176, 31, v{vL}\nv_lshlrev_b32 v176, 3, v176\nv_lshrrev_b32 v177, 5, v{vL}\nv_lshl_add_u32 v176, v177, 11, v176")
        e(f"s_lshl_b32 s90, s{sRB}, 12\ns_add_u32 s90, s90, s{sSTIN}")
        def stat_inter(t):
            t0 = 16 - self.AH
            if t0 <= t <= t0 + 3:
                for q in (2 * (t - t0), 2 * (t - t0) + 1):
                    self.ws_load(160 + 2 * q, "s90", q * 256, voff=176, n=2)
        self.pair_addrs(self.WL1)
        saved = list(e.vm); saved_act = dict(self._act)
        e(f"s_cmp_eq_u32 s{sP}, s{sJ}\ns_cbranch_scc0 {Lq}")
        for t in range(16):
            self.act_issue(t + self.AH)
            e.wait_vm(toks[t])
            e(f"v_mfma_f32_32x32x16_bf16 v[144:159], a[{4*t}:{4*t+3}], v[{16+4*t}:{19+4*t}], {'0' if t == 0 else 'v[144:159]'}")
            stat_inter(t)
        e(f"s_cmp_eq_u32 s{sKH}, 0\ns_cbranch_scc1 {Lb1}")
        e(f"v_add_u32 v{vT0}, {self.REDKV}, v{vL16}")
        for q in range(4):
            e(f"ds_write_b128 v{vT0}, v[{144+4*q}:{147+4*q}] offset:{q*1024}")
        e("s_waitcnt lgkmcnt(0)")
        e(f"s_branch {Lb1}")
        e.label(Lq)
        e.vm = list(saved); e.lg = []
        self._act = saved_act
        e(f"s_lshl_b32 s{sACT}, s{sRB}, 15\ns_lshl_b32 s{sT1}, s{sKH}, 14\ns_add_u32 s{sACT}, s{sACT}, s{sT1}\ns_add_u32 s{sACT}, s{sACT}, s{sXIN}\ns_add_u32 s{sACT}, s{sACT}, {((self.AH-1)//4)*4096}")
        self.pair_prime()
        self.pair_mfma(self._act, stat_inter)
        e.label(Lb1)
        e("s_waitcnt vmcnt(0)"); e.reset_counters()
        self.stats_finish(160, 178, 179)
        e(f"s_cmp_ge_u32 s{sJ}, 2\ns_cbranch_scc1 {Lred}")
        e("s_barrier")
        e(f"s_cmp_eq_u32 s{sP}, s{sJ}\ns_cbranch_scc0 {Lred}")
        e(f"s_cmp_lg_u32 s{sKH}, 0\ns_cbranch_scc1 {Lq2}")
        self.kv_epilogue(self.REDKV, self.VT, CSKV, 178, 179, defer_flag=True)
        e.label(Lq2)
        e.lg = []
        self.pair_prime()
        def g4mid(t):
            if t == 7:
                Lm = e.newlabel("G4KF")
                e(f"s_cmp_lg_u32 s{sKH}, 0\ns_cbranch_scc1 {Lm}")
                self.kv_flag()
                self.stamp("g4kv")
                e.label(Lm)
        self.pair_mfma(None, g4mid)
        e.label(Lred)
        e.lg = []
        self.reduce_pair()
        self.q_epilogue(CSQ, 178, 179)
        e.reset_counters()

    def att_unit(self, u, Sc, Sn, Pc, Pn, Qnext, Oc, Oprev, extra, first, cin="0"):
        e = self.e
        tn = (u + 1) % 16; tp = (u - 1) % 16
        for x in extra.get(-1, []): e(x)
        for i in range(16):
            if i == 2 and Qnext is not None: e(f"v_mfma_f32_32x32x16_bf16 {v(Sn,16)}, {a(4*tn,4)}, {v(Qnext,4)}, {cin}")
            if i == 7: e(f"v_mfma_f32_32x32x16_bf16 {v(Oprev,16)}, {a(64+8*tp+4,4)}, {v(Pn+4,4)}, {v(Oprev,16)}")
            if i == 12: e(f"v_mfma_f32_32x32x16_bf16 {v(Oc,16)}, {a(64+8*u,4)}, {v(Pc,4)}, {'0' if first else v(Oc,16)}")
            e(f"v_exp_f32 v{Sc+i}, v{Sc+i}")
            pk = (lambda d, lo, hi: f"v_perm_b32 v{d}, v{hi}, v{lo}, s{sPERM}") if getattr(self, "attperm", False) else (lambda d, lo, hi: f"v_cvt_pk_bf16_f32 v{d}, v{lo}, v{hi}")
            if i == 0: e(pk(Pn+7, Sn+14, Sn+15))
            if i >= 3 and (i - 3) % 2 == 0:
                k = (i - 3) // 2
                e(pk(Pc+k, Sc+2*k, Sc+2*k+1))
            for x in extra.get(i, []): e(x)

    def attention(self):
        e = self.e
        QA, QB = 16, 20
        S = [32, 48]; P = [64, 72]; O = [80, 96]
        PS, SL, QL, WS1 = self.PS, self.SLOT, self.QL, self.WL1
        sM0V, sSOFF = sA4, sA5
        sK, sV = 88, 89
        if getattr(self, "attperm", False): e(f"s_mov_b32 s{sPERM}, 0x07060302")
        self.g2_w_bases()
        e(f"v_mov_b32 v27, 0\nds_write_b32 v27, v27 offset:{self.FAIL}\ns_mov_b32 s{sFB}, 0")
        for r in range(8): e(f"v_mov_b32 v{P[1]+r}, 0")
        for r in range(2): e(f"v_mov_b32 v{S[1]+14+r}, 0")
        e(f"s_mul_i32 s{sT0}, s{sW}, {6*SL}\ns_add_u32 s{sT0}, s{sT0}, {PS}\nv_add_u32 v24, s{sT0}, v{vL16}\ns_add_u32 s{sT0}, s{sT0}, 2048\nv_add_u32 v25, s{sT0}, v{vL4}")
        setup, dmaitems = self.wpair_dma_list(WB_OA, WS1, sM0V, sSOFF)
        for x in setup: e(x)
        e(f"v_and_b32 v27, 31, v{vL}\nv_min_u32 v26, 16, v27\nv_lshlrev_b32 v26, 4, v26\nv_lshrrev_b32 v29, 5, v{vL}\nv_mul_u32_u24 v29, 272, v29\nv_add_u32 v26, v26, v29")
        e(f"v_and_b32 v29, 27, v27\nv_cmp_eq_u32 vcc, 16, v29\nv_cmp_gt_u32 s[{sM0}:{sM0+1}], 16, v27\ns_or_b64 vcc, vcc, s[{sM0}:{sM0+1}]\nv_mov_b32 v29, {WS_BYTES}\nv_cndmask_b32 v26, v29, v26, vcc")
        e(f"s_mov_b32 s{sLOOP}, 0\ns_lshl_b32 s{sT2}, s{sW}, 1\ns_add_u32 s{sT2}, s{sT2}, 2\ns_and_b32 s{sT2}, s{sT2}, 7")
        e(f"s_lshl_b32 s{sT2}, s{sT2}, 10\nv_add_u32 v28, s{sT2}, v{vL16}")
        e("s_waitcnt lgkmcnt(0)")
        self.stamp("att_poll")
        L = e.newlabel("GK")
        e(f"s_cmp_lg_u32 s{sW}, 0\ns_cbranch_scc1 {L}")
        Lm = e.newlabel("NOMODE")
        e(f"s_cmp_lg_u32 s{sHALF}, 0\ns_cbranch_scc1 {Lm}")
        self.mode_detect()
        e.label(Lm)
        e(f"s_lshl_b32 s{sT0}, s{sHALF}, 11\ns_and_b32 s{sT1}, s{sG}, 7\ns_lshl_b32 s{sT1}, s{sT1}, 8\ns_add_u32 s{sT0}, s{sT0}, s{sT1}\ns_add_u32 s{sT0}, s{sT0}, {FL_GK}")
        def setup_():
            e(f"buffer_load_dword v17, v{vL4}, s[{SRD_WS}:{SRD_WS+3}], s{sT0} offen sc1\ns_waitcnt vmcnt(0)")
            e(f"v_cmp_ne_u32 vcc, s{sTAG}, v17")
        self.poll("g", setup_)
        L2 = e.newlabel("EPOCH")
        e(f"s_cmp_lg_u32 s{sG}, 0\ns_cbranch_scc1 {L2}\ns_cmp_eq_u32 s{sHALF}, 0\ns_cbranch_scc1 {L2}")
        e(f"v_mov_b32 v16, 0\nv_mov_b32 v17, s{sTAG}\ns_mov_b64 exec, 1\nbuffer_store_dword v17, v16, s[{SRD_WS}:{SRD_WS+3}], 0 offen sc0 sc1\ns_mov_b64 exec, -1\ns_waitcnt vmcnt(0)")
        e.label(L2)
        e.label(L)
        e("s_waitcnt vmcnt(0)")
        e("s_barrier")
        Lm2 = e.newlabel("NOMODE2"); Lpf = e.newlabel("NOPF")
        e(f"s_cmp_lg_u32 s{sHALF}, 0\ns_cbranch_scc1 {Lm2}")
        self.mode_read()
        self.alias_setup()
        e(f"s_cmp_ge_u32 s{sRANK}, 97\ns_cbranch_scc1 {Lpf}\ns_cmp_lg_u32 s{sW}, 0\ns_cbranch_scc1 {Lpf}")
        e(f"v_lshlrev_b32 v16, 9, v{vL}\ns_lshl_b32 s{sT0}, s{sRANK}, 2\ns_add_u32 s{sT0}, s{sT0}, {FL_G0}\nv_mov_b32 v17, s{sTAG}")
        e(f"s_mov_b64 exec, 0xff\nbuffer_store_dword v17, v16, s[{SRD_WS}:{SRD_WS+3}], s{sT0} offen sc1\ns_mov_b64 exec, -1")
        e.label(Lpf)
        e.label(Lm2)
        self.stamp("att_start")
        e.reset_counters()
        e(f"ds_read_b128 v[{QA}:{QA+3}], v28 offset:{QL}")
        e(f"s_lshl_b32 s{sK}, s{sW}, 14\ns_add_u32 s{sK}, s{sK}, s{sKF}")
        e(f"s_mul_i32 s{sV}, s{sW}, {16*VT_STRIDE}\ns_add_u32 s{sV}, s{sV}, s{sKF}\ns_add_u32 s{sV}, s{sV}, 0x10000")
        def kv_lines(t):
            Ls = []
            if t % 4 == 0 and t: Ls += [f"s_add_u32 s{sK}, s{sK}, 4096"]
            if t % 2 == 0 and t: Ls += [f"s_add_u32 s{sV}, s{sV}, {2*VT_STRIDE}"]
            vo = (t % 2) * VT_STRIDE
            Ls += [f"buffer_load_dwordx4 a[{4*t}:{4*t+3}], v{vL16}, s[{SRD_WS}:{SRD_WS+3}], s{sK} offen offset:{(t%4)*1024} sc1",
                   f"buffer_load_dwordx4 a[{64+8*t}:{67+8*t}], v26, s[{SRD_WS}:{SRD_WS+3}], s{sV} offen offset:{vo} sc1",
                   f"buffer_load_dwordx4 a[{68+8*t}:{71+8*t}], v26, s[{SRD_WS}:{SRD_WS+3}], s{sV} offen offset:{vo+544} sc1"]
            return Ls
        AHEAD = 4
        for t in range(AHEAD):
            for x in kv_lines(t): e(x)
        e(f"s_waitcnt vmcnt({3*AHEAD-1}) lgkmcnt(0)")
        e(f"v_mfma_f32_32x32x16_bf16 {v(S[0],16)}, {a(0,4)}, {v(QA,4)}, 0")
        e("s_nop 7\ns_nop 7")
        self.stamp("att_kv")
        def wA_line(f):
            sb = sT7 if f < 16 else sT6
            pre = [f"s_add_u32 s{sb}, s{sA2}, {(f//4)*4096}"] if f % 4 == 0 else []
            return pre + [f"buffer_load_dwordx4 a[{4*f}:{4*f+3}], v{vL16}, s[{SRD_WS}:{SRD_WS+3}], s{sb} offen offset:{(f%4)*1024} sc1"]
        def position(pos, kind):
            Qc, Qn = (QA, QB) if pos == 0 else (QB, QA)
            Oc, On = (O[0], O[1]) if pos == 0 else (O[1], O[0])
            for u in range(16):
                c = u & 1; n = c ^ 1
                extra = {}
                if kind == 'first':
                    issued = min(AHEAD + u, 16)
                    need_idx = min(3 * (u + 1), 47) if u < 15 else 47
                    nw = 3*issued - need_idx - 1
                    if u in (13, 14): nw += 1
                    extra[-1] = [f"s_waitcnt vmcnt({nw})"]
                    if AHEAD + u < 16:
                        extra[3] = kv_lines(AHEAD + u)
                    if u == 12:
                        extra[5] = [f"s_and_b32 s{sT0}, s{sG}, 7", f"s_lshl_b32 s{sT0}, s{sT0}, 9", f"s_add_u32 s{sT0}, s{sT0}, {FL_G0}",
                                    f"v_lshlrev_b32 v29, 3, v{vL}",
                                    f"buffer_load_dwordx2 v[30:31], v29, s[{SRD_WS}:{SRD_WS+3}], s{sT0} offen sc1"]
                    if u == 15 and not getattr(self, "nopretouch", False):
                        Lh1 = e.newlabel("PTH1"); Lpd = e.newlabel("PTD")
                        srd = f"s[{SRD_WS}:{SRD_WS+3}]"
                        extra[10] = [f"s_cmp_lg_u32 s{sHALF}, 0", f"s_cbranch_scc1 {Lh1}",
                            f"s_add_u32 s{sT0}, s{sXMID}, s{sRBOFF}",
                            f"buffer_load_dwordx4 v[128:131], v{vL16}, {srd}, s{sT0} offen",
                            f"buffer_load_dwordx4 v[132:135], v{vL16}, {srd}, s{sT0} offen offset:1024",
                            f"s_add_u32 s{sT0}, s{sSTMID}, s{sSTOFF}", f"buffer_load_dword v136, v{vSTAT}, {srd}, s{sT0} offen",
                            f"s_lshl_b32 s{sT0}, s{sJ}, 2", f"s_add_u32 s{sT0}, s{sT0}, s{sW}", f"s_lshl_b32 s{sT0}, s{sT0}, 10", f"s_lshl_b32 s{sT1}, s{sC}, 16",
                            f"s_add_u32 s{sT0}, s{sT0}, s{sT1}", f"s_add_u32 s{sT0}, s{sT0}, s{sOA}", f"s_add_u32 s{sT1}, s{sT0}, 32768",
                            f"buffer_load_dwordx4 v[140:143], v{vL16}, {srd}, s{sT0} offen", f"buffer_load_dwordx4 v[144:147], v{vL16}, {srd}, s{sT1} offen",
                            f"s_lshl_b32 s{sT1}, s{sC}, 15", f"s_add_u32 s{sT1}, s{sT1}, s{sHX}", f"buffer_load_dword v137, v{vL4}, {srd}, s{sT1} offen",
                            f"buffer_load_dword v138, v{vL4}, {srd}, s{sSTH} offen",
                            f"s_branch {Lpd}", f"{Lh1}:",
                            f"v_and_b32 v139, 31, v{vL}", f"v_lshlrev_b32 v139, 11, v139", f"v_lshrrev_b32 v148, 5, v{vL}", f"v_lshl_add_u32 v139, v148, 4, v139",
                            f"s_lshl_b32 s{sT0}, s{sC}, 6", f"s_add_u32 s{sT0}, s{sT0}, s{sP}", f"s_lshl_b32 s{sT0}, s{sT0}, 10", f"s_lshl_b32 s{sT1}, s{sNB}, 6", f"s_add_u32 s{sT0}, s{sT0}, s{sT1}",
                            f"buffer_load_dwordx4 v[128:131], v139, s[{SRD_OUT}:{SRD_OUT+3}], s{sT0} offen",
                            f"{Lpd}:"]
                    if u == 15:
                        Lok = e.newlabel("G0OK"); Lp = e.newlabel("G0P")
                        chk = [f"v_xor_b32 v30, s{sTAG}, v30", f"v_xor_b32 v31, s{sTAG}, v31",
                               f"v_cmp_lt_u32 vcc, 48, v{vL}", "s_nop 1", "v_cndmask_b32 v30, v30, 0, vcc",
                               f"v_cmp_le_u32 vcc, 48, v{vL}", "s_nop 1", "v_cndmask_b32 v31, v31, 0, vcc",
                               "v_or_b32 v30, v30, v31", "v_cmp_ne_u32 vcc, 0, v30"]
                        extra[6] = chk + [f"s_cbranch_vccz {Lok}", f"s_mov_b32 s{sPOLL}, 0", f"{Lp}:",
                                          f"buffer_load_dwordx2 v[30:31], v29, s[{SRD_WS}:{SRD_WS+3}], s{sT0} offen sc1", "s_waitcnt vmcnt(0)"] + chk + \
                                         [f"s_cbranch_vccz {Lok}", f"s_add_u32 s{sPOLL}, s{sPOLL}, 1", f"s_cmp_lt_u32 s{sPOLL}, 400000", f"s_cbranch_scc1 {Lp}", "s_branch L_END", f"{Lok}:"]
                if u == 0 and kind != 'last':
                    extra[9] = ["v_add_u32 v28, 0x400, v28", "v_and_b32 v28, 0x1fff, v28"]
                if u == 1 and kind == 'loop':
                    extra[6] = [f"ds_write_b128 v24, v[{On}:{On+3}]", f"ds_write_b128 v24, v[{On+4}:{On+7}] offset:1024", f"ds_write_b32 v25, v{On+8}",
                                f"v_add_u32 v24, {SL}, v24", f"v_add_u32 v25, {SL}, v25"]
                if u == 4 and kind != 'last':
                    extra[5] = [f"ds_read_b128 v[{Qn}:{Qn+3}], v28 offset:{QL}"]
                if pos == 1 and kind == 'loop' and u == 2:
                    for t in range(4):
                        pre, ld, post = dmaitems[t]
                        extra[5 + 2 * t] = pre + [ld] + post
                if kind == 'last' and u == 0 and not getattr(self, "nopf", False):
                    Lp = e.newlabel("PF2")
                    extra[1] = [f"s_lshr_b32 s{sT4}, s{sG}, 3", f"s_lshl_b32 s{sT4}, s{sT4}, 2", f"s_add_u32 s{sT4}, s{sT4}, s{sW}", f"s_lshl_b32 s{sT4}, s{sT4}, 10",
                                f"s_add_u32 s{sT5}, s{sT4}, 1024", f"s_cmp_gt_u32 s{sT5}, L_CODE_END-L_PFBASE", f"s_cbranch_scc1 {Lp}",
                                f"s_add_u32 s{sT4}, s{sT4}, s{sPFB}", f"s_addc_u32 s{sT5}, s{sPFB+1}, 0",
                                f"global_load_dwordx4 v[128:131], v{vL16}, s[{sT4}:{sT4+1}]", f"{Lp}:"]
                if kind == 'last':
                    if u < 4:
                        pre, ld, post = dmaitems[u]
                        extra[8] = pre + [ld] + post
                    extra.setdefault(4, []).extend(wA_line(u))
                    if u >= 2: extra.setdefault(10, []).extend(wA_line(16 + u - 2))
                    if u >= 14: extra.setdefault(13, []).extend(wA_line(16 + u))
                if u == 14 and kind != 'last':
                    extra.setdefault(4, []).append("s_waitcnt lgkmcnt(0)")
                if u == 15 and kind != 'last':
                    extra[14] = [f"s_add_u32 s{sLOOP}, s{sLOOP}, 1"]
                Qx = Qn if u == 15 else Qc
                if u == 15 and kind == 'last': Qx = None
                Op = On if u == 0 else Oc
                self.att_unit(u, S[c], S[n], P[c], P[n], Qx, Oc, Op, extra, first=(u == 0))
        position(0, 'first')
        Lloop = e.newlabel("ATTLOOP")
        e(".p2align 3")
        e.label(Lloop)
        position(1, 'loop')
        position(0, 'loop')
        e(f"s_cmp_lt_u32 s{sLOOP}, 7\ns_cbranch_scc1 {Lloop}")
        position(1, 'last')
        e(f"v_cvt_pk_bf16_f32 v{P[1]+7}, v{S[1]+14}, v{S[1]+15}")
        e(f"v_mfma_f32_32x32x16_bf16 {v(O[1],16)}, {a(64+8*15+4,4)}, {v(P[1]+4,4)}, {v(O[1],16)}")
        e.label("L_ATT_TAIL")
        for vis in range(3):
            e(f"s_sub_u32 s{sT0}, s{sW}, {1+vis}\ns_and_b32 s{sT0}, s{sT0}, 3\ns_mul_i32 s{sT0}, s{sT0}, {6*SL}\ns_add_u32 s{sT0}, s{sT0}, {PS + 2*vis*SL}")
            e(f"v_add_u32 v{24+vis}, s{sT0}, v{vL16}\ns_add_u32 s{sT0}, s{sT0}, 2048\nv_add_u32 v{28+vis}, s{sT0}, v{vL4}")
        e("s_waitcnt vmcnt(27) lgkmcnt(0)\ns_barrier")
        self.stamp("att_loopend")
        slots = {}
        base = [32, 44, 56, 68, 112, 16]
        k = 0
        for pp in range(2):
            for vis in range(3):
                b = base[k]; k += 1; slots[(pp, vis)] = b
                lreg = 31 if b == 16 else b + 8
                e(f"ds_read_b128 v[{b}:{b+3}], v{24+vis} offset:{pp*SL}\nds_read_b128 v[{b+4}:{b+7}], v{24+vis} offset:{pp*SL+1024}\nds_read_b32 v{lreg}, v{28+vis} offset:{pp*SL}")
        e(f"s_lshl_b32 s{sT0}, s{sJ}, 2\ns_add_u32 s{sT0}, s{sT0}, s{sW}\ns_lshl_b32 s{sT0}, s{sT0}, 10")
        e(f"s_lshl_b32 s{sT1}, s{sC}, 16\ns_add_u32 s{sT0}, s{sT0}, s{sT1}\ns_add_u32 s{sT0}, s{sT0}, s{sOA}\ns_add_u32 s{sT1}, s{sT0}, 32768")
        tok = None
        for pp in range(2):
            Oo = O[pp]
            e(f"s_waitcnt lgkmcnt({9 if pp == 0 else 0})")
            for vis in range(3):
                b = slots[(pp, vis)]
                e(f"v_add_f32 v{Oo+8}, v{Oo+8}, v{31 if b == 16 else b + 8}")
                for r in range(0, 8, 2):
                    e(f"v_pk_add_f32 v[{Oo+r}:{Oo+r+1}], v[{Oo+r}:{Oo+r+1}], v[{b+r}:{b+r+1}]")
            e(f"v_rcp_f32 v{Oo+10}, v{Oo+8}")
            for r in range(0, 8, 2):
                e(f"v_pk_mul_f32 v[{Oo+r}:{Oo+r+1}], v[{Oo+r}:{Oo+r+1}], v[{Oo+10}:{Oo+11}] op_sel_hi:[1,0]")
            for d in range(4):
                e(f"v_cvt_pk_bf16_f32 v{Oo+12+d}, v{Oo+2*d}, v{Oo+2*d+1}")
            tok = self.moded(lambda fl: self.ws_store(Oo + 12, f"s{sT0 if pp == 0 else sT1}", 0, flag=fl))
        e(f"v_cmp_nle_f32 vcc, 0x1f800000, v{O[0]+8}\ns_mov_b64 s[{sBAD}:{sBAD+1}], vcc")
        e(f"v_cmp_nge_f32 vcc, 0x5f800000, v{O[0]+8}\ns_or_b64 s[{sBAD}:{sBAD+1}], s[{sBAD}:{sBAD+1}], vcc")
        e(f"v_cmp_nle_f32 vcc, 0x1f800000, v{O[1]+8}\ns_or_b64 s[{sBAD}:{sBAD+1}], s[{sBAD}:{sBAD+1}], vcc")
        e(f"v_cmp_nge_f32 vcc, 0x5f800000, v{O[1]+8}\ns_or_b64 s[{sBAD}:{sBAD+1}], s[{sBAD}:{sBAD+1}], vcc")
        Lok = e.newlabel("LSUMOK")
        e(f"s_cmp_eq_u64 s[{sBAD}:{sBAD+1}], 0\ns_cbranch_scc1 {Lok}")
        e(f"v_mov_b32 v24, 1\nv_mov_b32 v25, 0\nds_write_b32 v25, v24 offset:{self.FAIL}")
        e.label(Lok)
        return tok

    def fallback_check(self):
        e = self.e
        L = e.newlabel("NOFB")
        e(f"v_mov_b32 v16, 0\nds_read_b32 v17, v16 offset:{self.FAIL}\ns_waitcnt lgkmcnt(0)\nv_readfirstlane_b32 s{sT0}, v17")
        e(f"s_cmp_eq_u32 s{sT0}, 0\ns_cbranch_scc1 {L}\ns_cmp_eq_u32 s{sFB}, 0\ns_cbranch_scc1 L_FALLBACK")
        e.label(L)

    def fallback(self):
        e = self.e
        PS, SL, QL = self.PS, self.SLOT, self.QL
        MX = 131072
        K, V, Q, S, P, CM, M, ACC = 128, 132, 140, 144, 160, 168, 184, 192
        sI, sT, sKA, sVA, sB = 88, 89, 90, 92, 93
        e.label("L_FALLBACK")
        e(f"s_mov_b32 s{sFB}, 1\ns_waitcnt vmcnt(0) lgkmcnt(0)")
        e(f"v_and_b32 v187, 31, v{vL}\nv_min_u32 v186, 16, v187\nv_lshlrev_b32 v186, 4, v186\nv_lshrrev_b32 v188, 5, v{vL}\nv_mul_u32_u24 v188, 272, v188\nv_add_u32 v186, v186, v188")
        e(f"v_and_b32 v188, 27, v187\nv_cmp_eq_u32 vcc, 16, v188\nv_cmp_gt_u32 s[{sM0}:{sM0+1}], 16, v187\ns_or_b64 vcc, vcc, s[{sM0}:{sM0+1}]\nv_mov_b32 v188, {WS_BYTES}\nv_cndmask_b32 v186, v188, v186, vcc")
        e(f"v_and_b32 v187, 31, v{vL}\nv_lshlrev_b32 v187, 2, v187")
        for ps in range(2):
            Li = e.newlabel("FBI"); Lt = e.newlabel("FBT")
            e(f"s_mov_b32 s{sI}, 0")
            e.label(Li)
            e(f"s_lshl_b32 s{sB}, s{sW}, 1\ns_add_u32 s{sB}, s{sB}, 2\ns_add_u32 s{sB}, s{sB}, s{sI}\ns_and_b32 s{sB}, s{sB}, 7")
            e(f"s_lshl_b32 s{sT0}, s{sB}, 10\nv_add_u32 v185, s{sT0}, v{vL16}\nds_read_b128 v[{Q}:{Q+3}], v185 offset:{QL}")
            if ps == 0:
                e(f"v_mov_b32 v{M}, 0xff800000")
            else:
                e(f"s_lshl_b32 s{sT0}, s{sB}, 9\ns_add_u32 s{sT0}, s{sT0}, {MX}\nv_add_u32 v185, s{sT0}, v187")
                e(f"ds_read_b32 v{M}, v185\nds_read_b32 v189, v185 offset:128\nds_read_b32 v190, v185 offset:256\nds_read_b32 v191, v185 offset:384\ns_waitcnt lgkmcnt(0)")
                e(f"v_max_f32 v{M}, v{M}, v189\nv_max_f32 v190, v190, v191\nv_max_f32 v{M}, v{M}, v190")
                for r in range(16): e(f"v_sub_f32 v{CM+r}, 0, v{M}\nv_mov_b32 v{ACC+r}, 0")
            e(f"s_lshl_b32 s{sKA}, s{sW}, 14\ns_add_u32 s{sKA}, s{sKA}, s{sKF}")
            e(f"s_mul_i32 s{sVA}, s{sW}, {16*VT_STRIDE}\ns_add_u32 s{sVA}, s{sVA}, s{sKF}\ns_add_u32 s{sVA}, s{sVA}, 0x10000")
            e(f"s_mov_b32 s{sT}, 0")
            e.label(Lt)
            e(f"buffer_load_dwordx4 v[{K}:{K+3}], v{vL16}, s[{SRD_WS}:{SRD_WS+3}], s{sKA} offen sc1")
            if ps == 1:
                e(f"buffer_load_dwordx4 v[{V}:{V+3}], v186, s[{SRD_WS}:{SRD_WS+3}], s{sVA} offen sc1")
                e(f"buffer_load_dwordx4 v[{V+4}:{V+7}], v186, s[{SRD_WS}:{SRD_WS+3}], s{sVA} offen offset:544 sc1")
            e("s_waitcnt vmcnt(0) lgkmcnt(0)")
            e(f"v_mfma_f32_32x32x16_bf16 {v(S,16)}, {v(K,4)}, {v(Q,4)}, {'0' if ps == 0 else v(CM,16)}")
            if ps == 0:
                for r in range(0, 16, 2): e(f"v_max3_f32 v{M}, v{M}, v{S+r}, v{S+r+1}")
            else:
                for r in range(16): e(f"v_exp_f32 v{S+r}, v{S+r}")
                for d in range(8): e(f"v_cvt_pk_bf16_f32 v{P+d}, v{S+2*d}, v{S+2*d+1}")
                e(f"v_mfma_f32_32x32x16_bf16 {v(ACC,16)}, {v(V,4)}, {v(P,4)}, {v(ACC,16)}")
                e(f"v_mfma_f32_32x32x16_bf16 {v(ACC,16)}, {v(V+4,4)}, {v(P+4,4)}, {v(ACC,16)}")
            e(f"s_add_u32 s{sKA}, s{sKA}, 1024\ns_add_u32 s{sVA}, s{sVA}, {VT_STRIDE}\ns_add_u32 s{sT}, s{sT}, 1\ns_cmp_lt_u32 s{sT}, 16\ns_cbranch_scc1 {Lt}")
            if ps == 0:
                e(f"v_mov_b32 v189, v{M}\nv_permlane32_swap_b32 v{M}, v189\nv_max_f32 v{M}, v{M}, v189")
                e(f"s_lshl_b32 s{sT0}, s{sB}, 9\ns_lshl_b32 s{sT1}, s{sW}, 7\ns_add_u32 s{sT0}, s{sT0}, s{sT1}\ns_add_u32 s{sT0}, s{sT0}, {MX}\nv_add_u32 v185, s{sT0}, v187")
                e(f"ds_write_b32 v185, v{M}\ns_waitcnt lgkmcnt(0)")
            else:
                L6 = e.newlabel("FB6"); L7 = e.newlabel("FB7"); Ln = e.newlabel("FBN")
                e(f"s_cmp_eq_u32 s{sI}, 6\ns_cbranch_scc1 {L6}\ns_cmp_eq_u32 s{sI}, 7\ns_cbranch_scc1 {L7}")
                e(f"s_mul_i32 s{sT0}, s{sW}, 6\ns_add_u32 s{sT0}, s{sT0}, s{sI}\ns_mul_i32 s{sT0}, s{sT0}, {SL}\ns_add_u32 s{sT0}, s{sT0}, {PS}")
                e(f"v_add_u32 v185, s{sT0}, v{vL16}\ns_add_u32 s{sT0}, s{sT0}, 2048\nv_add_u32 v188, s{sT0}, v{vL4}")
                e(f"ds_write_b128 v185, v[{ACC}:{ACC+3}]\nds_write_b128 v185, v[{ACC+4}:{ACC+7}] offset:1024\nds_write_b32 v188, v{ACC+8}\ns_waitcnt lgkmcnt(0)\ns_branch {Ln}")
                e.label(L6)
                for r in range(9): e(f"v_mov_b32 v{80+r}, v{ACC+r}")
                e(f"s_branch {Ln}")
                e.label(L7)
                for r in range(9): e(f"v_mov_b32 v{96+r}, v{ACC+r}")
                e.label(Ln)
            e(f"s_add_u32 s{sI}, s{sI}, 1\ns_cmp_lt_u32 s{sI}, 8\ns_cbranch_scc1 {Li}")
            if ps == 0: e("s_barrier")
        e("s_waitcnt vmcnt(0) lgkmcnt(0)\ns_branch L_ATT_TAIL")

    def g2_w_bases(self):
        e = self.e
        e(f"s_lshl_b32 s{sT0}, s{sJ}, 1")
        tblA = [WB_BQ, WB_BK, WB_BK + 1, WB_BV + 1]; tblB = [WB_BQ + 1, WB_BK + 1, WB_BV, WB_BV]
        e(f"s_mov_b32 s{sA0}, {tblA[0]}\ns_mov_b32 s{sA1}, {tblB[0]}")
        for w in range(1, 4):
            e(f"s_cmp_eq_u32 s{sW}, {w}\ns_cselect_b32 s{sA0}, {tblA[w]}, s{sA0}\ns_cselect_b32 s{sA1}, {tblB[w]}, s{sA1}")
        e(f"s_add_u32 s{sA0}, s{sA0}, s{sT0}\ns_add_u32 s{sA1}, s{sA1}, s{sT0}")
        e(f"s_lshl_b32 s{sA2}, s{sA0}, 15\ns_add_u32 s{sA2}, s{sA2}, {WF}\ns_lshl_b32 s{sA3}, s{sA1}, 15\ns_add_u32 s{sA3}, s{sA3}, {WF}")
    def g2_w_load(self, f0, f1):
        e = self.e; tok = None
        cur = None
        for f in range(f0, f1):
            st = 0 if f < 32 else 1; ks = f % 32
            grp = (st, ks // 4)
            if grp != cur:
                e(f"s_add_u32 s{sT7}, s{sA2 if st == 0 else sA3}, {(ks//4)*4096}"); cur = grp
            tok = self.ws_load(st * 128 + 4 * ks, f"s{sT7}", (ks % 4) * 1024, acc=True)
        return tok

    def outproj(self, g1, sO, sXdst, sSTdst, sHXdst, wl, side=None, final=False, staged=False):
        e = self.e
        tag = "g1" if g1 else "g3"
        on = getattr(self, "light", None) == tag
        if on: self.lstamp(0)
        toks = self.load_act_half(sO, self.AH)
        self.pair_addrs(wl)
        if staged:
            e(f"s_waitcnt vmcnt({self.AH})\ns_barrier")
        e.lg = []
        self.pair_prime()
        if on:
            e.wait_vm(toks[0]); self.lstamp(1)
        side = list(side or [])
        def take(n):
            for _ in range(n):
                if side: self.emit_item(side.pop(0))
        self.pair_mfma(toks, lambda t: take(1) if t >= 16 - self.AH else None)
        if on: self.lstamp(2)
        for d in range(8):
            e(f"v_lshlrev_b32 v{16+2*d}, 16, v{XR+d}\nv_and_b32 v{17+2*d}, 0xffff0000, v{XR+d}")
            if d % 2 == 1: take(1)
        self.reduce_pair(after_writes=lambda: take(4), after_reads=lambda: take(100))
        if on: self.lstamp(3)
        for d in range(8):
            e(f"v_pk_add_f32 v[{80+2*d}:{81+2*d}], v[{80+2*d}:{81+2*d}], v[{16+2*d}:{17+2*d}]")
        for d in range(8):
            e(f"v_cvt_pk_bf16_f32 v{XR+d}, v{80+2*d}, v{81+2*d}")
        if final:
            for c in range(2):
                e(f"v_permlane32_swap_b32 v{XR+4*c}, v{XR+4*c+2}\nv_permlane32_swap_b32 v{XR+4*c+1}, v{XR+4*c+3}")
            for c in range(2):
                e(f"buffer_store_dwordx4 v[{XR+4*c}:{XR+4*c+3}], v{vOUT}, s[{SRD_OUT}:{SRD_OUT+3}], s{sAD} offen offset:{32*c} {getattr(self, 'outflag', '')}")
            self.stamp("end")
            e("s_endpgm")
            return None
        tok = self.publish_x(sXdst, sSTdst, sHXdst)
        if on:
            self.lstamp(4); self.lflush(tag)
        return tok

    XL = 0; QB_ = 98304; KB_ = 106496; VB_ = 118784; TB = 131072
    CSA, CSB, CSN = 176, 192, 208
    BIAS, BH = 210, 226
    def g2_const_items(self):
        srd = f"s[{SRD_WS}:{SRD_WS+3}]"
        its = []
        for q in range(4): its.append(([], f"buffer_load_dwordx4 v[{self.CSA+4*q}:{self.CSA+4*q+3}], v{vCSH}, {srd}, s{sCSA} offen offset:{32*q} sc1", []))
        for q in range(4): its.append(([], f"buffer_load_dwordx4 v[{self.CSB+4*q}:{self.CSB+4*q+3}], v{vCSH}, {srd}, s{sCSB} offen offset:{32*q} sc1", []))
        its.append(([], f"buffer_load_dword v{self.CSN}, v{vCSN}, {srd}, s{sCSA} offen sc1", []))
        its.append(([], f"buffer_load_dword v{self.CSN+1}, v{vCSN}, {srd}, s{sCSB} offen sc1", []))
        return its
    def g2_masks(self):
        e = self.e
        e(f"s_lshl_b32 s{sCSA}, s{sA0}, 7\ns_add_u32 s{sCSA}, s{sCSA}, {CS}\ns_lshl_b32 s{sCSB}, s{sA1}, 7\ns_add_u32 s{sCSB}, s{sCSB}, {CS}")
        NEG = "0xff800000"
        e(f"v_and_b32 v18, 31, v{vL}\nv_lshrrev_b32 v19, 5, v{vL}\nv_lshlrev_b32 v19, 2, v19\nv_sub_u32 v18, v18, v19")
        e(f"v_mov_b32 v19, {NEG}")
        for r in range(16):
            kk = 8 * (r >> 2) + (r & 3)
            e(f"v_subrev_u32 v20, {kk}, v18\nv_cmp_ge_u32 vcc, 7, v20\nv_cndmask_b32 v{212+r}, v19, 0, vcc")
        e(f"s_cmp_eq_u32 s{sC}, 0\ns_cselect_b32 s{sT0}, -64, 0")
        for jj in range(4):
            e(f"s_add_u32 s{sT1}, s{sT0}, {jj-1}\nv_cmp_ge_i32 vcc, s{sT1}, v18\nv_cndmask_b32 v{232+jj}, v19, 0, vcc\nv_mov_b32 v{240+jj}, v{232+jj}")
            e(f"v_mov_b32 v{228+jj}, 0\nv_mov_b32 v{236+jj}, 0")

    def g2_addrs(self):
        e = self.e
        sXB, sHB, sSB = 88, 89, 90
        TB = self.TB
        e(f"s_lshl_b32 s{sXB}, s{sC}, 16\ns_add_u32 s{sXB}, s{sXB}, s{sXMID}")
        sHS = 92
        e(f"v_and_b32 v18, 31, v{vL}\nv_lshrrev_b32 v19, 5, v{vL}")
        e(f"s_lshl_b32 s{sSB}, s{sC}, 1\ns_and_b32 s{sT5}, s{sW}, 1\ns_add_u32 s{sSB}, s{sSB}, s{sT5}\ns_lshl_b32 s{sSB}, s{sSB}, 12\ns_add_u32 s{sSB}, s{sSB}, s{sSTMID}")
        e(f"v_lshlrev_b32 v20, 3, v18\nv_lshl_add_u32 v20, v19, 11, v20")
        e(f"s_lshl_b32 s{sHS}, s{sHC}, 13\ns_add_u32 s{sHS}, s{sHS}, s{sSTH}")
        e("v_and_b32 v22, 15, v18\nv_add_u32 v22, 16, v22\nv_lshlrev_b32 v22, 3, v22\nv_lshrrev_b32 v23, 4, v18\nv_lshl_add_u32 v22, v23, 12, v22\nv_lshl_add_u32 v22, v19, 11, v22")
        e(f"s_lshl_b32 s93, s{sHALF}, 12\ns_lshl_b32 s{sT1}, s{sHC}, 7\ns_add_u32 s93, s93, s{sT1}\ns_add_u32 s93, s93, {FL_H}\nv_and_b32 v23, 7, v{vL}\nv_lshlrev_b32 v23, 2, v23")
        e(f"s_lshl_b32 s{sHB}, s{sHC}, 15\ns_add_u32 s{sHB}, s{sHB}, s{sHX}")
        e(f"v_and_b32 v134, 31, v{vL}\nv_lshlrev_b32 v134, 2, v134\nv_add_u32 v134, {TB}, v134")
        e(f"v_lshrrev_b32 v135, 5, v{vL}\nv_lshlrev_b32 v135, 4, v135\nv_add_u32 v135, {TB}, v135")
        e(f"v_add_u32 v21, 0x10000, v{vL16}")
        e(f"s_lshl_b32 s{sAD}, s{sHALF}, 12\ns_lshl_b32 s{sT1}, s{sC}, 7\ns_add_u32 s{sAD}, s{sAD}, s{sT1}\ns_add_u32 s{sAD}, s{sAD}, {FL_H}")

    def g2(self):
        e = self.e
        XL, QB_, KB_, VB_, TB = self.XL, self.QB_, self.KB_, self.VB_, self.TB
        CSA, CSB, CSN = self.CSA, self.CSB, self.CSN
        def dma(soff, imm): return e.vmem(f"buffer_load_dwordx4 v{vL16}, s[{SRD_WS}:{SRD_WS+3}], {soff} offen offset:{imm} sc1 lds")
        sXB, sHB, sSB = 88, 89, 90
        def grp(blk, ks_mul, ks_add, n):
            its = []
            for t in range(n):
                pre = []
                if t == 0:
                    pre = [f"s_mul_i32 s{sT1}, s{sW}, {ks_mul*1024}", f"s_add_u32 s{sT1}, s{sT1}, {blk*32768 + ks_add*1024}",
                           f"s_mov_b32 m0, s{sT1}", f"s_add_u32 s{sT2}, s{sXB}, s{sT1}"]
                its.append((pre, f"buffer_load_dwordx4 v{vL16}, s[{SRD_WS}:{SRD_WS+3}], s{sT2} offen offset:{t*1024} sc1 lds", []))
            return its
        def grp2(ks_mul, ks_add, n):
            its = []
            for t in range(n):
                pre = []
                if t % 4 == 0:
                    pre = [f"s_mul_i32 s{sT1}, s{sKH}, {ks_mul*1024}", f"s_lshl_b32 s{sT2}, s{sP}, 15", f"s_add_u32 s{sT1}, s{sT1}, s{sT2}",
                           f"s_add_u32 s{sT1}, s{sT1}, {(ks_add + t)*1024}", f"s_mov_b32 m0, s{sT1}", f"s_add_u32 s{sT3}, s{sXB}, s{sT1}"]
                its.append((pre, f"buffer_load_dwordx4 v{vL16}, s[{SRD_WS}:{SRD_WS+3}], s{sT3} offen offset:{(t%4)*1024} sc1 lds", []))
            return its
        C0 = grp2(3, 0, 3); C1 = grp2(5, 6, 5); C2 = grp2(8, 16, 8)
        tok0 = None; tok1 = None
        for it in C0: tok0 = self.emit_item(it)
        for it in C1: tok1 = self.emit_item(it)
        sHS = 92
        statitems = [([], f"buffer_load_dwordx2 v[{144+2*t}:{145+2*t}], v20, s[{SRD_WS}:{SRD_WS+3}], s{sSB} offen offset:{t*256} sc1", []) for t in range(8)]
        hstat = lambda dst: [([], f"buffer_load_dwordx2 v[{dst+2*t}:{dst+1+2*t}], v22, s[{SRD_WS}:{SRD_WS+3}], s{sHS} offen offset:{t*256} sc1", []) for t in range(8)]
        haloitems = []
        for t in range(8):
            pre = []
            if t == 0: pre = [f"s_lshl_b32 s{sT1}, s{sW}, 13", f"s_add_u32 s{sT2}, s{sHB}, s{sT1}", f"s_add_u32 s{sT1}, s{sT1}, 65536", f"s_mov_b32 m0, s{sT1}", "s_nop 0"]
            if t == 4: pre = [f"s_lshl_b32 s{sT1}, s{sW}, 13", f"s_add_u32 s{sT1}, s{sT1}, 4096", f"s_add_u32 s{sT2}, s{sHB}, s{sT1}", f"s_add_u32 s{sT1}, s{sT1}, 65536", f"s_mov_b32 m0, s{sT1}", "s_nop 0"]
            haloitems.append((pre, f"buffer_load_dwordx4 v{vL16}, s[{SRD_WS}:{SRD_WS+3}], s{sT2} offen offset:{(t%4)*1024} sc1 lds", []))
        def wB_item(ks):
            return ([f"s_add_u32 s{sT7}, s{sA3}, {(ks//4)*4096}"], f"buffer_load_dwordx4 a[{128+4*ks}:{131+4*ks}], v{vL16}, s[{SRD_WS}:{SRD_WS+3}], s{sT7} offen offset:{(ks%4)*1024} sc1", [])
        ACC = [32, 48, 64, 80]
        def xread(dst, blk, ks):
            off = blk * 32768 + ks * 1024
            if off < 65536: return e.lds(f"ds_read_b128 v[{dst}:{dst+3}], v{vL16} offset:{off}")
            return e.lds(f"ds_read_b128 v[{dst}:{dst+3}], v21 offset:{off-65536}")
        def mm(acc, wset, ks, xreg, orient, first):
            wr = a(wset * 128 + 4 * ks, 4); xr = v(xreg, 4); c = "0" if first else v(acc, 16)
            if orient == "T": e(f"v_mfma_f32_32x32x16_bf16 {v(acc,16)}, {wr}, {xr}, {c}")
            else: e(f"v_mfma_f32_32x32x16_bf16 {v(acc,16)}, {xr}, {wr}, {c}")
        RN = 4
        def epi(acc, kind, blk, cbi, cset, tmp, pk=False):
            L = []
            if kind in ("q", "k"):
                cs = CSA if cset == 'A' else CSB
                rs, nm = 136 + 2 * blk, 137 + 2 * blk
                if kind == "q":
                    L += [f"v_mul_f32 v142, {fbits(QSCALE)}, v{rs}", f"v_mul_f32 v143, {fbits(QSCALE)}, v{nm}"]; rs, nm = 142, 143
                if pk:
                    L += [f"v_mov_b32 v128, v{rs}", f"v_mov_b32 v130, v{nm}"]
                    for r in range(0, 16, 2): L += [f"v_pk_mul_f32 v[{tmp+r}:{tmp+r+1}], v[{cs+r}:{cs+r+1}], v[130:131] op_sel_hi:[1,0]"]
                    for r in range(0, 16, 2): L += [f"v_pk_fma_f32 v[{tmp+r}:{tmp+r+1}], v[{acc+r}:{acc+r+1}], v[128:129], v[{tmp+r}:{tmp+r+1}] op_sel_hi:[1,0,1]"]
                else:
                    for r in range(16):
                        L += [f"v_mul_f32 v{tmp+r}, v{nm}, v{cs+r}", f"v_fmac_f32 v{tmp+r}, v{acc+r}, v{rs}"]
                src = tmp
                base = (QB_ if kind == "q" else KB_) + blk * 4096 + cbi * 2048
            else:
                csn = CSN if cset == 'A' else CSN + 1
                for q in range(4):
                    L += [f"ds_read_b128 v[{tmp+4*q}:{tmp+3+4*q}], v135 offset:{blk*256+32*q}", f"ds_read_b128 v[{tmp+16+4*q}:{tmp+19+4*q}], v135 offset:{blk*256+128+32*q}"]
                L += ["@wait"]
                if pk:
                    L += [f"v_mov_b32 v128, v{csn}"]
                    for r in range(0, 16, 2): L += [f"v_pk_mul_f32 v[{tmp+16+r}:{tmp+17+r}], v[{tmp+16+r}:{tmp+17+r}], v[128:129] op_sel_hi:[1,0]"]
                    for r in range(0, 16, 2): L += [f"v_pk_fma_f32 v[{tmp+16+r}:{tmp+17+r}], v[{acc+r}:{acc+r+1}], v[{tmp+r}:{tmp+r+1}], v[{tmp+16+r}:{tmp+17+r}]"]
                else:
                    for r in range(16):
                        L += [f"v_mul_f32 v{tmp+16+r}, v{tmp+16+r}, v{csn}", f"v_fmac_f32 v{tmp+16+r}, v{acc+r}, v{tmp+r}"]
                src = tmp + 16
                base = VB_ + blk * 4096 + cbi * 2048
            for d in range(8):
                L += [f"v_cvt_pk_bf16_f32 v{acc+d}, v{src+2*d}, v{src+2*d+1}"]
            L += [f"v_add_u32 v133, {base}, v{vL16}", f"ds_write_b128 v133, v[{acc}:{acc+3}]", f"ds_write_b128 v133, v[{acc+4}:{acc+7}] offset:1024"]
            return L
        class Fill:
            def __init__(s_, items): s_.items = list(items); s_.last = None
            def emit(s_, n=1):
                for _ in range(n):
                    if not s_.items: return
                    l = s_.items.pop(0)
                    if l == "@wait":
                        e.wait_lg(s_.last); continue
                    if l.startswith("ds_"): s_.last = e.lds(l)
                    else: e(l)
            def flush(s_): s_.emit(10**6)
        desc = {
            0: [("q", 0, 0, 'A'), ("q", 1, 0, 'A'), ("q", 0, 1, 'B'), ("q", 1, 1, 'B')],
            1: [("k", 0, 0, 'A'), ("k", 1, 0, 'A'), ("k", 2, 0, 'A'), ("k", 2, 1, 'B')],
            2: [("k", 0, 1, 'A'), ("k", 1, 1, 'A'), ("v", 0, 0, 'B'), ("v", 1, 0, 'B')],
            3: [("v", 0, 1, 'A'), ("v", 1, 1, 'A'), ("v", 2, 1, 'A'), ("v", 2, 0, 'B')],
        }
        units = {
            0: [(ACC[0], 0, 0, "T"), (ACC[1], 0, 1, "T"), (ACC[2], 1, 0, "T"), (ACC[3], 1, 1, "T")],
            1: [(ACC[0], 0, 0, "T"), (ACC[1], 0, 1, "T"), (ACC[2], 0, 0, "T"), (ACC[3], 1, 0, "T")],
            2: [(ACC[0], 0, 0, "T"), (ACC[1], 0, 1, "T"), (ACC[2], 1, 0, "N"), (ACC[3], 1, 1, "N")],
            3: [(ACC[0], 0, 0, "N"), (ACC[1], 0, 1, "N"), (ACC[2], 0, 0, "N"), (ACC[3], 1, 0, "N")],
        }
        labs = [e.newlabel(f"G2W{w}") for w in range(4)]; Lgd = e.newlabel("G2GD")
        Lhf = e.newlabel("HF"); Lhf2 = e.newlabel("HF2")
        e(f"s_cmp_lg_u32 s{sW}, 0\ns_cbranch_scc1 {Lhf}")
        e(f"s_mov_b64 exec, 1\nbuffer_store_dword v{vFT}, v{vFA}, s[{SRD_WS}:{SRD_WS+3}], s{sAD} offen sc1\ns_mov_b64 exec, -1")
        e(f"s_waitcnt vmcnt(6)\ns_branch {Lhf2}")
        e.label(Lhf)
        e.wait_vm(tok0)
        e.label(Lhf2)
        e("s_barrier")
        self.stamp("g2A")
        vmA = list(e.vm)
        for w in range(1, 4):
            e(f"s_cmp_eq_u32 s{sW}, {w}\ns_cbranch_scc1 {labs[w]}")
        vm_end = None
        for w in range(4):
            e.label(labs[w]); e.lg = []; e.vm = list(vmA)
            if w == 0: e.vm.append(-77)
            U = units[w]; d = desc[w]
            if w in (0, 2):
                steps = [([0, 1], ks, [0, 1, 2, 3]) for ks in range(16)] + [([0, 1], ks, [0, 1]) for ks in range(16, 32)] + [([0, 1], ks, [2, 3]) for ks in range(16, 32)]
            else:
                steps = [([0, 1], ks, [0, 1]) for ks in range(32)] + [([2], ks, [2, 3]) for ks in range(32)]
            cnt0 = []; c_ = 0
            for (b_, k_, u_) in steps: cnt0.append(c_); c_ += len(u_)
            B1, B2, BC = 10, 30, 62
            def avail(step_idx, count):
                blks, ks, _ = steps[step_idx]
                if blks == [2]: return count >= BC
                if ks >= 16: return count >= B2
                if ks >= 6: return count >= B1
                return True
            side = {}
            def put(c, it): side.setdefault(c, []).append(it)
            named = {}
            for i, it in enumerate(C2): put(2 * i, ("vm", f"C2_{i}", it))
            wBneed = {}
            if w in (0, 2):
                lo = {10: 17, 11: 22, 12: 27, 13: 28, 14: 31, 15: 35} if w == 0 else {10: 17, 11: 20, 12: 23, 13: 26, 14: 31, 15: 35}
                for ks, c in lo.items(): put(c, ("vm", f"wB{ks}", wB_item(ks)))
                for i, ks in enumerate(range(16, 32)): put(46 + 2 * i, ("vm", f"wB{ks}", wB_item(ks)))
            else:
                for i, ks in enumerate(range(10, 16)): put(46 + 2 * i, ("vm", f"wB{ks}", wB_item(ks)))
                for i, ks in enumerate(range(16, 32)): put(58 + 2 * i, ("vm", f"wB{ks}", wB_item(ks)))
                for i, it in enumerate(hstat(160 if w == 1 else 176)): put(65 + 2 * i, ("vm", f"hs{i}", it))
            if w == 0:
                put(18, ("vm", "poll", ([], f"buffer_load_dword v24, v23, s[{SRD_WS}:{SRD_WS+3}], s93 offen sc1", [])))
                for i, c in enumerate((18, 19, 20, 21, 23, 24, 25, 26)): put(c, ("vm", f"st{i}", statitems[i]))
            if w == 1:
                for i in range(8): put(16 + i, ("vm", f"st{i}", statitems[i]))
            for i, it in enumerate(haloitems): put(30 + 2 * i, ("vm", f"halo{i}", it))
            stfill = None
            if w < 2:
                sub = Emitter(); old = self.e; self.e = sub
                self.stats_finish(144, 130, 131)
                sub(f"v_mul_f32 v130, v130, v131\nv_sub_f32 v130, 0, v130\nv_cmp_gt_u32 vcc, 32, v{vL}\ns_nop 1\nv_cndmask_b32 v130, v130, v131, vcc")
                sub(f"v_add_u32 v131, {TB + w*256}, v{vL4}\nds_write_b32 v131, v130")
                self.e = old
                stfill = Fill([l.strip() for l in sub.lines])
            f12 = None
            fstart = 98 if w in (0, 2) else 67
            hfill = None
            xt = {}
            ringslot = lambda si, b: 96 + ((si % RN) * 2 + b) * 4
            count = 0
            def do_barrier(c):
                if c == B1: e.wait_vm(tok1); e("s_barrier")
                if c == B2:
                    if w == 0:
                        Lok = e.newlabel("HOK"); Lp = e.newlabel("HPOLL")
                        e.wait_vm(named["poll"])
                        e(f"v_cmp_ne_u32 vcc, s{sTAG}, v24\ns_cbranch_vccz {Lok}")
                        saved = list(e.vm)
                        e(f"s_mov_b32 s{sPOLL}, 0")
                        e.label(Lp)
                        e(f"buffer_load_dword v24, v23, s[{SRD_WS}:{SRD_WS+3}], s93 offen sc1\ns_waitcnt vmcnt(0)\nv_cmp_ne_u32 vcc, s{sTAG}, v24\ns_cbranch_vccz {Lok}")
                        e(f"s_add_u32 s{sPOLL}, s{sPOLL}, 1\ns_cmp_lt_u32 s{sPOLL}, 400000\ns_cbranch_scc1 {Lp}\ns_branch L_END")
                        e.label(Lok)
                        e.vm = saved
                    e.wait_vm(named["C2_7"]); e("s_barrier")
                if c == BC:
                    if stfill: stfill.flush()
                    if w == 0: self.stamp("g2p1")
                    e.wait_vm(named["halo7"]); e("s_waitcnt lgkmcnt(0)\ns_barrier"); e.lg = []
                    for blk in range(2):
                        e.lds(f"ds_read_b32 v{136+2*blk}, v134 offset:{blk*256}"); named["tb"] = e.lds(f"ds_read_b32 v{137+2*blk}, v134 offset:{blk*256+128}")
            for si, (blks, ks, us) in enumerate(steps):
                for ui_i, ui in enumerate(us):
                    if count in (B1, B2, BC): do_barrier(count)
                    if ui_i == 0:
                        for sj in range(si, min(si + RN, len(steps))):
                            if sj not in xt and avail(sj, count):
                                bl, kk, _ = steps[sj]
                                t_ = None
                                for b, blk in enumerate(bl): t_ = xread(ringslot(sj, b), blk, kk)
                                xt[sj] = t_
                        e.wait_lg(xt[si])
                    acc, wset, b, orient = U[ui]
                    if wset == 1 and f"wB{ks}" in named: e.wait_vm(named[f"wB{ks}"])
                    first = (ks == 0)
                    mm(acc, wset, ks, ringslot(si, b), orient, first)
                    for kind, nm_, it in side.get(count, []): named[nm_] = self.emit_item(it)
                    if stfill and 46 <= count < BC:
                        if count == 46: e.wait_vm(named["st7"])
                        stfill.emit(3)
                    if count == fstart - 1:
                        e.wait_lg(named["tb"])
                        f12 = Fill(epi(ACC[0], *d[0], 144) + epi(ACC[1], *d[1], 144))
                    if f12 and count >= fstart:
                        f12.emit(4 if w in (0, 2) else 3)
                        if w in (1, 3) and not f12.items:
                            if hfill is None:
                                e.wait_vm(named["hs7"])
                                sub = Emitter(); old_ = self.e; self.e = sub
                                self.stats_finish(160 if w == 1 else 176, 130, 131)
                                sub("v_mul_f32 v130, v130, v131\nv_sub_f32 v130, 0, v130")
                                if w == 1:
                                    sub("v_mov_b32 v140, v131\nv_mov_b32 v141, v130")
                                else:
                                    sub(f"v_cmp_gt_u32 vcc, 32, v{vL}\ns_nop 1\nv_cndmask_b32 v130, v130, v131, vcc\nv_add_u32 v131, {TB + 2*256}, v{vL4}\nds_write_b32 v131, v130")
                                self.e = old_
                                hfill = Fill([l.strip() for l in sub.lines])
                            hfill.emit(3)
                    count += 1
            if f12: f12.flush()
            if hfill: hfill.flush()
            if w == 3:
                e("s_waitcnt lgkmcnt(0)"); e.lg = []
            if w == 0: self.stamp("g2p2")
            Fill(epi(ACC[2], *d[2], 144, pk=True)).flush()
            Fill(epi(ACC[3], *d[3], 96, pk=True)).flush()
            vm_end = list(e.vm)
            if w < 3: e(f"s_branch {Lgd}")
        e.label(Lgd)
        e.vm = vm_end
        e("s_waitcnt lgkmcnt(0)\ns_barrier")
        e.lg = []
        self.stamp("g2gemm")
        e(f"s_lshl_b32 s{sT0}, s{sW}, 10\ns_add_u32 s{sT0}, s{sT0}, {QB_}\nv_add_u32 v20, s{sT0}, v{vL16}")
        e(f"s_lshr_b32 s{sT1}, s{sW}, 1\ns_lshl_b32 s{sT1}, s{sT1}, 11\ns_add_u32 s{sT1}, s{sT1}, {VB_}\nv_add_u32 v21, s{sT1}, v{vL16}")
        Q = [32, 36]; Kf = [40, 44, 48]; V = {(0, 0): 52, (0, 1): 56, (1, 0): 60, (1, 1): 64, (2, 0): 68, (2, 1): 72}
        e(f"ds_read_b128 v[{Kf[2]}:{Kf[2]+3}], v20 offset:{(KB_-QB_)+2*4096}")
        for p in range(2):
            e(f"ds_read_b128 v[{Q[p]}:{Q[p]+3}], v20 offset:{p*4096}\nds_read_b128 v[{Kf[p]}:{Kf[p]+3}], v20 offset:{(KB_-QB_)+p*4096}")
        for (b, c), r in V.items(): e(f"ds_read_b128 v[{r}:{r+3}], v21 offset:{b*4096+c*1024}")
        e(f"s_lshl_b32 s{sT0}, s{sJ}, 2\ns_add_u32 s{sT0}, s{sT0}, s{sW}\ns_lshl_b32 s{sT0}, s{sT0}, 10")
        e(f"s_lshl_b32 s{sT1}, s{sC}, 16\ns_add_u32 s{sT0}, s{sT0}, s{sT1}\ns_add_u32 s{sT0}, s{sT0}, s{sOB}\ns_add_u32 s{sT1}, s{sT0}, 32768")
        So = [80, 96]; Sh = [112, 128]; Oo = [144, 160]
        setup, g3items = self.wpair_dma_list(WB_OB, self.WL0, sA4, sA5)
        e(f"s_mov_b32 s88, s{sT0}\ns_mov_b32 s89, s{sT1}")
        for x in setup: e(x)
        def g3dma(n):
            for _ in range(n):
                if g3items: self.emit_item(g3items.pop(0))
        g3dma(5)
        e("s_waitcnt lgkmcnt(8)")
        e(f"v_mfma_f32_32x32x16_bf16 {v(So[0],16)}, {v(Kf[0],4)}, {v(Q[0],4)}, v[212:227]")
        e(f"v_mfma_f32_32x32x16_bf16 {v(Sh[0],16)}, {v(Kf[2],4)}, {v(Q[0],4)}, v[228:243]")
        e("s_waitcnt lgkmcnt(6)")
        e(f"v_mfma_f32_32x32x16_bf16 {v(So[1],16)}, {v(Kf[1],4)}, {v(Q[1],4)}, v[212:227]")
        e(f"v_mfma_f32_32x32x16_bf16 {v(Sh[1],16)}, {v(Kf[2],4)}, {v(Q[1],4)}, v[228:243]")
        g3dma(3)
        e("v_mov_b32 v26, 0x3f803f80")
        vals = [[So[p] + r for r in range(16)] + [Sh[p] + 4 * (2 * p + 1) + jj for jj in range(4)] for p in range(2)]
        mx = [22, 24]; tm = [23, 25]
        PP = [176, 192]
        for p in range(2):
            vl = vals[p]
            e(f"v_max3_f32 v{mx[p]}, v{vl[0]}, v{vl[1]}, v{vl[2]}")
            i = 3
            while i < 20:
                if i + 1 < 20: e(f"v_max3_f32 v{mx[p]}, v{mx[p]}, v{vl[i]}, v{vl[i+1]}"); i += 2
                else: e(f"v_max_f32 v{mx[p]}, v{mx[p]}, v{vl[i]}"); i += 1
        for p in range(2): e(f"v_mov_b32 v{tm[p]}, v{mx[p]}")
        for p in range(2): e(f"v_permlane32_swap_b32 v{mx[p]}, v{tm[p]}")
        for p in range(2): e(f"v_max_f32 v{mx[p]}, v{mx[p]}, v{tm[p]}")
        for p in range(2):
            for x in vals[p][::2]:
                e(f"v_pk_add_f32 v[{x}:{x+1}], v[{x}:{x+1}], v[{mx[p]}:{mx[p]+1}] op_sel_hi:[1,0] neg_lo:[0,1] neg_hi:[0,1]")
        for p in range(2):
            for i_, x in enumerate(vals[p]):
                e(f"v_exp_f32 v{x}, v{x}")
                if i_ % 5 == 4: g3dma(1)
            S_ = So[p]; H_ = vals[p][16]; Pp = PP[p]
            e(f"v_mov_b32 v{Pp+8}, 0\nv_mov_b32 v{Pp+9}, 0")
            for d in range(8): e(f"v_cvt_pk_bf16_f32 v{Pp+d}, v{S_+2*d}, v{S_+2*d+1}")
            e(f"v_cvt_pk_bf16_f32 v{Pp+10}, v{H_}, v{H_+1}\nv_cvt_pk_bf16_f32 v{Pp+11}, v{H_+2}, v{H_+3}")
            e(f"v_mov_b32 v{mx[p]}, 0\nv_mov_b32 v{tm[p]}, 0")
            for k_, d in enumerate(list(range(8)) + [10, 11]): e(f"v_dot2c_f32_bf16 v{mx[p] if k_ % 2 == 0 else tm[p]}, v26, v{Pp+d}")
            O_ = Oo[p]
            if p == 0: e("s_waitcnt lgkmcnt(0)")
            e(f"v_mfma_f32_32x32x16_bf16 {v(O_,16)}, {v(V[(p,0)],4)}, {v(Pp,4)}, 0")
            e(f"v_mfma_f32_32x32x16_bf16 {v(O_,16)}, {v(V[(p,1)],4)}, {v(Pp+4,4)}, {v(O_,16)}")
            e(f"v_mfma_f32_32x32x16_bf16 {v(O_,16)}, {v(V[(2,p)],4)}, {v(Pp+8,4)}, {v(O_,16)}")
        for p in range(2): e(f"v_add_f32 v{mx[p]}, v{mx[p]}, v{tm[p]}")
        for p in range(2): e(f"v_mov_b32 v{tm[p]}, v{mx[p]}")
        for p in range(2): e(f"v_permlane32_swap_b32 v{mx[p]}, v{tm[p]}")
        for p in range(2): e(f"v_add_f32 v{mx[p]}, v{mx[p]}, v{tm[p]}")
        for p in range(2): e(f"v_rcp_f32 v{mx[p]}, v{mx[p]}")
        Lodd = e.newlabel("ODD"); Ldone = e.newlabel("ODDD")
        e(f"s_bitcmp1_b32 s{sW}, 0\ns_cbranch_scc1 {Lodd}")
        for half in range(2):
            if half == 1: e.label(Lodd)
            for p in range(2):
                b0 = Oo[p] + 8 * half
                for r in range(0, 8, 2): e(f"v_pk_mul_f32 v[{b0+r}:{b0+r+1}], v[{b0+r}:{b0+r+1}], v[{mx[p]}:{mx[p]+1}] op_sel_hi:[1,0]")
                for d in range(4): e(f"v_cvt_pk_bf16_f32 v{28+4*p+d}, v{b0+2*d}, v{b0+2*d+1}")
            if half == 0: e(f"s_branch {Ldone}")
        e.label(Ldone)
        tok = self.moded(lambda fl: (self.ws_store(28, "s88", 0, flag=fl), self.ws_store(32, "s89", 0, flag=fl))[1])
        g3dma(16)
        return tok

    def build(self):
        e = self.e
        self.prologue()
        self.stamp("start")
        def stop(name):
            if self.stop_after == name:
                e("s_waitcnt vmcnt(0) lgkmcnt(0)\ns_endpgm")
                return True
            return False
        self.half_setup()
        self.first_phase()
        self.sync_consts()
        self.stamp("fdone")
        e.label("L_ATT")
        tok = self.attention()
        self.stamp("attdone")
        if stop("att"): return self.finish()
        self.sync_cluster(0, tok=tok, window=lambda: self.g2_masks(), pre_barrier=lambda: e("s_waitcnt lgkmcnt(0)"), post_barrier=self.fallback_check)
        self.stamp("c0")
        def wB_it(ks):
            return ([f"s_add_u32 s{sT7}, s{sA3}, {(ks//4)*4096}"], f"buffer_load_dwordx4 a[{128+4*ks}:{131+4*ks}], v{vL16}, s[{SRD_WS}:{SRD_WS+3}], s{sT7} offen offset:{(ks%4)*1024} sc1", [])
        tok = self.outproj(True, sOA, sXMID, sSTMID, sHX, self.WL1, side=[wB_it(ks) for ks in range(10)] + self.g2_const_items())
        self.stamp("g1done")
        if stop("g1"): return self.finish()
        self.sync_cluster(1, tok=tok, window=lambda: self.g2_addrs(), drain=True)
        e.reset_counters()
        self.stamp("c1")
        tok = self.g2()
        self.stamp("g2done")
        if stop("g2"): return self.finish()
        Lh0 = e.newlabel("NOTLAST")
        e(f"s_cmp_eq_u32 s{sHALF}, 0\ns_cbranch_scc1 {Lh0}")
        saved_vm = list(e.vm)
        def out_addr():
            e(f"v_and_b32 v{vOUT}, 31, v{vL}\nv_lshlrev_b32 v{vOUT}, 11, v{vOUT}\nv_lshrrev_b32 v18, 5, v{vL}\nv_lshl_add_u32 v{vOUT}, v18, 4, v{vOUT}")
            e(f"s_lshl_b32 s{sAD}, s{sC}, 6\ns_add_u32 s{sAD}, s{sAD}, s{sP}\ns_lshl_b32 s{sAD}, s{sAD}, 10\ns_lshl_b32 s{sT1}, s{sNB}, 6\ns_add_u32 s{sAD}, s{sAD}, s{sT1}")
        self.sync_cluster(2, tok=tok, window=out_addr, drain=True)
        e.reset_counters()
        self.stamp("c2")
        self.outproj(False, sOB, None, None, None, self.WL0, final=True)
        e.label(Lh0)
        e.vm = saved_vm
        self.nstamp -= 2; self.stampnames = self.stampnames[:-2] if self.stamps else []
        self.sync_cluster(2, tok=tok, window=lambda: (self.g4_prefetch_cs(), self.g4_prefetch_kv()), drain=True)
        e.reset_counters()
        self.stamp("c2")
        setup, qitems = self.wpair_dma_list(WB_Q, self.WL1, sA4, sA5)
        for x in setup: e(x)
        tok = self.outproj(False, sOB, sXOUT, sSTOUT, None, self.WL0, side=qitems)
        self.nstamp += 1
        if self.stamps: self.stampnames.append("end")
        self.stamp("g3done")
        if stop("g3"): return self.finish()
        self.sync_cluster(3, tok=tok, drain=True)
        e.reset_counters()
        self.stamp("c3")
        e(f"s_mov_b32 s{sHALF}, 1")
        self.half_setup()
        self.alias_setup()
        self.g4()
        self.stamp("g4done")
        e("s_branch L_ATT")
        self.fallback()
        return self.finish()

    def finish(self):
        e = self.e
        e.label("L_END")
        e("s_endpgm")
        e.label("L_CODE_END")
        lines, n = fix_hazards(e.lines)
        hdr = open('cdna_kernels/' + NAME + '.s.ref').read().split("\n")
        head = [l for l in hdr if l.startswith(";") and "@launch" not in l and "Override launch" not in l and "grid=ceil" not in l]
        out = head + ["; @launch grid=(256,1,1) block=(256,1,1) lds=163840"]
        out += ['.amdgcn_target "amdgcn-amd-amdhsa--gfx950"', ".text", f".globl {KN}", ".p2align 8", f".type {KN},@function", f"{KN}:"]
        out += lines
        out += ['.section .rodata,"a"', ".p2align 6", f".amdhsa_kernel {KN}",
                "  .amdhsa_next_free_vgpr 512", "  .amdhsa_next_free_sgpr 102", "  .amdhsa_accum_offset 256",
                "  .amdhsa_group_segment_fixed_size 0", "  .amdhsa_kernarg_size 88", "  .amdhsa_user_sgpr_count 2",
                "  .amdhsa_user_sgpr_kernarg_segment_ptr 1", "  .amdhsa_system_sgpr_workgroup_id_x 1", ".end_amdhsa_kernel", ""]
        self.nops = n
        return "\n".join(out)

if __name__ == "__main__":
    import argparse
    ap = argparse.ArgumentParser()
    ap.add_argument("-o", default="k.s")
    ap.add_argument("--stop", default=None)
    ap.add_argument("--stamps", action="store_true")
    ap.add_argument("--attvar", default="")
    ap.add_argument("--light", default=None)
    ap.add_argument("--safe", action="store_true")
    ap.add_argument("--nopf", action="store_true")
    ap.add_argument("--outflag", default="")
    ap.add_argument("--noalias", action="store_true")
    ap.add_argument("--ah", type=int, default=8)
    ap.add_argument("--pp", action="store_true")
    ap.add_argument("--tlbtouch", action="store_true")
    ap.add_argument("--attperm", action="store_true")
    ap.add_argument("--dbgstamps", action="store_true")
    ap.add_argument("--prepmap", type=int, default=0)
    ap.add_argument("--nopretouch", action="store_true")
    args = ap.parse_args()
    g = Gen(stop_after=args.stop, stamps=args.stamps)
    g.attvar = args.attvar
    g.light = args.light
    g.force_safe = args.safe
    g.nopf = args.nopf
    g.outflag = args.outflag
    g.noalias = args.noalias
    g.AH = args.ah
    g.pp = args.pp
    g.tlbtouch = args.tlbtouch
    g.attperm = args.attperm
    g.dbgstamps = args.dbgstamps
    g.prepmap = args.prepmap
    g.nopretouch = args.nopretouch
    txt = g.build()
    open(args.o, "w").write(txt)
    print("wrote", args.o, "lines", txt.count("\n"), "nop states", g.nops)
    if args.stamps: print(g.stampnames)
```

```python
import sys
from asmlib import *

NAME = 'interleave_layers__grouped_kv_mqa__sliding_local_dilated__prompt'
KN = NAME + '_kernel'

FL_C   = 0x10000
FL_G0  = 0x18000
FL_GK  = 0x1A000
FL_XW  = 0x1C000
FL_H   = 0x20000
DBG    = 0x40000
WF     = 0x100000
CS     = 0x480000
X0     = 0x500000
OA     = 0xD00000
OB     = 0x1100000
HX     = 0x1500000
ST0    = 0x1700000
KF     = 0x1800000
VT_STRIDE = 1088
STH    = 0x1A00000
WS_BYTES = 0x10000000
MODEADDR = 163832
WB_Q, WB_KV, WB_OA, WB_BQ, WB_BK, WB_BV, WB_OB = 0, 16, 17, 33, 49, 65, 81

LOG2E = 1.4426950408889634
QSCALE = 0.25 * LOG2E
import struct
def fbits(x): return "0x%08x" % struct.unpack("<I", struct.pack("<f", x))[0]

sG = 2
SRD_WS = 4
SRD_T  = 8
SRD_OUT = 12
sC, sJ, sW, sP, sKH, sTAG, sHALF, sHC = 16, 17, 18, 19, 20, 21, 22, 23
sRBOFF = 24
sSTOFF = 25
sRB    = 26
sNB    = 27
sXIN, sXMID, sXOUT = 28, 29, 30
sSTIN, sSTMID, sSTOUT = 31, 32, 33
sOA, sOB, sHX, sKF = 34, 35, 36, 37
sFLC = 38
sT0, sT1, sT2, sT3, sT4, sT5, sT6, sT7 = 40, 41, 42, 43, 44, 45, 46, 47
sM0, sM1 = 48, 50
sPOLL = 52
sTS = 54
sIN = 64
sOUTP = 80
sLOOP = 56
sA0, sA1, sA2, sA3 = 57, 58, 59, 60
sFA = 61
sA4, sA5 = 62, 63
sACT = 91
sRANK = 100
sPERM = 97
sDBGP = 98
sAD = 96
sCSA, sCSB = 94, 95
sFB = 101
sBAD = 48
sPFB = 86
sMODE = 39
sSTH = 53

vTID, vL, vL16, vL4 = 0, 1, 2, 3
XR = 4
vSTAT = 12
vHALO = 13
vT0, vT1 = 14, 15
vFA, vFT, vPA, vPD = 244, 245, 246, 247
vOUT = 250
vCSH, vCSN = 248, 249
vWK, vWS = 254, 255

LS = [64, 66, 76, 78, 80, 84, 56, 58]
class Gen:
    AH = 8
    def __init__(self, stop_after=None, stamps=False, safe=True):
        self.e = Emitter()
        self.stop_after = stop_after
        self.stamps = stamps
        self.st = "sc1"
        self.ld = "sc1"
        self.nstamp = 0

    def stamp(self, name):
        if getattr(self, "dbgstamps", False):
            names = ["start", "att_kv", "att_loopend", "c3", "end"]
            if name not in names: return
            e = self.e
            k = names.index(name)
            L = e.newlabel("DST")
            e(f"s_cmp_lg_u32 s{sW}, 0\ns_cbranch_scc1 {L}\ns_and_b32 s{sT6}, s{sG}, 0xfb\ns_cmp_lg_u32 s{sT6}, 0\ns_cbranch_scc1 {L}")
            base = {"start": 0, "att_kv": 1, "att_loopend": 3, "c3": 5, "end": 6}[name]
            e(f"s_memrealtime s[84:85]\ns_waitcnt lgkmcnt(0)")
            e(f"s_lshl_b32 s{sT6}, s{sG}, 3")
            if name in ("att_kv", "att_loopend"): e(f"s_lshl_b32 s{sT7}, s{sHALF}, 2\ns_add_u32 s{sT6}, s{sT6}, s{sT7}")
            e(f"s_add_u32 s{sT6}, s{sT6}, {base*4}")
            e(f"s_mov_b32 s{SRD_T}, s82\ns_mov_b32 s{SRD_T+1}, s83\ns_mov_b32 s{SRD_T+2}, 256\ns_mov_b32 s{SRD_T+3}, 0x20000")
            e(f"v_mov_b32 v{vT0}, s84\nv_mov_b32 v{vT1}, 0\ns_mov_b64 exec, 1\nbuffer_store_dword v{vT0}, v{vT1}, s[{SRD_T}:{SRD_T+3}], s{sT6} offen")
            if name == "start": e(f"v_mov_b32 v{vT0}, s36\nbuffer_store_dword v{vT0}, v{vT1}, s[{SRD_T}:{SRD_T+3}], s{sT6} offen offset:28")
            e("s_mov_b64 exec, -1")
            e.label(L)
            return
        if not self.stamps: return
        e = self.e
        idx = self.nstamp; self.nstamp += 1
        L = e.newlabel("STAMP")
        e(f"s_cmp_lg_u32 s{sW}, 0\ns_cbranch_scc1 {L}")
        e(f"s_memrealtime s[{sTS}:{sTS+1}]\ns_memtime s[50:51]\ns_waitcnt lgkmcnt(0)")
        e(f"s_lshl_b32 s{sT7}, s{sG}, 9\ns_add_u32 s{sT7}, s{sT7}, {DBG}\ns_mul_i32 s{sT6}, s{sHALF}, 256\ns_add_u32 s{sT7}, s{sT7}, s{sT6}")
        e(f"v_mov_b32 v{vT0}, s{sTS}\nv_mov_b32 v{vT1}, 0")
        e(f"s_mov_b64 exec, 1\nbuffer_store_dword v{vT0}, v{vT1}, s[{SRD_WS}:{SRD_WS+3}], s{sT7} offen offset:{(idx % 32) * 4}")
        e(f"v_mov_b32 v{vT0}, s50\nbuffer_store_dword v{vT0}, v{vT1}, s[{SRD_WS}:{SRD_WS+3}], s{sT7} offen offset:{128 + (idx % 32) * 4}\ns_mov_b64 exec, -1")
        e.label(L)
        self.stampnames = getattr(self, "stampnames", []) + [name]

    def lstamp(self, k):
        if self.stamps and getattr(self, "light", None): self.e(f"s_memtime s[{LS[k]}:{LS[k]+1}]")
    def lflush(self, name):
        if not (self.stamps and getattr(self, "light", None) == name): return
        e = self.e
        L = e.newlabel("LST")
        e(f"s_cmp_lg_u32 s{sW}, 0\ns_cbranch_scc1 {L}\ns_waitcnt lgkmcnt(0)")
        e(f"s_lshl_b32 s{sT7}, s{sG}, 6\ns_add_u32 s{sT7}, s{sT7}, 0x60000\ns_lshl_b32 s{sT6}, s{sHALF}, 5\ns_add_u32 s{sT7}, s{sT7}, s{sT6}")
        e(f"v_mov_b32 v{vT1}, 0\ns_mov_b64 exec, 1")
        for k in range(8):
            e(f"v_mov_b32 v{vT0}, s{LS[k]}\nbuffer_store_dword v{vT0}, v{vT1}, s[{SRD_WS}:{SRD_WS+3}], s{sT7} offen offset:{4*k}")
        e("s_mov_b64 exec, -1")
        e.label(L)

    def ws_load(self, dst, soff, imm=0, voff=vL16, n=4, flag=None, acc=False):
        flag = self.ld if flag is None else flag
        mn = {1: "buffer_load_dword", 2: "buffer_load_dwordx2", 4: "buffer_load_dwordx4"}[n]
        d = a(dst, n) if acc else v(dst, n)
        return self.e.vmem(f"{mn} {d}, v{voff}, s[{SRD_WS}:{SRD_WS+3}], {soff} offen offset:{imm} {flag}")
    def ws_store(self, src, soff, imm=0, voff=vL16, n=4, flag=None):
        flag = self.st if flag is None else flag
        mn = {1: "buffer_store_dword", 2: "buffer_store_dwordx2", 4: "buffer_store_dwordx4"}[n]
        return self.e.vmem(f"{mn} {v(src, n)}, v{voff}, s[{SRD_WS}:{SRD_WS+3}], {soff} offen offset:{imm} {flag}")

    def moded(self, fn):
        e = self.e
        Lf = e.newlabel("FAST"); Ld = e.newlabel("MDONE")
        e(f"s_cmp_eq_u32 s{sMODE}, 1\ns_cbranch_scc1 {Lf}")
        saved = list(e.vm); nt = e.ntok
        fn("sc1")
        e(f"s_branch {Ld}")
        e.label(Lf)
        e.vm = saved; e.ntok = nt
        r = fn("")
        e.label(Ld)
        return r

    def load_frags(self, dst, sbase, nfr, acc=False, flag=None, stmp=sT7):
        e = self.e; toks = []
        for t in range(nfr):
            if t % 4 == 0:
                if t == 0: so = f"s{sbase}"
                else:
                    e(f"s_add_u32 s{stmp}, s{sbase}, {t*1024}"); so = f"s{stmp}"
            toks.append(self.ws_load(dst + 4 * t, so, (t % 4) * 1024, acc=acc, flag=flag))
        return toks

    def poll(self, kind, setup):
        e = self.e
        Lp = e.newlabel("POLL"); Lok = e.newlabel("POLLOK")
        e(f"s_mov_b32 s{sPOLL}, 0")
        e.label(Lp)
        setup()
        e(f"s_cbranch_vccz {Lok}")
        e(f"s_add_u32 s{sPOLL}, s{sPOLL}, 1\ns_cmp_lt_u32 s{sPOLL}, 400000\ns_cbranch_scc1 {Lp}")
        e("s_branch L_END")
        e.label(Lok)

    def poll2(self, vaddr, soff):
        e = self.e
        Lp = e.newlabel("POLL"); Lok = e.newlabel("POLLOK")
        ld = lambda r: e(f"buffer_load_dword v{r}, v{vaddr}, s[{SRD_WS}:{SRD_WS+3}], {soff} offen sc1")
        e(f"s_mov_b32 s{sPOLL}, 0")
        ld(17); e("s_nop 15\ns_nop 15\ns_nop 15"); ld(18); e("s_nop 15\ns_nop 15\ns_nop 15"); ld(19)
        e.label(Lp)
        for r in (17, 18, 19):
            e(f"s_waitcnt vmcnt(2)\nv_cmp_ne_u32 vcc, s{sTAG}, v{r}\ns_cbranch_vccz {Lok}")
            ld(r)
        e(f"s_add_u32 s{sPOLL}, s{sPOLL}, 1\ns_cmp_lt_u32 s{sPOLL}, 150000\ns_cbranch_scc1 {Lp}")
        e("s_branch L_END")
        e.label(Lok)

    def sync_consts(self):
        e = self.e
        e(f"s_lshl_b32 s{sT1}, s{sJ}, 2\nv_mov_b32 v{vFA}, s{sT1}\nv_mov_b32 v{vFT}, s{sTAG}\nv_and_b32 v{vPA}, 7, v{vL}\nv_lshlrev_b32 v{vPA}, 2, v{vPA}")
        e(f"v_lshrrev_b32 v{vCSH}, 5, v{vL}\nv_lshlrev_b32 v{vCSH}, 4, v{vCSH}\nv_and_b32 v{vCSN}, 31, v{vL}\nv_lshlrev_b32 v{vCSN}, 2, v{vCSN}")

    def sync_cluster(self, sid, tok=None, pre_barrier=None, window=None, drain=False, halo_flag=False, post_barrier=None):
        e = self.e
        e(f"s_lshl_b32 s{sFA}, s{sC}, 7\ns_add_u32 s{sFA}, s{sFA}, s{sFLC}\ns_add_u32 s{sFA}, s{sFA}, {sid*4096}")
        if halo_flag:
            e(f"s_lshl_b32 s{sAD}, s{sHALF}, 12\ns_lshl_b32 s{sT1}, s{sC}, 7\ns_add_u32 s{sAD}, s{sAD}, s{sT1}\ns_add_u32 s{sAD}, s{sAD}, {FL_H}")
        e.wait_vm(tok)
        if pre_barrier: pre_barrier()
        e("s_barrier")
        if post_barrier: post_barrier()
        L0 = e.newlabel("SYNCA"); L = e.newlabel("SYNC")
        srd = f"s[{SRD_WS}:{SRD_WS+3}]"
        e(f"s_cmp_lg_u32 s{sW}, 0\ns_cbranch_scc1 {L0}")
        e("s_mov_b64 exec, 1")
        saved = list(e.vm)
        self.moded(lambda fl: e(f"buffer_store_dword v{vFT}, v{vFA}, {srd}, s{sFA} offen {fl}"))
        e.vm = saved
        e("s_mov_b64 exec, -1")
        e(f"buffer_load_dword v{vPD}, v{vPA}, {srd}, s{sFA} offen sc1")
        e.label(L0)
        n0 = len(e.vm)
        if window: window()
        nwin = len(e.vm) - n0
        Lp = e.newlabel("POLL")
        e(f"s_cmp_lg_u32 s{sW}, 0\ns_cbranch_scc1 {L}")
        e(f"s_mov_b32 s{sPOLL}, 0\ns_waitcnt vmcnt({min(nwin, 63)})\nv_cmp_ne_u32 vcc, s{sTAG}, v{vPD}\ns_cbranch_vccz {L}")
        e.label(Lp)
        e(f"buffer_load_dword v{vPD}, v{vPA}, {srd}, s{sFA} offen sc1\ns_waitcnt vmcnt(0)\nv_cmp_ne_u32 vcc, s{sTAG}, v{vPD}\ns_cbranch_vccz {L}")
        e(f"s_add_u32 s{sPOLL}, s{sPOLL}, 1\ns_cmp_lt_u32 s{sPOLL}, 400000\ns_cbranch_scc1 {Lp}\ns_branch L_END")
        e.label(L)
        if drain:
            e("s_waitcnt vmcnt(0)"); e.vm = []
        e("s_barrier")
        if halo_flag:
            L2 = e.newlabel("HF")
            e(f"s_cmp_lg_u32 s{sW}, 0\ns_cbranch_scc1 {L2}")
            e(f"s_mov_b64 exec, 1\nbuffer_store_dword v{vFT}, v{vFA}, {srd}, s{sAD} offen sc1\ns_mov_b64 exec, -1")
            e.label(L2)

    def prologue(self):
        e = self.e
        if getattr(self, "dbgstamps", False): e("s_memrealtime s[36:37]")
        e(f"s_cmp_ge_u32 s{sG}, 256\ns_cbranch_scc1 L_END")
        if getattr(self, "permg", 0) == 1: e(f"s_mul_i32 s{sG}, s{sG}, 37\ns_add_u32 s{sG}, s{sG}, 3\ns_and_b32 s{sG}, s{sG}, 255")
        if getattr(self, "permg", 0) == 2: e(f"s_lshr_b32 s3, s{sG}, 5\ns_and_b32 s3, s3, 1\ns_xor_b32 s{sG}, s{sG}, s3")
        e(f"s_load_dwordx16 s[{sIN}:{sIN+15}], s[0:1], 0")
        if not getattr(self, "nopf", False):
            Lpf = e.newlabel("PF")
            e(f"s_getpc_b64 s[40:41]")
            e.label("L_PFBASE")
            e(f"s_mov_b32 s{sPFB}, s40\ns_mov_b32 s{sPFB+1}, s41")
            e(f"s_lshr_b32 s42, s{sG}, 3\ns_mul_i32 s42, s42, 3072\ns_add_u32 s43, s42, 3072\ns_cmp_gt_u32 s43, L_CODE_END-L_PFBASE\ns_cbranch_scc1 {Lpf}")
            e(f"s_add_u32 s40, s40, s42\ns_addc_u32 s41, s41, 0\nv_and_b32 v250, 63, v0\nv_lshrrev_b32 v251, 6, v0\nv_lshlrev_b32 v250, 4, v250\nv_min_u32 v251, 2, v251\nv_lshl_add_u32 v250, v251, 10, v250")
            e("global_load_dwordx4 v[252:255], v250, s[40:41]")
            e.label(Lpf)
        e(f"s_load_dwordx4 s[{sOUTP}:{sOUTP+3}], s[0:1], 64")
        e(f"s_load_dwordx2 s[{sOUTP+4}:{sOUTP+5}], s[0:1], 80")
        e(f"v_and_b32 v{vL}, 63, v{vTID}\nv_lshrrev_b32 v{vT0}, 6, v{vTID}")
        e(f"v_lshlrev_b32 v{vL16}, 4, v{vL}\nv_lshlrev_b32 v{vL4}, 2, v{vL}")
        e(f"v_readfirstlane_b32 s{sW}, v{vT0}")
        e(f"s_and_b32 s{sT0}, s{sG}, 7\ns_lshr_b32 s{sT1}, s{sG}, 3\ns_and_b32 s{sT2}, s{sT1}, 3")
        e(f"s_lshl_b32 s{sC}, s{sT0}, 2\ns_add_u32 s{sC}, s{sC}, s{sT2}\ns_lshr_b32 s{sJ}, s{sT1}, 2")
        e(f"s_and_b32 s{sP}, s{sW}, 1\ns_lshr_b32 s{sKH}, s{sW}, 1")
        e(f"s_max_u32 s{sHC}, s{sC}, 1\ns_sub_u32 s{sHC}, s{sHC}, 1")
        e(f"s_lshl_b32 s{sRB}, s{sC}, 1\ns_add_u32 s{sRB}, s{sRB}, s{sP}")
        e(f"s_lshl_b32 s{sNB}, s{sJ}, 1\ns_add_u32 s{sNB}, s{sNB}, s{sKH}")
        e(f"s_lshl_b32 s{sRBOFF}, s{sRB}, 15\ns_lshl_b32 s{sT0}, s{sNB}, 11\ns_add_u32 s{sRBOFF}, s{sRBOFF}, s{sT0}")
        e(f"s_lshl_b32 s{sSTOFF}, s{sRB}, 12\ns_lshl_b32 s{sT0}, s{sNB}, 8\ns_add_u32 s{sSTOFF}, s{sSTOFF}, s{sT0}")
        e(f"v_and_b32 v{vT0}, 31, v{vL}\nv_lshrrev_b32 v{vT1}, 5, v{vL}\nv_lshlrev_b32 v{vSTAT}, 3, v{vT0}\nv_lshl_add_u32 v{vSTAT}, v{vT1}, 2, v{vSTAT}")
        e(f"s_lshl_b32 s{sT0}, s{sP}, 4\ns_sub_u32 s{sT0}, s{sT0}, 16\nv_add_u32 v{vHALO}, s{sT0}, v{vL}\nv_lshlrev_b32 v{vHALO}, 4, v{vHALO}")
        e("s_waitcnt lgkmcnt(0)")
        e(f"s_mov_b32 s{SRD_WS}, s{sOUTP+4}\ns_mov_b32 s{SRD_WS+1}, s{sOUTP+5}\ns_mov_b32 s{SRD_WS+2}, {WS_BYTES}\ns_mov_b32 s{SRD_WS+3}, 0x20000")
        e(f"s_mov_b32 s{SRD_OUT}, s{sOUTP}\ns_mov_b32 s{SRD_OUT+1}, s{sOUTP+1}\ns_mov_b32 s{SRD_OUT+2}, {2048*512*2}\ns_mov_b32 s{SRD_OUT+3}, 0x20000")
        e(f"s_mov_b32 s{sHALF}, 0")
        e(f"s_getreg_b32 s3, hwreg(HW_REG_XCC_ID)\ns_and_b32 s3, s3, 15\ns_mov_b32 s{sMODE}, 0")

    def tag_from(self, vreg):
        e = self.e
        e(f"v_readfirstlane_b32 s{sTAG}, v{vreg}")
        e(f"s_mul_i32 s{sTAG}, s{sTAG}, 0x9E3779B1\ns_add_u32 s{sTAG}, s{sTAG}, 0x7F4A7C15")
        Lx = e.newlabel("XW")
        e(f"s_cmp_lg_u32 s{sW}, 0\ns_cbranch_scc1 {Lx}")
        e(f"s_add_u32 s{sT0}, s{sTAG}, s3\ns_add_u32 s{sT0}, s{sT0}, 16\nv_mov_b32 v{vT0}, s{sT0}")
        e(f"s_lshl_b32 s{sT1}, s{sC}, 3\ns_add_u32 s{sT1}, s{sT1}, s{sJ}\ns_lshl_b32 s{sT1}, s{sT1}, 2\ns_add_u32 s{sT1}, s{sT1}, {FL_XW}\nv_mov_b32 v{vT1}, 0")
        e(f"s_mov_b64 exec, 1\nbuffer_store_dword v{vT0}, v{vT1}, s[{SRD_WS}:{SRD_WS+3}], s{sT1} offen sc1\ns_mov_b64 exec, -1")
        e.label(Lx)

    def publish_x(self, sX, sST, sHXr=None, moded=True):
        e = self.e
        e(f"s_add_u32 s{sT0}, s{sX}, s{sRBOFF}")
        def st1(fl):
            for c in range(2): t = self.ws_store(XR + 4 * c, f"s{sT0}", c * 1024, flag=fl)
            return t
        if moded: self.moded(st1)
        else: st1("sc1")
        e(f"v_mov_b32 v16, 0x3f803f80\nv_mov_b32 v17, 0\nv_mov_b32 v18, 0\nv_mov_b32 v19, 0\nv_mov_b32 v20, 0")
        for i in range(8):
            e(f"v_dot2c_f32_bf16 v{17 if i % 2 == 0 else 19}, v16, v{XR+i}\nv_dot2c_f32_bf16 v{18 if i % 2 == 0 else 20}, v{XR+i}, v{XR+i}")
        e("v_add_f32 v17, v17, v19\nv_add_f32 v18, v18, v20")
        e("v_permlane32_swap_b32 v17, v18\nv_add_f32 v17, v17, v18")
        e(f"s_add_u32 s{sT0}, s{sST}, s{sSTOFF}")
        st2 = lambda fl: self.ws_store(17, f"s{sT0}", 0, voff=vSTAT, n=1, flag=fl)
        tok = self.moded(st2) if moded else st2("sc1")
        if sHXr is not None:
            e(f"s_lshl_b32 s{sT1}, s{sC}, 15\ns_add_u32 s{sT1}, s{sT1}, s{sHXr}\ns_lshl_b32 s{sT2}, s{sNB}, 11\ns_add_u32 s{sT1}, s{sT1}, s{sT2}")
            e("s_mov_b32 exec_lo, 0xffff0000\ns_mov_b32 exec_hi, 0xffff0000")
            for c in range(2):
                self.ws_store(XR + 4 * c, f"s{sT1}", c * 1024, voff=vHALO, flag="sc1")
            e("s_mov_b64 exec, -1")
            e(f"s_add_u32 s{sT0}, s{sSTH}, s{sSTOFF}")
            self.ws_store(17, f"s{sT0}", 0, voff=vSTAT, n=1, flag="sc1")
        return tok

    def load_stats_issue(self, dst, sST, srb):
        e = self.e
        e(f"v_and_b32 v{dst+16}, 31, v{vL}\nv_lshlrev_b32 v{dst+16}, 3, v{dst+16}\nv_lshrrev_b32 v{dst+17}, 5, v{vL}\nv_lshl_add_u32 v{dst+16}, v{dst+17}, 11, v{dst+16}")
        e(f"s_lshl_b32 s{sT0}, s{srb}, 12\ns_add_u32 s{sT0}, s{sT0}, s{sST}")
        tok = None
        for t in range(8):
            tok = self.ws_load(dst + 2 * t, f"s{sT0}", t * 256, voff=dst + 16, n=2)
        return tok
    def stats_finish(self, src, vmean, vrstd):
        e = self.e
        for t in range(1, 8):
            e(f"v_add_f32 v{src}, v{src}, v{src+2*t}\nv_add_f32 v{src+1}, v{src+1}, v{src+2*t+1}")
        e(f"v_permlane32_swap_b32 v{src}, v{src+1}\nv_add_f32 v{src}, v{src}, v{src+1}\nv_mov_b32 v{src+1}, v{src}")
        e(f"v_permlane32_swap_b32 v{src}, v{src+1}")
        e(f"v_mul_f32 v{vmean}, {fbits(1/512)}, v{src}")
        e(f"v_mul_f32 v{src+1}, {fbits(1/512)}, v{src+1}")
        e(f"v_fma_f32 v{src+1}, -v{vmean}, v{vmean}, v{src+1}")
        e(f"v_add_f32 v{src+1}, {fbits(1e-5)}, v{src+1}")
        e(f"v_rsq_f32 v{vrstd}, v{src+1}")

    def p0(self):
        e = self.e
        e(f"s_mov_b32 s{SRD_T}, s{sIN}\ns_mov_b32 s{SRD_T+1}, s{sIN+1}\ns_mov_b32 s{SRD_T+2}, {2048*1024}\ns_mov_b32 s{SRD_T+3}, 0x20000")
        e(f"v_and_b32 v16, 31, v{vL}\nv_lshlrev_b32 v16, 11, v16\nv_lshrrev_b32 v17, 5, v{vL}\nv_lshl_add_u32 v16, v17, 3, v16")
        e(f"s_lshl_b32 s{sT0}, s{sC}, 6\ns_add_u32 s{sT0}, s{sT0}, s{sP}\ns_lshl_b32 s{sT0}, s{sT0}, 10\ns_lshl_b32 s{sT1}, s{sNB}, 6\ns_add_u32 s{sT0}, s{sT0}, s{sT1}")
        for q in range(4):
            e.vmem(f"buffer_load_dwordx2 v[{XR+2*q}:{XR+2*q+1}], v16, s[{SRD_T}:{SRD_T+3}], s{sT0} offen offset:{16*q}")
        e.wait_vm()
        e(f"s_mov_b32 s{sA0}, {X0}\ns_mov_b32 s{sA1}, {ST0}")
        self.publish_x(sA0, sA1, moded=False)
        Lskip = e.newlabel("P0SKIP"); Lkv = e.newlabel("P0KV"); Lgo = e.newlabel("P0GO"); Lld = e.newlabel("P0LD")
        e(f"s_cmp_ge_u32 s{sG}, 97\ns_cbranch_scc1 {Lskip}")
        pw = lambda i: (sIN + 2 * i, sIN + 2 * i + 1)
        e(f"s_cmp_eq_u32 s{sG}, 16\ns_cbranch_scc1 {Lkv}")
        e(f"s_mov_b32 s{SRD_T}, s{pw(1)[0]}\ns_mov_b32 s{SRD_T+1}, s{pw(1)[1]}\ns_mov_b32 s{SRD_T+2}, {512*1024}\ns_mov_b32 s{sA2}, 1024\ns_lshl_b32 s{sA3}, s{sG}, 6")
        e(f"s_cmp_lt_u32 s{sG}, 16\ns_cbranch_scc1 {Lgo}")
        e(f"s_mov_b32 s{SRD_T}, s{pw(4)[0]}\ns_mov_b32 s{SRD_T+1}, s{pw(4)[1]}\ns_sub_u32 s{sA3}, s{sG}, 17\ns_lshl_b32 s{sA3}, s{sA3}, 6")
        e(f"s_cmp_lt_u32 s{sG}, 33\ns_cbranch_scc1 {Lgo}")
        e(f"s_mov_b32 s{SRD_T}, s{pw(6)[0]}\ns_mov_b32 s{SRD_T+1}, s{pw(6)[1]}\ns_mov_b32 s{SRD_T+2}, {512*3072}\ns_mov_b32 s{sA2}, 3072\ns_sub_u32 s{sA3}, s{sG}, 33\ns_lshl_b32 s{sA3}, s{sA3}, 6")
        e(f"s_cmp_lt_u32 s{sG}, 81\ns_cbranch_scc1 {Lgo}")
        e(f"s_mov_b32 s{SRD_T}, s{pw(7)[0]}\ns_mov_b32 s{SRD_T+1}, s{pw(7)[1]}\ns_mov_b32 s{SRD_T+2}, {512*1024}\ns_mov_b32 s{sA2}, 1024\ns_sub_u32 s{sA3}, s{sG}, 81\ns_lshl_b32 s{sA3}, s{sA3}, 6")
        e.label(Lgo)
        e(f"s_mov_b32 s{SRD_T+3}, 0x20000")
        e(f"v_lshrrev_b32 v16, 2, v{vL}\nv_mul_lo_u32 v16, v16, s{sA2}\nv_and_b32 v17, 3, v{vL}\nv_lshl_add_u32 v16, v17, 4, v16")
        e(f"s_lshl_b32 s{sT0}, s{sW}, 7\ns_mul_i32 s{sT0}, s{sT0}, s{sA2}\ns_add_u32 s{sT0}, s{sT0}, s{sA3}\ns_lshl_b32 s{sT1}, s{sA2}, 4")
        for it in range(8):
            e(f"buffer_load_dwordx4 v[{32+4*it}:{35+4*it}], v16, s[{SRD_T}:{SRD_T+3}], s{sT0} offen")
            if it < 7: e(f"s_add_u32 s{sT0}, s{sT0}, s{sT1}")
        e(f"s_branch {Lld}")
        e.label(Lkv)
        e(f"v_lshrrev_b32 v16, 2, v{vL}\nv_lshlrev_b32 v16, 5, v16\nv_and_b32 v17, 1, v{vL}\nv_lshl_add_u32 v16, v17, 4, v16")
        e(f"s_lshl_b32 s{sT0}, s{sW}, 12")
        e(f"v_and_b32 v17, 2, v{vL}\nv_cmp_eq_u32 vcc, 0, v17")
        e(f"s_mov_b32 s{SRD_T}, s{pw(3)[0]}\ns_mov_b32 s{SRD_T+1}, s{pw(3)[1]}\ns_mov_b32 s{SRD_T+2}, {512*32}\ns_mov_b32 s{SRD_T+3}, 0x20000")
        e(f"s_mov_b64 s[{sM0}:{sM0+1}], vcc")
        e(f"s_mov_b64 exec, s[{sM0}:{sM0+1}]")
        for it in range(8):
            e(f"buffer_load_dwordx4 v[{32+4*it}:{35+4*it}], v16, s[{SRD_T}:{SRD_T+3}], s{sT0} offen offset:{it*512}")
        e(f"s_mov_b64 exec, -1\ns_andn2_b64 exec, exec, s[{sM0}:{sM0+1}]")
        e(f"s_mov_b32 s{SRD_T}, s{pw(2)[0]}\ns_mov_b32 s{SRD_T+1}, s{pw(2)[1]}\ns_mov_b32 s{SRD_T+2}, {512*32}\ns_mov_b32 s{SRD_T+3}, 0x20000")
        for it in range(8):
            e(f"buffer_load_dwordx4 v[{32+4*it}:{35+4*it}], v16, s[{SRD_T}:{SRD_T+3}], s{sT0} offen offset:{it*512}")
        e("s_mov_b64 exec, -1")
        e.label(Lld)
        e("s_waitcnt vmcnt(0)")
        e(f"s_lshl_b32 s{sT0}, s{sW}, 13\nv_add_u32 v17, s{sT0}, v{vL16}")
        for it in range(8):
            e(f"ds_write_b128 v17, v[{32+4*it}:{35+4*it}] offset:{it*1024}")
        e(f"v_and_b32 v18, 15, v{vL}\nv_lshrrev_b32 v19, 2, v18\nv_lshrrev_b32 v20, 5, v{vL}\nv_lshl_add_u32 v19, v20, 2, v19\nv_lshlrev_b32 v19, 6, v19")
        e(f"v_and_b32 v20, 3, v18\nv_lshl_add_u32 v19, v20, 3, v19\nv_bfe_u32 v20, v{vL}, 4, 1\nv_lshl_add_u32 v19, v20, 5, v19\nv_add_u32 v19, s{sT0}, v19")
        e("s_waitcnt lgkmcnt(0)")
        for t in range(8):
            e(f"ds_read_b64_tr_b16 v[{64+4*t}:{65+4*t}], v19 offset:{t*1024}")
            e(f"ds_read_b64_tr_b16 v[{66+4*t}:{67+4*t}], v19 offset:{t*1024+512}")
        e("s_waitcnt lgkmcnt(0)")
        e(f"s_lshl_b32 s{sT0}, s{sG}, 15\ns_lshl_b32 s{sT1}, s{sW}, 13\ns_add_u32 s{sT0}, s{sT0}, s{sT1}\ns_add_u32 s{sT0}, s{sT0}, {WF}\ns_add_u32 s{sT1}, s{sT0}, 4096")
        for t in range(8):
            self.ws_store(64 + 4 * t, f"s{sT0 if t < 4 else sT1}", (t % 4) * 1024)
        e("v_mov_b32 v16, 0x3f803f80\nv_mov_b32 v17, 0")
        for i in range(32):
            e(f"v_dot2_f32_bf16 v17, v{64+i}, v16, v17")
        e("v_mov_b32 v18, v17\nv_permlane32_swap_b32 v17, v18\nv_add_f32 v17, v17, v18")
        e(f"s_lshl_b32 s{sT0}, s{sW}, 8\nv_add_u32 v18, s{sT0}, v{vL4}\nds_write_b32 v18, v17 offset:32768\ns_waitcnt lgkmcnt(0)\ns_barrier")
        e(f"ds_read_b32 v20, v{vL4} offset:32768\nds_read_b32 v21, v{vL4} offset:{32768+256}\nds_read_b32 v22, v{vL4} offset:{32768+512}\nds_read_b32 v23, v{vL4} offset:{32768+768}\ns_waitcnt lgkmcnt(0)")
        e("v_add_f32 v20, v20, v21\nv_add_f32 v22, v22, v23\nv_add_f32 v20, v20, v22")
        Lcs = e.newlabel("P0CS")
        e(f"s_cmp_lg_u32 s{sW}, 0\ns_cbranch_scc1 {Lcs}")
        e(f"s_lshl_b32 s{sT0}, s{sG}, 7\ns_add_u32 s{sT0}, s{sT0}, {CS}\ns_mov_b32 exec_hi, 0")
        self.ws_store(20, f"s{sT0}", 0, voff=vL4, n=1)
        e("s_mov_b64 exec, -1")
        e.label(Lcs)
        e.label(Lskip)
        e.wait_vm(); e("s_barrier")
        L = e.newlabel("G0")
        e(f"s_cmp_lg_u32 s{sW}, 0\ns_cbranch_scc1 {L}")
        e(f"v_lshlrev_b32 v16, 10, v{vL}\ns_lshl_b32 s{sT0}, s{sG}, 2\ns_add_u32 s{sT0}, s{sT0}, {FL_G0}\nv_mov_b32 v17, s{sTAG}")
        e(f"s_mov_b64 exec, 0xff\nbuffer_store_dword v17, v16, s[{SRD_WS}:{SRD_WS+3}], s{sT0} offen sc1\ns_mov_b64 exec, -1")
        e(f"s_and_b32 s{sT0}, s{sG}, 7\ns_lshl_b32 s{sT0}, s{sT0}, 10\ns_add_u32 s{sT0}, s{sT0}, {FL_G0}")
        def setup():
            e(f"buffer_load_dwordx4 v[16:19], v{vL16}, s[{SRD_WS}:{SRD_WS+3}], s{sT0} offen sc1\ns_waitcnt vmcnt(0)")
            e(f"v_xor_b32 v16, s{sTAG}, v16\nv_xor_b32 v17, s{sTAG}, v17\nv_xor_b32 v18, s{sTAG}, v18\nv_xor_b32 v19, s{sTAG}, v19")
            e("v_or_b32 v16, v16, v17\nv_or_b32 v18, v18, v19\nv_or_b32 v16, v16, v18\nv_cmp_ne_u32 vcc, 0, v16")
        self.poll("g", setup)
        self.mode_detect()
        e.label(L)
        e("s_barrier")
        self.mode_read()
        e.reset_counters()

    def mode_detect(self):
        e = self.e
        Lp = e.newlabel("XPOLL"); Lok = e.newlabel("XOK")
        e(f"s_lshl_b32 s{sT0}, s{sC}, 5\ns_add_u32 s{sT0}, s{sT0}, {FL_XW}\nv_and_b32 v16, 7, v{vL}\nv_lshlrev_b32 v16, 2, v16\ns_mov_b32 s{sPOLL}, 0")
        e.label(Lp)
        e(f"buffer_load_dword v17, v16, s[{SRD_WS}:{SRD_WS+3}], s{sT0} offen sc1\ns_waitcnt vmcnt(0)")
        e(f"v_subrev_u32 v17, s{sTAG}, v17\nv_subrev_u32 v17, 16, v17\nv_cmp_le_u32 vcc, 16, v17")
        e(f"s_cbranch_vccz {Lok}")
        e(f"s_add_u32 s{sPOLL}, s{sPOLL}, 1\ns_cmp_lt_u32 s{sPOLL}, 400000\ns_cbranch_scc1 {Lp}\ns_branch L_END")
        e.label(Lok)
        e(f"v_cmp_ne_u32 vcc, s3, v17\ns_nop 4\ns_cmp_eq_u64 vcc, 0\ns_cselect_b32 s{sT1}, 1, 0")
        if getattr(self, "force_safe", False): e(f"s_mov_b32 s{sT1}, 0")
        e(f"v_mov_b32 v16, {MODEADDR}\nv_mov_b32 v17, s{sT1}\nds_write_b32 v16, v17\ns_waitcnt lgkmcnt(0)")
    def mode_read(self):
        e = self.e
        e(f"v_mov_b32 v16, {MODEADDR}\nds_read_b32 v17, v16\ns_waitcnt lgkmcnt(0)\nv_readfirstlane_b32 s{sMODE}, v17")


    def first_phase(self):
        e = self.e
        XI, WQI, WVI = 0, 65536, 131072
        STX, CSP, CSK, REDKV, VT, RED = 8192, 9216, 9728, 12288, 16384, 32768
        SRD_X, SRD_Q, SRD_P = 8, 68, 72
        pw = lambda i: (sIN + 2 * i, sIN + 2 * i + 1)
        sR = sA0
        for k, i in enumerate((1, 2, 3, 4, 6, 7)):
            e(f"s_mov_b32 s{88+2*k}, s{pw(i)[0]}\ns_mov_b32 s{89+2*k}, s{pw(i)[1]}")
        e(f"s_mov_b32 s{SRD_X}, s{sIN}\ns_mov_b32 s{SRD_X+1}, s{sIN+1}\ns_mov_b32 s{SRD_X+2}, {2048*1024}\ns_mov_b32 s{SRD_X+3}, 0x20000")
        e(f"s_mov_b32 s{SRD_Q}, s88\ns_mov_b32 s{SRD_Q+1}, s89\ns_mov_b32 s{SRD_Q+2}, {512*1024}\ns_mov_b32 s{SRD_Q+3}, 0x20000")
        if getattr(self, "tlbtouch", False):
            e("v_mov_b32 v230, 0")
            for k, ptr in enumerate((88, 90, 92, 94, 96, 98)):
                e(f"global_load_dword v{128+k}, v230, s[{ptr}:{ptr+1}]")
            e(f"buffer_load_dword v134, v230, s[{SRD_X}:{SRD_X+3}], 0 offen\nbuffer_load_dword v135, v230, s[{SRD_OUT}:{SRD_OUT+3}], 0 offen")
            for k, off in enumerate((WF, WF + 0x200000, X0 + 0x200000, OA, HX, HX + 0x100000, ST0 + 0x40000, KF, STH)):
                e(f"s_mov_b32 s{sT0}, {off}\nbuffer_load_dword v{136+k}, v230, s[{SRD_WS}:{SRD_WS+3}], s{sT0} offen")
        e(f"v_mov_b32 v230, 0")
        e(f"buffer_load_dword v231, v230, s[{SRD_WS}:{SRD_WS+3}], 0 offen sc0 sc1")
        rot = not getattr(self, "norot", False)
        sX0, sX1, sX2, sRr = 76, 77, 78, 79
        def x_rows(par_expr_sgpr, nrows, srow0, first=0, count=None, setup=True):
            if setup:
                e(f"s_lshl_b32 s{sX0}, s{srow0}, 1\ns_add_u32 s{sX0}, s{sX0}, s{par_expr_sgpr}\ns_lshl_b32 s{sT4}, s{sC}, 6\ns_add_u32 s{sX0}, s{sX0}, s{sT4}\ns_lshl_b32 s{sX0}, s{sX0}, 10")
                e(f"s_lshl_b32 s{sX1}, s{par_expr_sgpr}, 5\ns_add_u32 s{sX1}, s{sX1}, s{srow0}\ns_lshl_b32 s{sX1}, s{sX1}, 10")
                e(f"s_and_b32 s{sX2}, s{srow0}, 15")
                if rot: e(f"s_mul_i32 s{sRr}, s{sJ}, {nrows // 8}\ns_and_b32 s{sRr}, s{sRr}, {nrows-1}")
                else: e(f"s_mov_b32 s{sRr}, 0")
            for t in range(first, nrows if count is None else first + count):
                e(f"s_add_u32 s{sT5}, s{sX2}, s{sRr}\ns_lshl_b32 s{sT5}, s{sT5}, 4")
                e(f"s_lshl_b32 s{sT3}, s{sRr}, 11\ns_add_u32 s{sT3}, s{sT3}, s{sX0}\ns_lshl_b32 s{sT4}, s{sRr}, 10\ns_add_u32 s{sT4}, s{sT4}, s{sX1}")
                e(f"v_xor_b32 v232, s{sT5}, v{vL16}\ns_mov_b32 m0, s{sT4}")
                e(f"buffer_load_dwordx4 v232, s[{SRD_X}:{SRD_X+3}], s{sT3} offen lds")
                e(f"s_add_u32 s{sRr}, s{sRr}, 1\ns_and_b32 s{sRr}, s{sRr}, {nrows-1}")
        sW0, sW1, sWr = 64, 65, 66
        def wq_rows(nit, srow_shift_expr, first=0, count=None, setup=True):
            p2 = (nit & (nit - 1)) == 0
            if setup:
                e(f"s_lshl_b32 s{sW0}, s{sT6}, 10\ns_lshl_b32 s{sT4}, s{sJ}, 7\ns_add_u32 s{sW0}, s{sW0}, s{sT4}\ns_lshl_b32 s{sW1}, s{sT6}, 7\ns_add_u32 s{sW1}, s{sW1}, {WQI}")
                if rot and p2: e(f"s_and_b32 s{sWr}, s{sC}, 3\ns_mul_i32 s{sWr}, s{sWr}, {nit // 4}")
                else: e(f"s_mov_b32 s{sWr}, 0")
            for t in range(first, nit if count is None else first + count):
                e(f"s_lshl_b32 s{sT4}, s{sWr}, 10\ns_add_u32 s{sT4}, s{sT4}, s{sW1}\ns_mov_b32 m0, s{sT4}")
                e(f"s_lshl_b32 s{sT3}, s{sWr}, 13\ns_add_u32 s{sT3}, s{sT3}, s{sW0}")
                e(f"buffer_load_dwordx4 v233, s[{SRD_Q}:{SRD_Q+3}], s{sT3} offen lds")
                e(f"s_add_u32 s{sWr}, s{sWr}, 1")
                if p2: e(f"s_and_b32 s{sWr}, s{sWr}, {nit-1}")
        e(f"v_lshrrev_b32 v233, 3, v{vL}\nv_lshlrev_b32 v233, 10, v233\nv_and_b32 v234, 7, v{vL}\nv_lshl_add_u32 v233, v234, 4, v233")
        if getattr(self, "prepmap", 0) == 0:
            e(f"s_sub_u32 s{sR}, s{sJ}, 2\ns_lshl_b32 s{sR}, s{sR}, 5\ns_add_u32 s{sR}, s{sR}, s{sC}\ns_cmp_lt_u32 s{sJ}, 2\ns_cselect_b32 s{sR}, 255, s{sR}")
        else:
            e(f"s_mul_i32 s{sR}, s{sC}, 6\ns_add_u32 s{sR}, s{sR}, s{sJ}\ns_sub_u32 s{sR}, s{sR}, 2\ns_cmp_lt_u32 s{sJ}, 2\ns_cselect_b32 s{sR}, 255, s{sR}")
        def _pl():
            Lnp = e.newlabel("FNP"); Lgo = e.newlabel("FGO"); Lkvb = e.newlabel("FKVB")
            e(f"s_cmp_ge_u32 s{sR}, 97\ns_cbranch_scc1 {Lnp}")
            e(f"s_cmp_eq_u32 s{sR}, 16\ns_cbranch_scc1 {Lkvb}")
            e(f"s_mov_b32 s{SRD_P}, s88\ns_mov_b32 s{SRD_P+1}, s89\ns_mov_b32 s{SRD_P+2}, {512*1024}\ns_mov_b32 s{sA2}, 1024\ns_lshl_b32 s{sA3}, s{sR}, 6")
            e(f"s_cmp_lt_u32 s{sR}, 16\ns_cbranch_scc1 {Lgo}")
            e(f"s_mov_b32 s{SRD_P}, s94\ns_mov_b32 s{SRD_P+1}, s95\ns_sub_u32 s{sA3}, s{sR}, 17\ns_lshl_b32 s{sA3}, s{sA3}, 6")
            e(f"s_cmp_lt_u32 s{sR}, 33\ns_cbranch_scc1 {Lgo}")
            e(f"s_mov_b32 s{SRD_P}, s96\ns_mov_b32 s{SRD_P+1}, s97\ns_mov_b32 s{SRD_P+2}, {512*3072}\ns_mov_b32 s{sA2}, 3072\ns_sub_u32 s{sA3}, s{sR}, 33\ns_lshl_b32 s{sA3}, s{sA3}, 6")
            e(f"s_cmp_lt_u32 s{sR}, 81\ns_cbranch_scc1 {Lgo}")
            e(f"s_mov_b32 s{SRD_P}, s98\ns_mov_b32 s{SRD_P+1}, s99\ns_mov_b32 s{SRD_P+2}, {512*1024}\ns_mov_b32 s{sA2}, 1024\ns_sub_u32 s{sA3}, s{sR}, 81\ns_lshl_b32 s{sA3}, s{sA3}, 6")
            e.label(Lgo)
            e(f"s_mov_b32 s{SRD_P+3}, 0x20000")
            e(f"v_lshrrev_b32 v235, 2, v{vL}\nv_mul_lo_u32 v235, v235, s{sA2}\nv_and_b32 v236, 3, v{vL}\nv_lshl_add_u32 v235, v236, 4, v235")
            e(f"s_lshl_b32 s{sT0}, s{sW}, 7\ns_mul_i32 s{sT0}, s{sT0}, s{sA2}\ns_add_u32 s{sT0}, s{sT0}, s{sA3}\ns_lshl_b32 s{sT1}, s{sA2}, 4")
            for it in range(8):
                e(f"buffer_load_dwordx4 a[{4*it}:{4*it+3}], v235, s[{SRD_P}:{SRD_P+3}], s{sT0} offen")
                if it < 7: e(f"s_add_u32 s{sT0}, s{sT0}, s{sT1}")
            e(f"s_branch {Lnp}")
            e.label(Lkvb)
            e(f"v_lshrrev_b32 v235, 2, v{vL}\nv_lshlrev_b32 v235, 5, v235\nv_and_b32 v236, 1, v{vL}\nv_lshl_add_u32 v235, v236, 4, v235")
            e(f"s_lshl_b32 s{sT0}, s{sW}, 12")
            e(f"v_and_b32 v236, 2, v{vL}\nv_cmp_eq_u32 vcc, 0, v236")
            e(f"s_mov_b32 s{SRD_P}, s92\ns_mov_b32 s{SRD_P+1}, s93\ns_mov_b32 s{SRD_P+2}, {512*32}\ns_mov_b32 s{SRD_P+3}, 0x20000")
            e(f"s_mov_b64 s[{sM0}:{sM0+1}], vcc\ns_mov_b64 exec, s[{sM0}:{sM0+1}]")
            for it in range(8):
                e(f"buffer_load_dwordx4 a[{4*it}:{4*it+3}], v235, s[{SRD_P}:{SRD_P+3}], s{sT0} offen offset:{it*512}")
            e(f"s_mov_b64 exec, -1\ns_andn2_b64 exec, exec, s[{sM0}:{sM0+1}]")
            e(f"s_mov_b32 s{SRD_P}, s90\ns_mov_b32 s{SRD_P+1}, s91\ns_mov_b32 s{SRD_P+2}, {512*32}\ns_mov_b32 s{SRD_P+3}, 0x20000")
            for it in range(8):
                e(f"buffer_load_dwordx4 a[{4*it}:{4*it+3}], v235, s[{SRD_P}:{SRD_P+3}], s{sT0} offen offset:{it*512}")
            e("s_mov_b64 exec, -1")
            e.label(Lnp)
        self._prep_loads = _pl
        Lnk = e.newlabel("FNK"); Lcommon = e.newlabel("FCOM"); Lkvw = e.newlabel("FKVW")
        e(f"s_cmp_ge_u32 s{sJ}, 2\ns_cbranch_scc1 {Lnk}")
        for m, (ptr, base) in enumerate(((92, WVI), (90, WVI + 16384))):
            e(f"s_mov_b32 s{SRD_P}, s{ptr}\ns_mov_b32 s{SRD_P+1}, s{ptr+1}\ns_mov_b32 s{SRD_P+2}, 16384\ns_mov_b32 s{SRD_P+3}, 0x20000")
            e(f"s_lshl_b32 s{sT0}, s{sW}, 12\ns_add_u32 s{sT1}, s{sT0}, {base}\ns_mov_b32 m0, s{sT1}\ns_nop 0")
            for t in range(4):
                e(f"buffer_load_dwordx4 v{vL16}, s[{SRD_P}:{SRD_P+3}], s{sT0} offen offset:{t*1024} lds")
        e(f"s_lshl_b32 s{sT6}, s{sW}, 3")
        x_rows(sJ, 8, sT6)
        e(f"s_branch {Lcommon}")
        e.label(Lnk)
        self._prep_loads()
        fi = getattr(self, "light", None) == "fi"
        if fi: self.lstamp(0)
        if rot:
            e(f"s_lshl_b32 s{sT6}, s{sW}, 7")
            wq_rows(16, None, 0, 4)
            e(f"s_lshr_b32 s{sT7}, s{sW}, 1\ns_and_b32 s{sT6}, s{sW}, 1\ns_lshl_b32 s{sT6}, s{sT6}, 4")
            x_rows(sT7, 16, sT6, 0, 2)
            if getattr(self, "twophase", True): e("s_waitcnt vmcnt(0)")
            x_rows(sT7, 16, sT6, 2, 14, setup=False)
            if fi: self.lstamp(1)
            wq_rows(16, None, 4, 12, setup=False)
        else:
            e(f"s_lshr_b32 s{sT7}, s{sW}, 1\ns_and_b32 s{sT6}, s{sW}, 1\ns_lshl_b32 s{sT6}, s{sT6}, 4")
            x_rows(sT7, 16, sT6)
            e(f"s_lshl_b32 s{sT6}, s{sW}, 7")
            wq_rows(16, None)
        if fi: self.lstamp(2)
        e.label(Lcommon)
        e(f"v_and_b32 v16, 31, v{vL}\nv_lshlrev_b32 v16, 11, v16\nv_lshrrev_b32 v17, 5, v{vL}\nv_lshl_add_u32 v16, v17, 3, v16")
        e(f"s_lshl_b32 s{sT0}, s{sC}, 6\ns_add_u32 s{sT0}, s{sT0}, s{sP}\ns_lshl_b32 s{sT0}, s{sT0}, 10\ns_lshl_b32 s{sT1}, s{sNB}, 6\ns_add_u32 s{sT0}, s{sT0}, s{sT1}")
        for q in range(4):
            e(f"buffer_load_dwordx2 v[{XR+2*q}:{XR+2*q+1}], v16, s[{SRD_X}:{SRD_X+3}], s{sT0} offen offset:{16*q}")
        if getattr(self, "light", None) == "fi":
            self.lstamp(3); self.lstamp(4); self.lstamp(5); self.lstamp(6); self.lstamp(7); self.lflush("fi")
        self.stamp("f_issued")
        e(f"v_and_b32 v16, 31, v{vL}\nv_lshrrev_b32 v17, 5, v{vL}\nv_and_b32 v18, 15, v16\nv_lshlrev_b32 v19, 10, v16")
        e(f"s_lshl_b32 s{sT0}, s{sP}, 15\ns_lshl_b32 s{sT1}, s{sKH}, 9\ns_add_u32 s{sT0}, s{sT0}, s{sT1}\nv_add_u32 v19, s{sT0}, v19")
        for b in range(8):
            e(f"v_add_u32 v20, {2*b}, v17\nv_xor_b32 v20, v20, v18\nv_lshl_add_u32 v{240+b}, v20, 4, v19")
        e(f"v_and_b32 v18, 15, v{vL}\nv_lshrrev_b32 v20, 2, v18\nv_lshl_add_u32 v20, v17, 3, v20\nv_lshlrev_b32 v21, 7, v20")
        e(f"v_bfe_u32 v22, v{vL}, 4, 1\nv_lshl_add_u32 v21, v22, 5, v21\nv_and_b32 v23, 3, v18\nv_lshl_add_u32 v21, v23, 3, v21")
        e(f"s_lshl_b32 s{sT0}, s{sKH}, 15\ns_add_u32 s{sT0}, s{sT0}, {WQI}\ns_lshl_b32 s{sT1}, s{sKH}, 6\ns_add_u32 s{sT2}, s{sT0}, s{sT1}\nv_add_u32 v248, s{sT2}, v21")
        e(f"s_xor_b32 s{sT1}, s{sT1}, 64\ns_add_u32 s{sT2}, s{sT0}, s{sT1}\nv_add_u32 v249, s{sT2}, v21")
        e(f"v_lshlrev_b32 v21, 5, v20\nv_lshl_add_u32 v21, v22, 14, v21\nv_lshl_add_u32 v21, v23, 3, v21")
        e(f"s_lshl_b32 s{sT0}, s{sKH}, 13\ns_add_u32 s{sT0}, s{sT0}, {WVI}\nv_add_u32 v250, s{sT0}, v21")
        STXK, CSK, REDKV, VT = WVI, WVI + 256, WVI + 8192 + 512, WVI + 1024
        STX2, CSP, RED = WVI + 13312, WVI + 14336, WVI + 16384
        ONE = 229
        def xreads():
            for t in range(16):
                e(f"ds_read_b128 v[{16+4*t}:{19+4*t}], v{240+(t&7)} offset:{(t>>3)*256}")
            e(f"v_mov_b32 v{ONE}, 0x3f803f80\nv_mov_b32 v224, 0\nv_mov_b32 v225, 0\nv_mov_b32 v226, 0\nv_mov_b32 v236, 0\nv_mov_b32 v237, 0\nv_mov_b32 v238, 0")
            e("s_waitcnt lgkmcnt(0)")
        def stats_ops(t):
            acc = lambda k, d: ((224, 236), (225, 237))[k][d & 1]
            return [f"v_dot2c_f32_bf16 v{acc(k,d)}, v{ONE if k == 0 else 16+4*t+d}, v{16+4*t+d}" for d in range(4) for k in range(2)]
        def stats_write(sbase):
            e("v_add_f32 v224, v224, v236\nv_add_f32 v225, v225, v237")
            e("v_permlane32_swap_b32 v224, v225\nv_add_f32 v224, v224, v225")
            e(f"v_add_u32 v227, s{sbase}, v{vL4}\nds_write_b32 v227, v224")
        def stats_read(sbase, second):
            e(f"v_and_b32 v227, 31, v{vL}\nv_lshlrev_b32 v227, 2, v227\nv_add_u32 v227, s{sbase}, v227")
            e(f"ds_read_b32 v224, v227\nds_read_b32 v225, v227 offset:128\nds_read_b32 v226, v227 offset:{second}\nds_read_b32 v228, v227 offset:{second+128}")
            e("s_waitcnt lgkmcnt(0)")
            e(f"v_add_f32 v224, v224, v226\nv_add_f32 v225, v225, v228")
            e(f"v_mul_f32 v178, {fbits(1/512)}, v224\nv_mul_f32 v225, {fbits(1/512)}, v225\nv_fma_f32 v225, -v178, v178, v225\nv_add_f32 v225, {fbits(1e-5)}, v225\nv_rsq_f32 v179, v225")
        def cs_read(dst, base, second):
            e(f"v_lshrrev_b32 v228, 5, v{vL}\nv_lshlrev_b32 v228, 4, v228\nv_add_u32 v228, {base}, v228")
            for q in range(4):
                e(f"ds_read_b128 v[{dst+4*q}:{dst+3+4*q}], v228 offset:{32*q}\nds_read_b128 v[{112+4*q}:{115+4*q}], v228 offset:{second+32*q}")
            e("s_waitcnt lgkmcnt(0)")
            for r in range(16): e(f"v_add_f32 v{dst+r}, v{dst+r}, v{112+r}")
        def qpass(with_stats, mid=None, after_stats=None):
            Lp1 = e.newlabel("FQP1"); Lpd = e.newlabel("FQPD")
            for r in range(4): e(f"v_mov_b32 v{232+r}, 0x3f803f80")
            if with_stats:
                for t in range(16):
                    for x in stats_ops(t): e(x)
            if after_stats: after_stats()
            e(f"s_cmp_eq_u32 s{sP}, 1\ns_cbranch_scc1 {Lp1}")
            for var in range(2):
                if var == 1: e.label(Lp1)
                def rd(t):
                    r = 112 + (t % 4) * 8
                    e(f"ds_read_b64_tr_b16 v[{r}:{r+1}], v248 offset:{t*2048}\nds_read_b64_tr_b16 v[{r+2}:{r+3}], v248 offset:{t*2048+512}")
                    e(f"ds_read_b64_tr_b16 v[{r+4}:{r+5}], v249 offset:{t*2048}\nds_read_b64_tr_b16 v[{r+6}:{r+7}], v249 offset:{t*2048+512}")
                for t in range(3): rd(t)
                for t in range(16):
                    if t + 3 < 16: rd(t + 3)
                    e(f"s_waitcnt lgkmcnt({4*min(3, 15-t)})")
                    r = 112 + (t % 4) * 8
                    e(f"v_mfma_f32_32x32x16_bf16 v[80:95], v[{r}:{r+3}], v[{16+4*t}:{19+4*t}], {'0' if t == 0 else 'v[80:95]'}")
                    e(f"v_mfma_f32_32x32x16_bf16 v[96:111], v[{r+4}:{r+7}], v[{16+4*t}:{19+4*t}], {'0' if t == 0 else 'v[96:111]'}")
                    e(f"v_mfma_f32_32x32x16_bf16 v[144:159], v[{r+4*var}:{r+4*var+3}], v[232:235], {'0' if t == 0 else 'v[144:159]'}")
                    if mid and t == 7: mid()
                if var == 0: e(f"s_branch {Lpd}")
            e.label(Lpd)
            e(f"s_xor_b32 s{sT1}, s{sKH}, s{sP}\ns_lshl_b32 s{sT1}, s{sT1}, 8\ns_lshl_b32 s{sT2}, s{sKH}, 7\ns_add_u32 s{sT1}, s{sT1}, s{sT2}\ns_add_u32 s{sT1}, s{sT1}, {CSP}")
            e(f"v_lshrrev_b32 v228, 5, v{vL}\nv_lshlrev_b32 v228, 4, v228\nv_add_u32 v228, s{sT1}, v228")
            e("s_mov_b32 exec_lo, 1\ns_mov_b32 exec_hi, 1")
            for q in range(4): e(f"ds_write_b128 v228, v[{144+4*q}:{147+4*q}] offset:{32*q}")
            e("s_mov_b64 exec, -1")
        def prep_process():
            Lcs = e.newlabel("FPCS")
            PL = WVI
            e("s_waitcnt vmcnt(36)")
            e(f"s_lshl_b32 s{sT0}, s{sW}, 13\ns_add_u32 s{sT0}, s{sT0}, {PL}\nv_add_u32 v17, s{sT0}, v{vL16}")
            for it in range(8):
                e(f"ds_write_b128 v17, a[{4*it}:{4*it+3}] offset:{it*1024}")
            e(f"v_and_b32 v18, 15, v{vL}\nv_lshrrev_b32 v19, 2, v18\nv_lshrrev_b32 v20, 5, v{vL}\nv_lshl_add_u32 v19, v20, 2, v19\nv_lshlrev_b32 v19, 6, v19")
            e(f"v_and_b32 v20, 3, v18\nv_lshl_add_u32 v19, v20, 3, v19\nv_bfe_u32 v20, v{vL}, 4, 1\nv_lshl_add_u32 v19, v20, 5, v19\nv_add_u32 v19, s{sT0}, v19")
            e("s_waitcnt lgkmcnt(0)")
            for t in range(8):
                e(f"ds_read_b64_tr_b16 v[{32+4*t}:{33+4*t}], v19 offset:{t*1024}")
                e(f"ds_read_b64_tr_b16 v[{34+4*t}:{35+4*t}], v19 offset:{t*1024+512}")
            e(f"s_lshl_b32 s{sT2}, s{sR}, 15\ns_lshl_b32 s{sT1}, s{sW}, 13\ns_add_u32 s{sT2}, s{sT2}, s{sT1}\ns_add_u32 s{sT2}, s{sT2}, {WF}\ns_add_u32 s{sT1}, s{sT2}, 4096")
            e("v_mov_b32 v16, 0x3f803f80\nv_mov_b32 v17, 0")
            e("s_waitcnt lgkmcnt(0)")
            for t in range(8):
                e(f"buffer_store_dwordx4 v[{32+4*t}:{35+4*t}], v{vL16}, s[{SRD_WS}:{SRD_WS+3}], s{sT2 if t < 4 else sT1} offen offset:{(t%4)*1024} sc1")
            e("v_mov_b32 v21, 0\nv_mov_b32 v22, 0\nv_mov_b32 v23, 0")
            for i in range(32):
                ac = (17, 21, 22, 23)[i % 4]
                e(f"v_dot2c_f32_bf16 v{ac}, v16, v{32+i}")
            e("v_add_f32 v21, v21, v22\nv_add_f32 v17, v17, v23\nv_add_f32 v17, v17, v21")
            e("v_mov_b32 v18, v17\nv_permlane32_swap_b32 v17, v18\nv_add_f32 v17, v17, v18")
            e(f"v_add_u32 v18, s{sT0}, v{vL4}\nds_write_b32 v18, v17\ns_waitcnt lgkmcnt(0)\ns_barrier")
            e(f"s_cmp_lg_u32 s{sW}, 0\ns_cbranch_scc1 {Lcs}")
            e(f"v_add_u32 v18, {PL}, v{vL4}")
            e(f"ds_read_b32 v20, v18\nds_read_b32 v21, v18 offset:8192\nds_read_b32 v22, v18 offset:16384\nds_read_b32 v23, v18 offset:24576\ns_waitcnt lgkmcnt(0)")
            e("v_add_f32 v20, v20, v21\nv_add_f32 v22, v22, v23\nv_add_f32 v20, v20, v22")
            e(f"s_lshl_b32 s{sT0}, s{sR}, 7\ns_add_u32 s{sT0}, s{sT0}, {CS}\ns_mov_b32 exec_hi, 0")
            e(f"buffer_store_dword v20, v{vL4}, s[{SRD_WS}:{SRD_WS+3}], s{sT0} offen sc1\ns_mov_b64 exec, -1")
            e.label(Lcs)
        Lkvp = e.newlabel("FKVP"); Lnkw = e.newlabel("FNKW"); Lqs = e.newlabel("FQS"); Lq2 = e.newlabel("FQ2"); Lred = e.newlabel("FRED"); Lep = e.newlabel("FEP")
        e(f"s_cmp_ge_u32 s{sJ}, 2\ns_cbranch_scc1 {Lnkw}")
        e(f"s_cmp_eq_u32 s{sP}, s{sJ}\ns_cbranch_scc1 {Lkvp}")
        e("s_waitcnt vmcnt(4)")
        self.tag_from(231)
        e("s_barrier")
        e(f"s_xor_b32 s{sT7}, s{sJ}, 1\ns_lshl_b32 s{sT6}, s{sKH}, 4")
        x_rows(sT7, 16, sT6)
        e(f"s_lshl_b32 s{sT6}, s{sKH}, 8")
        wq_rows(12, None)
        e("s_barrier")
        e(f"s_lshl_b32 s{sT6}, s{sKH}, 8\ns_add_u32 s{sT6}, s{sT6}, 96")
        wq_rows(20, None)
        e("s_waitcnt vmcnt(0)")
        e("s_barrier")
        e(f"s_branch {Lqs}")
        e.label(Lkvp)
        e("s_waitcnt vmcnt(4)")
        self.tag_from(231)
        e("s_barrier")
        self.stamp("f_b0")
        fl = getattr(self, "light", None) == "fkv"
        if fl: self.lstamp(0)
        xreads()
        if fl: self.lstamp(1)
        def kvrd(t): e(f"ds_read_b64_tr_b16 v[{160+4*t}:{161+4*t}], v250 offset:{t*512}\nds_read_b64_tr_b16 v[{162+4*t}:{163+4*t}], v250 offset:{t*512+128}")
        for t in range(6): kvrd(t)
        for t in range(16):
            for x in stats_ops(t): e(x)
            if 6 + t < 16: kvrd(6 + t)
        e("s_waitcnt lgkmcnt(0)")
        for t in range(16):
            for d in range(4): e(f"v_dot2c_f32_bf16 v{226 if d % 2 == 0 else 238}, v{ONE}, v{160+4*t+d}")
        for t in range(16):
            e(f"v_mfma_f32_32x32x16_bf16 v[144:159], v[{160+4*t}:{163+4*t}], v[{16+4*t}:{19+4*t}], {'0' if t == 0 else 'v[144:159]'}")
        if fl: self.lstamp(2)
        e(f"s_lshl_b32 s{sT0}, s{sKH}, 13\ns_add_u32 s{sT0}, s{sT0}, {STXK}")
        stats_write(sT0)
        e(f"s_add_u32 s{sT1}, s{sT0}, 256")
        e("v_add_f32 v226, v226, v238\nv_mov_b32 v228, v226\nv_permlane32_swap_b32 v226, v228\nv_add_f32 v226, v226, v228")
        e(f"v_add_u32 v228, s{sT1}, v{vL4}\ns_mov_b32 exec_hi, 0\nds_write_b32 v228, v226\ns_mov_b64 exec, -1")
        Lx = e.newlabel("FKW")
        e(f"s_cmp_eq_u32 s{sKH}, 0\ns_cbranch_scc1 {Lx}")
        e(f"v_add_u32 v{vT0}, {REDKV}, v{vL16}")
        for q in range(4):
            e(f"ds_write_b128 v{vT0}, v[{144+4*q}:{147+4*q}] offset:{q*1024}")
        e.label(Lx)
        e("s_waitcnt lgkmcnt(0)")
        if fl: self.lstamp(3)
        e("s_barrier")
        if fl: self.lstamp(4)
        e(f"s_mov_b32 s{sT0}, {STXK}")
        stats_read(sT0, 8192)
        if fl: self.lstamp(5)
        Lk1 = e.newlabel("FK1")
        e(f"s_cmp_lg_u32 s{sKH}, 0\ns_cbranch_scc1 {Lk1}")
        self.kv_epilogue(REDKV, VT, 196, 178, 179, pre=lambda: cs_read(196, CSK, 8192), defer_flag=True)
        e.label(Lk1)
        e("s_barrier")
        def mid():
            Lm = e.newlabel("FKF")
            e(f"s_cmp_lg_u32 s{sKH}, 0\ns_cbranch_scc1 {Lm}")
            self.kv_flag()
            e.label(Lm)
        qpass(False, mid)
        self.stamp("f_kv")
        e("s_waitcnt vmcnt(0)")
        e(f"s_branch {Lred}")
        e.label(Lnkw)
        Lw0 = e.newlabel("FW0"); Lw1 = e.newlabel("FW1")
        e(f"s_cmp_ge_u32 s{sR}, 97\ns_cbranch_scc1 {Lw0}")
        prep_process()
        Lw2 = e.newlabel("FW2")
        e(f"s_cmp_eq_u32 s{sW}, 0\ns_cbranch_scc1 {Lw2}")
        e(f"s_waitcnt vmcnt(8)\ns_branch {Lw1}")
        e.label(Lw2)
        e(f"s_waitcnt vmcnt(9)\ns_branch {Lw1}")
        e.label(Lw0)
        e("s_waitcnt vmcnt(0)")
        e.label(Lw1)
        self.tag_from(231)
        e("s_barrier")
        e.label(Lqs)
        self.stamp("f_landed")
        fq = getattr(self, "light", None) == "fq"
        if fq: self.lstamp(0)
        xreads()
        if fq: self.lstamp(1)
        qpass(True, after_stats=(lambda: self.lstamp(2)) if fq else None)
        if fq: self.lstamp(3)
        e(f"s_lshl_b32 s{sT0}, s{sW}, 8\ns_add_u32 s{sT0}, s{sT0}, {STX2}")
        stats_write(sT0)
        e.label(Lred)
        self.reduce_pair(red=RED)
        if fq: self.lstamp(4)
        Lst = e.newlabel("FST"); Lst2 = e.newlabel("FST2")
        e(f"s_lshl_b32 s{sT1}, s{sKH}, 8\ns_add_u32 s{sT1}, s{sT1}, {CSP}")
        e(f"v_lshrrev_b32 v228, 5, v{vL}\nv_lshlrev_b32 v228, 4, v228\nv_add_u32 v228, s{sT1}, v228")
        for q in range(4):
            e(f"ds_read_b128 v[{196+4*q}:{199+4*q}], v228 offset:{32*q}\nds_read_b128 v[{112+4*q}:{115+4*q}], v228 offset:{128+32*q}")
        e(f"s_cmp_eq_u32 s{sP}, s{sJ}\ns_cbranch_scc1 {Lst}")
        e(f"s_lshl_b32 s{sT0}, s{sP}, 8\ns_add_u32 s{sT0}, s{sT0}, {STX2}")
        stats_read(sT0, 512)
        e.label(Lst)
        e("s_waitcnt lgkmcnt(0)")
        for r in range(0, 16, 2): e(f"v_pk_add_f32 v[{196+r}:{197+r}], v[{196+r}:{197+r}], v[{112+r}:{113+r}]")
        if fq: self.lstamp(5)
        self.q_epilogue(196, 178, 179)
        if fq:
            self.lstamp(6); self.lstamp(7); self.lflush("fq")
        self.stamp("f_q")
        e(f"s_mov_b32 s{sRANK}, s{sR}")
        e.reset_counters()

    def half_setup(self):
        e = self.e
        e(f"s_lshl_b32 s{sT0}, s{sHALF}, 22")
        e(f"s_add_u32 s{sXIN}, s{sT0}, {X0}\ns_add_u32 s{sXMID}, s{sXIN}, 0x200000\ns_add_u32 s{sXOUT}, s{sXIN}, 0x400000")
        e(f"s_lshl_b32 s{sT0}, s{sHALF}, 19")
        e(f"s_add_u32 s{sSTIN}, s{sT0}, {ST0}\ns_add_u32 s{sSTMID}, s{sSTIN}, 0x40000\ns_add_u32 s{sSTOUT}, s{sSTIN}, 0x80000")
        e(f"s_lshl_b32 s{sT0}, s{sHALF}, 21")
        e(f"s_add_u32 s{sOA}, s{sT0}, {OA}\ns_add_u32 s{sOB}, s{sT0}, {OB}")
        e(f"s_lshl_b32 s{sT0}, s{sHALF}, 20\ns_add_u32 s{sHX}, s{sT0}, {HX}")
        e(f"s_lshl_b32 s{sT0}, s{sHALF}, 18\ns_add_u32 s{sKF}, s{sT0}, {KF}")
        e(f"s_lshl_b32 s{sT0}, s{sHALF}, 14\ns_add_u32 s{sFLC}, s{sT0}, {FL_C}")
        e(f"s_lshl_b32 s{sT0}, s{sHALF}, 18\ns_add_u32 s{sSTH}, s{sT0}, {STH}")


    def w_pair_bases(self, wb, sK, sS):
        e = self.e
        e(f"s_lshl_b32 s{sT2}, s{sKH}, 14")
        e(f"s_add_u32 s{sK}, s{sNB}, {wb}\ns_lshl_b32 s{sK}, s{sK}, 15\ns_add_u32 s{sK}, s{sK}, s{sT2}\ns_add_u32 s{sK}, s{sK}, {WF}")
        e(f"s_xor_b32 s{sS}, s{sNB}, 1\ns_add_u32 s{sS}, s{sS}, {wb}\ns_lshl_b32 s{sS}, s{sS}, 15\ns_add_u32 s{sS}, s{sS}, s{sT2}\ns_add_u32 s{sS}, s{sS}, {WF}")
    def alias_setup(self):
        if getattr(self, "noalias", False): return
        e = self.e
        L = e.newlabel("ALIAS")
        e(f"s_cmp_eq_u32 s{sMODE}, 0\ns_cbranch_scc1 {L}")
        e(f"s_mov_b32 s{sOA}, {OA}\ns_mov_b32 s{sOB}, {OA}")
        e(f"s_mov_b32 s{sXIN}, {X0 + 0x200000}\ns_mov_b32 s{sXMID}, {X0 + 0x200000}\ns_mov_b32 s{sXOUT}, {X0 + 0x200000}")
        e(f"s_mov_b32 s{sSTIN}, {ST0 + 0x40000}\ns_mov_b32 s{sSTMID}, {ST0 + 0x40000}\ns_mov_b32 s{sSTOUT}, {ST0 + 0x40000}")
        e.label(L)

    def wpair_dma3(self, wb, ldsbase):
        e = self.e
        L = e.newlabel("DMA3")
        e(f"s_cmp_eq_u32 s{sW}, 0\ns_cbranch_scc1 {L}")
        e(f"s_sub_u32 s{sT0}, s{sW}, 1\ns_mul_i32 s{sT0}, s{sT0}, {21*1024}\ns_add_u32 s{sA4}, s{sT0}, {ldsbase}")
        e(f"s_lshl_b32 s{sA5}, s{sJ}, 16\ns_add_u32 s{sA5}, s{sA5}, s{sT0}\ns_add_u32 s{sA5}, s{sA5}, {WF + wb*32768}")
        for t in range(22):
            if t % 4 == 0:
                e(f"s_mov_b32 m0, s{sA4}\ns_add_u32 s{sA4}, s{sA4}, 4096")
                if t: e(f"s_add_u32 s{sA5}, s{sA5}, 4096")
                else: e("s_nop 0")
            e(f"buffer_load_dwordx4 v{vL16}, s[{SRD_WS}:{SRD_WS+3}], s{sA5} offen offset:{(t%4)*1024} sc1 lds")
        e.label(L)

    def load_w_pair(self, wb, dk, ds, acc=True):
        self.w_pair_bases(wb, sT0, sT1)
        self.load_frags(dk, sT0, 16, acc=acc)
        return self.load_frags(ds, sT1, 16, acc=acc)

    def load_act_half(self, sbuf, nfirst=16):
        e = self.e
        e(f"s_lshl_b32 s{sACT}, s{sRB}, 15\ns_lshl_b32 s{sT1}, s{sKH}, 14\ns_add_u32 s{sACT}, s{sACT}, s{sT1}\ns_add_u32 s{sACT}, s{sACT}, s{sbuf}")
        self._act = {}
        for t in range(nfirst): self.act_issue(t)
        return self._act
    def act_issue(self, t):
        if t >= 16 or t in self._act: return
        e = self.e
        if t % 4 == 0 and t: e(f"s_add_u32 s{sACT}, s{sACT}, 4096")
        self._act[t] = self.ws_load(16 + 4 * t, f"s{sACT}", (t % 4) * 1024)

    RED = 131072; REDKV = 147456; VT = 151552
    WL0 = 0; WL1 = 65536
    WKVL = 0
    def reduce_pair(self, red=None, extra_write=None, after_writes=None, after_reads=None):
        e = self.e
        red = self.RED if red is None else red
        e(f"s_lshl_b32 s{sT0}, s{sW}, 12\ns_add_u32 s{sT0}, s{sT0}, {red}\nv_add_u32 v{vT0}, s{sT0}, v{vL16}")
        e(f"s_xor_b32 s{sT0}, s{sT0}, 8192\nv_add_u32 v{vT1}, s{sT0}, v{vL16}")
        for q in range(4):
            e(f"ds_write_b128 v{vT0}, v[{96+4*q}:{99+4*q}] offset:{q*1024}")
        if extra_write: extra_write()
        if after_writes: after_writes()
        e("s_waitcnt lgkmcnt(0)\ns_barrier")
        for q in range(4):
            e(f"ds_read_b128 v[{96+4*q}:{99+4*q}], v{vT1} offset:{q*1024}")
        if after_reads: after_reads()
        for q in range(4):
            e(f"s_waitcnt lgkmcnt({3-q})")
            for r in range(4 * q, 4 * q + 4, 2):
                e(f"v_pk_add_f32 v[{80+r}:{81+r}], v[{80+r}:{81+r}], v[{96+r}:{97+r}]")
        e.lg = []

    def load_cs(self, dst, sidx_expr_reg, vaddr):
        tok = None
        for q in range(4):
            tok = self.ws_load(dst + 4 * q, f"s{sidx_expr_reg}", 32 * q, voff=vaddr)
        return tok

    def dma(self, soff, imm):
        return self.e.vmem(f"buffer_load_dwordx4 v{vL16}, s[{SRD_WS}:{SRD_WS+3}], {soff} offen offset:{imm} sc1 lds")
    def wpair_dma_list(self, wb, ldsbase, sM, sS):
        setup = [f"s_lshl_b32 s{sT0}, s{sW}, 14", f"s_add_u32 s{sM}, s{sT0}, {ldsbase}",
                 f"s_lshl_b32 s{sS}, s{sJ}, 16", f"s_add_u32 s{sS}, s{sS}, s{sT0}", f"s_add_u32 s{sS}, s{sS}, {WF + wb*32768}"]
        items = []
        for g in range(4):
            for t in range(4):
                pre = [f"s_mov_b32 m0, s{sM}", f"s_add_u32 s{sM}, s{sM}, 4096"] if t == 0 else []
                post = [f"s_add_u32 s{sS}, s{sS}, 4096"] if t == 3 else []
                items.append((pre, f"buffer_load_dwordx4 v{vL16}, s[{SRD_WS}:{SRD_WS+3}], s{sS} offen offset:{t*1024} sc1 lds", post))
        return setup, items
    def emit_item(self, it):
        pre, ld, post = it
        for x in pre: self.e(x)
        t = self.e.vmem(ld)
        for x in post: self.e(x)
        return t
    def wpair_dma(self, wb, ldsbase):
        setup, items = self.wpair_dma_list(wb, ldsbase, sA4, sA5)
        for x in setup: self.e(x)
        t = None
        for it in items: t = self.emit_item(it)
        return t

    WR = 112
    def pair_addrs(self, ldsbase):
        e = self.e
        e(f"s_lshl_b32 s{sT2}, s{sKH}, 14\ns_lshl_b32 s{sT3}, s{sKH}, 15\ns_add_u32 s{sT3}, s{sT3}, s{sT2}\ns_add_u32 s{sT3}, s{sT3}, {ldsbase}\nv_add_u32 v{vWK}, s{sT3}, v{vL16}")
        e(f"s_xor_b32 s{sT3}, s{sKH}, 1\ns_lshl_b32 s{sT3}, s{sT3}, 15\ns_add_u32 s{sT3}, s{sT3}, s{sT2}\ns_add_u32 s{sT3}, s{sT3}, {ldsbase}\nv_add_u32 v{vWS}, s{sT3}, v{vL16}")
    def pair_prime(self):
        e = self.e; self._wt = {}
        for t in range(3): self._pair_read(t)
    def _pair_read(self, t):
        e = self.e; r = self.WR + (t % 4) * 8
        e.lds(f"ds_read_b128 v[{r}:{r+3}], v{vWK} offset:{t*1024}")
        self._wt[t] = e.lds(f"ds_read_b128 v[{r+4}:{r+7}], v{vWS} offset:{t*1024}")
    def pair_mfma(self, toks, inter=None, AH=None):
        AH = self.AH if AH is None else AH
        e = self.e
        for t in range(16):
            if t + 3 < 16: self._pair_read(t + 3)
            if toks is not None:
                self.act_issue(t + AH)
                e.wait_vm(toks[t])
            e.wait_lg(self._wt[t])
            r = self.WR + (t % 4) * 8
            e(f"v_mfma_f32_32x32x16_bf16 v[80:95], v[{r}:{r+3}], v[{16+4*t}:{19+4*t}], {'0' if t == 0 else 'v[80:95]'}")
            e(f"v_mfma_f32_32x32x16_bf16 v[96:111], v[{r+4}:{r+7}], v[{16+4*t}:{19+4*t}], {'0' if t == 0 else 'v[96:111]'}")
            if inter: inter(t)

    QL = 0; PS = 8192; SLOT = 2304; FAIL = 63488
    CSQ, CSKV = 180, 196
    def g4_prefetch_cs(self):
        e = self.e
        e(f"v_lshrrev_b32 v212, 5, v{vL}\nv_lshlrev_b32 v212, 4, v212")
        e(f"s_add_u32 s{sT0}, s{sNB}, {WB_Q}\ns_lshl_b32 s{sT0}, s{sT0}, 7\ns_add_u32 s{sT0}, s{sT0}, {CS}")
        self.load_cs(self.CSQ, sT0, 212)
        e(f"s_mov_b32 s{sT0}, {CS + WB_KV*128}")
        return self.load_cs(self.CSKV, sT0, 212)
    def g4_prefetch_kv(self):
        e = self.e
        L = e.newlabel("PFKV")
        e(f"s_cmp_eq_u32 s{sP}, s{sJ}\ns_cbranch_scc0 {L}")
        e(f"s_lshl_b32 s{sT2}, s{sKH}, 14\ns_add_u32 s{sT0}, s{sT2}, {WF + WB_KV*32768}")
        for t in range(16):
            if t % 4 == 0 and t: e(f"s_add_u32 s{sT0}, s{sT0}, 4096")
            e(f"buffer_load_dwordx4 a[{4*t}:{4*t+3}], v{vL16}, s[{SRD_WS}:{SRD_WS+3}], s{sT0} offen offset:{(t%4)*1024} sc1")
        e.label(L)

    def kv_epilogue(self, redkv, vt, CSKV, vmean, vrstd, pre=None, before_drain=None, defer_flag=False):
        e = self.e
        e(f"v_add_u32 v{vT0}, {redkv}, v{vL16}")
        for q in range(4):
            e(f"ds_read_b128 v[{96+4*q}:{99+4*q}], v{vT0} offset:{q*1024}")
        e(f"v_and_b32 v216, 31, v{vL}\nv_lshlrev_b32 v216, 5, v216\nv_lshrrev_b32 v217, 5, v{vL}\nv_lshl_add_u32 v216, v217, 3, v216\nv_add_u32 v216, {vt}, v216")
        e(f"v_and_b32 v218, 15, v{vL}\nv_bfe_u32 v219, v{vL}, 4, 1\nv_lshlrev_b32 v219, 4, v219\nv_lshl_add_u32 v219, v217, 2, v219\nv_lshrrev_b32 v220, 2, v218\nv_add_u32 v219, v219, v220\nv_lshlrev_b32 v219, 5, v219")
        e(f"v_and_b32 v220, 3, v218\nv_lshl_add_u32 v219, v220, 3, v219\nv_add_u32 v219, {vt}, v219")
        e(f"v_bfe_u32 v220, v{vL}, 4, 1\nv_mul_u32_u24 v220, 544, v220\nv_mul_u32_u24 v222, 272, v217\nv_add_u32 v220, v220, v222\nv_lshl_add_u32 v220, v218, 4, v220")
        e(f"s_lshl_b32 s{sT0}, s{sRB}, 10\ns_add_u32 s{sT0}, s{sT0}, s{sKF}")
        e(f"s_mul_i32 s{sT1}, s{sRB}, {VT_STRIDE}\ns_add_u32 s{sT1}, s{sT1}, s{sKF}\ns_add_u32 s{sT1}, s{sT1}, 0x10000")
        e(f"v_mul_u32_u24 v222, 272, v{vL}\nv_add_u32 v222, 256, v222")
        for r in range(4): e(f"v_mov_b32 v{224+r}, 0x3f803f80")
        e(f"s_mov_b64 exec, 0xf\nbuffer_store_dwordx4 v[224:227], v222, s[{SRD_WS}:{SRD_WS+3}], s{sT1} offen sc1\ns_mov_b64 exec, -1")
        e("s_waitcnt lgkmcnt(0)")
        if pre: pre()
        e(f"v_mul_f32 v214, v{vmean}, v{vrstd}\nv_sub_f32 v214, 0, v214\nv_mov_b32 v212, v{vrstd}")
        for r in range(0, 16, 2):
            e(f"v_pk_add_f32 v[{144+r}:{145+r}], v[{144+r}:{145+r}], v[{96+r}:{97+r}]")
        for r in range(0, 16, 2):
            e(f"v_pk_mul_f32 v[{96+r}:{97+r}], v[{CSKV+r}:{CSKV+r+1}], v[214:215] op_sel_hi:[1,0]")
        for r in range(0, 16, 2):
            e(f"v_pk_fma_f32 v[{144+r}:{145+r}], v[{144+r}:{145+r}], v[212:213], v[{96+r}:{97+r}] op_sel_hi:[1,0,1]")
        for d in range(8):
            e(f"v_cvt_pk_bf16_f32 v{96+d}, v{144+2*d}, v{145+2*d}")
        e("ds_write_b64 v216, v[96:97]\nds_write_b64 v216, v[98:99] offset:16")
        e(f"buffer_store_dwordx4 v[100:103], v{vL16}, s[{SRD_WS}:{SRD_WS+3}], s{sT0} offen sc1")
        e("s_waitcnt lgkmcnt(0)")
        e("ds_read_b64_tr_b16 v[104:105], v219\nds_read_b64_tr_b16 v[106:107], v219 offset:256\ns_waitcnt lgkmcnt(0)")
        e(f"buffer_store_dwordx4 v[104:107], v220, s[{SRD_WS}:{SRD_WS+3}], s{sT1} offen sc1")
        if not defer_flag: self.kv_flag()

    def kv_flag(self):
        e = self.e
        e(f"s_lshl_b32 s{sT4}, s{sHALF}, 11\ns_lshl_b32 s{sT5}, s{sRB}, 2\ns_add_u32 s{sT4}, s{sT4}, s{sT5}\ns_add_u32 s{sT4}, s{sT4}, {FL_GK}")
        e(f"v_lshlrev_b32 v220, 8, v{vL}\nv_mov_b32 v221, s{sTAG}")
        e("s_waitcnt vmcnt(0)")
        e(f"s_mov_b64 exec, 0xff\nbuffer_store_dword v221, v220, s[{SRD_WS}:{SRD_WS+3}], s{sT4} offen sc1\ns_mov_b64 exec, -1")

    def q_epilogue(self, CSQ, vmean, vrstd):
        e = self.e
        e(f"v_mul_f32 v214, {fbits(QSCALE)}, v{vrstd}")
        e(f"v_mul_f32 v216, v{vmean}, v214\nv_sub_f32 v216, 0, v216")
        e(f"s_lshl_b32 s{sT0}, s{sKH}, 2\ns_add_u32 s{sT0}, s{sT0}, s{sP}\ns_lshl_b32 s{sT0}, s{sT0}, 10\nv_add_u32 v{vT0}, s{sT0}, v{vL16}")
        for r in range(0, 16, 2):
            e(f"v_pk_mul_f32 v[{96+r}:{97+r}], v[{CSQ+r}:{CSQ+r+1}], v[216:217] op_sel_hi:[1,0]")
        for r in range(0, 16, 2):
            e(f"v_pk_fma_f32 v[{80+r}:{81+r}], v[{80+r}:{81+r}], v[214:215], v[{96+r}:{97+r}] op_sel_hi:[1,0,1]")
        for d in range(8):
            e(f"v_cvt_pk_bf16_f32 v{96+d}, v{80+2*d}, v{81+2*d}")
        e(f"ds_write_b128 v{vT0}, v[96:99] offset:{self.QL}\nds_write_b128 v{vT0}, v[100:103] offset:{self.QL+2048}")

    def g4(self):
        e = self.e
        CSQ, CSKV = self.CSQ, self.CSKV
        Lq = e.newlabel("G4Q"); Lb1 = e.newlabel("G4B1"); Lq2 = e.newlabel("G4Q2"); Lred = e.newlabel("G4RED")
        toks = self.load_act_half(sXIN, self.AH)
        e(f"v_and_b32 v176, 31, v{vL}\nv_lshlrev_b32 v176, 3, v176\nv_lshrrev_b32 v177, 5, v{vL}\nv_lshl_add_u32 v176, v177, 11, v176")
        e(f"s_lshl_b32 s90, s{sRB}, 12\ns_add_u32 s90, s90, s{sSTIN}")
        def stat_inter(t):
            t0 = 16 - self.AH
            if t0 <= t <= t0 + 3:
                for q in (2 * (t - t0), 2 * (t - t0) + 1):
                    self.ws_load(160 + 2 * q, "s90", q * 256, voff=176, n=2)
        self.pair_addrs(self.WL1)
        saved = list(e.vm); saved_act = dict(self._act)
        e(f"s_cmp_eq_u32 s{sP}, s{sJ}\ns_cbranch_scc0 {Lq}")
        for t in range(16):
            self.act_issue(t + self.AH)
            e.wait_vm(toks[t])
            e(f"v_mfma_f32_32x32x16_bf16 v[144:159], a[{4*t}:{4*t+3}], v[{16+4*t}:{19+4*t}], {'0' if t == 0 else 'v[144:159]'}")
            stat_inter(t)
        e(f"s_cmp_eq_u32 s{sKH}, 0\ns_cbranch_scc1 {Lb1}")
        e(f"v_add_u32 v{vT0}, {self.REDKV}, v{vL16}")
        for q in range(4):
            e(f"ds_write_b128 v{vT0}, v[{144+4*q}:{147+4*q}] offset:{q*1024}")
        e("s_waitcnt lgkmcnt(0)")
        e(f"s_branch {Lb1}")
        e.label(Lq)
        e.vm = list(saved); e.lg = []
        self._act = saved_act
        e(f"s_lshl_b32 s{sACT}, s{sRB}, 15\ns_lshl_b32 s{sT1}, s{sKH}, 14\ns_add_u32 s{sACT}, s{sACT}, s{sT1}\ns_add_u32 s{sACT}, s{sACT}, s{sXIN}\ns_add_u32 s{sACT}, s{sACT}, {((self.AH-1)//4)*4096}")
        self.pair_prime()
        self.pair_mfma(self._act, stat_inter)
        e.label(Lb1)
        e("s_waitcnt vmcnt(0)"); e.reset_counters()
        self.stats_finish(160, 178, 179)
        e(f"s_cmp_ge_u32 s{sJ}, 2\ns_cbranch_scc1 {Lred}")
        e("s_barrier")
        e(f"s_cmp_eq_u32 s{sP}, s{sJ}\ns_cbranch_scc0 {Lred}")
        e(f"s_cmp_lg_u32 s{sKH}, 0\ns_cbranch_scc1 {Lq2}")
        self.kv_epilogue(self.REDKV, self.VT, CSKV, 178, 179, defer_flag=True)
        e.label(Lq2)
        e.lg = []
        self.pair_prime()
        def g4mid(t):
            if t == 7:
                Lm = e.newlabel("G4KF")
                e(f"s_cmp_lg_u32 s{sKH}, 0\ns_cbranch_scc1 {Lm}")
                self.kv_flag()
                self.stamp("g4kv")
                e.label(Lm)
        self.pair_mfma(None, g4mid)
        e.label(Lred)
        e.lg = []
        self.reduce_pair()
        self.q_epilogue(CSQ, 178, 179)
        e.reset_counters()

    def att_unit(self, u, Sc, Sn, Pc, Pn, Qnext, Oc, Oprev, extra, first, cin="0"):
        e = self.e
        tn = (u + 1) % 16; tp = (u - 1) % 16
        for x in extra.get(-1, []): e(x)
        for i in range(16):
            if i == 2 and Qnext is not None: e(f"v_mfma_f32_32x32x16_bf16 {v(Sn,16)}, {a(4*tn,4)}, {v(Qnext,4)}, {cin}")
            if i == 7: e(f"v_mfma_f32_32x32x16_bf16 {v(Oprev,16)}, {a(64+8*tp+4,4)}, {v(Pn+4,4)}, {v(Oprev,16)}")
            if i == 12: e(f"v_mfma_f32_32x32x16_bf16 {v(Oc,16)}, {a(64+8*u,4)}, {v(Pc,4)}, {'0' if first else v(Oc,16)}")
            e(f"v_exp_f32 v{Sc+i}, v{Sc+i}")
            pk = (lambda d, lo, hi: f"v_perm_b32 v{d}, v{hi}, v{lo}, s{sPERM}") if getattr(self, "attperm", False) else (lambda d, lo, hi: f"v_cvt_pk_bf16_f32 v{d}, v{lo}, v{hi}")
            if i == 0: e(pk(Pn+7, Sn+14, Sn+15))
            if i >= 3 and (i - 3) % 2 == 0:
                k = (i - 3) // 2
                e(pk(Pc+k, Sc+2*k, Sc+2*k+1))
            for x in extra.get(i, []): e(x)

    def attention(self):
        e = self.e
        QA, QB = 16, 20
        S = [32, 48]; P = [64, 72]; O = [80, 96]
        PS, SL, QL, WS1 = self.PS, self.SLOT, self.QL, self.WL1
        sM0V, sSOFF = sA4, sA5
        sK, sV = 88, 89
        if getattr(self, "attperm", False): e(f"s_mov_b32 s{sPERM}, 0x07060302")
        self.g2_w_bases()
        e(f"v_mov_b32 v27, 0\nds_write_b32 v27, v27 offset:{self.FAIL}\ns_mov_b32 s{sFB}, 0")
        for r in range(8): e(f"v_mov_b32 v{P[1]+r}, 0")
        for r in range(2): e(f"v_mov_b32 v{S[1]+14+r}, 0")
        e(f"s_mul_i32 s{sT0}, s{sW}, {6*SL}\ns_add_u32 s{sT0}, s{sT0}, {PS}\nv_add_u32 v24, s{sT0}, v{vL16}\ns_add_u32 s{sT0}, s{sT0}, 2048\nv_add_u32 v25, s{sT0}, v{vL4}")
        setup, dmaitems = self.wpair_dma_list(WB_OA, WS1, sM0V, sSOFF)
        for x in setup: e(x)
        e(f"v_and_b32 v27, 31, v{vL}\nv_min_u32 v26, 16, v27\nv_lshlrev_b32 v26, 4, v26\nv_lshrrev_b32 v29, 5, v{vL}\nv_mul_u32_u24 v29, 272, v29\nv_add_u32 v26, v26, v29")
        e(f"v_and_b32 v29, 27, v27\nv_cmp_eq_u32 vcc, 16, v29\nv_cmp_gt_u32 s[{sM0}:{sM0+1}], 16, v27\ns_or_b64 vcc, vcc, s[{sM0}:{sM0+1}]\nv_mov_b32 v29, {WS_BYTES}\nv_cndmask_b32 v26, v29, v26, vcc")
        e(f"s_mov_b32 s{sLOOP}, 0\ns_lshl_b32 s{sT2}, s{sW}, 1\ns_add_u32 s{sT2}, s{sT2}, 2\ns_and_b32 s{sT2}, s{sT2}, 7")
        e(f"s_lshl_b32 s{sT2}, s{sT2}, 10\nv_add_u32 v28, s{sT2}, v{vL16}")
        e("s_waitcnt lgkmcnt(0)")
        self.stamp("att_poll")
        L = e.newlabel("GK")
        e(f"s_cmp_lg_u32 s{sW}, 0\ns_cbranch_scc1 {L}")
        Lm = e.newlabel("NOMODE")
        e(f"s_cmp_lg_u32 s{sHALF}, 0\ns_cbranch_scc1 {Lm}")
        self.mode_detect()
        e.label(Lm)
        e(f"s_lshl_b32 s{sT0}, s{sHALF}, 11\ns_and_b32 s{sT1}, s{sG}, 7\ns_lshl_b32 s{sT1}, s{sT1}, 8\ns_add_u32 s{sT0}, s{sT0}, s{sT1}\ns_add_u32 s{sT0}, s{sT0}, {FL_GK}")
        def setup_():
            e(f"buffer_load_dword v17, v{vL4}, s[{SRD_WS}:{SRD_WS+3}], s{sT0} offen sc1\ns_waitcnt vmcnt(0)")
            e(f"v_cmp_ne_u32 vcc, s{sTAG}, v17")
        self.poll("g", setup_)
        L2 = e.newlabel("EPOCH")
        e(f"s_cmp_lg_u32 s{sG}, 0\ns_cbranch_scc1 {L2}\ns_cmp_eq_u32 s{sHALF}, 0\ns_cbranch_scc1 {L2}")
        e(f"v_mov_b32 v16, 0\nv_mov_b32 v17, s{sTAG}\ns_mov_b64 exec, 1\nbuffer_store_dword v17, v16, s[{SRD_WS}:{SRD_WS+3}], 0 offen sc0 sc1\ns_mov_b64 exec, -1\ns_waitcnt vmcnt(0)")
        e.label(L2)
        e.label(L)
        e("s_waitcnt vmcnt(0)")
        e("s_barrier")
        Lm2 = e.newlabel("NOMODE2"); Lpf = e.newlabel("NOPF")
        e(f"s_cmp_lg_u32 s{sHALF}, 0\ns_cbranch_scc1 {Lm2}")
        self.mode_read()
        self.alias_setup()
        e(f"s_cmp_ge_u32 s{sRANK}, 97\ns_cbranch_scc1 {Lpf}\ns_cmp_lg_u32 s{sW}, 0\ns_cbranch_scc1 {Lpf}")
        e(f"v_lshlrev_b32 v16, 9, v{vL}\ns_lshl_b32 s{sT0}, s{sRANK}, 2\ns_add_u32 s{sT0}, s{sT0}, {FL_G0}\nv_mov_b32 v17, s{sTAG}")
        e(f"s_mov_b64 exec, 0xff\nbuffer_store_dword v17, v16, s[{SRD_WS}:{SRD_WS+3}], s{sT0} offen sc1\ns_mov_b64 exec, -1")
        e.label(Lpf)
        e.label(Lm2)
        self.stamp("att_start")
        e.reset_counters()
        e(f"ds_read_b128 v[{QA}:{QA+3}], v28 offset:{QL}")
        e(f"s_lshl_b32 s{sK}, s{sW}, 14\ns_add_u32 s{sK}, s{sK}, s{sKF}")
        e(f"s_mul_i32 s{sV}, s{sW}, {16*VT_STRIDE}\ns_add_u32 s{sV}, s{sV}, s{sKF}\ns_add_u32 s{sV}, s{sV}, 0x10000")
        def kv_lines(t):
            Ls = []
            if t % 4 == 0 and t: Ls += [f"s_add_u32 s{sK}, s{sK}, 4096"]
            if t % 2 == 0 and t: Ls += [f"s_add_u32 s{sV}, s{sV}, {2*VT_STRIDE}"]
            vo = (t % 2) * VT_STRIDE
            Ls += [f"buffer_load_dwordx4 a[{4*t}:{4*t+3}], v{vL16}, s[{SRD_WS}:{SRD_WS+3}], s{sK} offen offset:{(t%4)*1024} sc1",
                   f"buffer_load_dwordx4 a[{64+8*t}:{67+8*t}], v26, s[{SRD_WS}:{SRD_WS+3}], s{sV} offen offset:{vo} sc1",
                   f"buffer_load_dwordx4 a[{68+8*t}:{71+8*t}], v26, s[{SRD_WS}:{SRD_WS+3}], s{sV} offen offset:{vo+544} sc1"]
            return Ls
        AHEAD = 4
        for t in range(AHEAD):
            for x in kv_lines(t): e(x)
        e(f"s_waitcnt vmcnt({3*AHEAD-1}) lgkmcnt(0)")
        e(f"v_mfma_f32_32x32x16_bf16 {v(S[0],16)}, {a(0,4)}, {v(QA,4)}, 0")
        e("s_nop 7\ns_nop 7")
        self.stamp("att_kv")
        def wA_line(f):
            sb = sT7 if f < 16 else sT6
            pre = [f"s_add_u32 s{sb}, s{sA2}, {(f//4)*4096}"] if f % 4 == 0 else []
            return pre + [f"buffer_load_dwordx4 a[{4*f}:{4*f+3}], v{vL16}, s[{SRD_WS}:{SRD_WS+3}], s{sb} offen offset:{(f%4)*1024} sc1"]
        def position(pos, kind):
            Qc, Qn = (QA, QB) if pos == 0 else (QB, QA)
            Oc, On = (O[0], O[1]) if pos == 0 else (O[1], O[0])
            for u in range(16):
                c = u & 1; n = c ^ 1
                extra = {}
                if kind == 'first':
                    issued = min(AHEAD + u, 16)
                    need_idx = min(3 * (u + 1), 47) if u < 15 else 47
                    nw = 3*issued - need_idx - 1
                    if u in (13, 14): nw += 1
                    extra[-1] = [f"s_waitcnt vmcnt({nw})"]
                    if AHEAD + u < 16:
                        extra[3] = kv_lines(AHEAD + u)
                    if u == 12:
                        extra[5] = [f"s_and_b32 s{sT0}, s{sG}, 7", f"s_lshl_b32 s{sT0}, s{sT0}, 9", f"s_add_u32 s{sT0}, s{sT0}, {FL_G0}",
                                    f"v_lshlrev_b32 v29, 3, v{vL}",
                                    f"buffer_load_dwordx2 v[30:31], v29, s[{SRD_WS}:{SRD_WS+3}], s{sT0} offen sc1"]
                    if u == 15 and not getattr(self, "nopretouch", False):
                        Lh1 = e.newlabel("PTH1"); Lpd = e.newlabel("PTD")
                        srd = f"s[{SRD_WS}:{SRD_WS+3}]"
                        extra[10] = [f"s_cmp_lg_u32 s{sHALF}, 0", f"s_cbranch_scc1 {Lh1}",
                            f"s_add_u32 s{sT0}, s{sXMID}, s{sRBOFF}",
                            f"buffer_load_dwordx4 v[128:131], v{vL16}, {srd}, s{sT0} offen",
                            f"buffer_load_dwordx4 v[132:135], v{vL16}, {srd}, s{sT0} offen offset:1024",
                            f"s_add_u32 s{sT0}, s{sSTMID}, s{sSTOFF}", f"buffer_load_dword v136, v{vSTAT}, {srd}, s{sT0} offen",
                            f"s_lshl_b32 s{sT0}, s{sJ}, 2", f"s_add_u32 s{sT0}, s{sT0}, s{sW}", f"s_lshl_b32 s{sT0}, s{sT0}, 10", f"s_lshl_b32 s{sT1}, s{sC}, 16",
                            f"s_add_u32 s{sT0}, s{sT0}, s{sT1}", f"s_add_u32 s{sT0}, s{sT0}, s{sOA}", f"s_add_u32 s{sT1}, s{sT0}, 32768",
                            f"buffer_load_dwordx4 v[140:143], v{vL16}, {srd}, s{sT0} offen", f"buffer_load_dwordx4 v[144:147], v{vL16}, {srd}, s{sT1} offen",
                            f"s_branch {Lpd}", f"{Lh1}:",
                            f"v_and_b32 v139, 31, v{vL}", f"v_lshlrev_b32 v139, 11, v139", f"v_lshrrev_b32 v148, 5, v{vL}", f"v_lshl_add_u32 v139, v148, 4, v139",
                            f"s_lshl_b32 s{sT0}, s{sC}, 6", f"s_add_u32 s{sT0}, s{sT0}, s{sP}", f"s_lshl_b32 s{sT0}, s{sT0}, 10", f"s_lshl_b32 s{sT1}, s{sNB}, 6", f"s_add_u32 s{sT0}, s{sT0}, s{sT1}",
                            f"buffer_load_dwordx4 v[128:131], v139, s[{SRD_OUT}:{SRD_OUT+3}], s{sT0} offen",
                            f"{Lpd}:"]
                    if u == 15:
                        Lok = e.newlabel("G0OK"); Lp = e.newlabel("G0P")
                        chk = [f"v_xor_b32 v30, s{sTAG}, v30", f"v_xor_b32 v31, s{sTAG}, v31",
                               f"v_cmp_lt_u32 vcc, 48, v{vL}", "s_nop 1", "v_cndmask_b32 v30, v30, 0, vcc",
                               f"v_cmp_le_u32 vcc, 48, v{vL}", "s_nop 1", "v_cndmask_b32 v31, v31, 0, vcc",
                               "v_or_b32 v30, v30, v31", "v_cmp_ne_u32 vcc, 0, v30"]
                        extra[6] = chk + [f"s_cbranch_vccz {Lok}", f"s_mov_b32 s{sPOLL}, 0", f"{Lp}:",
                                          f"buffer_load_dwordx2 v[30:31], v29, s[{SRD_WS}:{SRD_WS+3}], s{sT0} offen sc1", "s_waitcnt vmcnt(0)"] + chk + \
                                         [f"s_cbranch_vccz {Lok}", f"s_add_u32 s{sPOLL}, s{sPOLL}, 1", f"s_cmp_lt_u32 s{sPOLL}, 400000", f"s_cbranch_scc1 {Lp}", "s_branch L_END", f"{Lok}:"]
                if u == 0 and kind != 'last':
                    extra[9] = ["v_add_u32 v28, 0x400, v28", "v_and_b32 v28, 0x1fff, v28"]
                if u == 1 and kind == 'loop':
                    extra[6] = [f"ds_write_b128 v24, v[{On}:{On+3}]", f"ds_write_b128 v24, v[{On+4}:{On+7}] offset:1024", f"ds_write_b32 v25, v{On+8}",
                                f"v_add_u32 v24, {SL}, v24", f"v_add_u32 v25, {SL}, v25"]
                if u == 4 and kind != 'last':
                    extra[5] = [f"ds_read_b128 v[{Qn}:{Qn+3}], v28 offset:{QL}"]
                if pos == 1 and kind == 'loop' and u == 2:
                    for t in range(4):
                        pre, ld, post = dmaitems[t]
                        extra[5 + 2 * t] = pre + [ld] + post
                if kind == 'last' and u == 0 and not getattr(self, "nopf", False):
                    Lp = e.newlabel("PF2")
                    extra[1] = [f"s_lshr_b32 s{sT4}, s{sG}, 3", f"s_lshl_b32 s{sT4}, s{sT4}, 2", f"s_add_u32 s{sT4}, s{sT4}, s{sW}", f"s_lshl_b32 s{sT4}, s{sT4}, 10",
                                f"s_add_u32 s{sT5}, s{sT4}, 1024", f"s_cmp_gt_u32 s{sT5}, L_CODE_END-L_PFBASE", f"s_cbranch_scc1 {Lp}",
                                f"s_add_u32 s{sT4}, s{sT4}, s{sPFB}", f"s_addc_u32 s{sT5}, s{sPFB+1}, 0",
                                f"global_load_dwordx4 v[128:131], v{vL16}, s[{sT4}:{sT4+1}]", f"{Lp}:"]
                if kind == 'last':
                    if u < 4:
                        pre, ld, post = dmaitems[u]
                        extra[8] = pre + [ld] + post
                    extra.setdefault(4, []).extend(wA_line(u))
                    if u >= 2: extra.setdefault(10, []).extend(wA_line(16 + u - 2))
                    if u >= 14: extra.setdefault(13, []).extend(wA_line(16 + u))
                if u == 14 and kind != 'last':
                    extra.setdefault(4, []).append("s_waitcnt lgkmcnt(0)")
                if u == 15 and kind != 'last' and not getattr(self, "unroll", False):
                    extra[14] = [f"s_add_u32 s{sLOOP}, s{sLOOP}, 1"]
                Qx = Qn if u == 15 else Qc
                if u == 15 and kind == 'last': Qx = None
                Op = On if u == 0 else Oc
                self.att_unit(u, S[c], S[n], P[c], P[n], Qx, Oc, Op, extra, first=(u == 0))
        position(0, 'first')
        if getattr(self, "unroll", False):
            for it in range(3):
                position(1, 'loop')
                position(0, 'loop')
        else:
            Lloop = e.newlabel("ATTLOOP")
            e(".p2align 3")
            e.label(Lloop)
            position(1, 'loop')
            position(0, 'loop')
            e(f"s_cmp_lt_u32 s{sLOOP}, 7\ns_cbranch_scc1 {Lloop}")
        position(1, 'last')
        e(f"v_cvt_pk_bf16_f32 v{P[1]+7}, v{S[1]+14}, v{S[1]+15}")
        e(f"v_mfma_f32_32x32x16_bf16 {v(O[1],16)}, {a(64+8*15+4,4)}, {v(P[1]+4,4)}, {v(O[1],16)}")
        e.label("L_ATT_TAIL")
        for vis in range(3):
            e(f"s_sub_u32 s{sT0}, s{sW}, {1+vis}\ns_and_b32 s{sT0}, s{sT0}, 3\ns_mul_i32 s{sT0}, s{sT0}, {6*SL}\ns_add_u32 s{sT0}, s{sT0}, {PS + 2*vis*SL}")
            e(f"v_add_u32 v{24+vis}, s{sT0}, v{vL16}\ns_add_u32 s{sT0}, s{sT0}, 2048\nv_add_u32 v{28+vis}, s{sT0}, v{vL4}")
        e("s_waitcnt vmcnt(27) lgkmcnt(0)\ns_barrier")
        self.stamp("att_loopend")
        slots = {}
        base = [32, 44, 56, 68, 112, 16]
        k = 0
        for pp in range(2):
            for vis in range(3):
                b = base[k]; k += 1; slots[(pp, vis)] = b
                lreg = 31 if b == 16 else b + 8
                e(f"ds_read_b128 v[{b}:{b+3}], v{24+vis} offset:{pp*SL}\nds_read_b128 v[{b+4}:{b+7}], v{24+vis} offset:{pp*SL+1024}\nds_read_b32 v{lreg}, v{28+vis} offset:{pp*SL}")
        e(f"s_lshl_b32 s{sT0}, s{sJ}, 2\ns_add_u32 s{sT0}, s{sT0}, s{sW}\ns_lshl_b32 s{sT0}, s{sT0}, 10")
        e(f"s_lshl_b32 s{sT1}, s{sC}, 16\ns_add_u32 s{sT0}, s{sT0}, s{sT1}\ns_add_u32 s{sT0}, s{sT0}, s{sOA}\ns_add_u32 s{sT1}, s{sT0}, 32768")
        tok = None
        for pp in range(2):
            Oo = O[pp]
            e(f"s_waitcnt lgkmcnt({9 if pp == 0 else 0})")
            for vis in range(3):
                b = slots[(pp, vis)]
                e(f"v_add_f32 v{Oo+8}, v{Oo+8}, v{31 if b == 16 else b + 8}")
                for r in range(0, 8, 2):
                    e(f"v_pk_add_f32 v[{Oo+r}:{Oo+r+1}], v[{Oo+r}:{Oo+r+1}], v[{b+r}:{b+r+1}]")
            e(f"v_rcp_f32 v{Oo+10}, v{Oo+8}")
            for r in range(0, 8, 2):
                e(f"v_pk_mul_f32 v[{Oo+r}:{Oo+r+1}], v[{Oo+r}:{Oo+r+1}], v[{Oo+10}:{Oo+11}] op_sel_hi:[1,0]")
            for d in range(4):
                e(f"v_cvt_pk_bf16_f32 v{Oo+12+d}, v{Oo+2*d}, v{Oo+2*d+1}")
            tok = self.moded(lambda fl: self.ws_store(Oo + 12, f"s{sT0 if pp == 0 else sT1}", 0, flag=fl))
        e(f"v_cmp_nle_f32 vcc, 0x1f800000, v{O[0]+8}\ns_mov_b64 s[{sBAD}:{sBAD+1}], vcc")
        e(f"v_cmp_nge_f32 vcc, 0x5f800000, v{O[0]+8}\ns_or_b64 s[{sBAD}:{sBAD+1}], s[{sBAD}:{sBAD+1}], vcc")
        e(f"v_cmp_nle_f32 vcc, 0x1f800000, v{O[1]+8}\ns_or_b64 s[{sBAD}:{sBAD+1}], s[{sBAD}:{sBAD+1}], vcc")
        e(f"v_cmp_nge_f32 vcc, 0x5f800000, v{O[1]+8}\ns_or_b64 s[{sBAD}:{sBAD+1}], s[{sBAD}:{sBAD+1}], vcc")
        Lok = e.newlabel("LSUMOK")
        e(f"s_cmp_eq_u64 s[{sBAD}:{sBAD+1}], 0\ns_cbranch_scc1 {Lok}")
        e(f"v_mov_b32 v24, 1\nv_mov_b32 v25, 0\nds_write_b32 v25, v24 offset:{self.FAIL}")
        e.label(Lok)
        return tok

    def fallback_check(self):
        e = self.e
        L = e.newlabel("NOFB")
        e(f"v_mov_b32 v16, 0\nds_read_b32 v17, v16 offset:{self.FAIL}\ns_waitcnt lgkmcnt(0)\nv_readfirstlane_b32 s{sT0}, v17")
        e(f"s_cmp_eq_u32 s{sT0}, 0\ns_cbranch_scc1 {L}\ns_cmp_eq_u32 s{sFB}, 0\ns_cbranch_scc1 L_FALLBACK")
        e.label(L)

    def fallback(self):
        e = self.e
        PS, SL, QL = self.PS, self.SLOT, self.QL
        MX = 131072
        K, V, Q, S, P, CM, M, ACC = 128, 132, 140, 144, 160, 168, 184, 192
        sI, sT, sKA, sVA, sB = 88, 89, 90, 92, 93
        e.label("L_FALLBACK")
        e(f"s_mov_b32 s{sFB}, 1\ns_waitcnt vmcnt(0) lgkmcnt(0)")
        e(f"v_and_b32 v187, 31, v{vL}\nv_min_u32 v186, 16, v187\nv_lshlrev_b32 v186, 4, v186\nv_lshrrev_b32 v188, 5, v{vL}\nv_mul_u32_u24 v188, 272, v188\nv_add_u32 v186, v186, v188")
        e(f"v_and_b32 v188, 27, v187\nv_cmp_eq_u32 vcc, 16, v188\nv_cmp_gt_u32 s[{sM0}:{sM0+1}], 16, v187\ns_or_b64 vcc, vcc, s[{sM0}:{sM0+1}]\nv_mov_b32 v188, {WS_BYTES}\nv_cndmask_b32 v186, v188, v186, vcc")
        e(f"v_and_b32 v187, 31, v{vL}\nv_lshlrev_b32 v187, 2, v187")
        for ps in range(2):
            Li = e.newlabel("FBI"); Lt = e.newlabel("FBT")
            e(f"s_mov_b32 s{sI}, 0")
            e.label(Li)
            e(f"s_lshl_b32 s{sB}, s{sW}, 1\ns_add_u32 s{sB}, s{sB}, 2\ns_add_u32 s{sB}, s{sB}, s{sI}\ns_and_b32 s{sB}, s{sB}, 7")
            e(f"s_lshl_b32 s{sT0}, s{sB}, 10\nv_add_u32 v185, s{sT0}, v{vL16}\nds_read_b128 v[{Q}:{Q+3}], v185 offset:{QL}")
            if ps == 0:
                e(f"v_mov_b32 v{M}, 0xff800000")
            else:
                e(f"s_lshl_b32 s{sT0}, s{sB}, 9\ns_add_u32 s{sT0}, s{sT0}, {MX}\nv_add_u32 v185, s{sT0}, v187")
                e(f"ds_read_b32 v{M}, v185\nds_read_b32 v189, v185 offset:128\nds_read_b32 v190, v185 offset:256\nds_read_b32 v191, v185 offset:384\ns_waitcnt lgkmcnt(0)")
                e(f"v_max_f32 v{M}, v{M}, v189\nv_max_f32 v190, v190, v191\nv_max_f32 v{M}, v{M}, v190")
                for r in range(16): e(f"v_sub_f32 v{CM+r}, 0, v{M}\nv_mov_b32 v{ACC+r}, 0")
            e(f"s_lshl_b32 s{sKA}, s{sW}, 14\ns_add_u32 s{sKA}, s{sKA}, s{sKF}")
            e(f"s_mul_i32 s{sVA}, s{sW}, {16*VT_STRIDE}\ns_add_u32 s{sVA}, s{sVA}, s{sKF}\ns_add_u32 s{sVA}, s{sVA}, 0x10000")
            e(f"s_mov_b32 s{sT}, 0")
            e.label(Lt)
            e(f"buffer_load_dwordx4 v[{K}:{K+3}], v{vL16}, s[{SRD_WS}:{SRD_WS+3}], s{sKA} offen sc1")
            if ps == 1:
                e(f"buffer_load_dwordx4 v[{V}:{V+3}], v186, s[{SRD_WS}:{SRD_WS+3}], s{sVA} offen sc1")
                e(f"buffer_load_dwordx4 v[{V+4}:{V+7}], v186, s[{SRD_WS}:{SRD_WS+3}], s{sVA} offen offset:544 sc1")
            e("s_waitcnt vmcnt(0) lgkmcnt(0)")
            e(f"v_mfma_f32_32x32x16_bf16 {v(S,16)}, {v(K,4)}, {v(Q,4)}, {'0' if ps == 0 else v(CM,16)}")
            if ps == 0:
                for r in range(0, 16, 2): e(f"v_max3_f32 v{M}, v{M}, v{S+r}, v{S+r+1}")
            else:
                for r in range(16): e(f"v_exp_f32 v{S+r}, v{S+r}")
                for d in range(8): e(f"v_cvt_pk_bf16_f32 v{P+d}, v{S+2*d}, v{S+2*d+1}")
                e(f"v_mfma_f32_32x32x16_bf16 {v(ACC,16)}, {v(V,4)}, {v(P,4)}, {v(ACC,16)}")
                e(f"v_mfma_f32_32x32x16_bf16 {v(ACC,16)}, {v(V+4,4)}, {v(P+4,4)}, {v(ACC,16)}")
            e(f"s_add_u32 s{sKA}, s{sKA}, 1024\ns_add_u32 s{sVA}, s{sVA}, {VT_STRIDE}\ns_add_u32 s{sT}, s{sT}, 1\ns_cmp_lt_u32 s{sT}, 16\ns_cbranch_scc1 {Lt}")
            if ps == 0:
                e(f"v_mov_b32 v189, v{M}\nv_permlane32_swap_b32 v{M}, v189\nv_max_f32 v{M}, v{M}, v189")
                e(f"s_lshl_b32 s{sT0}, s{sB}, 9\ns_lshl_b32 s{sT1}, s{sW}, 7\ns_add_u32 s{sT0}, s{sT0}, s{sT1}\ns_add_u32 s{sT0}, s{sT0}, {MX}\nv_add_u32 v185, s{sT0}, v187")
                e(f"ds_write_b32 v185, v{M}\ns_waitcnt lgkmcnt(0)")
            else:
                L6 = e.newlabel("FB6"); L7 = e.newlabel("FB7"); Ln = e.newlabel("FBN")
                e(f"s_cmp_eq_u32 s{sI}, 6\ns_cbranch_scc1 {L6}\ns_cmp_eq_u32 s{sI}, 7\ns_cbranch_scc1 {L7}")
                e(f"s_mul_i32 s{sT0}, s{sW}, 6\ns_add_u32 s{sT0}, s{sT0}, s{sI}\ns_mul_i32 s{sT0}, s{sT0}, {SL}\ns_add_u32 s{sT0}, s{sT0}, {PS}")
                e(f"v_add_u32 v185, s{sT0}, v{vL16}\ns_add_u32 s{sT0}, s{sT0}, 2048\nv_add_u32 v188, s{sT0}, v{vL4}")
                e(f"ds_write_b128 v185, v[{ACC}:{ACC+3}]\nds_write_b128 v185, v[{ACC+4}:{ACC+7}] offset:1024\nds_write_b32 v188, v{ACC+8}\ns_waitcnt lgkmcnt(0)\ns_branch {Ln}")
                e.label(L6)
                for r in range(9): e(f"v_mov_b32 v{80+r}, v{ACC+r}")
                e(f"s_branch {Ln}")
                e.label(L7)
                for r in range(9): e(f"v_mov_b32 v{96+r}, v{ACC+r}")
                e.label(Ln)
            e(f"s_add_u32 s{sI}, s{sI}, 1\ns_cmp_lt_u32 s{sI}, 8\ns_cbranch_scc1 {Li}")
            if ps == 0: e("s_barrier")
        e("s_waitcnt vmcnt(0) lgkmcnt(0)\ns_branch L_ATT_TAIL")

    def g2_w_bases(self):
        e = self.e
        e(f"s_lshl_b32 s{sT0}, s{sJ}, 1")
        tblA = [WB_BQ, WB_BK, WB_BK + 1, WB_BV + 1]; tblB = [WB_BQ + 1, WB_BK + 1, WB_BV, WB_BV]
        e(f"s_mov_b32 s{sA0}, {tblA[0]}\ns_mov_b32 s{sA1}, {tblB[0]}")
        for w in range(1, 4):
            e(f"s_cmp_eq_u32 s{sW}, {w}\ns_cselect_b32 s{sA0}, {tblA[w]}, s{sA0}\ns_cselect_b32 s{sA1}, {tblB[w]}, s{sA1}")
        e(f"s_add_u32 s{sA0}, s{sA0}, s{sT0}\ns_add_u32 s{sA1}, s{sA1}, s{sT0}")
        e(f"s_lshl_b32 s{sA2}, s{sA0}, 15\ns_add_u32 s{sA2}, s{sA2}, {WF}\ns_lshl_b32 s{sA3}, s{sA1}, 15\ns_add_u32 s{sA3}, s{sA3}, {WF}")
    def g2_w_load(self, f0, f1):
        e = self.e; tok = None
        cur = None
        for f in range(f0, f1):
            st = 0 if f < 32 else 1; ks = f % 32
            grp = (st, ks // 4)
            if grp != cur:
                e(f"s_add_u32 s{sT7}, s{sA2 if st == 0 else sA3}, {(ks//4)*4096}"); cur = grp
            tok = self.ws_load(st * 128 + 4 * ks, f"s{sT7}", (ks % 4) * 1024, acc=True)
        return tok

    def outproj(self, g1, sO, sXdst, sSTdst, sHXdst, wl, side=None, final=False, staged=False):
        e = self.e
        tag = "g1" if g1 else "g3"
        on = getattr(self, "light", None) == tag
        if on: self.lstamp(0)
        toks = self.load_act_half(sO, self.AH)
        self.pair_addrs(wl)
        if staged:
            e(f"s_waitcnt vmcnt({self.AH})\ns_barrier")
        e.lg = []
        self.pair_prime()
        if on:
            e.wait_vm(toks[0]); self.lstamp(1)
        side = list(side or [])
        def take(n):
            for _ in range(n):
                if side: self.emit_item(side.pop(0))
        self.pair_mfma(toks, lambda t: take(1) if t >= 16 - self.AH else None)
        if on: self.lstamp(2)
        for d in range(8):
            e(f"v_lshlrev_b32 v{16+2*d}, 16, v{XR+d}\nv_and_b32 v{17+2*d}, 0xffff0000, v{XR+d}")
            if d % 2 == 1: take(1)
        self.reduce_pair(after_writes=lambda: take(4), after_reads=lambda: take(100))
        if on: self.lstamp(3)
        for d in range(8):
            e(f"v_pk_add_f32 v[{80+2*d}:{81+2*d}], v[{80+2*d}:{81+2*d}], v[{16+2*d}:{17+2*d}]")
        for d in range(8):
            e(f"v_cvt_pk_bf16_f32 v{XR+d}, v{80+2*d}, v{81+2*d}")
        if final:
            for c in range(2):
                e(f"v_permlane32_swap_b32 v{XR+4*c}, v{XR+4*c+2}\nv_permlane32_swap_b32 v{XR+4*c+1}, v{XR+4*c+3}")
            for c in range(2):
                e(f"buffer_store_dwordx4 v[{XR+4*c}:{XR+4*c+3}], v{vOUT}, s[{SRD_OUT}:{SRD_OUT+3}], s{sAD} offen offset:{32*c} {getattr(self, 'outflag', '')}")
            self.stamp("end")
            e("s_endpgm")
            return None
        tok = self.publish_x(sXdst, sSTdst, sHXdst)
        if on:
            self.lstamp(4); self.lflush(tag)
        return tok

    XL = 0; QB_ = 98304; KB_ = 106496; VB_ = 118784; TB = 131072
    CSA, CSB, CSN = 176, 192, 208
    BIAS, BH = 210, 226
    def g2_const_items(self):
        srd = f"s[{SRD_WS}:{SRD_WS+3}]"
        its = []
        for q in range(4): its.append(([], f"buffer_load_dwordx4 v[{self.CSA+4*q}:{self.CSA+4*q+3}], v{vCSH}, {srd}, s{sCSA} offen offset:{32*q} sc1", []))
        for q in range(4): its.append(([], f"buffer_load_dwordx4 v[{self.CSB+4*q}:{self.CSB+4*q+3}], v{vCSH}, {srd}, s{sCSB} offen offset:{32*q} sc1", []))
        its.append(([], f"buffer_load_dword v{self.CSN}, v{vCSN}, {srd}, s{sCSA} offen sc1", []))
        its.append(([], f"buffer_load_dword v{self.CSN+1}, v{vCSN}, {srd}, s{sCSB} offen sc1", []))
        return its
    def g2_masks(self):
        e = self.e
        e(f"s_lshl_b32 s{sCSA}, s{sA0}, 7\ns_add_u32 s{sCSA}, s{sCSA}, {CS}\ns_lshl_b32 s{sCSB}, s{sA1}, 7\ns_add_u32 s{sCSB}, s{sCSB}, {CS}")
        NEG = "0xff800000"
        e(f"v_and_b32 v18, 31, v{vL}\nv_lshrrev_b32 v19, 5, v{vL}\nv_lshlrev_b32 v19, 2, v19\nv_sub_u32 v18, v18, v19")
        e(f"v_mov_b32 v19, {NEG}")
        for r in range(16):
            kk = 8 * (r >> 2) + (r & 3)
            e(f"v_subrev_u32 v20, {kk}, v18\nv_cmp_ge_u32 vcc, 7, v20\nv_cndmask_b32 v{212+r}, v19, 0, vcc")
        e(f"s_cmp_eq_u32 s{sC}, 0\ns_cselect_b32 s{sT0}, -64, 0")
        for jj in range(4):
            e(f"s_add_u32 s{sT1}, s{sT0}, {jj-1}\nv_cmp_ge_i32 vcc, s{sT1}, v18\nv_cndmask_b32 v{232+jj}, v19, 0, vcc\nv_mov_b32 v{240+jj}, v{232+jj}")
            e(f"v_mov_b32 v{228+jj}, 0\nv_mov_b32 v{236+jj}, 0")

    def g2_addrs(self):
        e = self.e
        sXB, sHB, sSB = 88, 89, 90
        TB = self.TB
        e(f"s_lshl_b32 s{sXB}, s{sC}, 16\ns_add_u32 s{sXB}, s{sXB}, s{sXMID}")
        sHS = 92
        e(f"v_and_b32 v18, 31, v{vL}\nv_lshrrev_b32 v19, 5, v{vL}")
        e(f"s_lshl_b32 s{sSB}, s{sC}, 1\ns_and_b32 s{sT5}, s{sW}, 1\ns_add_u32 s{sSB}, s{sSB}, s{sT5}\ns_lshl_b32 s{sSB}, s{sSB}, 12\ns_add_u32 s{sSB}, s{sSB}, s{sSTMID}")
        e(f"v_lshlrev_b32 v20, 3, v18\nv_lshl_add_u32 v20, v19, 11, v20")
        e(f"s_lshl_b32 s{sHS}, s{sHC}, 13\ns_add_u32 s{sHS}, s{sHS}, s{sSTH}")
        e("v_and_b32 v22, 15, v18\nv_add_u32 v22, 16, v22\nv_lshlrev_b32 v22, 3, v22\nv_lshrrev_b32 v23, 4, v18\nv_lshl_add_u32 v22, v23, 12, v22\nv_lshl_add_u32 v22, v19, 11, v22")
        e(f"s_lshl_b32 s93, s{sHALF}, 12\ns_lshl_b32 s{sT1}, s{sHC}, 7\ns_add_u32 s93, s93, s{sT1}\ns_add_u32 s93, s93, {FL_H}\nv_and_b32 v23, 7, v{vL}\nv_lshlrev_b32 v23, 2, v23")
        e(f"s_lshl_b32 s{sHB}, s{sHC}, 15\ns_add_u32 s{sHB}, s{sHB}, s{sHX}")
        e(f"v_and_b32 v134, 31, v{vL}\nv_lshlrev_b32 v134, 2, v134\nv_add_u32 v134, {TB}, v134")
        e(f"v_lshrrev_b32 v135, 5, v{vL}\nv_lshlrev_b32 v135, 4, v135\nv_add_u32 v135, {TB}, v135")
        e(f"v_add_u32 v21, 0x10000, v{vL16}")
        e(f"s_lshl_b32 s{sAD}, s{sHALF}, 12\ns_lshl_b32 s{sT1}, s{sC}, 7\ns_add_u32 s{sAD}, s{sAD}, s{sT1}\ns_add_u32 s{sAD}, s{sAD}, {FL_H}")

    def g2(self):
        e = self.e
        XL, QB_, KB_, VB_, TB = self.XL, self.QB_, self.KB_, self.VB_, self.TB
        CSA, CSB, CSN = self.CSA, self.CSB, self.CSN
        def dma(soff, imm): return e.vmem(f"buffer_load_dwordx4 v{vL16}, s[{SRD_WS}:{SRD_WS+3}], {soff} offen offset:{imm} sc1 lds")
        sXB, sHB, sSB = 88, 89, 90
        def grp(blk, ks_mul, ks_add, n):
            its = []
            for t in range(n):
                pre = []
                if t == 0:
                    pre = [f"s_mul_i32 s{sT1}, s{sW}, {ks_mul*1024}", f"s_add_u32 s{sT1}, s{sT1}, {blk*32768 + ks_add*1024}",
                           f"s_mov_b32 m0, s{sT1}", f"s_add_u32 s{sT2}, s{sXB}, s{sT1}"]
                its.append((pre, f"buffer_load_dwordx4 v{vL16}, s[{SRD_WS}:{SRD_WS+3}], s{sT2} offen offset:{t*1024} sc1 lds", []))
            return its
        def grp2(ks_mul, ks_add, n):
            its = []
            for t in range(n):
                pre = []
                if t % 4 == 0:
                    pre = [f"s_mul_i32 s{sT1}, s{sKH}, {ks_mul*1024}", f"s_lshl_b32 s{sT2}, s{sP}, 15", f"s_add_u32 s{sT1}, s{sT1}, s{sT2}",
                           f"s_add_u32 s{sT1}, s{sT1}, {(ks_add + t)*1024}", f"s_mov_b32 m0, s{sT1}", f"s_add_u32 s{sT3}, s{sXB}, s{sT1}"]
                its.append((pre, f"buffer_load_dwordx4 v{vL16}, s[{SRD_WS}:{SRD_WS+3}], s{sT3} offen offset:{(t%4)*1024} sc1 lds", []))
            return its
        C0 = grp2(3, 0, 3); C1 = grp2(5, 6, 5); C2 = grp2(8, 16, 8)
        tok0 = None; tok1 = None
        for it in C0: tok0 = self.emit_item(it)
        for it in C1: tok1 = self.emit_item(it)
        sHS = 92
        statitems = [([], f"buffer_load_dwordx2 v[{144+2*t}:{145+2*t}], v20, s[{SRD_WS}:{SRD_WS+3}], s{sSB} offen offset:{t*256} sc1", []) for t in range(8)]
        hstat = lambda dst: [([], f"buffer_load_dwordx2 v[{dst+2*t}:{dst+1+2*t}], v22, s[{SRD_WS}:{SRD_WS+3}], s{sHS} offen offset:{t*256} sc1", []) for t in range(8)]
        haloitems = []
        for t in range(8):
            pre = []
            if t == 0: pre = [f"s_lshl_b32 s{sT1}, s{sW}, 13", f"s_add_u32 s{sT2}, s{sHB}, s{sT1}", f"s_add_u32 s{sT1}, s{sT1}, 65536", f"s_mov_b32 m0, s{sT1}", "s_nop 0"]
            if t == 4: pre = [f"s_lshl_b32 s{sT1}, s{sW}, 13", f"s_add_u32 s{sT1}, s{sT1}, 4096", f"s_add_u32 s{sT2}, s{sHB}, s{sT1}", f"s_add_u32 s{sT1}, s{sT1}, 65536", f"s_mov_b32 m0, s{sT1}", "s_nop 0"]
            haloitems.append((pre, f"buffer_load_dwordx4 v{vL16}, s[{SRD_WS}:{SRD_WS+3}], s{sT2} offen offset:{(t%4)*1024} sc1 lds", []))
        def wB_item(ks):
            return ([f"s_add_u32 s{sT7}, s{sA3}, {(ks//4)*4096}"], f"buffer_load_dwordx4 a[{128+4*ks}:{131+4*ks}], v{vL16}, s[{SRD_WS}:{SRD_WS+3}], s{sT7} offen offset:{(ks%4)*1024} sc1", [])
        ACC = [32, 48, 64, 80]
        def xread(dst, blk, ks):
            off = blk * 32768 + ks * 1024
            if off < 65536: return e.lds(f"ds_read_b128 v[{dst}:{dst+3}], v{vL16} offset:{off}")
            return e.lds(f"ds_read_b128 v[{dst}:{dst+3}], v21 offset:{off-65536}")
        def mm(acc, wset, ks, xreg, orient, first):
            wr = a(wset * 128 + 4 * ks, 4); xr = v(xreg, 4); c = "0" if first else v(acc, 16)
            if orient == "T": e(f"v_mfma_f32_32x32x16_bf16 {v(acc,16)}, {wr}, {xr}, {c}")
            else: e(f"v_mfma_f32_32x32x16_bf16 {v(acc,16)}, {xr}, {wr}, {c}")
        RN = 4
        def epi(acc, kind, blk, cbi, cset, tmp, pk=False):
            L = []
            if kind in ("q", "k"):
                cs = CSA if cset == 'A' else CSB
                rs, nm = 136 + 2 * blk, 137 + 2 * blk
                if kind == "q":
                    L += [f"v_mul_f32 v142, {fbits(QSCALE)}, v{rs}", f"v_mul_f32 v143, {fbits(QSCALE)}, v{nm}"]; rs, nm = 142, 143
                if pk:
                    L += [f"v_mov_b32 v128, v{rs}", f"v_mov_b32 v130, v{nm}"]
                    for r in range(0, 16, 2): L += [f"v_pk_mul_f32 v[{tmp+r}:{tmp+r+1}], v[{cs+r}:{cs+r+1}], v[130:131] op_sel_hi:[1,0]"]
                    for r in range(0, 16, 2): L += [f"v_pk_fma_f32 v[{tmp+r}:{tmp+r+1}], v[{acc+r}:{acc+r+1}], v[128:129], v[{tmp+r}:{tmp+r+1}] op_sel_hi:[1,0,1]"]
                else:
                    for r in range(16):
                        L += [f"v_mul_f32 v{tmp+r}, v{nm}, v{cs+r}", f"v_fmac_f32 v{tmp+r}, v{acc+r}, v{rs}"]
                src = tmp
                base = (QB_ if kind == "q" else KB_) + blk * 4096 + cbi * 2048
            else:
                csn = CSN if cset == 'A' else CSN + 1
                for q in range(4):
                    L += [f"ds_read_b128 v[{tmp+4*q}:{tmp+3+4*q}], v135 offset:{blk*256+32*q}", f"ds_read_b128 v[{tmp+16+4*q}:{tmp+19+4*q}], v135 offset:{blk*256+128+32*q}"]
                L += ["@wait"]
                if pk:
                    L += [f"v_mov_b32 v128, v{csn}"]
                    for r in range(0, 16, 2): L += [f"v_pk_mul_f32 v[{tmp+16+r}:{tmp+17+r}], v[{tmp+16+r}:{tmp+17+r}], v[128:129] op_sel_hi:[1,0]"]
                    for r in range(0, 16, 2): L += [f"v_pk_fma_f32 v[{tmp+16+r}:{tmp+17+r}], v[{acc+r}:{acc+r+1}], v[{tmp+r}:{tmp+r+1}], v[{tmp+16+r}:{tmp+17+r}]"]
                else:
                    for r in range(16):
                        L += [f"v_mul_f32 v{tmp+16+r}, v{tmp+16+r}, v{csn}", f"v_fmac_f32 v{tmp+16+r}, v{acc+r}, v{tmp+r}"]
                src = tmp + 16
                base = VB_ + blk * 4096 + cbi * 2048
            for d in range(8):
                L += [f"v_cvt_pk_bf16_f32 v{acc+d}, v{src+2*d}, v{src+2*d+1}"]
            L += [f"v_add_u32 v133, {base}, v{vL16}", f"ds_write_b128 v133, v[{acc}:{acc+3}]", f"ds_write_b128 v133, v[{acc+4}:{acc+7}] offset:1024"]
            return L
        class Fill:
            def __init__(s_, items): s_.items = list(items); s_.last = None
            def emit(s_, n=1):
                for _ in range(n):
                    if not s_.items: return
                    l = s_.items.pop(0)
                    if l == "@wait":
                        e.wait_lg(s_.last); continue
                    if l.startswith("ds_"): s_.last = e.lds(l)
                    else: e(l)
            def flush(s_): s_.emit(10**6)
        desc = {
            0: [("q", 0, 0, 'A'), ("q", 1, 0, 'A'), ("q", 0, 1, 'B'), ("q", 1, 1, 'B')],
            1: [("k", 0, 0, 'A'), ("k", 1, 0, 'A'), ("k", 2, 0, 'A'), ("k", 2, 1, 'B')],
            2: [("k", 0, 1, 'A'), ("k", 1, 1, 'A'), ("v", 0, 0, 'B'), ("v", 1, 0, 'B')],
            3: [("v", 0, 1, 'A'), ("v", 1, 1, 'A'), ("v", 2, 1, 'A'), ("v", 2, 0, 'B')],
        }
        units = {
            0: [(ACC[0], 0, 0, "T"), (ACC[1], 0, 1, "T"), (ACC[2], 1, 0, "T"), (ACC[3], 1, 1, "T")],
            1: [(ACC[0], 0, 0, "T"), (ACC[1], 0, 1, "T"), (ACC[2], 0, 0, "T"), (ACC[3], 1, 0, "T")],
            2: [(ACC[0], 0, 0, "T"), (ACC[1], 0, 1, "T"), (ACC[2], 1, 0, "N"), (ACC[3], 1, 1, "N")],
            3: [(ACC[0], 0, 0, "N"), (ACC[1], 0, 1, "N"), (ACC[2], 0, 0, "N"), (ACC[3], 1, 0, "N")],
        }
        labs = [e.newlabel(f"G2W{w}") for w in range(4)]; Lgd = e.newlabel("G2GD")
        Lhf = e.newlabel("HF"); Lhf2 = e.newlabel("HF2")
        e(f"s_cmp_lg_u32 s{sW}, 0\ns_cbranch_scc1 {Lhf}")
        e(f"s_mov_b64 exec, 1\nbuffer_store_dword v{vFT}, v{vFA}, s[{SRD_WS}:{SRD_WS+3}], s{sAD} offen sc1\ns_mov_b64 exec, -1")
        e(f"s_waitcnt vmcnt(6)\ns_branch {Lhf2}")
        e.label(Lhf)
        e.wait_vm(tok0)
        e.label(Lhf2)
        e("s_barrier")
        self.stamp("g2A")
        vmA = list(e.vm)
        for w in range(1, 4):
            e(f"s_cmp_eq_u32 s{sW}, {w}\ns_cbranch_scc1 {labs[w]}")
        vm_end = None
        for w in range(4):
            e.label(labs[w]); e.lg = []; e.vm = list(vmA)
            if w == 0: e.vm.append(-77)
            wl = getattr(self, "light", None) == "g2w"
            if wl: e("s_memtime s[64:65]")
            U = units[w]; d = desc[w]
            if w in (0, 2):
                steps = [([0, 1], ks, [0, 1, 2, 3]) for ks in range(16)] + [([0, 1], ks, [0, 1]) for ks in range(16, 32)] + [([0, 1], ks, [2, 3]) for ks in range(16, 32)]
            else:
                steps = [([0, 1], ks, [0, 1]) for ks in range(32)] + [([2], ks, [2, 3]) for ks in range(32)]
            cnt0 = []; c_ = 0
            for (b_, k_, u_) in steps: cnt0.append(c_); c_ += len(u_)
            B1, B2, BC = 10, 30, 62
            def avail(step_idx, count):
                blks, ks, _ = steps[step_idx]
                if blks == [2]: return count >= BC
                if ks >= 16: return count >= B2
                if ks >= 6: return count >= B1
                return True
            side = {}
            def put(c, it): side.setdefault(c, []).append(it)
            named = {}
            for i, it in enumerate(C2): put(2 * i, ("vm", f"C2_{i}", it))
            wBneed = {}
            if w in (0, 2):
                lo = {10: 17, 11: 22, 12: 27, 13: 28, 14: 31, 15: 35} if w == 0 else {10: 17, 11: 20, 12: 23, 13: 26, 14: 31, 15: 35}
                for ks, c in lo.items(): put(c, ("vm", f"wB{ks}", wB_item(ks)))
                for i, ks in enumerate(range(16, 32)): put(46 + 2 * i, ("vm", f"wB{ks}", wB_item(ks)))
            else:
                for i, ks in enumerate(range(10, 16)): put(46 + 2 * i, ("vm", f"wB{ks}", wB_item(ks)))
                for i, ks in enumerate(range(16, 32)): put(58 + 2 * i, ("vm", f"wB{ks}", wB_item(ks)))
                for i, it in enumerate(hstat(160 if w == 1 else 176)): put(65 + 2 * i, ("vm", f"hs{i}", it))
            if w == 0:
                put(18, ("vm", "poll", ([], f"buffer_load_dword v24, v23, s[{SRD_WS}:{SRD_WS+3}], s93 offen sc1", [])))
                for i, c in enumerate((18, 19, 20, 21, 23, 24, 25, 26)): put(c, ("vm", f"st{i}", statitems[i]))
            if w == 1:
                for i in range(8): put(16 + i, ("vm", f"st{i}", statitems[i]))
            for i, it in enumerate(haloitems): put(30 + 2 * i, ("vm", f"halo{i}", it))
            stfill = None
            if w < 2:
                sub = Emitter(); old = self.e; self.e = sub
                self.stats_finish(144, 130, 131)
                sub(f"v_mul_f32 v130, v130, v131\nv_sub_f32 v130, 0, v130\nv_cmp_gt_u32 vcc, 32, v{vL}\ns_nop 1\nv_cndmask_b32 v130, v130, v131, vcc")
                sub(f"v_add_u32 v131, {TB + w*256}, v{vL4}\nds_write_b32 v131, v130")
                self.e = old
                stfill = Fill([l.strip() for l in sub.lines])
            f12 = None
            fstart = 98 if w in (0, 2) else 67
            hfill = None
            xt = {}
            ringslot = lambda si, b: 96 + ((si % RN) * 2 + b) * 4
            count = 0
            def do_barrier(c):
                if c == B1: e.wait_vm(tok1); e("s_barrier")
                if c == B2:
                    if w == 0:
                        Lok = e.newlabel("HOK"); Lp = e.newlabel("HPOLL")
                        e.wait_vm(named["poll"])
                        e(f"v_cmp_ne_u32 vcc, s{sTAG}, v24\ns_cbranch_vccz {Lok}")
                        saved = list(e.vm)
                        e(f"s_mov_b32 s{sPOLL}, 0")
                        e.label(Lp)
                        e(f"buffer_load_dword v24, v23, s[{SRD_WS}:{SRD_WS+3}], s93 offen sc1\ns_waitcnt vmcnt(0)\nv_cmp_ne_u32 vcc, s{sTAG}, v24\ns_cbranch_vccz {Lok}")
                        e(f"s_add_u32 s{sPOLL}, s{sPOLL}, 1\ns_cmp_lt_u32 s{sPOLL}, 400000\ns_cbranch_scc1 {Lp}\ns_branch L_END")
                        e.label(Lok)
                        e.vm = saved
                    e.wait_vm(named["C2_7"]); e("s_barrier")
                if c == BC:
                    if stfill: stfill.flush()
                    if w == 0: self.stamp("g2p1")
                    e.wait_vm(named["halo7"]); e("s_waitcnt lgkmcnt(0)\ns_barrier"); e.lg = []
                    for blk in range(2):
                        e.lds(f"ds_read_b32 v{136+2*blk}, v134 offset:{blk*256}"); named["tb"] = e.lds(f"ds_read_b32 v{137+2*blk}, v134 offset:{blk*256+128}")
            for si, (blks, ks, us) in enumerate(steps):
                for ui_i, ui in enumerate(us):
                    if count in (B1, B2, BC): do_barrier(count)
                    if ui_i == 0:
                        for sj in range(si, min(si + RN, len(steps))):
                            if sj not in xt and avail(sj, count):
                                bl, kk, _ = steps[sj]
                                t_ = None
                                for b, blk in enumerate(bl): t_ = xread(ringslot(sj, b), blk, kk)
                                xt[sj] = t_
                        e.wait_lg(xt[si])
                    acc, wset, b, orient = U[ui]
                    if wset == 1 and f"wB{ks}" in named: e.wait_vm(named[f"wB{ks}"])
                    first = (ks == 0)
                    mm(acc, wset, ks, ringslot(si, b), orient, first)
                    for kind, nm_, it in side.get(count, []): named[nm_] = self.emit_item(it)
                    if stfill and 46 <= count < BC:
                        if count == 46: e.wait_vm(named["st7"])
                        stfill.emit(3)
                    if count == fstart - 1:
                        e.wait_lg(named["tb"])
                        f12 = Fill(epi(ACC[0], *d[0], 144) + epi(ACC[1], *d[1], 144))
                    if f12 and count >= fstart:
                        f12.emit(4 if w in (0, 2) else 3)
                        if w in (1, 3) and not f12.items:
                            if hfill is None:
                                e.wait_vm(named["hs7"])
                                sub = Emitter(); old_ = self.e; self.e = sub
                                self.stats_finish(160 if w == 1 else 176, 130, 131)
                                sub("v_mul_f32 v130, v130, v131\nv_sub_f32 v130, 0, v130")
                                if w == 1:
                                    sub("v_mov_b32 v140, v131\nv_mov_b32 v141, v130")
                                else:
                                    sub(f"v_cmp_gt_u32 vcc, 32, v{vL}\ns_nop 1\nv_cndmask_b32 v130, v130, v131, vcc\nv_add_u32 v131, {TB + 2*256}, v{vL4}\nds_write_b32 v131, v130")
                                self.e = old_
                                hfill = Fill([l.strip() for l in sub.lines])
                            hfill.emit(3)
                    count += 1
            if wl: e("s_memtime s[66:67]")
            if f12: f12.flush()
            if hfill: hfill.flush()
            if w == 3:
                e("s_waitcnt lgkmcnt(0)"); e.lg = []
            if w == 0: self.stamp("g2p2")
            Fill(epi(ACC[2], *d[2], 144, pk=True)).flush()
            Fill(epi(ACC[3], *d[3], 96, pk=True)).flush()
            if wl:
                e("s_waitcnt lgkmcnt(0)\ns_memtime s[76:77]\ns_waitcnt lgkmcnt(0)")
                e(f"s_lshl_b32 s{sT7}, s{sG}, 2\ns_add_u32 s{sT7}, s{sT7}, s{sW}\ns_lshl_b32 s{sT7}, s{sT7}, 4\ns_add_u32 s{sT7}, s{sT7}, 0x70000")
                e(f"v_mov_b32 v{vT1}, 0\ns_mov_b64 exec, 1")
                for k_, r_ in enumerate((64, 66, 76)):
                    e(f"v_mov_b32 v{vT0}, s{r_}\nbuffer_store_dword v{vT0}, v{vT1}, s[{SRD_WS}:{SRD_WS+3}], s{sT7} offen offset:{4*k_}")
                e("s_mov_b64 exec, -1")
            vm_end = list(e.vm)
            if w < 3: e(f"s_branch {Lgd}")
        e.label(Lgd)
        e.vm = vm_end
        e("s_waitcnt lgkmcnt(0)\ns_barrier")
        e.lg = []
        self.stamp("g2gemm")
        e(f"s_lshl_b32 s{sT0}, s{sW}, 10\ns_add_u32 s{sT0}, s{sT0}, {QB_}\nv_add_u32 v20, s{sT0}, v{vL16}")
        e(f"s_lshr_b32 s{sT1}, s{sW}, 1\ns_lshl_b32 s{sT1}, s{sT1}, 11\ns_add_u32 s{sT1}, s{sT1}, {VB_}\nv_add_u32 v21, s{sT1}, v{vL16}")
        Q = [32, 36]; Kf = [40, 44, 48]; V = {(0, 0): 52, (0, 1): 56, (1, 0): 60, (1, 1): 64, (2, 0): 68, (2, 1): 72}
        e(f"ds_read_b128 v[{Kf[2]}:{Kf[2]+3}], v20 offset:{(KB_-QB_)+2*4096}")
        for p in range(2):
            e(f"ds_read_b128 v[{Q[p]}:{Q[p]+3}], v20 offset:{p*4096}\nds_read_b128 v[{Kf[p]}:{Kf[p]+3}], v20 offset:{(KB_-QB_)+p*4096}")
        for (b, c), r in V.items(): e(f"ds_read_b128 v[{r}:{r+3}], v21 offset:{b*4096+c*1024}")
        e(f"s_lshl_b32 s{sT0}, s{sJ}, 2\ns_add_u32 s{sT0}, s{sT0}, s{sW}\ns_lshl_b32 s{sT0}, s{sT0}, 10")
        e(f"s_lshl_b32 s{sT1}, s{sC}, 16\ns_add_u32 s{sT0}, s{sT0}, s{sT1}\ns_add_u32 s{sT0}, s{sT0}, s{sOB}\ns_add_u32 s{sT1}, s{sT0}, 32768")
        So = [80, 96]; Sh = [112, 128]; Oo = [144, 160]
        setup, g3items = self.wpair_dma_list(WB_OB, self.WL0, sA4, sA5)
        e(f"s_mov_b32 s88, s{sT0}\ns_mov_b32 s89, s{sT1}")
        for x in setup: e(x)
        def g3dma(n):
            for _ in range(n):
                if g3items: self.emit_item(g3items.pop(0))
        g3dma(5)
        e("s_waitcnt lgkmcnt(8)")
        e(f"v_mfma_f32_32x32x16_bf16 {v(So[0],16)}, {v(Kf[0],4)}, {v(Q[0],4)}, v[212:227]")
        e(f"v_mfma_f32_32x32x16_bf16 {v(Sh[0],16)}, {v(Kf[2],4)}, {v(Q[0],4)}, v[228:243]")
        e("s_waitcnt lgkmcnt(6)")
        e(f"v_mfma_f32_32x32x16_bf16 {v(So[1],16)}, {v(Kf[1],4)}, {v(Q[1],4)}, v[212:227]")
        e(f"v_mfma_f32_32x32x16_bf16 {v(Sh[1],16)}, {v(Kf[2],4)}, {v(Q[1],4)}, v[228:243]")
        g3dma(3)
        e("v_mov_b32 v26, 0x3f803f80")
        vals = [[So[p] + r for r in range(16)] + [Sh[p] + 4 * (2 * p + 1) + jj for jj in range(4)] for p in range(2)]
        mx = [22, 24]; tm = [23, 25]
        PP = [176, 192]
        for p in range(2):
            vl = vals[p]
            e(f"v_max3_f32 v{mx[p]}, v{vl[0]}, v{vl[1]}, v{vl[2]}")
            i = 3
            while i < 20:
                if i + 1 < 20: e(f"v_max3_f32 v{mx[p]}, v{mx[p]}, v{vl[i]}, v{vl[i+1]}"); i += 2
                else: e(f"v_max_f32 v{mx[p]}, v{mx[p]}, v{vl[i]}"); i += 1
        for p in range(2): e(f"v_mov_b32 v{tm[p]}, v{mx[p]}")
        for p in range(2): e(f"v_permlane32_swap_b32 v{mx[p]}, v{tm[p]}")
        for p in range(2): e(f"v_max_f32 v{mx[p]}, v{mx[p]}, v{tm[p]}")
        for p in range(2):
            for x in vals[p][::2]:
                e(f"v_pk_add_f32 v[{x}:{x+1}], v[{x}:{x+1}], v[{mx[p]}:{mx[p]+1}] op_sel_hi:[1,0] neg_lo:[0,1] neg_hi:[0,1]")
        for p in range(2):
            for i_, x in enumerate(vals[p]):
                e(f"v_exp_f32 v{x}, v{x}")
                if i_ % 5 == 4: g3dma(1)
            S_ = So[p]; H_ = vals[p][16]; Pp = PP[p]
            e(f"v_mov_b32 v{Pp+8}, 0\nv_mov_b32 v{Pp+9}, 0")
            for d in range(8): e(f"v_cvt_pk_bf16_f32 v{Pp+d}, v{S_+2*d}, v{S_+2*d+1}")
            e(f"v_cvt_pk_bf16_f32 v{Pp+10}, v{H_}, v{H_+1}\nv_cvt_pk_bf16_f32 v{Pp+11}, v{H_+2}, v{H_+3}")
            e(f"v_mov_b32 v{mx[p]}, 0\nv_mov_b32 v{tm[p]}, 0")
            for k_, d in enumerate(list(range(8)) + [10, 11]): e(f"v_dot2c_f32_bf16 v{mx[p] if k_ % 2 == 0 else tm[p]}, v26, v{Pp+d}")
            O_ = Oo[p]
            if p == 0: e("s_waitcnt lgkmcnt(0)")
            e(f"v_mfma_f32_32x32x16_bf16 {v(O_,16)}, {v(V[(p,0)],4)}, {v(Pp,4)}, 0")
            e(f"v_mfma_f32_32x32x16_bf16 {v(O_,16)}, {v(V[(p,1)],4)}, {v(Pp+4,4)}, {v(O_,16)}")
            e(f"v_mfma_f32_32x32x16_bf16 {v(O_,16)}, {v(V[(2,p)],4)}, {v(Pp+8,4)}, {v(O_,16)}")
        for p in range(2): e(f"v_add_f32 v{mx[p]}, v{mx[p]}, v{tm[p]}")
        for p in range(2): e(f"v_mov_b32 v{tm[p]}, v{mx[p]}")
        for p in range(2): e(f"v_permlane32_swap_b32 v{mx[p]}, v{tm[p]}")
        for p in range(2): e(f"v_add_f32 v{mx[p]}, v{mx[p]}, v{tm[p]}")
        for p in range(2): e(f"v_rcp_f32 v{mx[p]}, v{mx[p]}")
        Lodd = e.newlabel("ODD"); Ldone = e.newlabel("ODDD")
        e(f"s_bitcmp1_b32 s{sW}, 0\ns_cbranch_scc1 {Lodd}")
        for half in range(2):
            if half == 1: e.label(Lodd)
            for p in range(2):
                b0 = Oo[p] + 8 * half
                for r in range(0, 8, 2): e(f"v_pk_mul_f32 v[{b0+r}:{b0+r+1}], v[{b0+r}:{b0+r+1}], v[{mx[p]}:{mx[p]+1}] op_sel_hi:[1,0]")
                for d in range(4): e(f"v_cvt_pk_bf16_f32 v{28+4*p+d}, v{b0+2*d}, v{b0+2*d+1}")
            if half == 0: e(f"s_branch {Ldone}")
        e.label(Ldone)
        tok = self.moded(lambda fl: (self.ws_store(28, "s88", 0, flag=fl), self.ws_store(32, "s89", 0, flag=fl))[1])
        g3dma(16)
        return tok

    def build(self):
        e = self.e
        self.prologue()
        self.stamp("start")
        def stop(name):
            if self.stop_after == name:
                e("s_waitcnt vmcnt(0) lgkmcnt(0)\ns_endpgm")
                return True
            return False
        self.half_setup()
        self.first_phase()
        self.sync_consts()
        self.stamp("fdone")
        e.label("L_ATT")
        tok = self.attention()
        self.stamp("attdone")
        if stop("att"): return self.finish()
        self.sync_cluster(0, tok=tok, window=lambda: self.g2_masks(), pre_barrier=lambda: e("s_waitcnt lgkmcnt(0)"), post_barrier=self.fallback_check)
        self.stamp("c0")
        def wB_it(ks):
            return ([f"s_add_u32 s{sT7}, s{sA3}, {(ks//4)*4096}"], f"buffer_load_dwordx4 a[{128+4*ks}:{131+4*ks}], v{vL16}, s[{SRD_WS}:{SRD_WS+3}], s{sT7} offen offset:{(ks%4)*1024} sc1", [])
        tok = self.outproj(True, sOA, sXMID, sSTMID, sHX, self.WL1, side=[wB_it(ks) for ks in range(10)] + self.g2_const_items())
        self.stamp("g1done")
        if stop("g1"): return self.finish()
        self.sync_cluster(1, tok=tok, window=lambda: self.g2_addrs(), drain=True)
        e.reset_counters()
        self.stamp("c1")
        tok = self.g2()
        self.stamp("g2done")
        if stop("g2"): return self.finish()
        Lh0 = e.newlabel("NOTLAST")
        e(f"s_cmp_eq_u32 s{sHALF}, 0\ns_cbranch_scc1 {Lh0}")
        saved_vm = list(e.vm)
        def out_addr():
            e(f"v_and_b32 v{vOUT}, 31, v{vL}\nv_lshlrev_b32 v{vOUT}, 11, v{vOUT}\nv_lshrrev_b32 v18, 5, v{vL}\nv_lshl_add_u32 v{vOUT}, v18, 4, v{vOUT}")
            e(f"s_lshl_b32 s{sAD}, s{sC}, 6\ns_add_u32 s{sAD}, s{sAD}, s{sP}\ns_lshl_b32 s{sAD}, s{sAD}, 10\ns_lshl_b32 s{sT1}, s{sNB}, 6\ns_add_u32 s{sAD}, s{sAD}, s{sT1}")
        self.sync_cluster(2, tok=tok, window=out_addr, drain=True)
        e.reset_counters()
        self.stamp("c2")
        self.outproj(False, sOB, None, None, None, self.WL0, final=True)
        e.label(Lh0)
        e.vm = saved_vm
        self.nstamp -= 2; self.stampnames = self.stampnames[:-2] if self.stamps else []
        self.sync_cluster(2, tok=tok, window=lambda: (self.g4_prefetch_cs(), self.g4_prefetch_kv()), drain=True)
        e.reset_counters()
        self.stamp("c2")
        setup, qitems = self.wpair_dma_list(WB_Q, self.WL1, sA4, sA5)
        for x in setup: e(x)
        tok = self.outproj(False, sOB, sXOUT, sSTOUT, None, self.WL0, side=qitems)
        self.nstamp += 1
        if self.stamps: self.stampnames.append("end")
        self.stamp("g3done")
        if stop("g3"): return self.finish()
        self.sync_cluster(3, tok=tok, drain=True)
        e.reset_counters()
        self.stamp("c3")
        e(f"s_mov_b32 s{sHALF}, 1")
        self.half_setup()
        self.alias_setup()
        self.g4()
        self.stamp("g4done")
        e("s_branch L_ATT")
        self.fallback()
        return self.finish()

    def finish(self):
        e = self.e
        e.label("L_END")
        e("s_endpgm")
        e.label("L_CODE_END")
        lines, n = fix_hazards(e.lines)
        hdr = open('cdna_kernels/' + NAME + '.s.ref').read().split("\n")
        head = [l for l in hdr if l.startswith(";") and "@launch" not in l and "Override launch" not in l and "grid=ceil" not in l]
        notes = """;
; One persistent launch, 256 workgroups x 4 waves (one workgroup per CU, 512 registers per wave).  Generated by gen/kernel16.py.
; Workgroup g: x = g&7, u = g>>3, cluster c = 4x + (u&3) owns rows 64c..64c+63 (split by row parity into two 32-row blocks),
; j = u>>2 owns columns 64j..64j+63 / heads 4j..4j+3.  Phases per layer pair:
;   F / G4  LN + Q,K,V projection (LN applied after the GEMM: rstd*(x@W - mean*colsum(W)))     -> K/V hand-off to everybody
;   ATT     MQA attention, keys split over the 4 waves (K/V fragments in AGPRs).  exp2 is taken without a max shift;
;           every row sum is checked to lie in [2^-64, 2^64], otherwise the workgroup redoes the layer with the true max (L_FALLBACK)
;   G1      out-projection + residual        G2  LN + QKV(B) + dilated window attention (true max)        G3  out-projection + residual
; Hand-offs between workgroups go through d_ws with tagged flags (tag = f(word 0 of d_ws), advanced once per launch).
; Cluster hand-offs use plain stores when the 8 members report the same XCC id, write-through (sc1) stores otherwise.
;""".split("\n")
        out = head + notes + ["; @launch grid=(256,1,1) block=(256,1,1) lds=163840"]
        out += ['.amdgcn_target "amdgcn-amd-amdhsa--gfx950"', ".text", f".globl {KN}", ".p2align 8", f".type {KN},@function", f"{KN}:"]
        out += lines
        out += ['.section .rodata,"a"', ".p2align 6", f".amdhsa_kernel {KN}",
                "  .amdhsa_next_free_vgpr 512", "  .amdhsa_next_free_sgpr 102", "  .amdhsa_accum_offset 256",
                "  .amdhsa_group_segment_fixed_size 0", "  .amdhsa_kernarg_size 88", "  .amdhsa_user_sgpr_count 2",
                "  .amdhsa_user_sgpr_kernarg_segment_ptr 1", "  .amdhsa_system_sgpr_workgroup_id_x 1", ".end_amdhsa_kernel", ""]
        self.nops = n
        return "\n".join(out)

if __name__ == "__main__":
    import argparse
    ap = argparse.ArgumentParser()
    ap.add_argument("-o", default="k.s")
    ap.add_argument("--stop", default=None)
    ap.add_argument("--stamps", action="store_true")
    ap.add_argument("--attvar", default="")
    ap.add_argument("--light", default=None)
    ap.add_argument("--safe", action="store_true")
    ap.add_argument("--nopf", action="store_true")
    ap.add_argument("--outflag", default="")
    ap.add_argument("--noalias", action="store_true")
    ap.add_argument("--ah", type=int, default=8)
    ap.add_argument("--pp", action="store_true")
    ap.add_argument("--unroll", action="store_true")
    ap.add_argument("--permg", type=int, default=0)
    ap.add_argument("--norot", action="store_true")
    ap.add_argument("--tlbtouch", action="store_true")
    ap.add_argument("--attperm", action="store_true")
    ap.add_argument("--dbgstamps", action="store_true")
    ap.add_argument("--prepmap", type=int, default=0)
    ap.add_argument("--nopretouch", action="store_true")
    args = ap.parse_args()
    g = Gen(stop_after=args.stop, stamps=args.stamps)
    g.attvar = args.attvar
    g.light = args.light
    g.force_safe = args.safe
    g.nopf = args.nopf
    g.outflag = args.outflag
    g.noalias = args.noalias
    g.AH = args.ah
    g.pp = args.pp
    g.unroll = args.unroll
    g.permg = args.permg
    g.norot = args.norot
    g.tlbtouch = args.tlbtouch
    g.attperm = args.attperm
    g.dbgstamps = args.dbgstamps
    g.prepmap = args.prepmap
    g.nopretouch = args.nopretouch
    txt = g.build()
    open(args.o, "w").write(txt)
    print("wrote", args.o, "lines", txt.count("\n"), "nop states", g.nops)
    if args.stamps: print(g.stampnames)
```

```python
import sys
from asmlib import *

NAME = 'interleave_layers__grouped_kv_mqa__sliding_local_dilated__prompt'
KN = NAME + '_kernel'

FL_C   = 0x10000
FL_G0  = 0x18000
FL_GK  = 0x1A000
FL_XW  = 0x1C000
FL_H   = 0x20000
DBG    = 0x40000
WF     = 0x100000
CS     = 0x480000
X0     = 0x500000
OA     = 0xD00000
OB     = 0x1100000
HX     = 0x1500000
ST0    = 0x1700000
KF     = 0x1800000
VT_STRIDE = 1088
STH    = 0x1A00000
WS_BYTES = 0x10000000
MODEADDR = 163832
WB_Q, WB_KV, WB_OA, WB_BQ, WB_BK, WB_BV, WB_OB = 0, 16, 17, 33, 49, 65, 81

LOG2E = 1.4426950408889634
QSCALE = 0.25 * LOG2E
import struct
def fbits(x): return "0x%08x" % struct.unpack("<I", struct.pack("<f", x))[0]

sG = 2
SRD_WS = 4
SRD_T  = 8
SRD_OUT = 12
sC, sJ, sW, sP, sKH, sTAG, sHALF, sHC = 16, 17, 18, 19, 20, 21, 22, 23
sRBOFF = 24
sSTOFF = 25
sRB    = 26
sNB    = 27
sXIN, sXMID, sXOUT = 28, 29, 30
sSTIN, sSTMID, sSTOUT = 31, 32, 33
sOA, sOB, sHX, sKF = 34, 35, 36, 37
sFLC = 38
sT0, sT1, sT2, sT3, sT4, sT5, sT6, sT7 = 40, 41, 42, 43, 44, 45, 46, 47
sM0, sM1 = 48, 50
sPOLL = 52
sTS = 54
sIN = 64
sOUTP = 80
sLOOP = 56
sA0, sA1, sA2, sA3 = 57, 58, 59, 60
sFA = 61
sA4, sA5 = 62, 63
sACT = 91
sRANK = 100
sPERM = 97
sDBGP = 98
sAD = 96
sCSA, sCSB = 94, 95
sFB = 101
sBAD = 48
sPFB = 86
sMODE = 39
sSTH = 53

vTID, vL, vL16, vL4 = 0, 1, 2, 3
XR = 4
vSTAT = 12
vHALO = 13
vT0, vT1 = 14, 15
vFA, vFT, vPA, vPD = 244, 245, 246, 247
vOUT = 250
vCSH, vCSN = 248, 249
vWK, vWS = 254, 255

LS = [64, 66, 76, 78, 80, 84, 56, 58]
class Gen:
    AH = 8
    def __init__(self, stop_after=None, stamps=False, safe=True):
        self.e = Emitter()
        self.stop_after = stop_after
        self.stamps = stamps
        self.st = "sc1"
        self.ld = "sc1"
        self.nstamp = 0

    def stamp(self, name):
        if getattr(self, "dbgstamps", False):
            names = ["start", "att_kv", "att_loopend", "c3", "end"]
            if name not in names: return
            e = self.e
            k = names.index(name)
            L = e.newlabel("DST")
            e(f"s_cmp_lg_u32 s{sW}, 0\ns_cbranch_scc1 {L}\ns_and_b32 s{sT6}, s{sG}, 0xfb\ns_cmp_lg_u32 s{sT6}, 0\ns_cbranch_scc1 {L}")
            base = {"start": 0, "att_kv": 1, "att_loopend": 3, "c3": 5, "end": 6}[name]
            e(f"s_memrealtime s[84:85]\ns_waitcnt lgkmcnt(0)")
            e(f"s_lshl_b32 s{sT6}, s{sG}, 3")
            if name in ("att_kv", "att_loopend"): e(f"s_lshl_b32 s{sT7}, s{sHALF}, 2\ns_add_u32 s{sT6}, s{sT6}, s{sT7}")
            e(f"s_add_u32 s{sT6}, s{sT6}, {base*4}")
            e(f"s_mov_b32 s{SRD_T}, s82\ns_mov_b32 s{SRD_T+1}, s83\ns_mov_b32 s{SRD_T+2}, 256\ns_mov_b32 s{SRD_T+3}, 0x20000")
            e(f"v_mov_b32 v{vT0}, s84\nv_mov_b32 v{vT1}, 0\ns_mov_b64 exec, 1\nbuffer_store_dword v{vT0}, v{vT1}, s[{SRD_T}:{SRD_T+3}], s{sT6} offen")
            if name == "start": e(f"v_mov_b32 v{vT0}, s36\nbuffer_store_dword v{vT0}, v{vT1}, s[{SRD_T}:{SRD_T+3}], s{sT6} offen offset:28")
            e("s_mov_b64 exec, -1")
            e.label(L)
            return
        if not self.stamps: return
        e = self.e
        idx = self.nstamp; self.nstamp += 1
        L = e.newlabel("STAMP")
        e(f"s_cmp_lg_u32 s{sW}, 0\ns_cbranch_scc1 {L}")
        e(f"s_memrealtime s[{sTS}:{sTS+1}]\ns_memtime s[50:51]\ns_waitcnt lgkmcnt(0)")
        e(f"s_lshl_b32 s{sT7}, s{sG}, 9\ns_add_u32 s{sT7}, s{sT7}, {DBG}\ns_mul_i32 s{sT6}, s{sHALF}, 256\ns_add_u32 s{sT7}, s{sT7}, s{sT6}")
        e(f"v_mov_b32 v{vT0}, s{sTS}\nv_mov_b32 v{vT1}, 0")
        e(f"s_mov_b64 exec, 1\nbuffer_store_dword v{vT0}, v{vT1}, s[{SRD_WS}:{SRD_WS+3}], s{sT7} offen offset:{(idx % 32) * 4}")
        e(f"v_mov_b32 v{vT0}, s50\nbuffer_store_dword v{vT0}, v{vT1}, s[{SRD_WS}:{SRD_WS+3}], s{sT7} offen offset:{128 + (idx % 32) * 4}\ns_mov_b64 exec, -1")
        e.label(L)
        self.stampnames = getattr(self, "stampnames", []) + [name]

    def lstamp(self, k):
        if self.stamps and getattr(self, "light", None): self.e(f"s_memtime s[{LS[k]}:{LS[k]+1}]")
    def lflush(self, name):
        if not (self.stamps and getattr(self, "light", None) == name): return
        e = self.e
        L = e.newlabel("LST")
        e(f"s_cmp_lg_u32 s{sW}, 0\ns_cbranch_scc1 {L}\ns_waitcnt lgkmcnt(0)")
        e(f"s_lshl_b32 s{sT7}, s{sG}, 6\ns_add_u32 s{sT7}, s{sT7}, 0x60000\ns_lshl_b32 s{sT6}, s{sHALF}, 5\ns_add_u32 s{sT7}, s{sT7}, s{sT6}")
        e(f"v_mov_b32 v{vT1}, 0\ns_mov_b64 exec, 1")
        for k in range(8):
            e(f"v_mov_b32 v{vT0}, s{LS[k]}\nbuffer_store_dword v{vT0}, v{vT1}, s[{SRD_WS}:{SRD_WS+3}], s{sT7} offen offset:{4*k}")
        e("s_mov_b64 exec, -1")
        e.label(L)

    def ws_load(self, dst, soff, imm=0, voff=vL16, n=4, flag=None, acc=False):
        flag = self.ld if flag is None else flag
        mn = {1: "buffer_load_dword", 2: "buffer_load_dwordx2", 4: "buffer_load_dwordx4"}[n]
        d = a(dst, n) if acc else v(dst, n)
        return self.e.vmem(f"{mn} {d}, v{voff}, s[{SRD_WS}:{SRD_WS+3}], {soff} offen offset:{imm} {flag}")
    def ws_store(self, src, soff, imm=0, voff=vL16, n=4, flag=None):
        flag = self.st if flag is None else flag
        mn = {1: "buffer_store_dword", 2: "buffer_store_dwordx2", 4: "buffer_store_dwordx4"}[n]
        return self.e.vmem(f"{mn} {v(src, n)}, v{voff}, s[{SRD_WS}:{SRD_WS+3}], {soff} offen offset:{imm} {flag}")

    def moded(self, fn):
        e = self.e
        Lf = e.newlabel("FAST"); Ld = e.newlabel("MDONE")
        e(f"s_cmp_eq_u32 s{sMODE}, 1\ns_cbranch_scc1 {Lf}")
        saved = list(e.vm); nt = e.ntok
        fn("sc1")
        e(f"s_branch {Ld}")
        e.label(Lf)
        e.vm = saved; e.ntok = nt
        r = fn("")
        e.label(Ld)
        return r

    def load_frags(self, dst, sbase, nfr, acc=False, flag=None, stmp=sT7):
        e = self.e; toks = []
        for t in range(nfr):
            if t % 4 == 0:
                if t == 0: so = f"s{sbase}"
                else:
                    e(f"s_add_u32 s{stmp}, s{sbase}, {t*1024}"); so = f"s{stmp}"
            toks.append(self.ws_load(dst + 4 * t, so, (t % 4) * 1024, acc=acc, flag=flag))
        return toks

    def poll(self, kind, setup):
        e = self.e
        Lp = e.newlabel("POLL"); Lok = e.newlabel("POLLOK")
        e(f"s_mov_b32 s{sPOLL}, 0")
        e.label(Lp)
        setup()
        e(f"s_cbranch_vccz {Lok}")
        e(f"s_add_u32 s{sPOLL}, s{sPOLL}, 1\ns_cmp_lt_u32 s{sPOLL}, 400000\ns_cbranch_scc1 {Lp}")
        e("s_branch L_END")
        e.label(Lok)

    def poll2(self, vaddr, soff):
        e = self.e
        Lp = e.newlabel("POLL"); Lok = e.newlabel("POLLOK")
        ld = lambda r: e(f"buffer_load_dword v{r}, v{vaddr}, s[{SRD_WS}:{SRD_WS+3}], {soff} offen sc1")
        e(f"s_mov_b32 s{sPOLL}, 0")
        ld(17); e("s_nop 15\ns_nop 15\ns_nop 15"); ld(18); e("s_nop 15\ns_nop 15\ns_nop 15"); ld(19)
        e.label(Lp)
        for r in (17, 18, 19):
            e(f"s_waitcnt vmcnt(2)\nv_cmp_ne_u32 vcc, s{sTAG}, v{r}\ns_cbranch_vccz {Lok}")
            ld(r)
        e(f"s_add_u32 s{sPOLL}, s{sPOLL}, 1\ns_cmp_lt_u32 s{sPOLL}, 150000\ns_cbranch_scc1 {Lp}")
        e("s_branch L_END")
        e.label(Lok)

    def sync_consts(self):
        e = self.e
        e(f"s_lshl_b32 s{sT1}, s{sJ}, 2\nv_mov_b32 v{vFA}, s{sT1}\nv_mov_b32 v{vFT}, s{sTAG}\nv_and_b32 v{vPA}, 7, v{vL}\nv_lshlrev_b32 v{vPA}, 2, v{vPA}")
        e(f"v_lshrrev_b32 v{vCSH}, 5, v{vL}\nv_lshlrev_b32 v{vCSH}, 4, v{vCSH}\nv_and_b32 v{vCSN}, 31, v{vL}\nv_lshlrev_b32 v{vCSN}, 2, v{vCSN}")

    def sync_cluster(self, sid, tok=None, pre_barrier=None, window=None, drain=False, halo_flag=False, post_barrier=None):
        e = self.e
        e(f"s_lshl_b32 s{sFA}, s{sC}, 7\ns_add_u32 s{sFA}, s{sFA}, s{sFLC}\ns_add_u32 s{sFA}, s{sFA}, {sid*4096}")
        if halo_flag:
            e(f"s_lshl_b32 s{sAD}, s{sHALF}, 12\ns_lshl_b32 s{sT1}, s{sC}, 7\ns_add_u32 s{sAD}, s{sAD}, s{sT1}\ns_add_u32 s{sAD}, s{sAD}, {FL_H}")
        e.wait_vm(tok)
        if pre_barrier: pre_barrier()
        e("s_barrier")
        if post_barrier: post_barrier()
        L0 = e.newlabel("SYNCA"); L = e.newlabel("SYNC")
        srd = f"s[{SRD_WS}:{SRD_WS+3}]"
        e(f"s_cmp_lg_u32 s{sW}, 0\ns_cbranch_scc1 {L0}")
        e("s_mov_b64 exec, 1")
        saved = list(e.vm)
        self.moded(lambda fl: e(f"buffer_store_dword v{vFT}, v{vFA}, {srd}, s{sFA} offen {fl}"))
        e.vm = saved
        e("s_mov_b64 exec, -1")
        e(f"buffer_load_dword v{vPD}, v{vPA}, {srd}, s{sFA} offen sc1")
        e.label(L0)
        n0 = len(e.vm)
        if window: window()
        nwin = len(e.vm) - n0
        Lp = e.newlabel("POLL")
        e(f"s_cmp_lg_u32 s{sW}, 0\ns_cbranch_scc1 {L}")
        e(f"s_mov_b32 s{sPOLL}, 0\ns_waitcnt vmcnt({min(nwin, 63)})\nv_cmp_ne_u32 vcc, s{sTAG}, v{vPD}\ns_cbranch_vccz {L}")
        e.label(Lp)
        e(f"buffer_load_dword v{vPD}, v{vPA}, {srd}, s{sFA} offen sc1\ns_waitcnt vmcnt(0)\nv_cmp_ne_u32 vcc, s{sTAG}, v{vPD}\ns_cbranch_vccz {L}")
        e(f"s_add_u32 s{sPOLL}, s{sPOLL}, 1\ns_cmp_lt_u32 s{sPOLL}, 400000\ns_cbranch_scc1 {Lp}\ns_branch L_END")
        e.label(L)
        if drain:
            e("s_waitcnt vmcnt(0)"); e.vm = []
        e("s_barrier")
        if halo_flag:
            L2 = e.newlabel("HF")
            e(f"s_cmp_lg_u32 s{sW}, 0\ns_cbranch_scc1 {L2}")
            e(f"s_mov_b64 exec, 1\nbuffer_store_dword v{vFT}, v{vFA}, {srd}, s{sAD} offen sc1\ns_mov_b64 exec, -1")
            e.label(L2)

    def prologue(self):
        e = self.e
        if getattr(self, "dbgstamps", False): e("s_memrealtime s[36:37]")
        e(f"s_cmp_ge_u32 s{sG}, 256\ns_cbranch_scc1 L_END")
        if getattr(self, "permg", 0) == 1: e(f"s_mul_i32 s{sG}, s{sG}, 37\ns_add_u32 s{sG}, s{sG}, 3\ns_and_b32 s{sG}, s{sG}, 255")
        if getattr(self, "permg", 0) == 2: e(f"s_lshr_b32 s3, s{sG}, 5\ns_and_b32 s3, s3, 1\ns_xor_b32 s{sG}, s{sG}, s3")
        e(f"s_load_dwordx16 s[{sIN}:{sIN+15}], s[0:1], 0")
        if not getattr(self, "nopf", False):
            Lpf = e.newlabel("PF")
            e(f"s_getpc_b64 s[40:41]")
            e.label("L_PFBASE")
            e(f"s_mov_b32 s{sPFB}, s40\ns_mov_b32 s{sPFB+1}, s41")
            e(f"s_lshr_b32 s42, s{sG}, 3\ns_mul_i32 s42, s42, 3072\ns_add_u32 s43, s42, 3072\ns_cmp_gt_u32 s43, L_CODE_END-L_PFBASE\ns_cbranch_scc1 {Lpf}")
            e(f"s_add_u32 s40, s40, s42\ns_addc_u32 s41, s41, 0\nv_and_b32 v250, 63, v0\nv_lshrrev_b32 v251, 6, v0\nv_lshlrev_b32 v250, 4, v250\nv_min_u32 v251, 2, v251\nv_lshl_add_u32 v250, v251, 10, v250")
            e("global_load_dwordx4 v[252:255], v250, s[40:41]")
            e.label(Lpf)
        e(f"s_load_dwordx4 s[{sOUTP}:{sOUTP+3}], s[0:1], 64")
        e(f"s_load_dwordx2 s[{sOUTP+4}:{sOUTP+5}], s[0:1], 80")
        e(f"v_and_b32 v{vL}, 63, v{vTID}\nv_lshrrev_b32 v{vT0}, 6, v{vTID}")
        e(f"v_lshlrev_b32 v{vL16}, 4, v{vL}\nv_lshlrev_b32 v{vL4}, 2, v{vL}")
        e(f"v_readfirstlane_b32 s{sW}, v{vT0}")
        e(f"s_and_b32 s{sT0}, s{sG}, 7\ns_lshr_b32 s{sT1}, s{sG}, 3\ns_and_b32 s{sT2}, s{sT1}, 3")
        e(f"s_lshl_b32 s{sC}, s{sT0}, 2\ns_add_u32 s{sC}, s{sC}, s{sT2}\ns_lshr_b32 s{sJ}, s{sT1}, 2")
        e(f"s_and_b32 s{sP}, s{sW}, 1\ns_lshr_b32 s{sKH}, s{sW}, 1")
        e(f"s_max_u32 s{sHC}, s{sC}, 1\ns_sub_u32 s{sHC}, s{sHC}, 1")
        e(f"s_lshl_b32 s{sRB}, s{sC}, 1\ns_add_u32 s{sRB}, s{sRB}, s{sP}")
        e(f"s_lshl_b32 s{sNB}, s{sJ}, 1\ns_add_u32 s{sNB}, s{sNB}, s{sKH}")
        e(f"s_lshl_b32 s{sRBOFF}, s{sRB}, 15\ns_lshl_b32 s{sT0}, s{sNB}, 11\ns_add_u32 s{sRBOFF}, s{sRBOFF}, s{sT0}")
        e(f"s_lshl_b32 s{sSTOFF}, s{sRB}, 12\ns_lshl_b32 s{sT0}, s{sNB}, 8\ns_add_u32 s{sSTOFF}, s{sSTOFF}, s{sT0}")
        e(f"v_and_b32 v{vT0}, 31, v{vL}\nv_lshrrev_b32 v{vT1}, 5, v{vL}\nv_lshlrev_b32 v{vSTAT}, 3, v{vT0}\nv_lshl_add_u32 v{vSTAT}, v{vT1}, 2, v{vSTAT}")
        e(f"s_lshl_b32 s{sT0}, s{sP}, 4\ns_sub_u32 s{sT0}, s{sT0}, 16\nv_add_u32 v{vHALO}, s{sT0}, v{vL}\nv_lshlrev_b32 v{vHALO}, 4, v{vHALO}")
        e("s_waitcnt lgkmcnt(0)")
        e(f"s_mov_b32 s{SRD_WS}, s{sOUTP+4}\ns_mov_b32 s{SRD_WS+1}, s{sOUTP+5}\ns_mov_b32 s{SRD_WS+2}, {WS_BYTES}\ns_mov_b32 s{SRD_WS+3}, 0x20000")
        e(f"s_mov_b32 s{SRD_OUT}, s{sOUTP}\ns_mov_b32 s{SRD_OUT+1}, s{sOUTP+1}\ns_mov_b32 s{SRD_OUT+2}, {2048*512*2}\ns_mov_b32 s{SRD_OUT+3}, 0x20000")
        e(f"s_mov_b32 s{sHALF}, 0")
        e(f"s_getreg_b32 s3, hwreg(HW_REG_XCC_ID)\ns_and_b32 s3, s3, 15\ns_mov_b32 s{sMODE}, 0")

    def tag_from(self, vreg):
        e = self.e
        e(f"v_readfirstlane_b32 s{sTAG}, v{vreg}")
        e(f"s_mul_i32 s{sTAG}, s{sTAG}, 0x9E3779B1\ns_add_u32 s{sTAG}, s{sTAG}, 0x7F4A7C15")
        Lx = e.newlabel("XW")
        e(f"s_cmp_lg_u32 s{sW}, 0\ns_cbranch_scc1 {Lx}")
        e(f"s_add_u32 s{sT0}, s{sTAG}, s3\ns_add_u32 s{sT0}, s{sT0}, 16\nv_mov_b32 v{vT0}, s{sT0}")
        e(f"s_lshl_b32 s{sT1}, s{sC}, 3\ns_add_u32 s{sT1}, s{sT1}, s{sJ}\ns_lshl_b32 s{sT1}, s{sT1}, 2\ns_add_u32 s{sT1}, s{sT1}, {FL_XW}\nv_mov_b32 v{vT1}, 0")
        e(f"s_mov_b64 exec, 1\nbuffer_store_dword v{vT0}, v{vT1}, s[{SRD_WS}:{SRD_WS+3}], s{sT1} offen sc1\ns_mov_b64 exec, -1")
        e.label(Lx)

    def publish_x(self, sX, sST, sHXr=None, moded=True):
        e = self.e
        e(f"s_add_u32 s{sT0}, s{sX}, s{sRBOFF}")
        def st1(fl):
            for c in range(2): t = self.ws_store(XR + 4 * c, f"s{sT0}", c * 1024, flag=fl)
            return t
        if moded: self.moded(st1)
        else: st1("sc1")
        e(f"v_mov_b32 v16, 0x3f803f80\nv_mov_b32 v17, 0\nv_mov_b32 v18, 0\nv_mov_b32 v19, 0\nv_mov_b32 v20, 0")
        for i in range(8):
            e(f"v_dot2c_f32_bf16 v{17 if i % 2 == 0 else 19}, v16, v{XR+i}\nv_dot2c_f32_bf16 v{18 if i % 2 == 0 else 20}, v{XR+i}, v{XR+i}")
        e("v_add_f32 v17, v17, v19\nv_add_f32 v18, v18, v20")
        e("v_permlane32_swap_b32 v17, v18\nv_add_f32 v17, v17, v18")
        e(f"s_add_u32 s{sT0}, s{sST}, s{sSTOFF}")
        st2 = lambda fl: self.ws_store(17, f"s{sT0}", 0, voff=vSTAT, n=1, flag=fl)
        tok = self.moded(st2) if moded else st2("sc1")
        if sHXr is not None:
            e(f"s_lshl_b32 s{sT1}, s{sC}, 15\ns_add_u32 s{sT1}, s{sT1}, s{sHXr}\ns_lshl_b32 s{sT2}, s{sNB}, 11\ns_add_u32 s{sT1}, s{sT1}, s{sT2}")
            e("s_mov_b32 exec_lo, 0xffff0000\ns_mov_b32 exec_hi, 0xffff0000")
            for c in range(2):
                self.ws_store(XR + 4 * c, f"s{sT1}", c * 1024, voff=vHALO, flag="sc1")
            e("s_mov_b64 exec, -1")
            e(f"s_add_u32 s{sT0}, s{sSTH}, s{sSTOFF}")
            self.ws_store(17, f"s{sT0}", 0, voff=vSTAT, n=1, flag="sc1")
        return tok

    def load_stats_issue(self, dst, sST, srb):
        e = self.e
        e(f"v_and_b32 v{dst+16}, 31, v{vL}\nv_lshlrev_b32 v{dst+16}, 3, v{dst+16}\nv_lshrrev_b32 v{dst+17}, 5, v{vL}\nv_lshl_add_u32 v{dst+16}, v{dst+17}, 11, v{dst+16}")
        e(f"s_lshl_b32 s{sT0}, s{srb}, 12\ns_add_u32 s{sT0}, s{sT0}, s{sST}")
        tok = None
        for t in range(8):
            tok = self.ws_load(dst + 2 * t, f"s{sT0}", t * 256, voff=dst + 16, n=2)
        return tok
    def stats_finish(self, src, vmean, vrstd):
        e = self.e
        for t in range(1, 8):
            e(f"v_add_f32 v{src}, v{src}, v{src+2*t}\nv_add_f32 v{src+1}, v{src+1}, v{src+2*t+1}")
        e(f"v_permlane32_swap_b32 v{src}, v{src+1}\nv_add_f32 v{src}, v{src}, v{src+1}\nv_mov_b32 v{src+1}, v{src}")
        e(f"v_permlane32_swap_b32 v{src}, v{src+1}")
        e(f"v_mul_f32 v{vmean}, {fbits(1/512)}, v{src}")
        e(f"v_mul_f32 v{src+1}, {fbits(1/512)}, v{src+1}")
        e(f"v_fma_f32 v{src+1}, -v{vmean}, v{vmean}, v{src+1}")
        e(f"v_add_f32 v{src+1}, {fbits(1e-5)}, v{src+1}")
        e(f"v_rsq_f32 v{vrstd}, v{src+1}")

    def p0(self):
        e = self.e
        e(f"s_mov_b32 s{SRD_T}, s{sIN}\ns_mov_b32 s{SRD_T+1}, s{sIN+1}\ns_mov_b32 s{SRD_T+2}, {2048*1024}\ns_mov_b32 s{SRD_T+3}, 0x20000")
        e(f"v_and_b32 v16, 31, v{vL}\nv_lshlrev_b32 v16, 11, v16\nv_lshrrev_b32 v17, 5, v{vL}\nv_lshl_add_u32 v16, v17, 3, v16")
        e(f"s_lshl_b32 s{sT0}, s{sC}, 6\ns_add_u32 s{sT0}, s{sT0}, s{sP}\ns_lshl_b32 s{sT0}, s{sT0}, 10\ns_lshl_b32 s{sT1}, s{sNB}, 6\ns_add_u32 s{sT0}, s{sT0}, s{sT1}")
        for q in range(4):
            e.vmem(f"buffer_load_dwordx2 v[{XR+2*q}:{XR+2*q+1}], v16, s[{SRD_T}:{SRD_T+3}], s{sT0} offen offset:{16*q}")
        e.wait_vm()
        e(f"s_mov_b32 s{sA0}, {X0}\ns_mov_b32 s{sA1}, {ST0}")
        self.publish_x(sA0, sA1, moded=False)
        Lskip = e.newlabel("P0SKIP"); Lkv = e.newlabel("P0KV"); Lgo = e.newlabel("P0GO"); Lld = e.newlabel("P0LD")
        e(f"s_cmp_ge_u32 s{sG}, 97\ns_cbranch_scc1 {Lskip}")
        pw = lambda i: (sIN + 2 * i, sIN + 2 * i + 1)
        e(f"s_cmp_eq_u32 s{sG}, 16\ns_cbranch_scc1 {Lkv}")
        e(f"s_mov_b32 s{SRD_T}, s{pw(1)[0]}\ns_mov_b32 s{SRD_T+1}, s{pw(1)[1]}\ns_mov_b32 s{SRD_T+2}, {512*1024}\ns_mov_b32 s{sA2}, 1024\ns_lshl_b32 s{sA3}, s{sG}, 6")
        e(f"s_cmp_lt_u32 s{sG}, 16\ns_cbranch_scc1 {Lgo}")
        e(f"s_mov_b32 s{SRD_T}, s{pw(4)[0]}\ns_mov_b32 s{SRD_T+1}, s{pw(4)[1]}\ns_sub_u32 s{sA3}, s{sG}, 17\ns_lshl_b32 s{sA3}, s{sA3}, 6")
        e(f"s_cmp_lt_u32 s{sG}, 33\ns_cbranch_scc1 {Lgo}")
        e(f"s_mov_b32 s{SRD_T}, s{pw(6)[0]}\ns_mov_b32 s{SRD_T+1}, s{pw(6)[1]}\ns_mov_b32 s{SRD_T+2}, {512*3072}\ns_mov_b32 s{sA2}, 3072\ns_sub_u32 s{sA3}, s{sG}, 33\ns_lshl_b32 s{sA3}, s{sA3}, 6")
        e(f"s_cmp_lt_u32 s{sG}, 81\ns_cbranch_scc1 {Lgo}")
        e(f"s_mov_b32 s{SRD_T}, s{pw(7)[0]}\ns_mov_b32 s{SRD_T+1}, s{pw(7)[1]}\ns_mov_b32 s{SRD_T+2}, {512*1024}\ns_mov_b32 s{sA2}, 1024\ns_sub_u32 s{sA3}, s{sG}, 81\ns_lshl_b32 s{sA3}, s{sA3}, 6")
        e.label(Lgo)
        e(f"s_mov_b32 s{SRD_T+3}, 0x20000")
        e(f"v_lshrrev_b32 v16, 2, v{vL}\nv_mul_lo_u32 v16, v16, s{sA2}\nv_and_b32 v17, 3, v{vL}\nv_lshl_add_u32 v16, v17, 4, v16")
        e(f"s_lshl_b32 s{sT0}, s{sW}, 7\ns_mul_i32 s{sT0}, s{sT0}, s{sA2}\ns_add_u32 s{sT0}, s{sT0}, s{sA3}\ns_lshl_b32 s{sT1}, s{sA2}, 4")
        for it in range(8):
            e(f"buffer_load_dwordx4 v[{32+4*it}:{35+4*it}], v16, s[{SRD_T}:{SRD_T+3}], s{sT0} offen")
            if it < 7: e(f"s_add_u32 s{sT0}, s{sT0}, s{sT1}")
        e(f"s_branch {Lld}")
        e.label(Lkv)
        e(f"v_lshrrev_b32 v16, 2, v{vL}\nv_lshlrev_b32 v16, 5, v16\nv_and_b32 v17, 1, v{vL}\nv_lshl_add_u32 v16, v17, 4, v16")
        e(f"s_lshl_b32 s{sT0}, s{sW}, 12")
        e(f"v_and_b32 v17, 2, v{vL}\nv_cmp_eq_u32 vcc, 0, v17")
        e(f"s_mov_b32 s{SRD_T}, s{pw(3)[0]}\ns_mov_b32 s{SRD_T+1}, s{pw(3)[1]}\ns_mov_b32 s{SRD_T+2}, {512*32}\ns_mov_b32 s{SRD_T+3}, 0x20000")
        e(f"s_mov_b64 s[{sM0}:{sM0+1}], vcc")
        e(f"s_mov_b64 exec, s[{sM0}:{sM0+1}]")
        for it in range(8):
            e(f"buffer_load_dwordx4 v[{32+4*it}:{35+4*it}], v16, s[{SRD_T}:{SRD_T+3}], s{sT0} offen offset:{it*512}")
        e(f"s_mov_b64 exec, -1\ns_andn2_b64 exec, exec, s[{sM0}:{sM0+1}]")
        e(f"s_mov_b32 s{SRD_T}, s{pw(2)[0]}\ns_mov_b32 s{SRD_T+1}, s{pw(2)[1]}\ns_mov_b32 s{SRD_T+2}, {512*32}\ns_mov_b32 s{SRD_T+3}, 0x20000")
        for it in range(8):
            e(f"buffer_load_dwordx4 v[{32+4*it}:{35+4*it}], v16, s[{SRD_T}:{SRD_T+3}], s{sT0} offen offset:{it*512}")
        e("s_mov_b64 exec, -1")
        e.label(Lld)
        e("s_waitcnt vmcnt(0)")
        e(f"s_lshl_b32 s{sT0}, s{sW}, 13\nv_add_u32 v17, s{sT0}, v{vL16}")
        for it in range(8):
            e(f"ds_write_b128 v17, v[{32+4*it}:{35+4*it}] offset:{it*1024}")
        e(f"v_and_b32 v18, 15, v{vL}\nv_lshrrev_b32 v19, 2, v18\nv_lshrrev_b32 v20, 5, v{vL}\nv_lshl_add_u32 v19, v20, 2, v19\nv_lshlrev_b32 v19, 6, v19")
        e(f"v_and_b32 v20, 3, v18\nv_lshl_add_u32 v19, v20, 3, v19\nv_bfe_u32 v20, v{vL}, 4, 1\nv_lshl_add_u32 v19, v20, 5, v19\nv_add_u32 v19, s{sT0}, v19")
        e("s_waitcnt lgkmcnt(0)")
        for t in range(8):
            e(f"ds_read_b64_tr_b16 v[{64+4*t}:{65+4*t}], v19 offset:{t*1024}")
            e(f"ds_read_b64_tr_b16 v[{66+4*t}:{67+4*t}], v19 offset:{t*1024+512}")
        e("s_waitcnt lgkmcnt(0)")
        e(f"s_lshl_b32 s{sT0}, s{sG}, 15\ns_lshl_b32 s{sT1}, s{sW}, 13\ns_add_u32 s{sT0}, s{sT0}, s{sT1}\ns_add_u32 s{sT0}, s{sT0}, {WF}\ns_add_u32 s{sT1}, s{sT0}, 4096")
        for t in range(8):
            self.ws_store(64 + 4 * t, f"s{sT0 if t < 4 else sT1}", (t % 4) * 1024)
        e("v_mov_b32 v16, 0x3f803f80\nv_mov_b32 v17, 0")
        for i in range(32):
            e(f"v_dot2_f32_bf16 v17, v{64+i}, v16, v17")
        e("v_mov_b32 v18, v17\nv_permlane32_swap_b32 v17, v18\nv_add_f32 v17, v17, v18")
        e(f"s_lshl_b32 s{sT0}, s{sW}, 8\nv_add_u32 v18, s{sT0}, v{vL4}\nds_write_b32 v18, v17 offset:32768\ns_waitcnt lgkmcnt(0)\ns_barrier")
        e(f"ds_read_b32 v20, v{vL4} offset:32768\nds_read_b32 v21, v{vL4} offset:{32768+256}\nds_read_b32 v22, v{vL4} offset:{32768+512}\nds_read_b32 v23, v{vL4} offset:{32768+768}\ns_waitcnt lgkmcnt(0)")
        e("v_add_f32 v20, v20, v21\nv_add_f32 v22, v22, v23\nv_add_f32 v20, v20, v22")
        Lcs = e.newlabel("P0CS")
        e(f"s_cmp_lg_u32 s{sW}, 0\ns_cbranch_scc1 {Lcs}")
        e(f"s_lshl_b32 s{sT0}, s{sG}, 7\ns_add_u32 s{sT0}, s{sT0}, {CS}\ns_mov_b32 exec_hi, 0")
        self.ws_store(20, f"s{sT0}", 0, voff=vL4, n=1)
        e("s_mov_b64 exec, -1")
        e.label(Lcs)
        e.label(Lskip)
        e.wait_vm(); e("s_barrier")
        L = e.newlabel("G0")
        e(f"s_cmp_lg_u32 s{sW}, 0\ns_cbranch_scc1 {L}")
        e(f"v_lshlrev_b32 v16, 10, v{vL}\ns_lshl_b32 s{sT0}, s{sG}, 2\ns_add_u32 s{sT0}, s{sT0}, {FL_G0}\nv_mov_b32 v17, s{sTAG}")
        e(f"s_mov_b64 exec, 0xff\nbuffer_store_dword v17, v16, s[{SRD_WS}:{SRD_WS+3}], s{sT0} offen sc1\ns_mov_b64 exec, -1")
        e(f"s_and_b32 s{sT0}, s{sG}, 7\ns_lshl_b32 s{sT0}, s{sT0}, 10\ns_add_u32 s{sT0}, s{sT0}, {FL_G0}")
        def setup():
            e(f"buffer_load_dwordx4 v[16:19], v{vL16}, s[{SRD_WS}:{SRD_WS+3}], s{sT0} offen sc1\ns_waitcnt vmcnt(0)")
            e(f"v_xor_b32 v16, s{sTAG}, v16\nv_xor_b32 v17, s{sTAG}, v17\nv_xor_b32 v18, s{sTAG}, v18\nv_xor_b32 v19, s{sTAG}, v19")
            e("v_or_b32 v16, v16, v17\nv_or_b32 v18, v18, v19\nv_or_b32 v16, v16, v18\nv_cmp_ne_u32 vcc, 0, v16")
        self.poll("g", setup)
        self.mode_detect()
        e.label(L)
        e("s_barrier")
        self.mode_read()
        e.reset_counters()

    def mode_detect(self):
        e = self.e
        Lp = e.newlabel("XPOLL"); Lok = e.newlabel("XOK")
        e(f"s_lshl_b32 s{sT0}, s{sC}, 5\ns_add_u32 s{sT0}, s{sT0}, {FL_XW}\nv_and_b32 v16, 7, v{vL}\nv_lshlrev_b32 v16, 2, v16\ns_mov_b32 s{sPOLL}, 0")
        e.label(Lp)
        e(f"buffer_load_dword v17, v16, s[{SRD_WS}:{SRD_WS+3}], s{sT0} offen sc1\ns_waitcnt vmcnt(0)")
        e(f"v_subrev_u32 v17, s{sTAG}, v17\nv_subrev_u32 v17, 16, v17\nv_cmp_le_u32 vcc, 16, v17")
        e(f"s_cbranch_vccz {Lok}")
        e(f"s_add_u32 s{sPOLL}, s{sPOLL}, 1\ns_cmp_lt_u32 s{sPOLL}, 400000\ns_cbranch_scc1 {Lp}\ns_branch L_END")
        e.label(Lok)
        e(f"v_cmp_ne_u32 vcc, s3, v17\ns_nop 4\ns_cmp_eq_u64 vcc, 0\ns_cselect_b32 s{sT1}, 1, 0")
        if getattr(self, "force_safe", False): e(f"s_mov_b32 s{sT1}, 0")
        e(f"v_mov_b32 v16, {MODEADDR}\nv_mov_b32 v17, s{sT1}\nds_write_b32 v16, v17\ns_waitcnt lgkmcnt(0)")
    def mode_read(self):
        e = self.e
        e(f"v_mov_b32 v16, {MODEADDR}\nds_read_b32 v17, v16\ns_waitcnt lgkmcnt(0)\nv_readfirstlane_b32 s{sMODE}, v17")


    def first_phase(self):
        e = self.e
        XI, WQI, WVI = 0, 65536, 131072
        STX, CSP, CSK, REDKV, VT, RED = 8192, 9216, 9728, 12288, 16384, 32768
        SRD_X, SRD_Q, SRD_P = 8, 68, 72
        pw = lambda i: (sIN + 2 * i, sIN + 2 * i + 1)
        sR = sA0
        for k, i in enumerate((1, 2, 3, 4, 6, 7)):
            e(f"s_mov_b32 s{88+2*k}, s{pw(i)[0]}\ns_mov_b32 s{89+2*k}, s{pw(i)[1]}")
        e(f"s_mov_b32 s{SRD_X}, s{sIN}\ns_mov_b32 s{SRD_X+1}, s{sIN+1}\ns_mov_b32 s{SRD_X+2}, {2048*1024}\ns_mov_b32 s{SRD_X+3}, 0x20000")
        e(f"s_mov_b32 s{SRD_Q}, s88\ns_mov_b32 s{SRD_Q+1}, s89\ns_mov_b32 s{SRD_Q+2}, {512*1024}\ns_mov_b32 s{SRD_Q+3}, 0x20000")
        if getattr(self, "tlbtouch", False):
            e("v_mov_b32 v230, 0")
            for k, ptr in enumerate((88, 90, 92, 94, 96, 98)):
                e(f"global_load_dword v{128+k}, v230, s[{ptr}:{ptr+1}]")
            e(f"buffer_load_dword v134, v230, s[{SRD_X}:{SRD_X+3}], 0 offen\nbuffer_load_dword v135, v230, s[{SRD_OUT}:{SRD_OUT+3}], 0 offen")
            for k, off in enumerate((WF, WF + 0x200000, X0 + 0x200000, OA, HX, HX + 0x100000, ST0 + 0x40000, KF, STH)):
                e(f"s_mov_b32 s{sT0}, {off}\nbuffer_load_dword v{136+k}, v230, s[{SRD_WS}:{SRD_WS+3}], s{sT0} offen")
        e(f"v_mov_b32 v230, 0")
        e(f"buffer_load_dword v231, v230, s[{SRD_WS}:{SRD_WS+3}], 0 offen sc0 sc1")
        rot = not getattr(self, "norot", False)
        sX0, sX1, sX2, sRr = 76, 77, 78, 79
        def x_rows(par_expr_sgpr, nrows, srow0, first=0, count=None, setup=True):
            if setup:
                e(f"s_lshl_b32 s{sX0}, s{srow0}, 1\ns_add_u32 s{sX0}, s{sX0}, s{par_expr_sgpr}\ns_lshl_b32 s{sT4}, s{sC}, 6\ns_add_u32 s{sX0}, s{sX0}, s{sT4}\ns_lshl_b32 s{sX0}, s{sX0}, 10")
                e(f"s_lshl_b32 s{sX1}, s{par_expr_sgpr}, 5\ns_add_u32 s{sX1}, s{sX1}, s{srow0}\ns_lshl_b32 s{sX1}, s{sX1}, 10")
                e(f"s_and_b32 s{sX2}, s{srow0}, 15")
                if rot: e(f"s_mul_i32 s{sRr}, s{sJ}, {nrows // 8}\ns_and_b32 s{sRr}, s{sRr}, {nrows-1}")
                else: e(f"s_mov_b32 s{sRr}, 0")
            for t in range(first, nrows if count is None else first + count):
                e(f"s_add_u32 s{sT5}, s{sX2}, s{sRr}\ns_lshl_b32 s{sT5}, s{sT5}, 4")
                e(f"s_lshl_b32 s{sT3}, s{sRr}, 11\ns_add_u32 s{sT3}, s{sT3}, s{sX0}\ns_lshl_b32 s{sT4}, s{sRr}, 10\ns_add_u32 s{sT4}, s{sT4}, s{sX1}")
                e(f"v_xor_b32 v232, s{sT5}, v{vL16}\ns_mov_b32 m0, s{sT4}")
                e(f"buffer_load_dwordx4 v232, s[{SRD_X}:{SRD_X+3}], s{sT3} offen lds")
                e(f"s_add_u32 s{sRr}, s{sRr}, 1\ns_and_b32 s{sRr}, s{sRr}, {nrows-1}")
        sW0, sW1, sWr = 64, 65, 66
        def wq_rows(nit, srow_shift_expr, first=0, count=None, setup=True):
            p2 = (nit & (nit - 1)) == 0
            if setup:
                e(f"s_lshl_b32 s{sW0}, s{sT6}, 10\ns_lshl_b32 s{sT4}, s{sJ}, 7\ns_add_u32 s{sW0}, s{sW0}, s{sT4}\ns_lshl_b32 s{sW1}, s{sT6}, 7\ns_add_u32 s{sW1}, s{sW1}, {WQI}")
                if rot and p2: e(f"s_and_b32 s{sWr}, s{sC}, 3\ns_mul_i32 s{sWr}, s{sWr}, {nit // 4}")
                else: e(f"s_mov_b32 s{sWr}, 0")
            for t in range(first, nit if count is None else first + count):
                e(f"s_lshl_b32 s{sT4}, s{sWr}, 10\ns_add_u32 s{sT4}, s{sT4}, s{sW1}\ns_mov_b32 m0, s{sT4}")
                e(f"s_lshl_b32 s{sT3}, s{sWr}, 13\ns_add_u32 s{sT3}, s{sT3}, s{sW0}")
                e(f"buffer_load_dwordx4 v233, s[{SRD_Q}:{SRD_Q+3}], s{sT3} offen lds")
                e(f"s_add_u32 s{sWr}, s{sWr}, 1")
                if p2: e(f"s_and_b32 s{sWr}, s{sWr}, {nit-1}")
        e(f"v_lshrrev_b32 v233, 3, v{vL}\nv_lshlrev_b32 v233, 10, v233\nv_and_b32 v234, 7, v{vL}\nv_lshl_add_u32 v233, v234, 4, v233")
        if getattr(self, "prepmap", 0) == 0:
            e(f"s_sub_u32 s{sR}, s{sJ}, 2\ns_lshl_b32 s{sR}, s{sR}, 5\ns_add_u32 s{sR}, s{sR}, s{sC}\ns_cmp_lt_u32 s{sJ}, 2\ns_cselect_b32 s{sR}, 255, s{sR}")
        else:
            e(f"s_mul_i32 s{sR}, s{sC}, 6\ns_add_u32 s{sR}, s{sR}, s{sJ}\ns_sub_u32 s{sR}, s{sR}, 2\ns_cmp_lt_u32 s{sJ}, 2\ns_cselect_b32 s{sR}, 255, s{sR}")
        def _pl():
            Lnp = e.newlabel("FNP"); Lgo = e.newlabel("FGO"); Lkvb = e.newlabel("FKVB")
            e(f"s_cmp_ge_u32 s{sR}, 97\ns_cbranch_scc1 {Lnp}")
            e(f"s_cmp_eq_u32 s{sR}, 16\ns_cbranch_scc1 {Lkvb}")
            e(f"s_mov_b32 s{SRD_P}, s88\ns_mov_b32 s{SRD_P+1}, s89\ns_mov_b32 s{SRD_P+2}, {512*1024}\ns_mov_b32 s{sA2}, 1024\ns_lshl_b32 s{sA3}, s{sR}, 6")
            e(f"s_cmp_lt_u32 s{sR}, 16\ns_cbranch_scc1 {Lgo}")
            e(f"s_mov_b32 s{SRD_P}, s94\ns_mov_b32 s{SRD_P+1}, s95\ns_sub_u32 s{sA3}, s{sR}, 17\ns_lshl_b32 s{sA3}, s{sA3}, 6")
            e(f"s_cmp_lt_u32 s{sR}, 33\ns_cbranch_scc1 {Lgo}")
            e(f"s_mov_b32 s{SRD_P}, s96\ns_mov_b32 s{SRD_P+1}, s97\ns_mov_b32 s{SRD_P+2}, {512*3072}\ns_mov_b32 s{sA2}, 3072\ns_sub_u32 s{sA3}, s{sR}, 33\ns_lshl_b32 s{sA3}, s{sA3}, 6")
            e(f"s_cmp_lt_u32 s{sR}, 81\ns_cbranch_scc1 {Lgo}")
            e(f"s_mov_b32 s{SRD_P}, s98\ns_mov_b32 s{SRD_P+1}, s99\ns_mov_b32 s{SRD_P+2}, {512*1024}\ns_mov_b32 s{sA2}, 1024\ns_sub_u32 s{sA3}, s{sR}, 81\ns_lshl_b32 s{sA3}, s{sA3}, 6")
            e.label(Lgo)
            e(f"s_mov_b32 s{SRD_P+3}, 0x20000")
            e(f"v_lshrrev_b32 v235, 2, v{vL}\nv_mul_lo_u32 v235, v235, s{sA2}\nv_and_b32 v236, 3, v{vL}\nv_lshl_add_u32 v235, v236, 4, v235")
            e(f"s_lshl_b32 s{sT0}, s{sW}, 7\ns_mul_i32 s{sT0}, s{sT0}, s{sA2}\ns_add_u32 s{sT0}, s{sT0}, s{sA3}\ns_lshl_b32 s{sT1}, s{sA2}, 4")
            for it in range(8):
                e(f"buffer_load_dwordx4 a[{4*it}:{4*it+3}], v235, s[{SRD_P}:{SRD_P+3}], s{sT0} offen")
                if it < 7: e(f"s_add_u32 s{sT0}, s{sT0}, s{sT1}")
            e(f"s_branch {Lnp}")
            e.label(Lkvb)
            e(f"v_lshrrev_b32 v235, 2, v{vL}\nv_lshlrev_b32 v235, 5, v235\nv_and_b32 v236, 1, v{vL}\nv_lshl_add_u32 v235, v236, 4, v235")
            e(f"s_lshl_b32 s{sT0}, s{sW}, 12")
            e(f"v_and_b32 v236, 2, v{vL}\nv_cmp_eq_u32 vcc, 0, v236")
            e(f"s_mov_b32 s{SRD_P}, s92\ns_mov_b32 s{SRD_P+1}, s93\ns_mov_b32 s{SRD_P+2}, {512*32}\ns_mov_b32 s{SRD_P+3}, 0x20000")
            e(f"s_mov_b64 s[{sM0}:{sM0+1}], vcc\ns_mov_b64 exec, s[{sM0}:{sM0+1}]")
            for it in range(8):
                e(f"buffer_load_dwordx4 a[{4*it}:{4*it+3}], v235, s[{SRD_P}:{SRD_P+3}], s{sT0} offen offset:{it*512}")
            e(f"s_mov_b64 exec, -1\ns_andn2_b64 exec, exec, s[{sM0}:{sM0+1}]")
            e(f"s_mov_b32 s{SRD_P}, s90\ns_mov_b32 s{SRD_P+1}, s91\ns_mov_b32 s{SRD_P+2}, {512*32}\ns_mov_b32 s{SRD_P+3}, 0x20000")
            for it in range(8):
                e(f"buffer_load_dwordx4 a[{4*it}:{4*it+3}], v235, s[{SRD_P}:{SRD_P+3}], s{sT0} offen offset:{it*512}")
            e("s_mov_b64 exec, -1")
            e.label(Lnp)
        self._prep_loads = _pl
        Lnk = e.newlabel("FNK"); Lcommon = e.newlabel("FCOM"); Lkvw = e.newlabel("FKVW")
        e(f"s_cmp_ge_u32 s{sJ}, 2\ns_cbranch_scc1 {Lnk}")
        for m, (ptr, base) in enumerate(((92, WVI), (90, WVI + 16384))):
            e(f"s_mov_b32 s{SRD_P}, s{ptr}\ns_mov_b32 s{SRD_P+1}, s{ptr+1}\ns_mov_b32 s{SRD_P+2}, 16384\ns_mov_b32 s{SRD_P+3}, 0x20000")
            e(f"s_lshl_b32 s{sT0}, s{sW}, 12\ns_add_u32 s{sT1}, s{sT0}, {base}\ns_mov_b32 m0, s{sT1}\ns_nop 0")
            for t in range(4):
                e(f"buffer_load_dwordx4 v{vL16}, s[{SRD_P}:{SRD_P+3}], s{sT0} offen offset:{t*1024} lds")
        e(f"s_lshl_b32 s{sT6}, s{sW}, 3")
        x_rows(sJ, 8, sT6)
        e(f"s_branch {Lcommon}")
        e.label(Lnk)
        self._prep_loads()
        fi = getattr(self, "light", None) == "fi"
        if fi: self.lstamp(0)
        if rot:
            e(f"s_lshl_b32 s{sT6}, s{sW}, 7")
            wq_rows(16, None, 0, 4)
            e(f"s_lshr_b32 s{sT7}, s{sW}, 1\ns_and_b32 s{sT6}, s{sW}, 1\ns_lshl_b32 s{sT6}, s{sT6}, 4")
            x_rows(sT7, 16, sT6, 0, 2)
            if getattr(self, "twophase", True): e("s_waitcnt vmcnt(0)")
            x_rows(sT7, 16, sT6, 2, 14, setup=False)
            if fi: self.lstamp(1)
            wq_rows(16, None, 4, 12, setup=False)
        else:
            e(f"s_lshr_b32 s{sT7}, s{sW}, 1\ns_and_b32 s{sT6}, s{sW}, 1\ns_lshl_b32 s{sT6}, s{sT6}, 4")
            x_rows(sT7, 16, sT6)
            e(f"s_lshl_b32 s{sT6}, s{sW}, 7")
            wq_rows(16, None)
        if fi: self.lstamp(2)
        e.label(Lcommon)
        e(f"v_and_b32 v16, 31, v{vL}\nv_lshlrev_b32 v16, 11, v16\nv_lshrrev_b32 v17, 5, v{vL}\nv_lshl_add_u32 v16, v17, 3, v16")
        e(f"s_lshl_b32 s{sT0}, s{sC}, 6\ns_add_u32 s{sT0}, s{sT0}, s{sP}\ns_lshl_b32 s{sT0}, s{sT0}, 10\ns_lshl_b32 s{sT1}, s{sNB}, 6\ns_add_u32 s{sT0}, s{sT0}, s{sT1}")
        for q in range(4):
            e(f"buffer_load_dwordx2 v[{XR+2*q}:{XR+2*q+1}], v16, s[{SRD_X}:{SRD_X+3}], s{sT0} offen offset:{16*q}")
        if getattr(self, "light", None) == "fi":
            self.lstamp(3); self.lstamp(4); self.lstamp(5); self.lstamp(6); self.lstamp(7); self.lflush("fi")
        self.stamp("f_issued")
        e(f"v_and_b32 v16, 31, v{vL}\nv_lshrrev_b32 v17, 5, v{vL}\nv_and_b32 v18, 15, v16\nv_lshlrev_b32 v19, 10, v16")
        e(f"s_lshl_b32 s{sT0}, s{sP}, 15\ns_lshl_b32 s{sT1}, s{sKH}, 9\ns_add_u32 s{sT0}, s{sT0}, s{sT1}\nv_add_u32 v19, s{sT0}, v19")
        for b in range(8):
            e(f"v_add_u32 v20, {2*b}, v17\nv_xor_b32 v20, v20, v18\nv_lshl_add_u32 v{240+b}, v20, 4, v19")
        e(f"v_and_b32 v18, 15, v{vL}\nv_lshrrev_b32 v20, 2, v18\nv_lshl_add_u32 v20, v17, 3, v20\nv_lshlrev_b32 v21, 7, v20")
        e(f"v_bfe_u32 v22, v{vL}, 4, 1\nv_lshl_add_u32 v21, v22, 5, v21\nv_and_b32 v23, 3, v18\nv_lshl_add_u32 v21, v23, 3, v21")
        e(f"s_lshl_b32 s{sT0}, s{sKH}, 15\ns_add_u32 s{sT0}, s{sT0}, {WQI}\ns_lshl_b32 s{sT1}, s{sKH}, 6\ns_add_u32 s{sT2}, s{sT0}, s{sT1}\nv_add_u32 v248, s{sT2}, v21")
        e(f"s_xor_b32 s{sT1}, s{sT1}, 64\ns_add_u32 s{sT2}, s{sT0}, s{sT1}\nv_add_u32 v249, s{sT2}, v21")
        e(f"v_lshlrev_b32 v21, 5, v20\nv_lshl_add_u32 v21, v22, 14, v21\nv_lshl_add_u32 v21, v23, 3, v21")
        e(f"s_lshl_b32 s{sT0}, s{sKH}, 13\ns_add_u32 s{sT0}, s{sT0}, {WVI}\nv_add_u32 v250, s{sT0}, v21")
        STXK, CSK, REDKV, VT = WVI, WVI + 256, WVI + 8192 + 512, WVI + 1024
        STX2, CSP, RED = WVI + 13312, WVI + 14336, WVI + 16384
        ONE = 229
        def xreads():
            for t in range(16):
                e(f"ds_read_b128 v[{16+4*t}:{19+4*t}], v{240+(t&7)} offset:{(t>>3)*256}")
            e(f"v_mov_b32 v{ONE}, 0x3f803f80\nv_mov_b32 v224, 0\nv_mov_b32 v225, 0\nv_mov_b32 v226, 0\nv_mov_b32 v236, 0\nv_mov_b32 v237, 0\nv_mov_b32 v238, 0")
            e("s_waitcnt lgkmcnt(0)")
        def stats_ops(t):
            acc = lambda k, d: ((224, 236), (225, 237))[k][d & 1]
            return [f"v_dot2c_f32_bf16 v{acc(k,d)}, v{ONE if k == 0 else 16+4*t+d}, v{16+4*t+d}" for d in range(4) for k in range(2)]
        def stats_write(sbase):
            e("v_add_f32 v224, v224, v236\nv_add_f32 v225, v225, v237")
            e("v_permlane32_swap_b32 v224, v225\nv_add_f32 v224, v224, v225")
            e(f"v_add_u32 v227, s{sbase}, v{vL4}\nds_write_b32 v227, v224")
        def stats_read(sbase, second):
            e(f"v_and_b32 v227, 31, v{vL}\nv_lshlrev_b32 v227, 2, v227\nv_add_u32 v227, s{sbase}, v227")
            e(f"ds_read_b32 v224, v227\nds_read_b32 v225, v227 offset:128\nds_read_b32 v226, v227 offset:{second}\nds_read_b32 v228, v227 offset:{second+128}")
            e("s_waitcnt lgkmcnt(0)")
            e(f"v_add_f32 v224, v224, v226\nv_add_f32 v225, v225, v228")
            e(f"v_mul_f32 v178, {fbits(1/512)}, v224\nv_mul_f32 v225, {fbits(1/512)}, v225\nv_fma_f32 v225, -v178, v178, v225\nv_add_f32 v225, {fbits(1e-5)}, v225\nv_rsq_f32 v179, v225")
        def cs_read(dst, base, second):
            e(f"v_lshrrev_b32 v228, 5, v{vL}\nv_lshlrev_b32 v228, 4, v228\nv_add_u32 v228, {base}, v228")
            for q in range(4):
                e(f"ds_read_b128 v[{dst+4*q}:{dst+3+4*q}], v228 offset:{32*q}\nds_read_b128 v[{112+4*q}:{115+4*q}], v228 offset:{second+32*q}")
            e("s_waitcnt lgkmcnt(0)")
            for r in range(16): e(f"v_add_f32 v{dst+r}, v{dst+r}, v{112+r}")
        def qpass(with_stats, mid=None, after_stats=None):
            Lp1 = e.newlabel("FQP1"); Lpd = e.newlabel("FQPD")
            for r in range(4): e(f"v_mov_b32 v{232+r}, 0x3f803f80")
            if with_stats:
                for t in range(16):
                    for x in stats_ops(t): e(x)
            if after_stats: after_stats()
            e(f"s_cmp_eq_u32 s{sP}, 1\ns_cbranch_scc1 {Lp1}")
            for var in range(2):
                if var == 1: e.label(Lp1)
                def rd(t):
                    r = 112 + (t % 4) * 8
                    e(f"ds_read_b64_tr_b16 v[{r}:{r+1}], v248 offset:{t*2048}\nds_read_b64_tr_b16 v[{r+2}:{r+3}], v248 offset:{t*2048+512}")
                    e(f"ds_read_b64_tr_b16 v[{r+4}:{r+5}], v249 offset:{t*2048}\nds_read_b64_tr_b16 v[{r+6}:{r+7}], v249 offset:{t*2048+512}")
                for t in range(3): rd(t)
                for t in range(16):
                    if t + 3 < 16: rd(t + 3)
                    e(f"s_waitcnt lgkmcnt({4*min(3, 15-t)})")
                    r = 112 + (t % 4) * 8
                    e(f"v_mfma_f32_32x32x16_bf16 v[80:95], v[{r}:{r+3}], v[{16+4*t}:{19+4*t}], {'0' if t == 0 else 'v[80:95]'}")
                    e(f"v_mfma_f32_32x32x16_bf16 v[96:111], v[{r+4}:{r+7}], v[{16+4*t}:{19+4*t}], {'0' if t == 0 else 'v[96:111]'}")
                    e(f"v_mfma_f32_32x32x16_bf16 v[144:159], v[{r+4*var}:{r+4*var+3}], v[232:235], {'0' if t == 0 else 'v[144:159]'}")
                    if mid and t == 7: mid()
                if var == 0: e(f"s_branch {Lpd}")
            e.label(Lpd)
            e(f"s_xor_b32 s{sT1}, s{sKH}, s{sP}\ns_lshl_b32 s{sT1}, s{sT1}, 8\ns_lshl_b32 s{sT2}, s{sKH}, 7\ns_add_u32 s{sT1}, s{sT1}, s{sT2}\ns_add_u32 s{sT1}, s{sT1}, {CSP}")
            e(f"v_lshrrev_b32 v228, 5, v{vL}\nv_lshlrev_b32 v228, 4, v228\nv_add_u32 v228, s{sT1}, v228")
            e("s_mov_b32 exec_lo, 1\ns_mov_b32 exec_hi, 1")
            for q in range(4): e(f"ds_write_b128 v228, v[{144+4*q}:{147+4*q}] offset:{32*q}")
            e("s_mov_b64 exec, -1")
        def prep_process():
            Lcs = e.newlabel("FPCS")
            PL = WVI
            e("s_waitcnt vmcnt(36)")
            e(f"s_lshl_b32 s{sT0}, s{sW}, 13\ns_add_u32 s{sT0}, s{sT0}, {PL}\nv_add_u32 v17, s{sT0}, v{vL16}")
            for it in range(8):
                e(f"ds_write_b128 v17, a[{4*it}:{4*it+3}] offset:{it*1024}")
            e(f"v_and_b32 v18, 15, v{vL}\nv_lshrrev_b32 v19, 2, v18\nv_lshrrev_b32 v20, 5, v{vL}\nv_lshl_add_u32 v19, v20, 2, v19\nv_lshlrev_b32 v19, 6, v19")
            e(f"v_and_b32 v20, 3, v18\nv_lshl_add_u32 v19, v20, 3, v19\nv_bfe_u32 v20, v{vL}, 4, 1\nv_lshl_add_u32 v19, v20, 5, v19\nv_add_u32 v19, s{sT0}, v19")
            e("s_waitcnt lgkmcnt(0)")
            for t in range(8):
                e(f"ds_read_b64_tr_b16 v[{32+4*t}:{33+4*t}], v19 offset:{t*1024}")
                e(f"ds_read_b64_tr_b16 v[{34+4*t}:{35+4*t}], v19 offset:{t*1024+512}")
            e(f"s_lshl_b32 s{sT2}, s{sR}, 15\ns_lshl_b32 s{sT1}, s{sW}, 13\ns_add_u32 s{sT2}, s{sT2}, s{sT1}\ns_add_u32 s{sT2}, s{sT2}, {WF}\ns_add_u32 s{sT1}, s{sT2}, 4096")
            e("v_mov_b32 v16, 0x3f803f80\nv_mov_b32 v17, 0")
            e("s_waitcnt lgkmcnt(0)")
            for t in range(8):
                e(f"buffer_store_dwordx4 v[{32+4*t}:{35+4*t}], v{vL16}, s[{SRD_WS}:{SRD_WS+3}], s{sT2 if t < 4 else sT1} offen offset:{(t%4)*1024} sc1")
            e("v_mov_b32 v21, 0\nv_mov_b32 v22, 0\nv_mov_b32 v23, 0")
            for i in range(32):
                ac = (17, 21, 22, 23)[i % 4]
                e(f"v_dot2c_f32_bf16 v{ac}, v16, v{32+i}")
            e("v_add_f32 v21, v21, v22\nv_add_f32 v17, v17, v23\nv_add_f32 v17, v17, v21")
            e("v_mov_b32 v18, v17\nv_permlane32_swap_b32 v17, v18\nv_add_f32 v17, v17, v18")
            e(f"v_add_u32 v18, s{sT0}, v{vL4}\nds_write_b32 v18, v17\ns_waitcnt lgkmcnt(0)\ns_barrier")
            e(f"s_cmp_lg_u32 s{sW}, 0\ns_cbranch_scc1 {Lcs}")
            e(f"v_add_u32 v18, {PL}, v{vL4}")
            e(f"ds_read_b32 v20, v18\nds_read_b32 v21, v18 offset:8192\nds_read_b32 v22, v18 offset:16384\nds_read_b32 v23, v18 offset:24576\ns_waitcnt lgkmcnt(0)")
            e("v_add_f32 v20, v20, v21\nv_add_f32 v22, v22, v23\nv_add_f32 v20, v20, v22")
            e(f"s_lshl_b32 s{sT0}, s{sR}, 7\ns_add_u32 s{sT0}, s{sT0}, {CS}\ns_mov_b32 exec_hi, 0")
            e(f"buffer_store_dword v20, v{vL4}, s[{SRD_WS}:{SRD_WS+3}], s{sT0} offen sc1\ns_mov_b64 exec, -1")
            e.label(Lcs)
        Lkvp = e.newlabel("FKVP"); Lnkw = e.newlabel("FNKW"); Lqs = e.newlabel("FQS"); Lq2 = e.newlabel("FQ2"); Lred = e.newlabel("FRED"); Lep = e.newlabel("FEP")
        e(f"s_cmp_ge_u32 s{sJ}, 2\ns_cbranch_scc1 {Lnkw}")
        e(f"s_cmp_eq_u32 s{sP}, s{sJ}\ns_cbranch_scc1 {Lkvp}")
        e("s_waitcnt vmcnt(4)")
        self.tag_from(231)
        e("s_barrier")
        e(f"s_xor_b32 s{sT7}, s{sJ}, 1\ns_lshl_b32 s{sT6}, s{sKH}, 4")
        x_rows(sT7, 16, sT6)
        e(f"s_lshl_b32 s{sT6}, s{sKH}, 8")
        wq_rows(12, None)
        e("s_barrier")
        e(f"s_lshl_b32 s{sT6}, s{sKH}, 8\ns_add_u32 s{sT6}, s{sT6}, 96")
        wq_rows(20, None)
        e("s_waitcnt vmcnt(0)")
        e("s_barrier")
        e(f"s_branch {Lqs}")
        e.label(Lkvp)
        e("s_waitcnt vmcnt(4)")
        self.tag_from(231)
        e("s_barrier")
        self.stamp("f_b0")
        fl = getattr(self, "light", None) == "fkv"
        if fl: self.lstamp(0)
        xreads()
        if fl: self.lstamp(1)
        def kvrd(t): e(f"ds_read_b64_tr_b16 v[{160+4*t}:{161+4*t}], v250 offset:{t*512}\nds_read_b64_tr_b16 v[{162+4*t}:{163+4*t}], v250 offset:{t*512+128}")
        for t in range(6): kvrd(t)
        for t in range(16):
            for x in stats_ops(t): e(x)
            if 6 + t < 16: kvrd(6 + t)
        e("s_waitcnt lgkmcnt(0)")
        for t in range(16):
            for d in range(4): e(f"v_dot2c_f32_bf16 v{226 if d % 2 == 0 else 238}, v{ONE}, v{160+4*t+d}")
        for t in range(16):
            e(f"v_mfma_f32_32x32x16_bf16 v[144:159], v[{160+4*t}:{163+4*t}], v[{16+4*t}:{19+4*t}], {'0' if t == 0 else 'v[144:159]'}")
        if fl: self.lstamp(2)
        e(f"s_lshl_b32 s{sT0}, s{sKH}, 13\ns_add_u32 s{sT0}, s{sT0}, {STXK}")
        stats_write(sT0)
        e(f"s_add_u32 s{sT1}, s{sT0}, 256")
        e("v_add_f32 v226, v226, v238\nv_mov_b32 v228, v226\nv_permlane32_swap_b32 v226, v228\nv_add_f32 v226, v226, v228")
        e(f"v_add_u32 v228, s{sT1}, v{vL4}\ns_mov_b32 exec_hi, 0\nds_write_b32 v228, v226\ns_mov_b64 exec, -1")
        Lx = e.newlabel("FKW")
        e(f"s_cmp_eq_u32 s{sKH}, 0\ns_cbranch_scc1 {Lx}")
        e(f"v_add_u32 v{vT0}, {REDKV}, v{vL16}")
        for q in range(4):
            e(f"ds_write_b128 v{vT0}, v[{144+4*q}:{147+4*q}] offset:{q*1024}")
        e.label(Lx)
        e("s_waitcnt lgkmcnt(0)")
        if fl: self.lstamp(3)
        e("s_barrier")
        if fl: self.lstamp(4)
        e(f"s_mov_b32 s{sT0}, {STXK}")
        stats_read(sT0, 8192)
        if fl: self.lstamp(5)
        Lk1 = e.newlabel("FK1")
        e(f"s_cmp_lg_u32 s{sKH}, 0\ns_cbranch_scc1 {Lk1}")
        self.kv_epilogue(REDKV, VT, 196, 178, 179, pre=lambda: cs_read(196, CSK, 8192), defer_flag=True)
        e.label(Lk1)
        e("s_barrier")
        def mid():
            Lm = e.newlabel("FKF")
            e(f"s_cmp_lg_u32 s{sKH}, 0\ns_cbranch_scc1 {Lm}")
            self.kv_flag()
            e.label(Lm)
        qpass(False, mid)
        self.stamp("f_kv")
        e("s_waitcnt vmcnt(0)")
        e(f"s_branch {Lred}")
        e.label(Lnkw)
        Lw0 = e.newlabel("FW0"); Lw1 = e.newlabel("FW1")
        e(f"s_cmp_ge_u32 s{sR}, 97\ns_cbranch_scc1 {Lw0}")
        prep_process()
        Lw2 = e.newlabel("FW2")
        e(f"s_cmp_eq_u32 s{sW}, 0\ns_cbranch_scc1 {Lw2}")
        e(f"s_waitcnt vmcnt(8)\ns_branch {Lw1}")
        e.label(Lw2)
        e(f"s_waitcnt vmcnt(9)\ns_branch {Lw1}")
        e.label(Lw0)
        e("s_waitcnt vmcnt(0)")
        e.label(Lw1)
        self.tag_from(231)
        e("s_barrier")
        e.label(Lqs)
        self.stamp("f_landed")
        fq = getattr(self, "light", None) == "fq"
        if fq: self.lstamp(0)
        xreads()
        if fq: self.lstamp(1)
        qpass(True, after_stats=(lambda: self.lstamp(2)) if fq else None)
        if fq: self.lstamp(3)
        e(f"s_lshl_b32 s{sT0}, s{sW}, 8\ns_add_u32 s{sT0}, s{sT0}, {STX2}")
        stats_write(sT0)
        e.label(Lred)
        self.reduce_pair(red=RED)
        if fq: self.lstamp(4)
        Lst = e.newlabel("FST"); Lst2 = e.newlabel("FST2")
        e(f"s_lshl_b32 s{sT1}, s{sKH}, 8\ns_add_u32 s{sT1}, s{sT1}, {CSP}")
        e(f"v_lshrrev_b32 v228, 5, v{vL}\nv_lshlrev_b32 v228, 4, v228\nv_add_u32 v228, s{sT1}, v228")
        for q in range(4):
            e(f"ds_read_b128 v[{196+4*q}:{199+4*q}], v228 offset:{32*q}\nds_read_b128 v[{112+4*q}:{115+4*q}], v228 offset:{128+32*q}")
        e(f"s_cmp_eq_u32 s{sP}, s{sJ}\ns_cbranch_scc1 {Lst}")
        e(f"s_lshl_b32 s{sT0}, s{sP}, 8\ns_add_u32 s{sT0}, s{sT0}, {STX2}")
        stats_read(sT0, 512)
        e.label(Lst)
        e("s_waitcnt lgkmcnt(0)")
        for r in range(0, 16, 2): e(f"v_pk_add_f32 v[{196+r}:{197+r}], v[{196+r}:{197+r}], v[{112+r}:{113+r}]")
        if fq: self.lstamp(5)
        self.q_epilogue(196, 178, 179)
        if fq:
            self.lstamp(6); self.lstamp(7); self.lflush("fq")
        self.stamp("f_q")
        e(f"s_mov_b32 s{sRANK}, s{sR}")
        e.reset_counters()

    def half_setup(self):
        e = self.e
        e(f"s_lshl_b32 s{sT0}, s{sHALF}, 22")
        e(f"s_add_u32 s{sXIN}, s{sT0}, {X0}\ns_add_u32 s{sXMID}, s{sXIN}, 0x200000\ns_add_u32 s{sXOUT}, s{sXIN}, 0x400000")
        e(f"s_lshl_b32 s{sT0}, s{sHALF}, 19")
        e(f"s_add_u32 s{sSTIN}, s{sT0}, {ST0}\ns_add_u32 s{sSTMID}, s{sSTIN}, 0x40000\ns_add_u32 s{sSTOUT}, s{sSTIN}, 0x80000")
        e(f"s_lshl_b32 s{sT0}, s{sHALF}, 21")
        e(f"s_add_u32 s{sOA}, s{sT0}, {OA}\ns_add_u32 s{sOB}, s{sT0}, {OB}")
        e(f"s_lshl_b32 s{sT0}, s{sHALF}, 20\ns_add_u32 s{sHX}, s{sT0}, {HX}")
        e(f"s_lshl_b32 s{sT0}, s{sHALF}, 18\ns_add_u32 s{sKF}, s{sT0}, {KF}")
        e(f"s_lshl_b32 s{sT0}, s{sHALF}, 14\ns_add_u32 s{sFLC}, s{sT0}, {FL_C}")
        e(f"s_lshl_b32 s{sT0}, s{sHALF}, 18\ns_add_u32 s{sSTH}, s{sT0}, {STH}")


    def w_pair_bases(self, wb, sK, sS):
        e = self.e
        e(f"s_lshl_b32 s{sT2}, s{sKH}, 14")
        e(f"s_add_u32 s{sK}, s{sNB}, {wb}\ns_lshl_b32 s{sK}, s{sK}, 15\ns_add_u32 s{sK}, s{sK}, s{sT2}\ns_add_u32 s{sK}, s{sK}, {WF}")
        e(f"s_xor_b32 s{sS}, s{sNB}, 1\ns_add_u32 s{sS}, s{sS}, {wb}\ns_lshl_b32 s{sS}, s{sS}, 15\ns_add_u32 s{sS}, s{sS}, s{sT2}\ns_add_u32 s{sS}, s{sS}, {WF}")
    def alias_setup(self):
        if getattr(self, "noalias", False): return
        e = self.e
        L = e.newlabel("ALIAS")
        e(f"s_cmp_eq_u32 s{sMODE}, 0\ns_cbranch_scc1 {L}")
        e(f"s_mov_b32 s{sOA}, {OA}\ns_mov_b32 s{sOB}, {OA}")
        e(f"s_mov_b32 s{sXIN}, {X0 + 0x200000}\ns_mov_b32 s{sXMID}, {X0 + 0x200000}\ns_mov_b32 s{sXOUT}, {X0 + 0x200000}")
        e(f"s_mov_b32 s{sSTIN}, {ST0 + 0x40000}\ns_mov_b32 s{sSTMID}, {ST0 + 0x40000}\ns_mov_b32 s{sSTOUT}, {ST0 + 0x40000}")
        e.label(L)

    def wpair_dma3(self, wb, ldsbase):
        e = self.e
        L = e.newlabel("DMA3")
        e(f"s_cmp_eq_u32 s{sW}, 0\ns_cbranch_scc1 {L}")
        e(f"s_sub_u32 s{sT0}, s{sW}, 1\ns_mul_i32 s{sT0}, s{sT0}, {21*1024}\ns_add_u32 s{sA4}, s{sT0}, {ldsbase}")
        e(f"s_lshl_b32 s{sA5}, s{sJ}, 16\ns_add_u32 s{sA5}, s{sA5}, s{sT0}\ns_add_u32 s{sA5}, s{sA5}, {WF + wb*32768}")
        for t in range(22):
            if t % 4 == 0:
                e(f"s_mov_b32 m0, s{sA4}\ns_add_u32 s{sA4}, s{sA4}, 4096")
                if t: e(f"s_add_u32 s{sA5}, s{sA5}, 4096")
                else: e("s_nop 0")
            e(f"buffer_load_dwordx4 v{vL16}, s[{SRD_WS}:{SRD_WS+3}], s{sA5} offen offset:{(t%4)*1024} sc1 lds")
        e.label(L)

    def load_w_pair(self, wb, dk, ds, acc=True):
        self.w_pair_bases(wb, sT0, sT1)
        self.load_frags(dk, sT0, 16, acc=acc)
        return self.load_frags(ds, sT1, 16, acc=acc)

    def load_act_half(self, sbuf, nfirst=16):
        e = self.e
        e(f"s_lshl_b32 s{sACT}, s{sRB}, 15\ns_lshl_b32 s{sT1}, s{sKH}, 14\ns_add_u32 s{sACT}, s{sACT}, s{sT1}\ns_add_u32 s{sACT}, s{sACT}, s{sbuf}")
        self._act = {}
        for t in range(nfirst): self.act_issue(t)
        return self._act
    def act_issue(self, t):
        if t >= 16 or t in self._act: return
        e = self.e
        if t % 4 == 0 and t: e(f"s_add_u32 s{sACT}, s{sACT}, 4096")
        self._act[t] = self.ws_load(16 + 4 * t, f"s{sACT}", (t % 4) * 1024)

    RED = 131072; REDKV = 147456; VT = 151552
    WL0 = 0; WL1 = 65536
    WKVL = 0
    def reduce_pair(self, red=None, extra_write=None, after_writes=None, after_reads=None):
        e = self.e
        red = self.RED if red is None else red
        e(f"s_lshl_b32 s{sT0}, s{sW}, 12\ns_add_u32 s{sT0}, s{sT0}, {red}\nv_add_u32 v{vT0}, s{sT0}, v{vL16}")
        e(f"s_xor_b32 s{sT0}, s{sT0}, 8192\nv_add_u32 v{vT1}, s{sT0}, v{vL16}")
        for q in range(4):
            e(f"ds_write_b128 v{vT0}, v[{96+4*q}:{99+4*q}] offset:{q*1024}")
        if extra_write: extra_write()
        if after_writes: after_writes()
        e("s_waitcnt lgkmcnt(0)\ns_barrier")
        for q in range(4):
            e(f"ds_read_b128 v[{96+4*q}:{99+4*q}], v{vT1} offset:{q*1024}")
        if after_reads: after_reads()
        for q in range(4):
            e(f"s_waitcnt lgkmcnt({3-q})")
            for r in range(4 * q, 4 * q + 4, 2):
                e(f"v_pk_add_f32 v[{80+r}:{81+r}], v[{80+r}:{81+r}], v[{96+r}:{97+r}]")
        e.lg = []

    def load_cs(self, dst, sidx_expr_reg, vaddr):
        tok = None
        for q in range(4):
            tok = self.ws_load(dst + 4 * q, f"s{sidx_expr_reg}", 32 * q, voff=vaddr)
        return tok

    def dma(self, soff, imm):
        return self.e.vmem(f"buffer_load_dwordx4 v{vL16}, s[{SRD_WS}:{SRD_WS+3}], {soff} offen offset:{imm} sc1 lds")
    def wpair_dma_list(self, wb, ldsbase, sM, sS):
        setup = [f"s_lshl_b32 s{sT0}, s{sW}, 14", f"s_add_u32 s{sM}, s{sT0}, {ldsbase}",
                 f"s_lshl_b32 s{sS}, s{sJ}, 16", f"s_add_u32 s{sS}, s{sS}, s{sT0}", f"s_add_u32 s{sS}, s{sS}, {WF + wb*32768}"]
        items = []
        for g in range(4):
            for t in range(4):
                pre = [f"s_mov_b32 m0, s{sM}", f"s_add_u32 s{sM}, s{sM}, 4096"] if t == 0 else []
                post = [f"s_add_u32 s{sS}, s{sS}, 4096"] if t == 3 else []
                items.append((pre, f"buffer_load_dwordx4 v{vL16}, s[{SRD_WS}:{SRD_WS+3}], s{sS} offen offset:{t*1024} sc1 lds", post))
        return setup, items
    def emit_item(self, it):
        pre, ld, post = it
        for x in pre: self.e(x)
        t = self.e.vmem(ld)
        for x in post: self.e(x)
        return t
    def wpair_dma(self, wb, ldsbase):
        setup, items = self.wpair_dma_list(wb, ldsbase, sA4, sA5)
        for x in setup: self.e(x)
        t = None
        for it in items: t = self.emit_item(it)
        return t

    WR = 112
    def pair_addrs(self, ldsbase):
        e = self.e
        e(f"s_lshl_b32 s{sT2}, s{sKH}, 14\ns_lshl_b32 s{sT3}, s{sKH}, 15\ns_add_u32 s{sT3}, s{sT3}, s{sT2}\ns_add_u32 s{sT3}, s{sT3}, {ldsbase}\nv_add_u32 v{vWK}, s{sT3}, v{vL16}")
        e(f"s_xor_b32 s{sT3}, s{sKH}, 1\ns_lshl_b32 s{sT3}, s{sT3}, 15\ns_add_u32 s{sT3}, s{sT3}, s{sT2}\ns_add_u32 s{sT3}, s{sT3}, {ldsbase}\nv_add_u32 v{vWS}, s{sT3}, v{vL16}")
    def pair_prime(self):
        e = self.e; self._wt = {}
        for t in range(3): self._pair_read(t)
    def _pair_read(self, t):
        e = self.e; r = self.WR + (t % 4) * 8
        e.lds(f"ds_read_b128 v[{r}:{r+3}], v{vWK} offset:{t*1024}")
        self._wt[t] = e.lds(f"ds_read_b128 v[{r+4}:{r+7}], v{vWS} offset:{t*1024}")
    def pair_mfma(self, toks, inter=None, AH=None):
        AH = self.AH if AH is None else AH
        e = self.e
        for t in range(16):
            if t + 3 < 16: self._pair_read(t + 3)
            if toks is not None:
                self.act_issue(t + AH)
                e.wait_vm(toks[t])
            e.wait_lg(self._wt[t])
            r = self.WR + (t % 4) * 8
            e(f"v_mfma_f32_32x32x16_bf16 v[80:95], v[{r}:{r+3}], v[{16+4*t}:{19+4*t}], {'0' if t == 0 else 'v[80:95]'}")
            e(f"v_mfma_f32_32x32x16_bf16 v[96:111], v[{r+4}:{r+7}], v[{16+4*t}:{19+4*t}], {'0' if t == 0 else 'v[96:111]'}")
            if inter: inter(t)

    QL = 0; PS = 8192; SLOT = 2304; FAIL = 63488
    CSQ, CSKV = 180, 196
    def g4_prefetch_cs(self):
        e = self.e
        e(f"v_lshrrev_b32 v212, 5, v{vL}\nv_lshlrev_b32 v212, 4, v212")
        e(f"s_add_u32 s{sT0}, s{sNB}, {WB_Q}\ns_lshl_b32 s{sT0}, s{sT0}, 7\ns_add_u32 s{sT0}, s{sT0}, {CS}")
        self.load_cs(self.CSQ, sT0, 212)
        e(f"s_mov_b32 s{sT0}, {CS + WB_KV*128}")
        return self.load_cs(self.CSKV, sT0, 212)
    def g4_prefetch_kv(self):
        e = self.e
        L = e.newlabel("PFKV")
        e(f"s_cmp_eq_u32 s{sP}, s{sJ}\ns_cbranch_scc0 {L}")
        e(f"s_lshl_b32 s{sT2}, s{sKH}, 14\ns_add_u32 s{sT0}, s{sT2}, {WF + WB_KV*32768}")
        for t in range(16):
            if t % 4 == 0 and t: e(f"s_add_u32 s{sT0}, s{sT0}, 4096")
            e(f"buffer_load_dwordx4 a[{4*t}:{4*t+3}], v{vL16}, s[{SRD_WS}:{SRD_WS+3}], s{sT0} offen offset:{(t%4)*1024} sc1")
        e.label(L)

    def kv_epilogue(self, redkv, vt, CSKV, vmean, vrstd, pre=None, before_drain=None, defer_flag=False):
        e = self.e
        e(f"v_add_u32 v{vT0}, {redkv}, v{vL16}")
        for q in range(4):
            e(f"ds_read_b128 v[{96+4*q}:{99+4*q}], v{vT0} offset:{q*1024}")
        e(f"v_and_b32 v216, 31, v{vL}\nv_lshlrev_b32 v216, 5, v216\nv_lshrrev_b32 v217, 5, v{vL}\nv_lshl_add_u32 v216, v217, 3, v216\nv_add_u32 v216, {vt}, v216")
        e(f"v_and_b32 v218, 15, v{vL}\nv_bfe_u32 v219, v{vL}, 4, 1\nv_lshlrev_b32 v219, 4, v219\nv_lshl_add_u32 v219, v217, 2, v219\nv_lshrrev_b32 v220, 2, v218\nv_add_u32 v219, v219, v220\nv_lshlrev_b32 v219, 5, v219")
        e(f"v_and_b32 v220, 3, v218\nv_lshl_add_u32 v219, v220, 3, v219\nv_add_u32 v219, {vt}, v219")
        e(f"v_bfe_u32 v220, v{vL}, 4, 1\nv_mul_u32_u24 v220, 544, v220\nv_mul_u32_u24 v222, 272, v217\nv_add_u32 v220, v220, v222\nv_lshl_add_u32 v220, v218, 4, v220")
        e(f"s_lshl_b32 s{sT0}, s{sRB}, 10\ns_add_u32 s{sT0}, s{sT0}, s{sKF}")
        e(f"s_mul_i32 s{sT1}, s{sRB}, {VT_STRIDE}\ns_add_u32 s{sT1}, s{sT1}, s{sKF}\ns_add_u32 s{sT1}, s{sT1}, 0x10000")
        e(f"v_mul_u32_u24 v222, 272, v{vL}\nv_add_u32 v222, 256, v222")
        for r in range(4): e(f"v_mov_b32 v{224+r}, 0x3f803f80")
        e(f"s_mov_b64 exec, 0xf\nbuffer_store_dwordx4 v[224:227], v222, s[{SRD_WS}:{SRD_WS+3}], s{sT1} offen sc1\ns_mov_b64 exec, -1")
        e("s_waitcnt lgkmcnt(0)")
        if pre: pre()
        e(f"v_mul_f32 v214, v{vmean}, v{vrstd}\nv_sub_f32 v214, 0, v214\nv_mov_b32 v212, v{vrstd}")
        for r in range(0, 16, 2):
            e(f"v_pk_add_f32 v[{144+r}:{145+r}], v[{144+r}:{145+r}], v[{96+r}:{97+r}]")
        for r in range(0, 16, 2):
            e(f"v_pk_mul_f32 v[{96+r}:{97+r}], v[{CSKV+r}:{CSKV+r+1}], v[214:215] op_sel_hi:[1,0]")
        for r in range(0, 16, 2):
            e(f"v_pk_fma_f32 v[{144+r}:{145+r}], v[{144+r}:{145+r}], v[212:213], v[{96+r}:{97+r}] op_sel_hi:[1,0,1]")
        for d in range(8):
            e(f"v_cvt_pk_bf16_f32 v{96+d}, v{144+2*d}, v{145+2*d}")
        e("ds_write_b64 v216, v[96:97]\nds_write_b64 v216, v[98:99] offset:16")
        e(f"buffer_store_dwordx4 v[100:103], v{vL16}, s[{SRD_WS}:{SRD_WS+3}], s{sT0} offen sc1")
        e("s_waitcnt lgkmcnt(0)")
        e("ds_read_b64_tr_b16 v[104:105], v219\nds_read_b64_tr_b16 v[106:107], v219 offset:256\ns_waitcnt lgkmcnt(0)")
        e(f"buffer_store_dwordx4 v[104:107], v220, s[{SRD_WS}:{SRD_WS+3}], s{sT1} offen sc1")
        if not defer_flag: self.kv_flag()

    def kv_flag(self):
        e = self.e
        e(f"s_lshl_b32 s{sT4}, s{sHALF}, 11\ns_lshl_b32 s{sT5}, s{sRB}, 2\ns_add_u32 s{sT4}, s{sT4}, s{sT5}\ns_add_u32 s{sT4}, s{sT4}, {FL_GK}")
        e(f"v_lshlrev_b32 v220, 8, v{vL}\nv_mov_b32 v221, s{sTAG}")
        e("s_waitcnt vmcnt(0)")
        e(f"s_mov_b64 exec, 0xff\nbuffer_store_dword v221, v220, s[{SRD_WS}:{SRD_WS+3}], s{sT4} offen sc1\ns_mov_b64 exec, -1")

    def q_epilogue(self, CSQ, vmean, vrstd):
        e = self.e
        e(f"v_mul_f32 v214, {fbits(QSCALE)}, v{vrstd}")
        e(f"v_mul_f32 v216, v{vmean}, v214\nv_sub_f32 v216, 0, v216")
        e(f"s_lshl_b32 s{sT0}, s{sKH}, 2\ns_add_u32 s{sT0}, s{sT0}, s{sP}\ns_lshl_b32 s{sT0}, s{sT0}, 10\nv_add_u32 v{vT0}, s{sT0}, v{vL16}")
        for r in range(0, 16, 2):
            e(f"v_pk_mul_f32 v[{96+r}:{97+r}], v[{CSQ+r}:{CSQ+r+1}], v[216:217] op_sel_hi:[1,0]")
        for r in range(0, 16, 2):
            e(f"v_pk_fma_f32 v[{80+r}:{81+r}], v[{80+r}:{81+r}], v[214:215], v[{96+r}:{97+r}] op_sel_hi:[1,0,1]")
        for d in range(8):
            e(f"v_cvt_pk_bf16_f32 v{96+d}, v{80+2*d}, v{81+2*d}")
        e(f"ds_write_b128 v{vT0}, v[96:99] offset:{self.QL}\nds_write_b128 v{vT0}, v[100:103] offset:{self.QL+2048}")

    def g4(self):
        e = self.e
        CSQ, CSKV = self.CSQ, self.CSKV
        Lq = e.newlabel("G4Q"); Lb1 = e.newlabel("G4B1"); Lq2 = e.newlabel("G4Q2"); Lred = e.newlabel("G4RED")
        toks = self.load_act_half(sXIN, self.AH)
        e(f"v_and_b32 v176, 31, v{vL}\nv_lshlrev_b32 v176, 3, v176\nv_lshrrev_b32 v177, 5, v{vL}\nv_lshl_add_u32 v176, v177, 11, v176")
        e(f"s_lshl_b32 s90, s{sRB}, 12\ns_add_u32 s90, s90, s{sSTIN}")
        def stat_inter(t):
            t0 = 16 - self.AH
            if t0 <= t <= t0 + 3:
                for q in (2 * (t - t0), 2 * (t - t0) + 1):
                    self.ws_load(160 + 2 * q, "s90", q * 256, voff=176, n=2)
        self.pair_addrs(self.WL1)
        saved = list(e.vm); saved_act = dict(self._act)
        e(f"s_cmp_eq_u32 s{sP}, s{sJ}\ns_cbranch_scc0 {Lq}")
        for t in range(16):
            self.act_issue(t + self.AH)
            e.wait_vm(toks[t])
            e(f"v_mfma_f32_32x32x16_bf16 v[144:159], a[{4*t}:{4*t+3}], v[{16+4*t}:{19+4*t}], {'0' if t == 0 else 'v[144:159]'}")
            stat_inter(t)
        e(f"s_cmp_eq_u32 s{sKH}, 0\ns_cbranch_scc1 {Lb1}")
        e(f"v_add_u32 v{vT0}, {self.REDKV}, v{vL16}")
        for q in range(4):
            e(f"ds_write_b128 v{vT0}, v[{144+4*q}:{147+4*q}] offset:{q*1024}")
        e("s_waitcnt lgkmcnt(0)")
        e(f"s_branch {Lb1}")
        e.label(Lq)
        e.vm = list(saved); e.lg = []
        self._act = saved_act
        e(f"s_lshl_b32 s{sACT}, s{sRB}, 15\ns_lshl_b32 s{sT1}, s{sKH}, 14\ns_add_u32 s{sACT}, s{sACT}, s{sT1}\ns_add_u32 s{sACT}, s{sACT}, s{sXIN}\ns_add_u32 s{sACT}, s{sACT}, {((self.AH-1)//4)*4096}")
        self.pair_prime()
        self.pair_mfma(self._act, stat_inter)
        e.label(Lb1)
        e("s_waitcnt vmcnt(0)"); e.reset_counters()
        self.stats_finish(160, 178, 179)
        e(f"s_cmp_ge_u32 s{sJ}, 2\ns_cbranch_scc1 {Lred}")
        e("s_barrier")
        e(f"s_cmp_eq_u32 s{sP}, s{sJ}\ns_cbranch_scc0 {Lred}")
        e(f"s_cmp_lg_u32 s{sKH}, 0\ns_cbranch_scc1 {Lq2}")
        self.kv_epilogue(self.REDKV, self.VT, CSKV, 178, 179, defer_flag=True)
        e.label(Lq2)
        e.lg = []
        self.pair_prime()
        def g4mid(t):
            if t == 7:
                Lm = e.newlabel("G4KF")
                e(f"s_cmp_lg_u32 s{sKH}, 0\ns_cbranch_scc1 {Lm}")
                self.kv_flag()
                self.stamp("g4kv")
                e.label(Lm)
        self.pair_mfma(None, g4mid)
        e.label(Lred)
        e.lg = []
        self.reduce_pair()
        self.q_epilogue(CSQ, 178, 179)
        e.reset_counters()

    def att_unit(self, u, Sc, Sn, Pc, Pn, Qnext, Oc, Oprev, extra, first, cin="0"):
        e = self.e
        tn = (u + 1) % 16; tp = (u - 1) % 16
        for x in extra.get(-1, []): e(x)
        for i in range(16):
            if i == 2 and Qnext is not None: e(f"v_mfma_f32_32x32x16_bf16 {v(Sn,16)}, {a(4*tn,4)}, {v(Qnext,4)}, {cin}")
            if i == 7: e(f"v_mfma_f32_32x32x16_bf16 {v(Oprev,16)}, {a(64+8*tp+4,4)}, {v(Pn+4,4)}, {v(Oprev,16)}")
            if i == 12: e(f"v_mfma_f32_32x32x16_bf16 {v(Oc,16)}, {a(64+8*u,4)}, {v(Pc,4)}, {'0' if first else v(Oc,16)}")
            e(f"v_exp_f32 v{Sc+i}, v{Sc+i}")
            pk = (lambda d, lo, hi: f"v_perm_b32 v{d}, v{hi}, v{lo}, s{sPERM}") if getattr(self, "attperm", False) else (lambda d, lo, hi: f"v_cvt_pk_bf16_f32 v{d}, v{lo}, v{hi}")
            if i == 0: e(pk(Pn+7, Sn+14, Sn+15))
            if i >= 3 and (i - 3) % 2 == 0:
                k = (i - 3) // 2
                e(pk(Pc+k, Sc+2*k, Sc+2*k+1))
            for x in extra.get(i, []): e(x)

    def attention(self):
        e = self.e
        QA, QB = 16, 20
        S = [32, 48]; P = [64, 72]; O = [80, 96]
        PS, SL, QL, WS1 = self.PS, self.SLOT, self.QL, self.WL1
        sM0V, sSOFF = sA4, sA5
        sK, sV = 88, 89
        if getattr(self, "attperm", False): e(f"s_mov_b32 s{sPERM}, 0x07060302")
        self.g2_w_bases()
        e(f"v_mov_b32 v27, 0\nds_write_b32 v27, v27 offset:{self.FAIL}\ns_mov_b32 s{sFB}, 0")
        for r in range(8): e(f"v_mov_b32 v{P[1]+r}, 0")
        for r in range(2): e(f"v_mov_b32 v{S[1]+14+r}, 0")
        e(f"s_mul_i32 s{sT0}, s{sW}, {6*SL}\ns_add_u32 s{sT0}, s{sT0}, {PS}\nv_add_u32 v24, s{sT0}, v{vL16}\ns_add_u32 s{sT0}, s{sT0}, 2048\nv_add_u32 v25, s{sT0}, v{vL4}")
        setup, dmaitems = self.wpair_dma_list(WB_OA, WS1, sM0V, sSOFF)
        for x in setup: e(x)
        e(f"v_and_b32 v27, 31, v{vL}\nv_min_u32 v26, 16, v27\nv_lshlrev_b32 v26, 4, v26\nv_lshrrev_b32 v29, 5, v{vL}\nv_mul_u32_u24 v29, 272, v29\nv_add_u32 v26, v26, v29")
        e(f"v_and_b32 v29, 27, v27\nv_cmp_eq_u32 vcc, 16, v29\nv_cmp_gt_u32 s[{sM0}:{sM0+1}], 16, v27\ns_or_b64 vcc, vcc, s[{sM0}:{sM0+1}]\nv_mov_b32 v29, {WS_BYTES}\nv_cndmask_b32 v26, v29, v26, vcc")
        e(f"s_mov_b32 s{sLOOP}, 0\ns_lshl_b32 s{sT2}, s{sW}, 1\ns_add_u32 s{sT2}, s{sT2}, 2\ns_and_b32 s{sT2}, s{sT2}, 7")
        e(f"s_lshl_b32 s{sT2}, s{sT2}, 10\nv_add_u32 v28, s{sT2}, v{vL16}")
        e("s_waitcnt lgkmcnt(0)")
        self.stamp("att_poll")
        L = e.newlabel("GK")
        e(f"s_cmp_lg_u32 s{sW}, 0\ns_cbranch_scc1 {L}")
        e(f"s_lshl_b32 s{sT0}, s{sHALF}, 11\ns_and_b32 s{sT1}, s{sG}, 7\ns_lshl_b32 s{sT1}, s{sT1}, 8\ns_add_u32 s{sT0}, s{sT0}, s{sT1}\ns_add_u32 s{sT0}, s{sT0}, {FL_GK}")
        e(f"s_lshl_b32 s{sT2}, s{sC}, 5\ns_add_u32 s{sT2}, s{sT2}, {FL_XW}")
        def setup_():
            e(f"buffer_load_dword v18, v{vPA}, s[{SRD_WS}:{SRD_WS+3}], s{sT2} offen sc1")
            e(f"buffer_load_dword v17, v{vL4}, s[{SRD_WS}:{SRD_WS+3}], s{sT0} offen sc1\ns_waitcnt vmcnt(0)")
            e(f"v_subrev_u32 v18, s{sTAG}, v18\nv_subrev_u32 v18, 16, v18\nv_cmp_le_u32 vcc, 16, v18\ns_mov_b64 s[{sM0}:{sM0+1}], vcc")
            e(f"v_cmp_ne_u32 vcc, s{sTAG}, v17\ns_or_b64 vcc, vcc, s[{sM0}:{sM0+1}]")
        self.poll("g", setup_)
        Lm = e.newlabel("NOMODE")
        e(f"s_cmp_lg_u32 s{sHALF}, 0\ns_cbranch_scc1 {Lm}")
        e(f"v_cmp_ne_u32 vcc, s3, v18\ns_nop 4\ns_cmp_eq_u64 vcc, 0\ns_cselect_b32 s{sT1}, 1, 0")
        if getattr(self, "force_safe", False): e(f"s_mov_b32 s{sT1}, 0")
        e(f"v_mov_b32 v16, {MODEADDR}\nv_mov_b32 v17, s{sT1}\nds_write_b32 v16, v17\ns_waitcnt lgkmcnt(0)")
        e.label(Lm)
        e.label(L)
        e("s_waitcnt vmcnt(0)")
        e("s_barrier")
        Lm2 = e.newlabel("NOMODE2")
        e(f"s_cmp_lg_u32 s{sHALF}, 0\ns_cbranch_scc1 {Lm2}")
        self.mode_read()
        self.alias_setup()
        e.label(Lm2)
        self.stamp("att_start")
        e.reset_counters()
        e(f"ds_read_b128 v[{QA}:{QA+3}], v28 offset:{QL}")
        e(f"s_lshl_b32 s{sK}, s{sW}, 14\ns_add_u32 s{sK}, s{sK}, s{sKF}")
        e(f"s_mul_i32 s{sV}, s{sW}, {16*VT_STRIDE}\ns_add_u32 s{sV}, s{sV}, s{sKF}\ns_add_u32 s{sV}, s{sV}, 0x10000")
        def kv_lines(t):
            Ls = []
            if t % 4 == 0 and t: Ls += [f"s_add_u32 s{sK}, s{sK}, 4096"]
            if t % 2 == 0 and t: Ls += [f"s_add_u32 s{sV}, s{sV}, {2*VT_STRIDE}"]
            vo = (t % 2) * VT_STRIDE
            Ls += [f"buffer_load_dwordx4 a[{4*t}:{4*t+3}], v{vL16}, s[{SRD_WS}:{SRD_WS+3}], s{sK} offen offset:{(t%4)*1024} sc1",
                   f"buffer_load_dwordx4 a[{64+8*t}:{67+8*t}], v26, s[{SRD_WS}:{SRD_WS+3}], s{sV} offen offset:{vo} sc1",
                   f"buffer_load_dwordx4 a[{68+8*t}:{71+8*t}], v26, s[{SRD_WS}:{SRD_WS+3}], s{sV} offen offset:{vo+544} sc1"]
            return Ls
        AHEAD = 4
        for t in range(AHEAD):
            for x in kv_lines(t): e(x)
        e(f"s_waitcnt vmcnt({3*AHEAD-1}) lgkmcnt(0)")
        e(f"v_mfma_f32_32x32x16_bf16 {v(S[0],16)}, {a(0,4)}, {v(QA,4)}, 0")
        e("s_nop 7\ns_nop 7")
        self.stamp("att_kv")
        def wA_line(f):
            sb = sT7 if f < 16 else sT6
            pre = [f"s_add_u32 s{sb}, s{sA2}, {(f//4)*4096}"] if f % 4 == 0 else []
            return pre + [f"buffer_load_dwordx4 a[{4*f}:{4*f+3}], v{vL16}, s[{SRD_WS}:{SRD_WS+3}], s{sb} offen offset:{(f%4)*1024} sc1"]
        def position(pos, kind):
            Qc, Qn = (QA, QB) if pos == 0 else (QB, QA)
            Oc, On = (O[0], O[1]) if pos == 0 else (O[1], O[0])
            for u in range(16):
                c = u & 1; n = c ^ 1
                extra = {}
                if kind == 'first':
                    issued = min(AHEAD + u, 16)
                    need_idx = min(3 * (u + 1), 47) if u < 15 else 47
                    nw = 3*issued - need_idx - 1
                    if u in (13, 14): nw += 1
                    extra[-1] = [f"s_waitcnt vmcnt({nw})"]
                    if AHEAD + u < 16:
                        extra[3] = kv_lines(AHEAD + u)
                    if u == 0:
                        Lpf = e.newlabel("NOPF")
                        extra[13] = [f"s_cmp_lg_u32 s{sHALF}, 0", f"s_cbranch_scc1 {Lpf}", f"s_cmp_ge_u32 s{sRANK}, 97", f"s_cbranch_scc1 {Lpf}", f"s_cmp_lg_u32 s{sW}, 0", f"s_cbranch_scc1 {Lpf}",
                                     f"v_lshlrev_b32 v29, 9, v{vL}", f"s_lshl_b32 s{sT0}, s{sRANK}, 2", f"s_add_u32 s{sT0}, s{sT0}, {FL_G0}",
                                     "s_mov_b64 exec, 0xff", f"buffer_store_dword v{vFT}, v29, s[{SRD_WS}:{SRD_WS+3}], s{sT0} offen sc1", "s_mov_b64 exec, -1", f"{Lpf}:"]
                    if u == 15:
                        Lep = e.newlabel("EPOCH")
                        extra[12] = [f"s_cmp_lg_u32 s{sG}, 0", f"s_cbranch_scc1 {Lep}", f"s_cmp_eq_u32 s{sHALF}, 0", f"s_cbranch_scc1 {Lep}", f"s_cmp_lg_u32 s{sW}, 0", f"s_cbranch_scc1 {Lep}",
                                     "v_mov_b32 v182, 0", "s_mov_b64 exec, 1", f"buffer_store_dword v{vFT}, v182, s[{SRD_WS}:{SRD_WS+3}], 0 offen sc0 sc1", "s_mov_b64 exec, -1", f"{Lep}:"]
                    if u == 12:
                        extra[5] = [f"s_and_b32 s{sT0}, s{sG}, 7", f"s_lshl_b32 s{sT0}, s{sT0}, 9", f"s_add_u32 s{sT0}, s{sT0}, {FL_G0}",
                                    f"v_lshlrev_b32 v29, 3, v{vL}",
                                    f"buffer_load_dwordx2 v[30:31], v29, s[{SRD_WS}:{SRD_WS+3}], s{sT0} offen sc1"]
                    if u == 15 and not getattr(self, "nopretouch", False):
                        Lh1 = e.newlabel("PTH1"); Lpd = e.newlabel("PTD")
                        srd = f"s[{SRD_WS}:{SRD_WS+3}]"
                        extra[10] = [f"s_cmp_lg_u32 s{sHALF}, 0", f"s_cbranch_scc1 {Lh1}",
                            f"s_add_u32 s{sT0}, s{sXMID}, s{sRBOFF}",
                            f"buffer_load_dwordx4 v[128:131], v{vL16}, {srd}, s{sT0} offen",
                            f"buffer_load_dwordx4 v[132:135], v{vL16}, {srd}, s{sT0} offen offset:1024",
                            f"s_add_u32 s{sT0}, s{sSTMID}, s{sSTOFF}", f"buffer_load_dword v136, v{vSTAT}, {srd}, s{sT0} offen",
                            f"s_lshl_b32 s{sT0}, s{sJ}, 2", f"s_add_u32 s{sT0}, s{sT0}, s{sW}", f"s_lshl_b32 s{sT0}, s{sT0}, 10", f"s_lshl_b32 s{sT1}, s{sC}, 16",
                            f"s_add_u32 s{sT0}, s{sT0}, s{sT1}", f"s_add_u32 s{sT0}, s{sT0}, s{sOA}", f"s_add_u32 s{sT1}, s{sT0}, 32768",
                            f"buffer_load_dwordx4 v[140:143], v{vL16}, {srd}, s{sT0} offen", f"buffer_load_dwordx4 v[144:147], v{vL16}, {srd}, s{sT1} offen",
                            f"s_branch {Lpd}", f"{Lh1}:",
                            f"v_and_b32 v139, 31, v{vL}", f"v_lshlrev_b32 v139, 11, v139", f"v_lshrrev_b32 v148, 5, v{vL}", f"v_lshl_add_u32 v139, v148, 4, v139",
                            f"s_lshl_b32 s{sT0}, s{sC}, 6", f"s_add_u32 s{sT0}, s{sT0}, s{sP}", f"s_lshl_b32 s{sT0}, s{sT0}, 10", f"s_lshl_b32 s{sT1}, s{sNB}, 6", f"s_add_u32 s{sT0}, s{sT0}, s{sT1}",
                            f"buffer_load_dwordx4 v[128:131], v139, s[{SRD_OUT}:{SRD_OUT+3}], s{sT0} offen",
                            f"{Lpd}:"]
                    if u == 15:
                        Lok = e.newlabel("G0OK"); Lp = e.newlabel("G0P")
                        chk = [f"v_xor_b32 v30, s{sTAG}, v30", f"v_xor_b32 v31, s{sTAG}, v31",
                               f"v_cmp_lt_u32 vcc, 48, v{vL}", "s_nop 1", "v_cndmask_b32 v30, v30, 0, vcc",
                               f"v_cmp_le_u32 vcc, 48, v{vL}", "s_nop 1", "v_cndmask_b32 v31, v31, 0, vcc",
                               "v_or_b32 v30, v30, v31", "v_cmp_ne_u32 vcc, 0, v30"]
                        extra[6] = chk + [f"s_cbranch_vccz {Lok}", f"s_mov_b32 s{sPOLL}, 0", f"{Lp}:",
                                          f"buffer_load_dwordx2 v[30:31], v29, s[{SRD_WS}:{SRD_WS+3}], s{sT0} offen sc1", "s_waitcnt vmcnt(0)"] + chk + \
                                         [f"s_cbranch_vccz {Lok}", f"s_add_u32 s{sPOLL}, s{sPOLL}, 1", f"s_cmp_lt_u32 s{sPOLL}, 400000", f"s_cbranch_scc1 {Lp}", "s_branch L_END", f"{Lok}:"]
                if u == 0 and kind != 'last':
                    extra[9] = ["v_add_u32 v28, 0x400, v28", "v_and_b32 v28, 0x1fff, v28"]
                if u == 1 and kind == 'loop':
                    extra[6] = [f"ds_write_b128 v24, v[{On}:{On+3}]", f"ds_write_b128 v24, v[{On+4}:{On+7}] offset:1024", f"ds_write_b32 v25, v{On+8}",
                                f"v_add_u32 v24, {SL}, v24", f"v_add_u32 v25, {SL}, v25"]
                if u == 4 and kind != 'last':
                    extra[5] = [f"ds_read_b128 v[{Qn}:{Qn+3}], v28 offset:{QL}"]
                if pos == 1 and kind == 'loop' and u == 2:
                    for t in range(4):
                        pre, ld, post = dmaitems[t]
                        extra[5 + 2 * t] = pre + [ld] + post
                if kind == 'last' and u == 0 and not getattr(self, "nopf", False):
                    Lp = e.newlabel("PF2")
                    extra[1] = [f"s_lshr_b32 s{sT4}, s{sG}, 3", f"s_lshl_b32 s{sT4}, s{sT4}, 2", f"s_add_u32 s{sT4}, s{sT4}, s{sW}", f"s_lshl_b32 s{sT4}, s{sT4}, 10",
                                f"s_add_u32 s{sT5}, s{sT4}, 1024", f"s_cmp_gt_u32 s{sT5}, L_CODE_END-L_PFBASE", f"s_cbranch_scc1 {Lp}",
                                f"s_add_u32 s{sT4}, s{sT4}, s{sPFB}", f"s_addc_u32 s{sT5}, s{sPFB+1}, 0",
                                f"global_load_dwordx4 v[128:131], v{vL16}, s[{sT4}:{sT4+1}]", f"{Lp}:"]
                if kind == 'last':
                    if u < 4:
                        pre, ld, post = dmaitems[u]
                        extra[8] = pre + [ld] + post
                    extra.setdefault(4, []).extend(wA_line(u))
                    if u >= 2: extra.setdefault(10, []).extend(wA_line(16 + u - 2))
                    if u >= 14: extra.setdefault(13, []).extend(wA_line(16 + u))
                if u == 14 and kind != 'last':
                    extra.setdefault(4, []).append("s_waitcnt lgkmcnt(0)")
                if u == 15 and kind != 'last' and not getattr(self, "unroll", False):
                    extra[14] = [f"s_add_u32 s{sLOOP}, s{sLOOP}, 1"]
                Qx = Qn if u == 15 else Qc
                if u == 15 and kind == 'last': Qx = None
                Op = On if u == 0 else Oc
                self.att_unit(u, S[c], S[n], P[c], P[n], Qx, Oc, Op, extra, first=(u == 0))
        position(0, 'first')
        if getattr(self, "unroll", False):
            for it in range(3):
                position(1, 'loop')
                position(0, 'loop')
        else:
            Lloop = e.newlabel("ATTLOOP")
            e(".p2align 3")
            e.label(Lloop)
            position(1, 'loop')
            position(0, 'loop')
            e(f"s_cmp_lt_u32 s{sLOOP}, 7\ns_cbranch_scc1 {Lloop}")
        position(1, 'last')
        e(f"v_cvt_pk_bf16_f32 v{P[1]+7}, v{S[1]+14}, v{S[1]+15}")
        e(f"v_mfma_f32_32x32x16_bf16 {v(O[1],16)}, {a(64+8*15+4,4)}, {v(P[1]+4,4)}, {v(O[1],16)}")
        e.label("L_ATT_TAIL")
        for vis in range(3):
            e(f"s_sub_u32 s{sT0}, s{sW}, {1+vis}\ns_and_b32 s{sT0}, s{sT0}, 3\ns_mul_i32 s{sT0}, s{sT0}, {6*SL}\ns_add_u32 s{sT0}, s{sT0}, {PS + 2*vis*SL}")
            e(f"v_add_u32 v{24+vis}, s{sT0}, v{vL16}\ns_add_u32 s{sT0}, s{sT0}, 2048\nv_add_u32 v{28+vis}, s{sT0}, v{vL4}")
        e("s_waitcnt vmcnt(27) lgkmcnt(0)\ns_barrier")
        self.stamp("att_loopend")
        slots = {}
        base = [32, 44, 56, 68, 112, 16]
        k = 0
        for pp in range(2):
            for vis in range(3):
                b = base[k]; k += 1; slots[(pp, vis)] = b
                lreg = 31 if b == 16 else b + 8
                e(f"ds_read_b128 v[{b}:{b+3}], v{24+vis} offset:{pp*SL}\nds_read_b128 v[{b+4}:{b+7}], v{24+vis} offset:{pp*SL+1024}\nds_read_b32 v{lreg}, v{28+vis} offset:{pp*SL}")
        e(f"s_lshl_b32 s{sT0}, s{sJ}, 2\ns_add_u32 s{sT0}, s{sT0}, s{sW}\ns_lshl_b32 s{sT0}, s{sT0}, 10")
        e(f"s_lshl_b32 s{sT1}, s{sC}, 16\ns_add_u32 s{sT0}, s{sT0}, s{sT1}\ns_add_u32 s{sT0}, s{sT0}, s{sOA}\ns_add_u32 s{sT1}, s{sT0}, 32768")
        tok = None
        for pp in range(2):
            Oo = O[pp]
            e(f"s_waitcnt lgkmcnt({9 if pp == 0 else 0})")
            for vis in range(3):
                b = slots[(pp, vis)]
                e(f"v_add_f32 v{Oo+8}, v{Oo+8}, v{31 if b == 16 else b + 8}")
                for r in range(0, 8, 2):
                    e(f"v_pk_add_f32 v[{Oo+r}:{Oo+r+1}], v[{Oo+r}:{Oo+r+1}], v[{b+r}:{b+r+1}]")
            e(f"v_rcp_f32 v{Oo+10}, v{Oo+8}")
            for r in range(0, 8, 2):
                e(f"v_pk_mul_f32 v[{Oo+r}:{Oo+r+1}], v[{Oo+r}:{Oo+r+1}], v[{Oo+10}:{Oo+11}] op_sel_hi:[1,0]")
            for d in range(4):
                e(f"v_cvt_pk_bf16_f32 v{Oo+12+d}, v{Oo+2*d}, v{Oo+2*d+1}")
            tok = self.moded(lambda fl: self.ws_store(Oo + 12, f"s{sT0 if pp == 0 else sT1}", 0, flag=fl))
        e(f"v_cmp_nle_f32 vcc, 0x1f800000, v{O[0]+8}\ns_mov_b64 s[{sBAD}:{sBAD+1}], vcc")
        e(f"v_cmp_nge_f32 vcc, 0x5f800000, v{O[0]+8}\ns_or_b64 s[{sBAD}:{sBAD+1}], s[{sBAD}:{sBAD+1}], vcc")
        e(f"v_cmp_nle_f32 vcc, 0x1f800000, v{O[1]+8}\ns_or_b64 s[{sBAD}:{sBAD+1}], s[{sBAD}:{sBAD+1}], vcc")
        e(f"v_cmp_nge_f32 vcc, 0x5f800000, v{O[1]+8}\ns_or_b64 s[{sBAD}:{sBAD+1}], s[{sBAD}:{sBAD+1}], vcc")
        Lok = e.newlabel("LSUMOK")
        e(f"s_cmp_eq_u64 s[{sBAD}:{sBAD+1}], 0\ns_cbranch_scc1 {Lok}")
        e(f"v_mov_b32 v24, 1\nv_mov_b32 v25, 0\nds_write_b32 v25, v24 offset:{self.FAIL}")
        e.label(Lok)
        return tok

    def fallback_check(self):
        e = self.e
        L = e.newlabel("NOFB")
        e(f"v_mov_b32 v16, 0\nds_read_b32 v17, v16 offset:{self.FAIL}\ns_waitcnt lgkmcnt(0)\nv_readfirstlane_b32 s{sT0}, v17")
        e(f"s_cmp_eq_u32 s{sT0}, 0\ns_cbranch_scc1 {L}\ns_cmp_eq_u32 s{sFB}, 0\ns_cbranch_scc1 L_FALLBACK")
        e.label(L)

    def fallback(self):
        e = self.e
        PS, SL, QL = self.PS, self.SLOT, self.QL
        MX = 131072
        K, V, Q, S, P, CM, M, ACC = 128, 132, 140, 144, 160, 168, 184, 192
        sI, sT, sKA, sVA, sB = 88, 89, 90, 92, 93
        e.label("L_FALLBACK")
        e(f"s_mov_b32 s{sFB}, 1\ns_waitcnt vmcnt(0) lgkmcnt(0)")
        e(f"v_and_b32 v187, 31, v{vL}\nv_min_u32 v186, 16, v187\nv_lshlrev_b32 v186, 4, v186\nv_lshrrev_b32 v188, 5, v{vL}\nv_mul_u32_u24 v188, 272, v188\nv_add_u32 v186, v186, v188")
        e(f"v_and_b32 v188, 27, v187\nv_cmp_eq_u32 vcc, 16, v188\nv_cmp_gt_u32 s[{sM0}:{sM0+1}], 16, v187\ns_or_b64 vcc, vcc, s[{sM0}:{sM0+1}]\nv_mov_b32 v188, {WS_BYTES}\nv_cndmask_b32 v186, v188, v186, vcc")
        e(f"v_and_b32 v187, 31, v{vL}\nv_lshlrev_b32 v187, 2, v187")
        for ps in range(2):
            Li = e.newlabel("FBI"); Lt = e.newlabel("FBT")
            e(f"s_mov_b32 s{sI}, 0")
            e.label(Li)
            e(f"s_lshl_b32 s{sB}, s{sW}, 1\ns_add_u32 s{sB}, s{sB}, 2\ns_add_u32 s{sB}, s{sB}, s{sI}\ns_and_b32 s{sB}, s{sB}, 7")
            e(f"s_lshl_b32 s{sT0}, s{sB}, 10\nv_add_u32 v185, s{sT0}, v{vL16}\nds_read_b128 v[{Q}:{Q+3}], v185 offset:{QL}")
            if ps == 0:
                e(f"v_mov_b32 v{M}, 0xff800000")
            else:
                e(f"s_lshl_b32 s{sT0}, s{sB}, 9\ns_add_u32 s{sT0}, s{sT0}, {MX}\nv_add_u32 v185, s{sT0}, v187")
                e(f"ds_read_b32 v{M}, v185\nds_read_b32 v189, v185 offset:128\nds_read_b32 v190, v185 offset:256\nds_read_b32 v191, v185 offset:384\ns_waitcnt lgkmcnt(0)")
                e(f"v_max_f32 v{M}, v{M}, v189\nv_max_f32 v190, v190, v191\nv_max_f32 v{M}, v{M}, v190")
                for r in range(16): e(f"v_sub_f32 v{CM+r}, 0, v{M}\nv_mov_b32 v{ACC+r}, 0")
            e(f"s_lshl_b32 s{sKA}, s{sW}, 14\ns_add_u32 s{sKA}, s{sKA}, s{sKF}")
            e(f"s_mul_i32 s{sVA}, s{sW}, {16*VT_STRIDE}\ns_add_u32 s{sVA}, s{sVA}, s{sKF}\ns_add_u32 s{sVA}, s{sVA}, 0x10000")
            e(f"s_mov_b32 s{sT}, 0")
            e.label(Lt)
            e(f"buffer_load_dwordx4 v[{K}:{K+3}], v{vL16}, s[{SRD_WS}:{SRD_WS+3}], s{sKA} offen sc1")
            if ps == 1:
                e(f"buffer_load_dwordx4 v[{V}:{V+3}], v186, s[{SRD_WS}:{SRD_WS+3}], s{sVA} offen sc1")
                e(f"buffer_load_dwordx4 v[{V+4}:{V+7}], v186, s[{SRD_WS}:{SRD_WS+3}], s{sVA} offen offset:544 sc1")
            e("s_waitcnt vmcnt(0) lgkmcnt(0)")
            e(f"v_mfma_f32_32x32x16_bf16 {v(S,16)}, {v(K,4)}, {v(Q,4)}, {'0' if ps == 0 else v(CM,16)}")
            if ps == 0:
                for r in range(0, 16, 2): e(f"v_max3_f32 v{M}, v{M}, v{S+r}, v{S+r+1}")
            else:
                for r in range(16): e(f"v_exp_f32 v{S+r}, v{S+r}")
                for d in range(8): e(f"v_cvt_pk_bf16_f32 v{P+d}, v{S+2*d}, v{S+2*d+1}")
                e(f"v_mfma_f32_32x32x16_bf16 {v(ACC,16)}, {v(V,4)}, {v(P,4)}, {v(ACC,16)}")
                e(f"v_mfma_f32_32x32x16_bf16 {v(ACC,16)}, {v(V+4,4)}, {v(P+4,4)}, {v(ACC,16)}")
            e(f"s_add_u32 s{sKA}, s{sKA}, 1024\ns_add_u32 s{sVA}, s{sVA}, {VT_STRIDE}\ns_add_u32 s{sT}, s{sT}, 1\ns_cmp_lt_u32 s{sT}, 16\ns_cbranch_scc1 {Lt}")
            if ps == 0:
                e(f"v_mov_b32 v189, v{M}\nv_permlane32_swap_b32 v{M}, v189\nv_max_f32 v{M}, v{M}, v189")
                e(f"s_lshl_b32 s{sT0}, s{sB}, 9\ns_lshl_b32 s{sT1}, s{sW}, 7\ns_add_u32 s{sT0}, s{sT0}, s{sT1}\ns_add_u32 s{sT0}, s{sT0}, {MX}\nv_add_u32 v185, s{sT0}, v187")
                e(f"ds_write_b32 v185, v{M}\ns_waitcnt lgkmcnt(0)")
            else:
                L6 = e.newlabel("FB6"); L7 = e.newlabel("FB7"); Ln = e.newlabel("FBN")
                e(f"s_cmp_eq_u32 s{sI}, 6\ns_cbranch_scc1 {L6}\ns_cmp_eq_u32 s{sI}, 7\ns_cbranch_scc1 {L7}")
                e(f"s_mul_i32 s{sT0}, s{sW}, 6\ns_add_u32 s{sT0}, s{sT0}, s{sI}\ns_mul_i32 s{sT0}, s{sT0}, {SL}\ns_add_u32 s{sT0}, s{sT0}, {PS}")
                e(f"v_add_u32 v185, s{sT0}, v{vL16}\ns_add_u32 s{sT0}, s{sT0}, 2048\nv_add_u32 v188, s{sT0}, v{vL4}")
                e(f"ds_write_b128 v185, v[{ACC}:{ACC+3}]\nds_write_b128 v185, v[{ACC+4}:{ACC+7}] offset:1024\nds_write_b32 v188, v{ACC+8}\ns_waitcnt lgkmcnt(0)\ns_branch {Ln}")
                e.label(L6)
                for r in range(9): e(f"v_mov_b32 v{80+r}, v{ACC+r}")
                e(f"s_branch {Ln}")
                e.label(L7)
                for r in range(9): e(f"v_mov_b32 v{96+r}, v{ACC+r}")
                e.label(Ln)
            e(f"s_add_u32 s{sI}, s{sI}, 1\ns_cmp_lt_u32 s{sI}, 8\ns_cbranch_scc1 {Li}")
            if ps == 0: e("s_barrier")
        e("s_waitcnt vmcnt(0) lgkmcnt(0)\ns_branch L_ATT_TAIL")

    def g2_w_bases(self):
        e = self.e
        e(f"s_lshl_b32 s{sT0}, s{sJ}, 1")
        tblA = [WB_BQ, WB_BK, WB_BK + 1, WB_BV + 1]; tblB = [WB_BQ + 1, WB_BK + 1, WB_BV, WB_BV]
        e(f"s_mov_b32 s{sA0}, {tblA[0]}\ns_mov_b32 s{sA1}, {tblB[0]}")
        for w in range(1, 4):
            e(f"s_cmp_eq_u32 s{sW}, {w}\ns_cselect_b32 s{sA0}, {tblA[w]}, s{sA0}\ns_cselect_b32 s{sA1}, {tblB[w]}, s{sA1}")
        e(f"s_add_u32 s{sA0}, s{sA0}, s{sT0}\ns_add_u32 s{sA1}, s{sA1}, s{sT0}")
        e(f"s_lshl_b32 s{sA2}, s{sA0}, 15\ns_add_u32 s{sA2}, s{sA2}, {WF}\ns_lshl_b32 s{sA3}, s{sA1}, 15\ns_add_u32 s{sA3}, s{sA3}, {WF}")
    def g2_w_load(self, f0, f1):
        e = self.e; tok = None
        cur = None
        for f in range(f0, f1):
            st = 0 if f < 32 else 1; ks = f % 32
            grp = (st, ks // 4)
            if grp != cur:
                e(f"s_add_u32 s{sT7}, s{sA2 if st == 0 else sA3}, {(ks//4)*4096}"); cur = grp
            tok = self.ws_load(st * 128 + 4 * ks, f"s{sT7}", (ks % 4) * 1024, acc=True)
        return tok

    def outproj(self, g1, sO, sXdst, sSTdst, sHXdst, wl, side=None, final=False, staged=False):
        e = self.e
        tag = "g1" if g1 else "g3"
        on = getattr(self, "light", None) == tag
        if on: self.lstamp(0)
        toks = self.load_act_half(sO, self.AH)
        self.pair_addrs(wl)
        if staged:
            e(f"s_waitcnt vmcnt({self.AH})\ns_barrier")
        e.lg = []
        self.pair_prime()
        if on:
            e.wait_vm(toks[0]); self.lstamp(1)
        side = list(side or [])
        def take(n):
            for _ in range(n):
                if side: self.emit_item(side.pop(0))
        self.pair_mfma(toks, lambda t: take(1) if t >= 16 - self.AH else None)
        if on: self.lstamp(2)
        for d in range(8):
            e(f"v_lshlrev_b32 v{16+2*d}, 16, v{XR+d}\nv_and_b32 v{17+2*d}, 0xffff0000, v{XR+d}")
            if d % 2 == 1: take(1)
        self.reduce_pair(after_writes=lambda: take(4), after_reads=lambda: take(100))
        if on: self.lstamp(3)
        for d in range(8):
            e(f"v_pk_add_f32 v[{80+2*d}:{81+2*d}], v[{80+2*d}:{81+2*d}], v[{16+2*d}:{17+2*d}]")
        for d in range(8):
            e(f"v_cvt_pk_bf16_f32 v{XR+d}, v{80+2*d}, v{81+2*d}")
        if final:
            for c in range(2):
                e(f"v_permlane32_swap_b32 v{XR+4*c}, v{XR+4*c+2}\nv_permlane32_swap_b32 v{XR+4*c+1}, v{XR+4*c+3}")
            for c in range(2):
                e(f"buffer_store_dwordx4 v[{XR+4*c}:{XR+4*c+3}], v{vOUT}, s[{SRD_OUT}:{SRD_OUT+3}], s{sAD} offen offset:{32*c} {getattr(self, 'outflag', '')}")
            self.stamp("end")
            e("s_endpgm")
            return None
        tok = self.publish_x(sXdst, sSTdst, sHXdst)
        if on:
            self.lstamp(4); self.lflush(tag)
        return tok

    XL = 0; QB_ = 98304; KB_ = 106496; VB_ = 118784; TB = 131072
    CSA, CSB, CSN = 176, 192, 208
    BIAS, BH = 210, 226
    def g2_const_items(self):
        srd = f"s[{SRD_WS}:{SRD_WS+3}]"
        its = []
        for q in range(4): its.append(([], f"buffer_load_dwordx4 v[{self.CSA+4*q}:{self.CSA+4*q+3}], v{vCSH}, {srd}, s{sCSA} offen offset:{32*q} sc1", []))
        for q in range(4): its.append(([], f"buffer_load_dwordx4 v[{self.CSB+4*q}:{self.CSB+4*q+3}], v{vCSH}, {srd}, s{sCSB} offen offset:{32*q} sc1", []))
        its.append(([], f"buffer_load_dword v{self.CSN}, v{vCSN}, {srd}, s{sCSA} offen sc1", []))
        its.append(([], f"buffer_load_dword v{self.CSN+1}, v{vCSN}, {srd}, s{sCSB} offen sc1", []))
        return its
    def g2_masks(self):
        e = self.e
        e(f"s_lshl_b32 s{sCSA}, s{sA0}, 7\ns_add_u32 s{sCSA}, s{sCSA}, {CS}\ns_lshl_b32 s{sCSB}, s{sA1}, 7\ns_add_u32 s{sCSB}, s{sCSB}, {CS}")
        NEG = "0xff800000"
        e(f"v_and_b32 v18, 31, v{vL}\nv_lshrrev_b32 v19, 5, v{vL}\nv_lshlrev_b32 v19, 2, v19\nv_sub_u32 v18, v18, v19")
        e(f"v_mov_b32 v19, {NEG}")
        for r in range(16):
            kk = 8 * (r >> 2) + (r & 3)
            e(f"v_subrev_u32 v20, {kk}, v18\nv_cmp_ge_u32 vcc, 7, v20\nv_cndmask_b32 v{212+r}, v19, 0, vcc")
        e(f"s_cmp_eq_u32 s{sC}, 0\ns_cselect_b32 s{sT0}, -64, 0")
        for jj in range(4):
            e(f"s_add_u32 s{sT1}, s{sT0}, {jj-1}\nv_cmp_ge_i32 vcc, s{sT1}, v18\nv_cndmask_b32 v{232+jj}, v19, 0, vcc\nv_mov_b32 v{240+jj}, v{232+jj}")
            e(f"v_mov_b32 v{228+jj}, 0\nv_mov_b32 v{236+jj}, 0")

    def g2_addrs(self):
        e = self.e
        sXB, sHB, sSB = 88, 89, 90
        TB = self.TB
        e(f"s_lshl_b32 s{sXB}, s{sC}, 16\ns_add_u32 s{sXB}, s{sXB}, s{sXMID}")
        sHS = 92
        e(f"v_and_b32 v18, 31, v{vL}\nv_lshrrev_b32 v19, 5, v{vL}")
        e(f"s_lshl_b32 s{sSB}, s{sC}, 1\ns_and_b32 s{sT5}, s{sW}, 1\ns_add_u32 s{sSB}, s{sSB}, s{sT5}\ns_lshl_b32 s{sSB}, s{sSB}, 12\ns_add_u32 s{sSB}, s{sSB}, s{sSTMID}")
        e(f"v_lshlrev_b32 v20, 3, v18\nv_lshl_add_u32 v20, v19, 11, v20")
        e(f"s_lshl_b32 s{sHS}, s{sHC}, 13\ns_add_u32 s{sHS}, s{sHS}, s{sSTH}")
        e("v_and_b32 v22, 15, v18\nv_add_u32 v22, 16, v22\nv_lshlrev_b32 v22, 3, v22\nv_lshrrev_b32 v23, 4, v18\nv_lshl_add_u32 v22, v23, 12, v22\nv_lshl_add_u32 v22, v19, 11, v22")
        e(f"s_lshl_b32 s93, s{sHALF}, 12\ns_lshl_b32 s{sT1}, s{sHC}, 7\ns_add_u32 s93, s93, s{sT1}\ns_add_u32 s93, s93, {FL_H}\nv_and_b32 v23, 7, v{vL}\nv_lshlrev_b32 v23, 2, v23")
        e(f"s_lshl_b32 s{sHB}, s{sHC}, 15\ns_add_u32 s{sHB}, s{sHB}, s{sHX}")
        e(f"v_and_b32 v134, 31, v{vL}\nv_lshlrev_b32 v134, 2, v134\nv_add_u32 v134, {TB}, v134")
        e(f"v_lshrrev_b32 v135, 5, v{vL}\nv_lshlrev_b32 v135, 4, v135\nv_add_u32 v135, {TB}, v135")
        e(f"v_add_u32 v21, 0x10000, v{vL16}")
        e(f"s_lshl_b32 s{sAD}, s{sHALF}, 12\ns_lshl_b32 s{sT1}, s{sC}, 7\ns_add_u32 s{sAD}, s{sAD}, s{sT1}\ns_add_u32 s{sAD}, s{sAD}, {FL_H}")

    def g2(self):
        e = self.e
        XL, QB_, KB_, VB_, TB = self.XL, self.QB_, self.KB_, self.VB_, self.TB
        CSA, CSB, CSN = self.CSA, self.CSB, self.CSN
        def dma(soff, imm): return e.vmem(f"buffer_load_dwordx4 v{vL16}, s[{SRD_WS}:{SRD_WS+3}], {soff} offen offset:{imm} sc1 lds")
        sXB, sHB, sSB = 88, 89, 90
        def grp(blk, ks_mul, ks_add, n):
            its = []
            for t in range(n):
                pre = []
                if t == 0:
                    pre = [f"s_mul_i32 s{sT1}, s{sW}, {ks_mul*1024}", f"s_add_u32 s{sT1}, s{sT1}, {blk*32768 + ks_add*1024}",
                           f"s_mov_b32 m0, s{sT1}", f"s_add_u32 s{sT2}, s{sXB}, s{sT1}"]
                its.append((pre, f"buffer_load_dwordx4 v{vL16}, s[{SRD_WS}:{SRD_WS+3}], s{sT2} offen offset:{t*1024} sc1 lds", []))
            return its
        def grp2(ks_mul, ks_add, n):
            its = []
            for t in range(n):
                pre = []
                if t % 4 == 0:
                    pre = [f"s_mul_i32 s{sT1}, s{sKH}, {ks_mul*1024}", f"s_lshl_b32 s{sT2}, s{sP}, 15", f"s_add_u32 s{sT1}, s{sT1}, s{sT2}",
                           f"s_add_u32 s{sT1}, s{sT1}, {(ks_add + t)*1024}", f"s_mov_b32 m0, s{sT1}", f"s_add_u32 s{sT3}, s{sXB}, s{sT1}"]
                its.append((pre, f"buffer_load_dwordx4 v{vL16}, s[{SRD_WS}:{SRD_WS+3}], s{sT3} offen offset:{(t%4)*1024} sc1 lds", []))
            return its
        C0 = grp2(3, 0, 3); C1 = grp2(5, 6, 5); C2 = grp2(8, 16, 8)
        tok0 = None; tok1 = None
        for it in C0: tok0 = self.emit_item(it)
        for it in C1: tok1 = self.emit_item(it)
        sHS = 92
        statitems = [([], f"buffer_load_dwordx2 v[{144+2*t}:{145+2*t}], v20, s[{SRD_WS}:{SRD_WS+3}], s{sSB} offen offset:{t*256} sc1", []) for t in range(8)]
        hstat = lambda dst: [([], f"buffer_load_dwordx2 v[{dst+2*t}:{dst+1+2*t}], v22, s[{SRD_WS}:{SRD_WS+3}], s{sHS} offen offset:{t*256} sc1", []) for t in range(8)]
        haloitems = []
        for t in range(8):
            pre = []
            if t == 0: pre = [f"s_lshl_b32 s{sT1}, s{sW}, 13", f"s_add_u32 s{sT2}, s{sHB}, s{sT1}", f"s_add_u32 s{sT1}, s{sT1}, 65536", f"s_mov_b32 m0, s{sT1}", "s_nop 0"]
            if t == 4: pre = [f"s_lshl_b32 s{sT1}, s{sW}, 13", f"s_add_u32 s{sT1}, s{sT1}, 4096", f"s_add_u32 s{sT2}, s{sHB}, s{sT1}", f"s_add_u32 s{sT1}, s{sT1}, 65536", f"s_mov_b32 m0, s{sT1}", "s_nop 0"]
            haloitems.append((pre, f"buffer_load_dwordx4 v{vL16}, s[{SRD_WS}:{SRD_WS+3}], s{sT2} offen offset:{(t%4)*1024} sc1 lds", []))
        def wB_item(ks):
            return ([f"s_add_u32 s{sT7}, s{sA3}, {(ks//4)*4096}"], f"buffer_load_dwordx4 a[{128+4*ks}:{131+4*ks}], v{vL16}, s[{SRD_WS}:{SRD_WS+3}], s{sT7} offen offset:{(ks%4)*1024} sc1", [])
        ACC = [32, 48, 64, 80]
        def xread(dst, blk, ks):
            off = blk * 32768 + ks * 1024
            if off < 65536: return e.lds(f"ds_read_b128 v[{dst}:{dst+3}], v{vL16} offset:{off}")
            return e.lds(f"ds_read_b128 v[{dst}:{dst+3}], v21 offset:{off-65536}")
        def mm(acc, wset, ks, xreg, orient, first):
            wr = a(wset * 128 + 4 * ks, 4); xr = v(xreg, 4); c = "0" if first else v(acc, 16)
            if orient == "T": e(f"v_mfma_f32_32x32x16_bf16 {v(acc,16)}, {wr}, {xr}, {c}")
            else: e(f"v_mfma_f32_32x32x16_bf16 {v(acc,16)}, {xr}, {wr}, {c}")
        RN = 4
        def epi(acc, kind, blk, cbi, cset, tmp, pk=False):
            L = []
            if kind in ("q", "k"):
                cs = CSA if cset == 'A' else CSB
                rs, nm = 136 + 2 * blk, 137 + 2 * blk
                if kind == "q":
                    L += [f"v_mul_f32 v142, {fbits(QSCALE)}, v{rs}", f"v_mul_f32 v143, {fbits(QSCALE)}, v{nm}"]; rs, nm = 142, 143
                if pk:
                    L += [f"v_mov_b32 v128, v{rs}", f"v_mov_b32 v130, v{nm}"]
                    for r in range(0, 16, 2): L += [f"v_pk_mul_f32 v[{tmp+r}:{tmp+r+1}], v[{cs+r}:{cs+r+1}], v[130:131] op_sel_hi:[1,0]"]
                    for r in range(0, 16, 2): L += [f"v_pk_fma_f32 v[{tmp+r}:{tmp+r+1}], v[{acc+r}:{acc+r+1}], v[128:129], v[{tmp+r}:{tmp+r+1}] op_sel_hi:[1,0,1]"]
                else:
                    for r in range(16):
                        L += [f"v_mul_f32 v{tmp+r}, v{nm}, v{cs+r}", f"v_fmac_f32 v{tmp+r}, v{acc+r}, v{rs}"]
                src = tmp
                base = (QB_ if kind == "q" else KB_) + blk * 4096 + cbi * 2048
            else:
                csn = CSN if cset == 'A' else CSN + 1
                for q in range(4):
                    L += [f"ds_read_b128 v[{tmp+4*q}:{tmp+3+4*q}], v135 offset:{blk*256+32*q}", f"ds_read_b128 v[{tmp+16+4*q}:{tmp+19+4*q}], v135 offset:{blk*256+128+32*q}"]
                L += ["@wait"]
                if pk:
                    L += [f"v_mov_b32 v128, v{csn}"]
                    for r in range(0, 16, 2): L += [f"v_pk_mul_f32 v[{tmp+16+r}:{tmp+17+r}], v[{tmp+16+r}:{tmp+17+r}], v[128:129] op_sel_hi:[1,0]"]
                    for r in range(0, 16, 2): L += [f"v_pk_fma_f32 v[{tmp+16+r}:{tmp+17+r}], v[{acc+r}:{acc+r+1}], v[{tmp+r}:{tmp+r+1}], v[{tmp+16+r}:{tmp+17+r}]"]
                else:
                    for r in range(16):
                        L += [f"v_mul_f32 v{tmp+16+r}, v{tmp+16+r}, v{csn}", f"v_fmac_f32 v{tmp+16+r}, v{acc+r}, v{tmp+r}"]
                src = tmp + 16
                base = VB_ + blk * 4096 + cbi * 2048
            for d in range(8):
                L += [f"v_cvt_pk_bf16_f32 v{acc+d}, v{src+2*d}, v{src+2*d+1}"]
            L += [f"v_add_u32 v133, {base}, v{vL16}", f"ds_write_b128 v133, v[{acc}:{acc+3}]", f"ds_write_b128 v133, v[{acc+4}:{acc+7}] offset:1024"]
            return L
        class Fill:
            def __init__(s_, items): s_.items = list(items); s_.last = None
            def emit(s_, n=1):
                for _ in range(n):
                    if not s_.items: return
                    l = s_.items.pop(0)
                    if l == "@wait":
                        e.wait_lg(s_.last); continue
                    if l.startswith("ds_"): s_.last = e.lds(l)
                    else: e(l)
            def flush(s_): s_.emit(10**6)
        desc = {
            0: [("q", 0, 0, 'A'), ("q", 1, 0, 'A'), ("q", 0, 1, 'B'), ("q", 1, 1, 'B')],
            1: [("k", 0, 0, 'A'), ("k", 1, 0, 'A'), ("k", 2, 0, 'A'), ("k", 2, 1, 'B')],
            2: [("k", 0, 1, 'A'), ("k", 1, 1, 'A'), ("v", 0, 0, 'B'), ("v", 1, 0, 'B')],
            3: [("v", 0, 1, 'A'), ("v", 1, 1, 'A'), ("v", 2, 1, 'A'), ("v", 2, 0, 'B')],
        }
        units = {
            0: [(ACC[0], 0, 0, "T"), (ACC[1], 0, 1, "T"), (ACC[2], 1, 0, "T"), (ACC[3], 1, 1, "T")],
            1: [(ACC[0], 0, 0, "T"), (ACC[1], 0, 1, "T"), (ACC[2], 0, 0, "T"), (ACC[3], 1, 0, "T")],
            2: [(ACC[0], 0, 0, "T"), (ACC[1], 0, 1, "T"), (ACC[2], 1, 0, "N"), (ACC[3], 1, 1, "N")],
            3: [(ACC[0], 0, 0, "N"), (ACC[1], 0, 1, "N"), (ACC[2], 0, 0, "N"), (ACC[3], 1, 0, "N")],
        }
        labs = [e.newlabel(f"G2W{w}") for w in range(4)]; Lgd = e.newlabel("G2GD")
        Lhf = e.newlabel("HF"); Lhf2 = e.newlabel("HF2")
        e(f"s_cmp_lg_u32 s{sW}, 0\ns_cbranch_scc1 {Lhf}")
        e(f"s_mov_b64 exec, 1\nbuffer_store_dword v{vFT}, v{vFA}, s[{SRD_WS}:{SRD_WS+3}], s{sAD} offen sc1\ns_mov_b64 exec, -1")
        e(f"s_waitcnt vmcnt(6)\ns_branch {Lhf2}")
        e.label(Lhf)
        e.wait_vm(tok0)
        e.label(Lhf2)
        e("s_barrier")
        self.stamp("g2A")
        vmA = list(e.vm)
        for w in range(1, 4):
            e(f"s_cmp_eq_u32 s{sW}, {w}\ns_cbranch_scc1 {labs[w]}")
        vm_end = None
        for w in range(4):
            e.label(labs[w]); e.lg = []; e.vm = list(vmA)
            if w == 0: e.vm.append(-77)
            wl = getattr(self, "light", None) == "g2w"
            if wl: e("s_memtime s[64:65]")
            U = units[w]; d = desc[w]
            if w in (0, 2):
                steps = [([0, 1], ks, [0, 1, 2, 3]) for ks in range(16)] + [([0, 1], ks, [0, 1]) for ks in range(16, 32)] + [([0, 1], ks, [2, 3]) for ks in range(16, 32)]
            else:
                steps = [([0, 1], ks, [0, 1]) for ks in range(32)] + [([2], ks, [2, 3]) for ks in range(32)]
            cnt0 = []; c_ = 0
            for (b_, k_, u_) in steps: cnt0.append(c_); c_ += len(u_)
            B1, B2, BC = 10, 30, 62
            def avail(step_idx, count):
                blks, ks, _ = steps[step_idx]
                if blks == [2]: return count >= BC
                if ks >= 16: return count >= B2
                if ks >= 6: return count >= B1
                return True
            side = {}
            def put(c, it): side.setdefault(c, []).append(it)
            named = {}
            for i, it in enumerate(C2): put(2 * i, ("vm", f"C2_{i}", it))
            wBneed = {}
            if w in (0, 2):
                lo = {10: 17, 11: 22, 12: 27, 13: 28, 14: 31, 15: 35} if w == 0 else {10: 17, 11: 20, 12: 23, 13: 26, 14: 31, 15: 35}
                for ks, c in lo.items(): put(c, ("vm", f"wB{ks}", wB_item(ks)))
                for i, ks in enumerate(range(16, 32)): put(46 + 2 * i, ("vm", f"wB{ks}", wB_item(ks)))
            else:
                for i, ks in enumerate(range(10, 16)): put(46 + 2 * i, ("vm", f"wB{ks}", wB_item(ks)))
                for i, ks in enumerate(range(16, 32)): put(58 + 2 * i, ("vm", f"wB{ks}", wB_item(ks)))
                for i, it in enumerate(hstat(160 if w == 1 else 176)): put(65 + 2 * i, ("vm", f"hs{i}", it))
            if w == 0:
                put(18, ("vm", "poll", ([], f"buffer_load_dword v24, v23, s[{SRD_WS}:{SRD_WS+3}], s93 offen sc1", [])))
                for i, c in enumerate((18, 19, 20, 21, 23, 24, 25, 26)): put(c, ("vm", f"st{i}", statitems[i]))
            if w == 1:
                for i in range(8): put(16 + i, ("vm", f"st{i}", statitems[i]))
            for i, it in enumerate(haloitems): put(30 + 2 * i, ("vm", f"halo{i}", it))
            stfill = None
            if w < 2:
                sub = Emitter(); old = self.e; self.e = sub
                self.stats_finish(144, 130, 131)
                sub(f"v_mul_f32 v130, v130, v131\nv_sub_f32 v130, 0, v130\nv_cmp_gt_u32 vcc, 32, v{vL}\ns_nop 1\nv_cndmask_b32 v130, v130, v131, vcc")
                sub(f"v_add_u32 v131, {TB + w*256}, v{vL4}\nds_write_b32 v131, v130")
                self.e = old
                stfill = Fill([l.strip() for l in sub.lines])
            f12 = None
            fstart = 98 if w in (0, 2) else 67
            hfill = None
            xt = {}
            ringslot = lambda si, b: 96 + ((si % RN) * 2 + b) * 4
            count = 0
            def do_barrier(c):
                if c == B1: e.wait_vm(tok1); e("s_barrier")
                if c == B2:
                    if w == 0:
                        Lok = e.newlabel("HOK"); Lp = e.newlabel("HPOLL")
                        e.wait_vm(named["poll"])
                        e(f"v_cmp_ne_u32 vcc, s{sTAG}, v24\ns_cbranch_vccz {Lok}")
                        saved = list(e.vm)
                        e(f"s_mov_b32 s{sPOLL}, 0")
                        e.label(Lp)
                        e(f"buffer_load_dword v24, v23, s[{SRD_WS}:{SRD_WS+3}], s93 offen sc1\ns_waitcnt vmcnt(0)\nv_cmp_ne_u32 vcc, s{sTAG}, v24\ns_cbranch_vccz {Lok}")
                        e(f"s_add_u32 s{sPOLL}, s{sPOLL}, 1\ns_cmp_lt_u32 s{sPOLL}, 400000\ns_cbranch_scc1 {Lp}\ns_branch L_END")
                        e.label(Lok)
                        e.vm = saved
                    e.wait_vm(named["C2_7"]); e("s_barrier")
                if c == BC:
                    if stfill: stfill.flush()
                    if w == 0: self.stamp("g2p1")
                    e.wait_vm(named["halo7"]); e("s_waitcnt lgkmcnt(0)\ns_barrier"); e.lg = []
                    for blk in range(2):
                        e.lds(f"ds_read_b32 v{136+2*blk}, v134 offset:{blk*256}"); named["tb"] = e.lds(f"ds_read_b32 v{137+2*blk}, v134 offset:{blk*256+128}")
            for si, (blks, ks, us) in enumerate(steps):
                for ui_i, ui in enumerate(us):
                    if count in (B1, B2, BC): do_barrier(count)
                    if ui_i == 0:
                        for sj in range(si, min(si + RN, len(steps))):
                            if sj not in xt and avail(sj, count):
                                bl, kk, _ = steps[sj]
                                t_ = None
                                for b, blk in enumerate(bl): t_ = xread(ringslot(sj, b), blk, kk)
                                xt[sj] = t_
                        e.wait_lg(xt[si])
                    acc, wset, b, orient = U[ui]
                    if wset == 1 and f"wB{ks}" in named: e.wait_vm(named[f"wB{ks}"])
                    first = (ks == 0)
                    mm(acc, wset, ks, ringslot(si, b), orient, first)
                    for kind, nm_, it in side.get(count, []): named[nm_] = self.emit_item(it)
                    if stfill and 46 <= count < BC:
                        if count == 46: e.wait_vm(named["st7"])
                        stfill.emit(3)
                    if count == fstart - 1:
                        e.wait_lg(named["tb"])
                        f12 = Fill(epi(ACC[0], *d[0], 144) + epi(ACC[1], *d[1], 144))
                    if f12 and count >= fstart:
                        f12.emit(4 if w in (0, 2) else 3)
                        if w in (1, 3) and not f12.items:
                            if hfill is None:
                                e.wait_vm(named["hs7"])
                                sub = Emitter(); old_ = self.e; self.e = sub
                                self.stats_finish(160 if w == 1 else 176, 130, 131)
                                sub("v_mul_f32 v130, v130, v131\nv_sub_f32 v130, 0, v130")
                                if w == 1:
                                    sub("v_mov_b32 v140, v131\nv_mov_b32 v141, v130")
                                else:
                                    sub(f"v_cmp_gt_u32 vcc, 32, v{vL}\ns_nop 1\nv_cndmask_b32 v130, v130, v131, vcc\nv_add_u32 v131, {TB + 2*256}, v{vL4}\nds_write_b32 v131, v130")
                                self.e = old_
                                hfill = Fill([l.strip() for l in sub.lines])
                            hfill.emit(3)
                    count += 1
            if wl: e("s_memtime s[66:67]")
            if f12: f12.flush()
            if hfill: hfill.flush()
            if w == 3:
                e("s_waitcnt lgkmcnt(0)"); e.lg = []
            if w == 0: self.stamp("g2p2")
            Fill(epi(ACC[2], *d[2], 144, pk=True)).flush()
            Fill(epi(ACC[3], *d[3], 96, pk=True)).flush()
            if wl:
                e("s_waitcnt lgkmcnt(0)\ns_memtime s[76:77]\ns_waitcnt lgkmcnt(0)")
                e(f"s_lshl_b32 s{sT7}, s{sG}, 2\ns_add_u32 s{sT7}, s{sT7}, s{sW}\ns_lshl_b32 s{sT7}, s{sT7}, 4\ns_add_u32 s{sT7}, s{sT7}, 0x70000")
                e(f"v_mov_b32 v{vT1}, 0\ns_mov_b64 exec, 1")
                for k_, r_ in enumerate((64, 66, 76)):
                    e(f"v_mov_b32 v{vT0}, s{r_}\nbuffer_store_dword v{vT0}, v{vT1}, s[{SRD_WS}:{SRD_WS+3}], s{sT7} offen offset:{4*k_}")
                e("s_mov_b64 exec, -1")
            vm_end = list(e.vm)
            if w < 3: e(f"s_branch {Lgd}")
        e.label(Lgd)
        e.vm = vm_end
        e("s_waitcnt lgkmcnt(0)\ns_barrier")
        e.lg = []
        self.stamp("g2gemm")
        e(f"s_lshl_b32 s{sT0}, s{sW}, 10\ns_add_u32 s{sT0}, s{sT0}, {QB_}\nv_add_u32 v20, s{sT0}, v{vL16}")
        e(f"s_lshr_b32 s{sT1}, s{sW}, 1\ns_lshl_b32 s{sT1}, s{sT1}, 11\ns_add_u32 s{sT1}, s{sT1}, {VB_}\nv_add_u32 v21, s{sT1}, v{vL16}")
        Q = [32, 36]; Kf = [40, 44, 48]; V = {(0, 0): 52, (0, 1): 56, (1, 0): 60, (1, 1): 64, (2, 0): 68, (2, 1): 72}
        e(f"ds_read_b128 v[{Kf[2]}:{Kf[2]+3}], v20 offset:{(KB_-QB_)+2*4096}")
        for p in range(2):
            e(f"ds_read_b128 v[{Q[p]}:{Q[p]+3}], v20 offset:{p*4096}\nds_read_b128 v[{Kf[p]}:{Kf[p]+3}], v20 offset:{(KB_-QB_)+p*4096}")
        for (b, c), r in V.items(): e(f"ds_read_b128 v[{r}:{r+3}], v21 offset:{b*4096+c*1024}")
        e(f"s_lshl_b32 s{sT0}, s{sJ}, 2\ns_add_u32 s{sT0}, s{sT0}, s{sW}\ns_lshl_b32 s{sT0}, s{sT0}, 10")
        e(f"s_lshl_b32 s{sT1}, s{sC}, 16\ns_add_u32 s{sT0}, s{sT0}, s{sT1}\ns_add_u32 s{sT0}, s{sT0}, s{sOB}\ns_add_u32 s{sT1}, s{sT0}, 32768")
        So = [80, 96]; Sh = [112, 128]; Oo = [144, 160]
        setup, g3items = self.wpair_dma_list(WB_OB, self.WL0, sA4, sA5)
        e(f"s_mov_b32 s88, s{sT0}\ns_mov_b32 s89, s{sT1}")
        for x in setup: e(x)
        def g3dma(n):
            for _ in range(n):
                if g3items: self.emit_item(g3items.pop(0))
        g3dma(5)
        e("s_waitcnt lgkmcnt(8)")
        e(f"v_mfma_f32_32x32x16_bf16 {v(So[0],16)}, {v(Kf[0],4)}, {v(Q[0],4)}, v[212:227]")
        e(f"v_mfma_f32_32x32x16_bf16 {v(Sh[0],16)}, {v(Kf[2],4)}, {v(Q[0],4)}, v[228:243]")
        e("s_waitcnt lgkmcnt(6)")
        e(f"v_mfma_f32_32x32x16_bf16 {v(So[1],16)}, {v(Kf[1],4)}, {v(Q[1],4)}, v[212:227]")
        e(f"v_mfma_f32_32x32x16_bf16 {v(Sh[1],16)}, {v(Kf[2],4)}, {v(Q[1],4)}, v[228:243]")
        g3dma(3)
        e("v_mov_b32 v26, 0x3f803f80")
        vals = [[So[p] + r for r in range(16)] + [Sh[p] + 4 * (2 * p + 1) + jj for jj in range(4)] for p in range(2)]
        mx = [22, 24]; tm = [23, 25]
        PP = [176, 192]
        for p in range(2):
            vl = vals[p]
            e(f"v_max3_f32 v{mx[p]}, v{vl[0]}, v{vl[1]}, v{vl[2]}")
            i = 3
            while i < 20:
                if i + 1 < 20: e(f"v_max3_f32 v{mx[p]}, v{mx[p]}, v{vl[i]}, v{vl[i+1]}"); i += 2
                else: e(f"v_max_f32 v{mx[p]}, v{mx[p]}, v{vl[i]}"); i += 1
        for p in range(2): e(f"v_mov_b32 v{tm[p]}, v{mx[p]}")
        for p in range(2): e(f"v_permlane32_swap_b32 v{mx[p]}, v{tm[p]}")
        for p in range(2): e(f"v_max_f32 v{mx[p]}, v{mx[p]}, v{tm[p]}")
        for p in range(2):
            for x in vals[p][::2]:
                e(f"v_pk_add_f32 v[{x}:{x+1}], v[{x}:{x+1}], v[{mx[p]}:{mx[p]+1}] op_sel_hi:[1,0] neg_lo:[0,1] neg_hi:[0,1]")
        for p in range(2):
            for i_, x in enumerate(vals[p]):
                e(f"v_exp_f32 v{x}, v{x}")
                if i_ % 5 == 4: g3dma(1)
            S_ = So[p]; H_ = vals[p][16]; Pp = PP[p]
            e(f"v_mov_b32 v{Pp+8}, 0\nv_mov_b32 v{Pp+9}, 0")
            for d in range(8): e(f"v_cvt_pk_bf16_f32 v{Pp+d}, v{S_+2*d}, v{S_+2*d+1}")
            e(f"v_cvt_pk_bf16_f32 v{Pp+10}, v{H_}, v{H_+1}\nv_cvt_pk_bf16_f32 v{Pp+11}, v{H_+2}, v{H_+3}")
            e(f"v_mov_b32 v{mx[p]}, 0\nv_mov_b32 v{tm[p]}, 0")
            for k_, d in enumerate(list(range(8)) + [10, 11]): e(f"v_dot2c_f32_bf16 v{mx[p] if k_ % 2 == 0 else tm[p]}, v26, v{Pp+d}")
            O_ = Oo[p]
            if p == 0: e("s_waitcnt lgkmcnt(0)")
            e(f"v_mfma_f32_32x32x16_bf16 {v(O_,16)}, {v(V[(p,0)],4)}, {v(Pp,4)}, 0")
            e(f"v_mfma_f32_32x32x16_bf16 {v(O_,16)}, {v(V[(p,1)],4)}, {v(Pp+4,4)}, {v(O_,16)}")
            e(f"v_mfma_f32_32x32x16_bf16 {v(O_,16)}, {v(V[(2,p)],4)}, {v(Pp+8,4)}, {v(O_,16)}")
        for p in range(2): e(f"v_add_f32 v{mx[p]}, v{mx[p]}, v{tm[p]}")
        for p in range(2): e(f"v_mov_b32 v{tm[p]}, v{mx[p]}")
        for p in range(2): e(f"v_permlane32_swap_b32 v{mx[p]}, v{tm[p]}")
        for p in range(2): e(f"v_add_f32 v{mx[p]}, v{mx[p]}, v{tm[p]}")
        for p in range(2): e(f"v_rcp_f32 v{mx[p]}, v{mx[p]}")
        Lodd = e.newlabel("ODD"); Ldone = e.newlabel("ODDD")
        e(f"s_bitcmp1_b32 s{sW}, 0\ns_cbranch_scc1 {Lodd}")
        for half in range(2):
            if half == 1: e.label(Lodd)
            for p in range(2):
                b0 = Oo[p] + 8 * half
                for r in range(0, 8, 2): e(f"v_pk_mul_f32 v[{b0+r}:{b0+r+1}], v[{b0+r}:{b0+r+1}], v[{mx[p]}:{mx[p]+1}] op_sel_hi:[1,0]")
                for d in range(4): e(f"v_cvt_pk_bf16_f32 v{28+4*p+d}, v{b0+2*d}, v{b0+2*d+1}")
            if half == 0: e(f"s_branch {Ldone}")
        e.label(Ldone)
        tok = self.moded(lambda fl: (self.ws_store(28, "s88", 0, flag=fl), self.ws_store(32, "s89", 0, flag=fl))[1])
        g3dma(16)
        return tok

    def build(self):
        e = self.e
        self.prologue()
        self.stamp("start")
        def stop(name):
            if self.stop_after == name:
                e("s_waitcnt vmcnt(0) lgkmcnt(0)\ns_endpgm")
                return True
            return False
        self.half_setup()
        self.first_phase()
        self.sync_consts()
        self.stamp("fdone")
        e.label("L_ATT")
        tok = self.attention()
        self.stamp("attdone")
        if stop("att"): return self.finish()
        self.sync_cluster(0, tok=tok, window=lambda: self.g2_masks(), pre_barrier=lambda: e("s_waitcnt lgkmcnt(0)"), post_barrier=self.fallback_check)
        self.stamp("c0")
        def wB_it(ks):
            return ([f"s_add_u32 s{sT7}, s{sA3}, {(ks//4)*4096}"], f"buffer_load_dwordx4 a[{128+4*ks}:{131+4*ks}], v{vL16}, s[{SRD_WS}:{SRD_WS+3}], s{sT7} offen offset:{(ks%4)*1024} sc1", [])
        tok = self.outproj(True, sOA, sXMID, sSTMID, sHX, self.WL1, side=[wB_it(ks) for ks in range(10)] + self.g2_const_items())
        self.stamp("g1done")
        if stop("g1"): return self.finish()
        self.sync_cluster(1, tok=tok, window=lambda: self.g2_addrs(), drain=True)
        e.reset_counters()
        self.stamp("c1")
        tok = self.g2()
        self.stamp("g2done")
        if stop("g2"): return self.finish()
        Lh0 = e.newlabel("NOTLAST")
        e(f"s_cmp_eq_u32 s{sHALF}, 0\ns_cbranch_scc1 {Lh0}")
        saved_vm = list(e.vm)
        def out_addr():
            e(f"v_and_b32 v{vOUT}, 31, v{vL}\nv_lshlrev_b32 v{vOUT}, 11, v{vOUT}\nv_lshrrev_b32 v18, 5, v{vL}\nv_lshl_add_u32 v{vOUT}, v18, 4, v{vOUT}")
            e(f"s_lshl_b32 s{sAD}, s{sC}, 6\ns_add_u32 s{sAD}, s{sAD}, s{sP}\ns_lshl_b32 s{sAD}, s{sAD}, 10\ns_lshl_b32 s{sT1}, s{sNB}, 6\ns_add_u32 s{sAD}, s{sAD}, s{sT1}")
        self.sync_cluster(2, tok=tok, window=out_addr, drain=True)
        e.reset_counters()
        self.stamp("c2")
        self.outproj(False, sOB, None, None, None, self.WL0, final=True)
        e.label(Lh0)
        e.vm = saved_vm
        self.nstamp -= 2; self.stampnames = self.stampnames[:-2] if self.stamps else []
        self.sync_cluster(2, tok=tok, window=lambda: (self.g4_prefetch_cs(), self.g4_prefetch_kv()), drain=True)
        e.reset_counters()
        self.stamp("c2")
        setup, qitems = self.wpair_dma_list(WB_Q, self.WL1, sA4, sA5)
        for x in setup: e(x)
        tok = self.outproj(False, sOB, sXOUT, sSTOUT, None, self.WL0, side=qitems)
        self.nstamp += 1
        if self.stamps: self.stampnames.append("end")
        self.stamp("g3done")
        if stop("g3"): return self.finish()
        self.sync_cluster(3, tok=tok, drain=True)
        e.reset_counters()
        self.stamp("c3")
        e(f"s_mov_b32 s{sHALF}, 1")
        self.half_setup()
        self.alias_setup()
        self.g4()
        self.stamp("g4done")
        e("s_branch L_ATT")
        self.fallback()
        return self.finish()

    def finish(self):
        e = self.e
        e.label("L_END")
        e("s_endpgm")
        e.label("L_CODE_END")
        lines, n = fix_hazards(e.lines)
        hdr = open('cdna_kernels/' + NAME + '.s.ref').read().split("\n")
        head = [l for l in hdr if l.startswith(";") and "@launch" not in l and "Override launch" not in l and "grid=ceil" not in l]
        notes = """;
; One persistent launch, 256 workgroups x 4 waves (one workgroup per CU, 512 registers per wave).  Generated by gen/kernel16.py.
; Workgroup g: x = g&7, u = g>>3, cluster c = 4x + (u&3) owns rows 64c..64c+63 (split by row parity into two 32-row blocks),
; j = u>>2 owns columns 64j..64j+63 / heads 4j..4j+3.  Phases per layer pair:
;   F / G4  LN + Q,K,V projection (LN applied after the GEMM: rstd*(x@W - mean*colsum(W)))     -> K/V hand-off to everybody
;   ATT     MQA attention, keys split over the 4 waves (K/V fragments in AGPRs).  exp2 is taken without a max shift;
;           every row sum is checked to lie in [2^-64, 2^64], otherwise the workgroup redoes the layer with the true max (L_FALLBACK)
;   G1      out-projection + residual        G2  LN + QKV(B) + dilated window attention (true max)        G3  out-projection + residual
; Hand-offs between workgroups go through d_ws with tagged flags (tag = f(word 0 of d_ws), advanced once per launch).
; Cluster hand-offs use plain stores when the 8 members report the same XCC id, write-through (sc1) stores otherwise.
;""".split("\n")
        out = head + notes + ["; @launch grid=(256,1,1) block=(256,1,1) lds=163840"]
        out += ['.amdgcn_target "amdgcn-amd-amdhsa--gfx950"', ".text", f".globl {KN}", ".p2align 8", f".type {KN},@function", f"{KN}:"]
        out += lines
        out += ['.section .rodata,"a"', ".p2align 6", f".amdhsa_kernel {KN}",
                "  .amdhsa_next_free_vgpr 512", "  .amdhsa_next_free_sgpr 102", "  .amdhsa_accum_offset 256",
                "  .amdhsa_group_segment_fixed_size 0", "  .amdhsa_kernarg_size 88", "  .amdhsa_user_sgpr_count 2",
                "  .amdhsa_user_sgpr_kernarg_segment_ptr 1", "  .amdhsa_system_sgpr_workgroup_id_x 1", ".end_amdhsa_kernel", ""]
        self.nops = n
        return "\n".join(out)

if __name__ == "__main__":
    import argparse
    ap = argparse.ArgumentParser()
    ap.add_argument("-o", default="k.s")
    ap.add_argument("--stop", default=None)
    ap.add_argument("--stamps", action="store_true")
    ap.add_argument("--attvar", default="")
    ap.add_argument("--light", default=None)
    ap.add_argument("--safe", action="store_true")
    ap.add_argument("--nopf", action="store_true")
    ap.add_argument("--outflag", default="")
    ap.add_argument("--noalias", action="store_true")
    ap.add_argument("--ah", type=int, default=8)
    ap.add_argument("--pp", action="store_true")
    ap.add_argument("--unroll", action="store_true")
    ap.add_argument("--permg", type=int, default=0)
    ap.add_argument("--norot", action="store_true")
    ap.add_argument("--tlbtouch", action="store_true")
    ap.add_argument("--attperm", action="store_true")
    ap.add_argument("--dbgstamps", action="store_true")
    ap.add_argument("--prepmap", type=int, default=0)
    ap.add_argument("--nopretouch", action="store_true")
    args = ap.parse_args()
    g = Gen(stop_after=args.stop, stamps=args.stamps)
    g.attvar = args.attvar
    g.light = args.light
    g.force_safe = args.safe
    g.nopf = args.nopf
    g.outflag = args.outflag
    g.noalias = args.noalias
    g.AH = args.ah
    g.pp = args.pp
    g.unroll = args.unroll
    g.permg = args.permg
    g.norot = args.norot
    g.tlbtouch = args.tlbtouch
    g.attperm = args.attperm
    g.dbgstamps = args.dbgstamps
    g.prepmap = args.prepmap
    g.nopretouch = args.nopretouch
    txt = g.build()
    open(args.o, "w").write(txt)
    print("wrote", args.o, "lines", txt.count("\n"), "nop states", g.nops)
    if args.stamps: print(g.stampnames)
```
